```python
import torch

def _softmax(x, axis=-1):
    return torch.softmax(x, dim=axis)
def _gelu(x):
    return torch.nn.functional.gelu(x, approximate="tanh")
def _silu(x):
    return torch.nn.functional.silu(x)
def _sigmoid(x):
    return torch.sigmoid(x)
def _layernorm(x, axis=-1, eps=1e-5):
    m = x.mean(dim=axis, keepdim=True)
    v = x.var(dim=axis, keepdim=True, unbiased=False)
    return (x - m) / torch.sqrt(v + eps)
def _scatter_add(tgt, idx, src, axis=0):
    return tgt.clone().index_add_(axis, idx, src)
def _segment_sum(src, seg, n):
    out = torch.zeros((n,) + src.shape[1:], dtype=src.dtype)
    return out.index_add_(0, seg, src)
def _pad(x, pw):
    flat = tuple(v for pair in reversed(pw) for v in pair)
    return torch.nn.functional.pad(x, flat)

kernel_name = 'standalone__dcn_v2_cross__recsys'

def setup_inputs():

    _w = (lambda a: (lambda t: t.to(torch.bfloat16) if t.is_floating_point() else t)(torch.as_tensor(a)))
    B, F, D, L = 16384, 26, 32, 3
    Din = min(F * D, 1024)
    return {
        "x0": _w((lambda *s: torch.randn(*s, dtype=torch.bfloat16) * 0.05)(B, Din)),
        "ws": _w((lambda *s: torch.randn(*s, dtype=torch.bfloat16) * 0.05)(L, Din, Din)),
        "bs": _w((lambda *s: torch.randn(*s, dtype=torch.bfloat16) * 0.05)(L, Din)),
    }

def reference(x0, ws, bs):
    x = x0
    for l in range(ws.shape[0]):
        x = x0 * (x @ ws[l] + bs[l]) + x
    return x
```

```python
import sys, argparse

KNAME = "standalone__dcn_v2_cross__recsys_kernel"
D = 832; ROWB = 1664
LSTRIDE = D * ROWB
KSB = 32 * ROWB
RING = 54848
BIAS = 54848
XR = 57344
XRW = 26624
XBASE = 0x100000
XLAYER = 64 * 4 * 106496
CH = 4128
XB = 4096

ACC0 = 48
def acc(j, mt): return ACC0 + 16 * j + 4 * mt
WF0 = 32; NB = 4
def wf(f): return WF0 + 4 * (f % NB)
vA = [1, 2]; vA2 = 3
vPW = 4; vPW2 = 5; vPE = 6; vPE2 = 7
vX = [8, 9]; vX2 = 10
vL16 = 11; vL8 = 12
vPX = 13; vOut = 30
vPXE = 14; vOutE = 31
vBias = 15
vFlagOff = 16; vFlagVal = 17; vPollOff = 18; vPoll = 19
vXP = [20, 24]
vT = [28, 29]
vDummy = 0
sW_ = 8; sX0_ = 12; sOUT_ = 16; sWS_ = 20; sDBG_ = 24; sB_ = 28
sQ = 32; sC = 33; sWv = 34; sWq = 35; sW1032 = 36; sW8 = 37; sXq = 38; sW1024 = 39
sXb = 40; sRow = 41; sMask = 44; sXRw = 45
sOutMt = [46, 47, 48, 49]
sT = [50, 51, 52, 53, 54, 55]
sXs = [56, 57]
sXt = [77, 84]
sP = 58
sSpin = 59
sStamp = 60
def srd(b): return f"s[{b}:{b+3}]"

class Ins:
    __slots__ = ("text", "kind", "rd", "wr", "vm", "lg", "need_vm", "need_lg", "earliest", "label", "note", "after")
    def __init__(self, text, kind, rd=(), wr=(), vm=None, lg=None, need_vm=None, need_lg=None, earliest=None, note=None):
        self.text = text; self.kind = kind; self.rd = tuple(rd); self.wr = tuple(wr)
        self.vm = vm; self.lg = lg; self.need_vm = need_vm or []; self.need_lg = need_lg or []
        self.earliest = earliest; self.note = note; self.after = []
def vr(b, n=1): return [("v", b + i) for i in range(n)]
def ar(b, n=1): return [("a", b + i) for i in range(n)]

def S(t, **k): return Ins(t, "S", **k)
def V(t, rd=(), wr=(), **k): return Ins(t, "V", rd=rd, wr=wr, **k)

class Gen:
    def __init__(self, NL=3, interval=12, dbg=None, stamps=False):
        self.NL = NL; self.interval = interval; self.stamps = stamps
        self.out = []
        self.vmq = []; self.vm_done = 0; self.vm_pos = {}
        self.lgq = []; self.lg_done = 0; self.lg_pos = {}
        self.slow = []
        self.tcount = 0
        self.nstamp = 0

    def emit(self, ins):
        if ins.vm is not None:
            assert ins.vm not in self.vm_pos, ins.vm
            self.vm_pos[ins.vm] = len(self.vmq); self.vmq.append(ins.vm)
        if ins.lg is not None:
            assert ins.lg not in self.lg_pos, ins.lg
            self.lg_pos[ins.lg] = len(self.lgq); self.lgq.append(ins.lg)
        self.out.append(ins)
    def wait_for(self, need_vm, need_lg):
        nv = None; nl = None
        for t in need_vm:
            p = self.vm_pos[t]
            if p >= self.vm_done:
                n = len(self.vmq) - 1 - p
                nv = n if nv is None else min(nv, n)
        for t in need_lg:
            p = self.lg_pos[t]
            if p >= self.lg_done:
                n = len(self.lgq) - 1 - p
                nl = n if nl is None else min(nl, n)
        return nv, nl
    def emit_wait(self, need_vm, need_lg):
        nv, nl = self.wait_for(need_vm, need_lg)
        if nv is None and nl is None: return False
        parts = []
        if nv is not None:
            nv = min(nv, 63); parts.append(f"vmcnt({nv})"); self.vm_done = max(self.vm_done, len(self.vmq) - nv)
        if nl is not None:
            nl = min(nl, 15); parts.append(f"lgkmcnt({nl})"); self.lg_done = max(self.lg_done, len(self.lgq) - nl)
        self.emit(Ins("s_waitcnt " + " ".join(parts), "W"))
        return True
    def raw(self, text, kind="S", **k):
        for line in text.strip().split("\n"):
            self.emit(Ins(line.strip(), kind, **k))
    def stemp(self, stream=0):
        self.tcount += 1
        return sT[2 * stream + self.tcount % 2]

    def plan(self):
        NL = self.NL
        self.groups = []
        for l in range(NL):
            if l == 0:
                G = [[0, 1, 2], [3, 4, 5], [6, 7, 8, 9], [10, 11, 12], list(range(13, 26))]
            else:
                G = [[0, 6, 12], [18, 1, 7], [13, 19, 2, 8], [14, 20, 3],
                     [9, 15, 21, 4, 10, 16, 22, 5, 11, 17, 23, 24, 25]]
            SL = [[13, 14, 15], [0, 1, 2], [3, 4, 5, 6], [13, 14, 15], [7, 8, 9, 10, 11, 12, 0, 1, 2, 3, 4, 5, 6]]
            self.groups.append(list(zip(G, SL)))
        self.entries = []
        self.steps = []
        def seg_main(l, gi, u, lst):
            for ks, sl in lst:
                e = dict(kind="m", l=l, u=u, ks=[ks], size=CH, gi=gi, first=len(self.steps))
                self.entries.append(e)
                for sb in range(2):
                    for ee in range(2):
                        self.steps.append(dict(e=len(self.entries) - 1, j=4 * u + 2 * sb + ee, ks=ks, slot=sl,
                                               va=vA[sb], rel=8 * ee, rdoff=512, l=l, gi=gi, u=u))
                e["last"] = len(self.steps) - 1
        def seg_extra(l, gi, bt):
            e = dict(kind="x", l=l, u=3, ks=[k for k, _ in bt], size=XB, gi=gi, first=len(self.steps))
            self.entries.append(e)
            for i, (ks, sl) in enumerate(bt):
                self.steps.append(dict(e=len(self.entries) - 1, j=12, ks=ks, slot=sl,
                                       va=vA2, rel=1024 * i, rdoff=256, l=l, gi=gi, u=3))
            e["last"] = len(self.steps) - 1
        for l in range(NL):
            gl = [list(zip(G, SL)) for (G, SL) in self.groups[l]]
            a, b = gl[0], gl[1]
            seg_main(l, 0, 0, a); seg_main(l, 0, 1, a); seg_main(l, 1, 0, b); seg_main(l, 1, 1, b)
            seg_main(l, 0, 2, a); seg_main(l, 1, 2, b)
            ab = a + b
            seg_extra(l, 1, ab[0:4]); seg_extra(l, 1, ab[4:6])
            for gi in (2, 3, 4):
                lst = gl[gi]
                for u in range(3): seg_main(l, gi, u, lst)
                if gi < 4: batches = [lst]
                elif l == 0: batches = [lst[0:4], lst[4:8], lst[8:12], lst[12:13]]
                else: batches = [lst[0:4], lst[4:8], lst[8:11], lst[11:13]]
                for bt in batches: seg_extra(l, gi, bt)
        self.nsteps = len(self.steps)
        iv = self.interval
        LA = self.LA
        self.bars = [-LA - 1] + list(range(iv - LA - 1, self.nsteps - LA - 1, iv))
        pos = 0
        live = []
        for n, e in enumerate(self.entries):
            if pos + e["size"] > RING: pos = 0
            e["base"] = pos; s0, s1 = pos, pos + e["size"]
            ov = [m for (m, a, b) in live if a < s1 and s0 < b]
            live = live + [(n, s0, s1)]
            lastneed = max([self.entries[m]["last"] for m in ov], default=None)
            if lastneed is None: e["jf"] = -1
            else:
                e["jf"] = next(j for j, P in enumerate(self.bars) if lastneed <= P + 1)
            e["jl"] = max(j for j, P in enumerate(self.bars) if P + LA + 1 <= e["first"] or j == 0)
            assert e["jf"] < e["jl"] or e["jf"] == -1, (n, e)
            pos = s1
        self.minlead = min((self.bars[e["jl"]] - self.bars[e["jf"]]) for e in self.entries if e["jf"] >= 0)

    def tr_reads(self, f):
        st = self.steps[f]; e = self.entries[st["e"]]
        r = wf(f)
        res = []
        for rd in range(2):
            off = e["base"] + st["rel"] + rd * st["rdoff"]
            res.append(Ins(f"ds_read_b64_tr_b16 v[{r+2*rd}:{r+2*rd+1}], v{st['va']} offset:{off}", "D",
                           rd=vr(st["va"]), wr=vr(r + 2 * rd, 2), lg=("wf", f, rd)))
        return res
    def mfma(self, f, mt):
        st = self.steps[f]
        c = acc(st["j"], mt); a = wf(f); b = 16 * st["slot"] + 4 * mt
        return Ins(f"v_mfma_f32_16x16x32_bf16 v[{c}:{c+3}], v[{a}:{a+3}], a[{b}:{b+3}], v[{c}:{c+3}]", "M",
                   rd=vr(a, 4) + ar(b, 4) + vr(c, 4), wr=vr(c, 4))
    def dma_entry(self, n):
        e = self.entries[n]; l = e["l"]
        t = self.stemp()
        if e["kind"] == "m":
            ks = e["ks"][0]
            const = l * LSTRIDE + ks * KSB + 128 * e["u"]
            pat = vPW2 if (l > 0 and ks >= 24) else vPW
            seq = [S(f"s_add_u32 s{t}, s{sWq}, {const}"),
                   S(f"s_add_u32 m0, s{sW1032}, {e['base']}", note="m0"),
                   Ins(f"buffer_load_dwordx4 v{pat}, {srd(sW_)}, s{t} offen lds", "A", rd=vr(pat), vm=("w", n))]
        else:
            ks = e["ks"] + [e["ks"][-1]] * (4 - len(e["ks"]))
            lit = 0
            for i, k in enumerate(ks): lit |= (26 * l + k) << (8 * i)
            pat = vPE2 if (l > 0 and ks[0] >= 24) else vPE
            seq = [S(f"s_lshr_b32 s{t}, 0x{lit:x}, s{sW8}"),
                   S(f"s_and_b32 s{t}, s{t}, 0xff"),
                   S(f"s_mul_i32 s{t}, s{t}, {KSB}"),
                   S(f"s_add_u32 s{t}, s{t}, s{sXq}"),
                   S(f"s_add_u32 m0, s{sW1024}, {e['base']}", note="m0"),
                   Ins(f"buffer_load_dwordx4 v{pat}, {srd(sW_)}, s{t} offen lds", "A", rd=vr(pat), vm=("w", n))]
        return seq
    def xload(self, l, ks, slot):
        t = sXs[(ks + l) % 2]
        seq = [S(f"s_add_u32 s{t}, s{sXb}, {(l - 1) * XLAYER + 4096 * ks}")]
        for mt in range(4):
            d = 16 * slot + 4 * mt
            if ks < 24:
                seq.append(Ins(f"buffer_load_dwordx4 a[{d}:{d+3}], v{vL16}, {srd(sWS_)}, s{t} offen offset:{1024*mt} sc1", "L",
                               rd=vr(vL16), wr=ar(d, 4), vm=("x", l, ks, mt, 0)))
            else:
                for h in range(2):
                    seq.append(Ins(f"buffer_load_dwordx2 a[{d+2*h}:{d+2*h+1}], v{vL8}, {srd(sWS_)}, s{t} offen offset:{2048*h+512*mt} sc1", "L",
                                   rd=vr(vL8), wr=ar(d + 2 * h, 2), vm=("x", l, ks, mt, h)))
        return seq
    def xtags(self, l, ks, mt):
        if l == 0: return [], [("xs", ks, mt)]
        if ks < 24: return [("x", l, ks, mt, 0)], []
        return [("x", l, ks, mt, 0), ("x", l, ks, mt, 1)], []
    def stage_dma(self, line):
        seq = []
        for j in range(8):
            t = self.stemp(1)
            seq += [S(f"s_add_u32 s{t}, s{sRow}, {j * 8 * ROWB + 128 * line}"),
                    S(f"s_add_u32 m0, s{sXRw}, {8192 * (line % 3) + 1024 * j}", note="m0"),
                    Ins(f"buffer_load_dwordx4 v{vPX}, {srd(sX0_)}, s{t} offen lds", "A", rd=vr(vPX), vm=("st", line, j))]
        return seq
    def stage_read(self, ks, slot):
        line, sb = ks >> 1, ks & 1
        seq = []
        for mt in range(4):
            d = 16 * slot + 4 * mt
            seq.append(Ins(f"ds_read_b128 a[{d}:{d+3}], v{vX[sb]} offset:{8192 * (line % 3) + 2048 * mt}", "D",
                           rd=vr(vX[sb]), wr=ar(d, 4), lg=("xs", ks, mt), need_vm=[("st", line, 2 * mt), ("st", line, 2 * mt + 1)]))
        return seq
    def reload_dma(self):
        seq = []
        for lam in range(3):
            for j in range(8):
                t = self.stemp(1)
                seq += [S(f"s_add_u32 s{t}, s{sRow}, s{sWq}"),
                        S(f"s_add_u32 s{t}, s{t}, {j * 8 * ROWB + 128 * lam}"),
                        S(f"s_add_u32 m0, s{sXRw}, {8192 * lam + 1024 * j}", note="m0"),
                        Ins(f"buffer_load_dwordx4 v{vPX}, {srd(sX0_)}, s{t} offen lds", "A", rd=vr(vPX), vm=("rl", lam, j))]
        for h in range(2):
            t = self.stemp(1)
            seq += [S(f"s_add_u32 s{t}, s{sRow}, s{sXq}"),
                    S(f"s_add_u32 s{t}, s{t}, {h * 32 * ROWB}"),
                    S(f"s_add_u32 m0, s{sXRw}, {24576 + 1024 * h}", note="m0"),
                    Ins(f"buffer_load_dwordx4 v{vPXE}, {srd(sX0_)}, s{t} offen lds", "A", rd=vr(vPXE), vm=("rl", 3, h))]
        return seq
    def epi_unit(self, l, u):
        last = (l == self.NL - 1)
        seq = []
        items = [(sb, mt) for sb in range(2) for mt in range(4)] if u < 3 else [(0, mt) for mt in range(4)]
        def rd(i):
            sb, mt = items[i]; xp = vXP[i % 2]
            if u < 3:
                nv = [("rl", u, 2 * mt), ("rl", u, 2 * mt + 1)] if l == 0 else []
                return Ins(f"ds_read_b128 v[{xp}:{xp+3}], v{vX[sb]} offset:{8192 * u + 2048 * mt}", "D", rd=vr(vX[sb]), wr=vr(xp, 4),
                           lg=("xp", l, u, i), need_vm=nv)
            nv = [("rl", 3, mt >> 1)] if l == 0 else []
            return Ins(f"ds_read_b64 v[{xp}:{xp+1}], v{vX2} offset:{512 * mt}", "D", rd=vr(vX2), wr=vr(xp, 2), lg=("xp", l, u, i), need_vm=nv)
        seq2 = [rd(0), rd(1)]
        for b_ in range(2):
            if self.last_reader[b_] is not None: seq2[b_].after = [self.last_reader[b_]]
        for i, (sb, mt) in enumerate(items):
            xp = vXP[i % 2]
            ne = 2 if u < 3 else 1
            first = True
            for e in range(ne):
                j = 4 * u + 2 * sb + e if u < 3 else 12
                c = acc(j, mt)
                for p in range(2):
                    x = xp + 2 * e + p; t = vT[p]
                    i0 = V(f"v_lshlrev_b32 v{t}, 16, v{x}", rd=vr(x), wr=vr(t))
                    if first: i0.need_lg = [("xp", l, u, i)]; first = False
                    seq += [i0,
                            V(f"v_and_b32 v{x}, s{sMask}, v{x}", rd=vr(x), wr=vr(x)),
                            V(f"v_mul_f32 v{t}, v{t}, v{c+2*p}", rd=vr(t) + vr(c + 2 * p), wr=vr(t)),
                            V(f"v_mul_f32 v{x}, v{x}, v{c+2*p+1}", rd=vr(x) + vr(c + 2 * p + 1), wr=vr(x)),
                            V(f"v_cvt_pk_bf16_f32 v{x}, v{t}, v{x}", rd=vr(t) + vr(x), wr=vr(x))]
            lastv = seq[-1]
            if not last:
                t = sXt[i % 2]
                if u < 3:
                    b = 2 * u + sb
                    seq2.append(S(f"s_add_u32 s{t}, s42, {l * XLAYER + 4096 * b}"))
                    st = Ins(f"buffer_store_dwordx4 v[{xp}:{xp+3}], v{vL16}, {srd(sWS_)}, s{t} offen offset:{1024*mt} sc1", "T",
                             rd=vr(xp, 4) + vr(vL16), vm=("xo", l, u, i))
                else:
                    seq2.append(S(f"s_add_u32 s{t}, s43, {l * XLAYER}"))
                    st = Ins(f"buffer_store_dwordx2 v[{xp}:{xp+1}], v{vL8}, {srd(sWS_)}, s{t} offen offset:{512*mt} sc1", "T",
                             rd=vr(xp, 2) + vr(vL8), vm=("xo", l, u, i))
            else:
                if u < 3:
                    b = 2 * u + sb
                    st = Ins(f"buffer_store_dwordx4 v[{xp}:{xp+3}], v{vOut}, {srd(sOUT_)}, s{sOutMt[mt]} offen offset:{64*b}", "T",
                             rd=vr(xp, 4) + vr(vOut), vm=("xo", l, u, i))
                else:
                    t = sXt[i % 2]
                    seq2.append(S(f"s_add_u32 s{t}, s{sOutMt[mt]}, s76"))
                    st = Ins(f"buffer_store_dwordx2 v[{xp}:{xp+1}], v{vOutE}, {srd(sOUT_)}, s{t} offen", "T",
                             rd=vr(xp, 2) + vr(vOutE), vm=("xo", l, u, i))
            st.after = [lastv]
            self.last_reader[i % 2] = st
            seq2.append(st)
            if i + 2 < len(items): seq2.append(rd(i + 2))
        return seq, seq2
    def bias_unit(self, l, u):
        seq = []
        tiles = [4 * u + i for i in range(4)] if u < 3 else [12]
        def rd(i):
            xp = vXP[i % 2]
            return Ins(f"ds_read_b128 v[{xp}:{xp+3}], v{vBias} offset:{832 * l + 64 * tiles[i]}", "D", rd=vr(vBias), wr=vr(xp, 4), lg=("bi", l, tiles[i]))
        seq2 = [rd(0)] + ([rd(1)] if len(tiles) > 1 else [])
        for b_ in range(len(seq2)):
            if self.last_reader[b_] is not None: seq2[b_].after = [self.last_reader[b_]]
        for i, j in enumerate(tiles):
            xp = vXP[i % 2]
            first = True
            for mt in range(4):
                c = acc(j, mt)
                for r in range(4):
                    x = V(f"v_add_f32 v{c+r}, v{c+r}, v{xp+r}", rd=vr(c + r) + vr(xp + r), wr=vr(c + r))
                    if first: x.need_lg = [("bi", l, j)]; first = False
                    seq.append(x)
            self.last_reader[i % 2] = seq[-1]
            if i + 2 < len(tiles):
                r2 = rd(i + 2); r2.after = [seq[-1]]; seq2.append(r2)
        return seq, seq2
    def flag_set(self, val, need):
        return [V(f"v_mov_b32 v{vFlagVal}, {val}", wr=vr(vFlagVal)),
                Ins(f"buffer_store_byte v{vFlagVal}, v{vFlagOff}, {srd(sDBG_)}, 0 offen sc1", "T", rd=vr(vFlagVal) + vr(vFlagOff), vm=("fs", val))]
    def flag_poll(self, val):
        k = val
        ld = Ins(f"buffer_load_dword v{vPoll}, v{vPollOff}, {srd(sDBG_)}, 0 offen sc1", "L", rd=vr(vPollOff), wr=vr(vPoll), vm=("fp", val))
        chk = [V(f"v_readfirstlane_b32 s{sP}, v{vPoll}", rd=vr(vPoll), need_vm=[("fp", val)]),
               S(f"s_or_b32 s{sP}, s{sP}, 0x80808080"),
               S(f"s_sub_u32 s{sP}, s{sP}, 0x{val * 0x01010101:x}"),
               S(f"s_and_b32 s{sP}, s{sP}, 0x80808080"),
               Ins(f"s_cmp_eq_u32 s{sP}, 0x80808080\n  s_cbranch_scc0 Lslow{k}\nLback{k}:", "SS")]
        self.slow.append(f"""Lslow{k}:
  s_mov_b32 s{sSpin}, 0x{self.SPIN:x}
Lspin{k}:
  buffer_load_dword v{vPoll}, v{vPollOff}, {srd(sDBG_)}, 0 offen sc1
  s_waitcnt vmcnt(0)
  v_readfirstlane_b32 s{sP}, v{vPoll}
  s_or_b32 s{sP}, s{sP}, 0x80808080
  s_sub_u32 s{sP}, s{sP}, 0x{val * 0x01010101:x}
  s_and_b32 s{sP}, s{sP}, 0x80808080
  s_cmp_eq_u32 s{sP}, 0x80808080
  s_cbranch_scc1 Lback{k}
  s_sub_u32 s{sSpin}, s{sSpin}, 1
  s_cmp_lg_u32 s{sSpin}, 0
  s_cbranch_scc1 Lspin{k}
  s_branch Lback{k}""")
        return ld, chk

    def prologue(self):
        R = self.raw
        R("s_cmp_ge_u32 s2, 256\ns_cbranch_scc1 Lend")
        R("s_load_dwordx4 s[64:67], s[0:1], 0\ns_load_dwordx4 s[68:71], s[0:1], 16\ns_load_dwordx4 s[72:75], s[0:1], 32")
        if self.stamps:
            R("s_memrealtime s[80:81]\ns_memtime s[82:83]")
        R(f"""s_and_b32 s{sC}, s2, 7
s_lshr_b32 s3, s2, 5
s_lshl_b32 s3, s3, 3
s_add_u32 s{sC}, s{sC}, s3
s_lshr_b32 s{sQ}, s2, 3
s_and_b32 s{sQ}, s{sQ}, 3""")
        VV = lambda t: self.emit(Ins(t, "V"))
        VV("v_lshrrev_b32 v31, 6, v0")
        VV("v_and_b32 v0, 63, v0")
        VV(f"v_readfirstlane_b32 s{sWv}, v31")
        R("s_nop 3")
        R(f"""s_mul_i32 s{sWq}, s{sQ}, 384
s_mul_i32 s{sW1032}, s{sWv}, 1032
s_lshl_b32 s{sW8}, s{sWv}, 3
s_lshl_b32 s{sXq}, s{sQ}, 5
s_add_u32 s{sXq}, s{sXq}, 1536
s_lshl_b32 s{sW1024}, s{sWv}, 10
s_lshl_b32 s3, s{sC}, 2
s_add_u32 s3, s3, s{sWv}
s_mul_i32 s{sXb}, s3, 106496
s_add_u32 s{sXb}, s{sXb}, {XBASE}
s_mul_i32 s{sRow}, s3, {64 * ROWB}
s_mov_b32 s{sMask}, 0xffff0000
s_mul_i32 s{sXRw}, s{sWv}, {XRW}
s_add_u32 s{sXRw}, s{sXRw}, {XR}
s_mul_i32 s42, s{sQ}, 24576
s_add_u32 s42, s42, s{sXb}
s_lshr_b32 s43, s{sQ}, 1
s_add_u32 s43, s43, 24
s_lshl_b32 s43, s43, 12
s_and_b32 s3, s{sQ}, 1
s_lshl_b32 s3, s3, 11
s_add_u32 s43, s43, s3
s_add_u32 s43, s43, s{sXb}
s_mul_i32 s76, s{sQ}, 352
s_sub_u32 s76, 1536, s76""")
        for mt in range(4):
            R(f"s_add_u32 s{sOutMt[mt]}, s{sRow}, {mt * 16 * ROWB}\ns_add_u32 s{sOutMt[mt]}, s{sOutMt[mt]}, s{sWq}")
        VV("v_lshrrev_b32 v20, 3, v0")
        VV("v_and_b32 v21, 7, v0")
        VV("v_lshlrev_b32 v22, 1, v20")
        VV("v_and_b32 v22, 4, v22")
        VV("v_xor_b32 v22, v21, v22")
        VV("v_lshlrev_b32 v22, 4, v22")
        VV(f"v_add_u32 v23, s{sW8}, v20")
        VV(f"v_mul_u32_u24 v23, {ROWB}, v23")
        VV(f"v_add_u32 v{vPW}, v23, v22")
        VV("v_lshrrev_b32 v23, 2, v20")
        VV("v_lshlrev_b32 v23, 4, v23")
        VV("v_and_b32 v24, 3, v20")
        VV("v_add_u32 v23, v23, v24")
        R(f"s_lshl_b32 s3, s{sWv}, 2")
        VV("v_add_u32 v23, s3, v23")
        VV(f"v_mul_u32_u24 v23, {ROWB}, v23")
        VV(f"v_add_u32 v{vPW2}, v23, v22")
        VV("v_and_b32 v23, 6, v20")
        VV("v_xor_b32 v23, v21, v23")
        VV("v_lshlrev_b32 v23, 4, v23")
        VV(f"v_mul_u32_u24 v24, {ROWB}, v20")
        VV(f"v_add_u32 v{vPX}, v23, v24")
        VV("v_lshrrev_b32 v20, 1, v0")
        VV("v_and_b32 v21, 1, v0")
        VV("v_lshlrev_b32 v21, 4, v21")
        VV(f"v_mul_u32_u24 v23, {ROWB}, v20")
        VV(f"v_add_u32 v{vPXE}, v23, v21")
        VV("v_and_b32 v23, 19, v20")
        VV("v_and_b32 v24, 4, v20")
        VV("v_lshlrev_b32 v24, 1, v24")
        VV("v_or_b32 v23, v23, v24")
        VV("v_and_b32 v24, 8, v20")
        VV("v_lshrrev_b32 v24, 1, v24")
        VV("v_or_b32 v23, v23, v24")
        VV(f"v_mul_u32_u24 v23, {ROWB}, v23")
        VV(f"v_add_u32 v{vPE}, v23, v21")
        VV("v_and_b32 v23, 7, v20")
        VV("v_and_b32 v24, 8, v20")
        VV("v_lshlrev_b32 v24, 1, v24")
        VV("v_or_b32 v23, v23, v24")
        VV("v_and_b32 v24, 16, v20")
        VV("v_lshrrev_b32 v24, 1, v24")
        VV("v_or_b32 v23, v23, v24")
        VV(f"v_mul_u32_u24 v23, {ROWB}, v23")
        VV(f"v_add_u32 v{vPE2}, v23, v21")
        VV("v_lshrrev_b32 v20, 4, v0")
        VV("v_and_b32 v21, 15, v0")
        VV("v_lshrrev_b32 v22, 2, v0")
        VV("v_and_b32 v22, 3, v22")
        VV("v_and_b32 v23, 3, v0")
        VV("v_mul_u32_u24 v24, 1032, v20")
        VV("v_lshlrev_b32 v25, 7, v22")
        VV("v_add_u32 v24, v24, v25")
        VV("v_lshlrev_b32 v25, 4, v23")
        VV("v_add_u32 v24, v24, v25")
        VV("v_lshrrev_b32 v25, 1, v22")
        VV("v_lshlrev_b32 v25, 6, v25")
        VV(f"v_add_u32 v{vA[0]}, v24, v25")
        VV("v_sub_u32 v25, 64, v25")
        VV(f"v_add_u32 v{vA[1]}, v24, v25")
        VV("v_lshrrev_b32 v24, 1, v20")
        VV("v_lshlrev_b32 v24, 9, v24")
        VV("v_and_b32 v25, 1, v20")
        VV("v_lshlrev_b32 v25, 7, v25")
        VV("v_add_u32 v24, v24, v25")
        VV("v_lshlrev_b32 v25, 5, v22")
        VV("v_add_u32 v24, v24, v25")
        VV("v_lshlrev_b32 v25, 3, v23")
        VV(f"v_add_u32 v{vA2}, v24, v25")
        VV("v_and_b32 v24, 6, v21")
        VV("v_xor_b32 v24, v20, v24")
        VV("v_lshlrev_b32 v24, 4, v24")
        VV("v_lshlrev_b32 v25, 7, v21")
        VV("v_add_u32 v24, v24, v25")
        VV(f"v_add_u32 v{vX[0]}, s{sXRw}, v24")
        VV(f"v_xor_b32 v{vX[1]}, 64, v{vX[0]}")
        VV("v_lshlrev_b32 v24, 5, v21")
        VV("v_lshlrev_b32 v25, 3, v20")
        VV("v_add_u32 v24, v24, v25")
        VV(f"v_add_u32 v24, s{sXRw}, v24")
        VV(f"v_add_u32 v{vX2}, 24576, v24")
        VV(f"v_lshlrev_b32 v{vL16}, 4, v0")
        VV(f"v_lshlrev_b32 v{vL8}, 3, v0")
        VV("v_lshlrev_b32 v24, 4, v20")
        VV(f"v_add_u32 v{vBias}, {BIAS}, v24")
        VV(f"v_mul_u32_u24 v25, {ROWB}, v21")
        VV(f"v_add_u32 v{vOut}, v25, v24")
        VV("v_lshlrev_b32 v24, 3, v20")
        VV(f"v_add_u32 v{vOutE}, v25, v24")
        R(f"s_lshl_b32 s3, s{sC}, 2")
        VV(f"v_mov_b32 v{vPollOff}, s3")
        R(f"s_add_u32 s3, s3, s{sQ}\ns_cmp_eq_u32 s{sWv}, 0\ns_cselect_b32 s3, s3, 0x7fffff00")
        VV(f"v_mov_b32 v{vFlagOff}, 0x7fffff00")
        VV("v_mov_b32 v24, s3")
        VV("v_cmp_eq_u32 vcc, 0, v0")
        R("s_nop 1")
        VV(f"v_cndmask_b32 v{vFlagOff}, v{vFlagOff}, v24, vcc")
        R("s_waitcnt lgkmcnt(0)")
        def mk(b, lo, size):
            R(f"s_mov_b32 s{b}, s{lo}\ns_and_b32 s{b+1}, s{lo+1}, 0xffff\ns_mov_b32 s{b+2}, {size}\ns_mov_b32 s{b+3}, 0x20000")
        mk(sX0_, 64, 16384 * ROWB)
        mk(sW_, 66, 3 * LSTRIDE)
        mk(sB_, 68, 3 * ROWB)
        mk(sOUT_, 70, 16384 * ROWB)
        mk(sDBG_, 72, 256)
        mk(sWS_, 74, 0x10000000)

    def bias_prologue(self):
        R = self.raw; VV = lambda t: self.emit(Ins(t, "V"))
        R(f"s_lshl_b32 s3, s{sWv}, 6")
        VV("v_add_u32 v20, s3, v0")
        VV("v_lshrrev_b32 v21, 4, v20")
        VV("v_and_b32 v22, 15, v20")
        VV("v_lshrrev_b32 v23, 1, v21")
        VV("v_lshlrev_b32 v23, 5, v23")
        VV("v_lshrrev_b32 v24, 2, v22")
        VV("v_lshlrev_b32 v24, 3, v24")
        VV("v_add_u32 v23, v23, v24")
        VV("v_and_b32 v24, 1, v21")
        VV("v_lshlrev_b32 v24, 2, v24")
        VV("v_add_u32 v23, v23, v24")
        VV("v_and_b32 v24, 3, v22")
        VV("v_add_u32 v23, v23, v24")
        R(f"s_mul_i32 s3, s{sQ}, 192")
        VV("v_add_u32 v23, s3, v23")
        R(f"s_lshl_b32 s3, s{sQ}, 4\ns_add_u32 s3, s3, 768")
        VV("v_add_u32 v24, s3, v22")
        VV("v_cmp_eq_u32 vcc, 12, v21")
        R("s_nop 1")
        VV("v_cndmask_b32 v23, v23, v24, vcc")
        VV("v_lshlrev_b32 v23, 1, v23")
        VV("v_mov_b32 v24, 0x7fffff00")
        VV("v_cmp_gt_u32 vcc, 208, v20")
        R("s_nop 1")
        VV("v_cndmask_b32 v23, v24, v23, vcc")
        for l in range(3):
            self.emit(Ins(f"buffer_load_ushort v{25+l}, v23, {srd(sB_)}, 0 offen offset:{l*ROWB}", "L", vm=("bl", l)))
        VV("v_lshlrev_b32 v22, 2, v20")
        VV(f"v_add_u32 v22, {BIAS}, v22")
        return
    def bias_prologue2(self):
        R = self.raw; VV = lambda t: self.emit(Ins(t, "V"))
        self.emit_wait([("bl", 2)], [])
        for l in range(3):
            VV(f"v_lshlrev_b32 v{25+l}, 16, v{25+l}")
        VV("v_add_f32 v25, 1.0, v25")
        VV("v_cmp_gt_u32 vcc, 208, v20")
        R("s_and_saveexec_b64 s[78:79], vcc")
        for l in range(3):
            self.emit(Ins(f"ds_write_b32 v22, v{25+l} offset:{832*l}", "D", lg=("bw", l)))
        R("s_mov_b64 exec, s[78:79]")
        self.emit_wait([], [("bw", 2)])

    COST = {"S": 4, "W": 4, "X": 4, "SS": 8, "V": 4, "D": 8, "L": 8, "A": 12, "T": 12}
    def fits(self, kinds):
        t = 4
        for i, k in enumerate(kinds):
            if k == "V": t = max(t, 8) + 4
            else: t += self.COST[k]
            if k == "L" and (i + 1 == len(kinds)): t += 4
            if k == "L" and i + 1 < len(kinds) and kinds[i + 1] != "V": return False
            if k in ("A", "T") and (i != 0 or len(kinds) > 1): return False
        return t <= 16

    def first_step(self, l, gi, u=0):
        for f, st in enumerate(self.steps):
            if st["l"] == l and st["gi"] == gi and st["u"] == u: return f
    def last_step(self, l, gi, u):
        r = None
        for f, st in enumerate(self.steps):
            if st["l"] == l and st["gi"] == gi and st["u"] == u: r = f
        return r
    def group_range(self, l, gi):
        fs = [f for f, st in enumerate(self.steps) if st["l"] == l and st["gi"] == gi]
        return fs[0], fs[-1]

    def build_streams(self):
        NL = self.NL
        self.last_reader = [None, None]
        M1 = []
        M2 = []
        E = []
        E2 = []
        M3 = []
        for n, e in enumerate(self.entries):
            es = -100 if e["jf"] < 0 else self.bars[e["jf"]]
            M1.append([es, 0, self.dma_entry(n), ("bar", e["jf"])])
        G = self.groups[0]
        slot_of = {}
        for gi, (ks_l, sl_l) in enumerate(G):
            for ks, sl in zip(ks_l, sl_l): slot_of[ks] = (gi, sl)
        def first_use(l, ks):
            for f, st in enumerate(self.steps):
                if st["l"] == l and st["ks"] == ks: return f
        self.first_use = first_use
        def slot_free(l, ks, sl):
            f0 = first_use(l, ks)
            r = -100
            for f in range(f0):
                if self.steps[f]["slot"] == sl: r = f
            return r
        self.stage_reads = {}
        stage_free = {}
        DM = []
        rd_earliest = {}
        for ks in range(26):
            gi, sl = slot_of[ks]
            rd_earliest[ks] = slot_free(0, ks, sl) + 1 if slot_free(0, ks, sl) >= 0 else -100
        cur = -100
        for ks in range(26):
            cur = max(cur, rd_earliest[ks]); rd_earliest[ks] = cur
        self.rd_earliest = rd_earliest
        self.slot_of0 = slot_of
        for line in range(13):
            seq = self.stage_dma(line)
            if line >= 3:
                seq[0].need_lg = [("xs", 2 * (line - 3) + 1, 3)]
                es = max(rd_earliest[2 * (line - 3) + 1] + 2, 0)
            else: es = -100
            M3.append([es, 1, seq, None])
        seq = self.reload_dma()
        seq[0].need_lg = [("xs", 25, 3)]
        M3.append([rd_earliest[25] + 2, 1, seq, None])
        for ks in range(26):
            gi, sl = slot_of[ks]
            M2.append([rd_earliest[ks], 0, self.stage_read(ks, sl), None])
        for l in range(1, NL):
            base = 3 * (l - 1)
            def cls(ks):
                if ks >= 24: return 3
                return (ks % 6) // 2 + 1
            polled = set()
            lst = []
            for gi, (ks_l, sl_l) in enumerate(self.groups[l]):
                for ks, sl in zip(ks_l, sl_l):
                    lst.append((gi, ks, sl))
            gb0, gb1 = self.group_range(l - 1, 4)
            l0 = gb1 + 1
            exp = {1: l0 + self.T_U0, 2: l0 + self.T_U1, 3: l0 + self.T_U2}
            items = []
            for gi, ks, sl in lst:
                es = max(slot_free(l, ks, sl) + 1, exp[cls(ks)], first_use(l, ks) - self.XLEAD)
                items.append([es, cls(ks), first_use(l, ks), ks, sl])
            items.sort(key=lambda it: (it[0], it[2]))
            for es, c, gi, ks, sl in items:
                seq = []
                if c not in polled:
                    polled.add(c)
                    ld, chk = self.flag_poll(base + c)
                    M2.append([es - self.T_POLL, 2, [ld], None])
                    seq += chk
                seq += self.xload(l, ks, sl)
                M2.append([es, 3, seq, None])
        for l in range(NL):
            for u in range(4):
                lastf = self.last_step(l, 4, u)
                a, b = self.epi_unit(l, u)
                E.append([lastf + 2, 0, a, None]); E2.append([lastf + 2 - self.E2LEAD, 0, b, ("epi", l, u)])
            if l + 1 < NL:
                g3 = 2
                for u in range(4):
                    lastf = self.last_step(l + 1, g3, u)
                    a, b = self.bias_unit(l + 1, u)
                    E.append([lastf + 2, 1, a, ("bias", l + 1, u)]); E2.append([lastf + 2 - self.E2LEAD, 1, b, None])
        M1.sort(key=lambda x: (x[0], x[1])); M2.sort(key=lambda x: (x[0], x[1])); E.sort(key=lambda x: (x[0], x[1]))
        flat = lambda Q: [(es, ins, tag, idx == len(seq) - 1) for es, _, seq, tag in Q for idx, ins in enumerate(seq)]
        M3.sort(key=lambda x: (x[0], x[1]))
        E2.sort(key=lambda x: (x[0], x[1]))
        self.M1, self.M2, self.E, self.M3, self.E2 = flat(M1), flat(M2), flat(E), flat(M3), flat(E2)

    def try_emit_from(self, Q, f, gap_kinds, allow, post_w):
        if not Q: return False
        es, ins, tag, lastflag = Q[0]
        if es > f: return False
        if isinstance(tag, tuple) and tag[0] == "bar" and tag[1] >= 0 and tag[1] > self.bar_passed: return False
        if ins.kind not in allow: return False
        if ins.note == 'm0' and self.m0_owner is not None: return False
        for a in ins.after:
            if id(a) not in self.issue_step: return False
        for t in ins.need_vm:
            if t not in self.vm_pos: return False
        for t in ins.need_lg:
            if t not in self.lg_pos: return False
        nv, nl = self.wait_for(ins.need_vm, ins.need_lg)
        needw = nv is not None or nl is not None
        kinds = gap_kinds + (["W"] if needw else []) + [ins.kind] + post_w
        if not self.fits(kinds):
            if needw and self.fits(gap_kinds + ["W"] + post_w) and self.wait_ok(ins, f):
                self.emit_wait(ins.need_vm, ins.need_lg); gap_kinds.append("W"); return True
            return False
        if needw and not self.wait_ok(ins, f): return False
        if not self.hazard_ok(ins): return False
        if needw:
            self.emit_wait(ins.need_vm, ins.need_lg); gap_kinds.append("W")
        self.emit(ins); gap_kinds.append(ins.kind)
        if ins.note == 'm0': self.m0_owner = id(Q)
        if ins.kind == 'A': self.m0_owner = None
        self.issue_step[id(ins)] = f
        if ins.vm is not None: self.vm_step[ins.vm] = f
        if ins.lg is not None: self.lg_step[ins.lg] = f
        Q.pop(0)
        if lastflag and isinstance(tag, tuple) and tag[0] == "epi":
            self.epi_done(tag, f)
        if lastflag and isinstance(tag, tuple) and tag[0] == "bias":
            self.bias_done[(tag[1], tag[2])] = f
        return True
    def wait_ok(self, ins, f):
        for t in ins.need_vm:
            if self.vm_pos[t] >= self.vm_done and f - self.vm_step.get(t, -1000) < self.MIN_VM: return False
        for t in ins.need_lg:
            if self.lg_pos[t] >= self.lg_done and f - self.lg_step.get(t, -1000) < self.MIN_LG: return False
        return True
    def hazard_ok(self, ins):
        if ins.kind in ("V", "D", "L"):
            regs = set(ins.rd) | set(ins.wr) if ins.kind == "V" else set(ins.wr)
            n = 0
            for prev in reversed(self.out):
                if n >= 9: break
                if prev.kind == "M" and (set(prev.wr) & regs): return False
                n += 1 if prev.kind != "SS" else 2
        if ins.kind == "V":
            n = 0
            for prev in reversed(self.out):
                if n >= 2: break
                if prev.kind == "T" and (set(prev.rd) & set(ins.wr)): return False
                n += 1
        if ins.kind == "V" and not getattr(self, "drain", False):
            f, g = self.cur
            nxt = []
            for d in (1, 2):
                gg = g + d; ff = f + gg // 4; gg %= 4
                if ff < self.nsteps: nxt.append(self.mfma(ff, gg))
            for m in nxt:
                if set(m.rd) & set(ins.wr): return False
        if ins.kind == "A":
            if self.out and self.out[-1].note == "m0": return False
        return True
    def epi_done(self, tag, f):
        _, l, u = tag
        self.epi_fin[(l, u)] = f
        if l == self.NL - 1: return
        n = 8 if u < 3 else 4
        tags = [("xo", l, u, i) for i in range(n)]
        if u == 0: self.pending.append((3 * l + 1, tags))
        elif u == 1: self.pending.append((3 * l + 2, tags))
        elif u == 3: self.pending.append((3 * l + 3, tags + [("xo", l, 2, i) for i in range(8)]))

    def schedule(self):
        self.issue_step = {}; self.vm_step = {}; self.lg_step = {}
        self.pending = []; self.epi_fin = {}; self.bias_done = {}
        self.bar_passed = -1
        self.F = []
        self.m0_owner = None
        N = self.nsteps
        barat = {P: j for j, P in enumerate(self.bars)}
        need_at = {}
        for n, e in enumerate(self.entries): need_at.setdefault(e["jl"], []).append(("w", n))
        self.pro_issue()
        self.emit_wait(need_at.get(0, []), [])
        self.emit(Ins("s_barrier", "X")); self.bar_passed = 0
        for j in range(13):
            for mt in range(4):
                c = acc(j, mt)
                self.emit(Ins(f"ds_read_b128 v[{c}:{c+3}], v{vBias} offset:{64*j}", "D", rd=vr(vBias), wr=vr(c, 4), lg=("ai", j, mt)))
                if (4 * j + mt) % 8 == 7: self.emit_wait([], [("ai", j, mt - 4 if mt >= 4 else mt)])
        for f in range(self.LA):
            for r in self.tr_reads(f): self.emit(r); self.lg_step[r.lg] = -10
        self.emit_wait([], [("ai", 12, 3)])
        if self.stamps: self.stamp()
        self.epi_started = set()
        for f in range(N):
            st = self.steps[f]
            if f == 0:
                nv, nl = self.step_needs(0)
                self.emit_wait(nv, nl)
            if st["l"] > 0 and (st["l"], st["u"]) not in self.epi_started:
                self.epi_started.add((st["l"], st["u"]))
                assert (st["l"] - 1, st["u"]) in self.epi_fin, ("epilogue late", st["l"] - 1, st["u"], f, self.epi_fin, self.flag_step, {k: v for k, v in self.vm_step.items() if k[0] in ("x", "fp", "fs", "xo")})
            nL = 0; dynbar = False
            for g in range(4):
                self.emit(self.mfma(f, g))
                self.cur = (f, g)
                kinds = []
                if g < 2 and f + self.LA < N:
                    r = self.tr_reads(f + self.LA)[g]
                    if g == 0:
                        pass
                    self.emit(r); self.lg_step[r.lg] = f; kinds.append("D")
                if g == 1 and f + 1 < N:
                    nv, nl = self.step_needs(f + 1)
                    if f in barat: nv = nv + need_at.get(barat[f], [])
                    for val, tags in self.pending:
                        if all(f - self.vm_step[t] >= self.T_ST for t in tags):
                            nv = nv + tags; dynbar = True
                    if self.emit_wait(nv, nl): kinds.append("W")
                if g == 2 and (f in barat or dynbar):
                    self.emit(Ins("s_barrier", "X")); kinds.append("X")
                    if f in barat: self.bar_passed = barat[f]
                    for val, tags in list(self.pending):
                        if all(self.vm_pos[t] < self.vm_done for t in tags):
                            self.pending.remove((val, tags))
                            seq = self.flag_set(val, tags)
                            self.F += [(f, ins, None, False) for ins in seq]
                            self.flag_step[val] = f
                progress = True
                allk = ("S", "SS", "V", "A", "L", "T", "D")
                while progress:
                    progress = False
                    order = [self.F, self.M1, self.M2, self.M3, self.E2, self.E]
                    for Q in order:
                        allow = allk
                        if Q is self.M2 and Q and Q[0][1].kind == "L" and nL >= self.MAXL: continue
                        k0 = Q[0][1].kind if Q else None
                        if self.try_emit_from(Q, f, kinds, allow, []):
                            if k0 == "L" and Q is self.M2: nL += 1
                            progress = True; break
            if self.stamps and f + 1 < N and (self.steps[f + 1]["l"] != st["l"] or (self.steps[f + 1]["gi"] == 4 and st["gi"] == 3)):
                self.stamp()
        self.drain = True
        guard = 0
        while self.M1 or self.M2 or self.E or self.M3 or self.F or self.E2:
            guard += 1
            assert guard < 100000
            done = False
            for Q in (self.F, self.E2, self.E, self.M2, self.M3, self.M1):
                if Q:
                    es, ins, tag, lastflag = Q[0]
                    if any(id(a) not in self.issue_step for a in ins.after): continue
                    if any(t not in self.lg_pos for t in ins.need_lg): continue
                    while not self.hazard_ok(ins): self.emit(Ins("s_nop 0", "S"))
                    self.emit_wait(ins.need_vm, ins.need_lg)
                    while not self.hazard_ok(ins): self.emit(Ins("s_nop 0", "S"))
                    self.emit(ins); Q.pop(0); self.issue_step[id(ins)] = N
                    if ins.vm is not None: self.vm_step[ins.vm] = N
                    if lastflag and isinstance(tag, tuple) and tag[0] == "epi": self.epi_done(tag, N)
                    done = True; break
            assert done
        if self.stamps: self.stamp()

    def step_needs(self, f):
        st = self.steps[f]
        nl = [("wf", f, 0), ("wf", f, 1)]
        nv = []
        for mt in range(4):
            a, b = self.xtags(st["l"], st["ks"], mt)
            for t in a:
                assert t in self.vm_pos, ("x load not issued before use", t, f, self.epi_fin, self.flag_step, {k: v for k, v in self.vm_step.items() if k[0] in ("x", "fp", "fs")}, self.M2[0][0], self.M2[0][1].text)
            for t in b:
                assert t in self.lg_pos, ("stage read not issued before use", t, f)
            nv += a; nl += b
        return nv, nl

    def pro_issue(self):
        def take(Q, pred):
            out = []
            while Q and pred(Q[0]): out.append(Q.pop(0))
            return out
        items = take(self.M1, lambda it: it[0] <= -50) + take(self.M3, lambda it: it[0] <= -50)
        ring = [it for it in items if it[1].vm is None or True]
        seqs = []; cur = []
        for it in items:
            cur.append(it[1])
            if it[1].kind == "A": seqs.append(cur); cur = []
        wseq = [s for s in seqs if s[-1].vm[0] == "w"]; xseq = [s for s in seqs if s[-1].vm[0] == "st"]
        order = xseq[0:8] + wseq[0:3] + xseq[8:16] + wseq[3:10] + xseq[16:24] + wseq[10:]
        for s in order:
            for k, ins in enumerate(s):
                if ins.kind == "A" and self.out[-1].note == "m0": self.emit(Ins("s_nop 0", "S"))
                self.emit(ins)
                if ins.vm is not None: self.vm_step[ins.vm] = -100
        self.bias_prologue()
        self.prefetch_prologue()
        self.bias_prologue2()
        while self.M2 and self.M2[0][0] <= -50:
            es, ins, tag, lf = self.M2[0]
            if ins.kind == "D" and any(t not in self.vm_pos for t in ins.need_vm): break
            self.emit_wait(ins.need_vm, ins.need_lg)
            self.emit(ins); self.M2.pop(0)
            if ins.lg is not None: self.lg_step[ins.lg] = -100
            if len(self.lgq) - self.lg_done > 12: self.emit_wait([], [self.lgq[-8]])
    def prefetch_prologue(self):
        pass
    def stamp(self):
        k = self.nstamp; self.nstamp += 1
        if k < 8:
            self.emit(Ins(f"s_memtime s[{86 + 2*k}:{87 + 2*k}]", "S"))

    def check(self):
        out = self.out
        errs = 0
        for i, ins in enumerate(out):
            if ins.kind == "M":
                n = 0
                for prev in reversed(out[max(0, i - 4):i]):
                    if n >= 2: break
                    if prev.kind == "V" and set(prev.wr) & set(ins.rd):
                        print("HAZARD V->M", i, prev.text, "|", ins.text, file=sys.stderr); errs += 1
                    n += 1
            if ins.kind == "V":
                n = 0
                for prev in reversed(out[max(0, i - 10):i]):
                    if n >= 8: break
                    if prev.kind == "M" and set(prev.wr) & (set(ins.rd) | set(ins.wr)):
                        print("HAZARD M->V", i, prev.text, "|", ins.text, file=sys.stderr); errs += 1
                    n += 1
        return errs

    def text(self):
        NL = self.NL
        L = []
        L.append("""; Kernarg layout for this problem (48 bytes, ptrs only, base s[0:1]):
;   offset   0: d_in[0] x0  shape=(16384, 832) dtype=bfloat16 strides=(1664, 2) contiguous=True
;   offset   8: d_in[1] ws  shape=(3, 832, 832) dtype=bfloat16 strides=(1384448, 1664, 2) contiguous=True
;   offset  16: d_in[2] bs  shape=(3, 832) dtype=bfloat16 strides=(1664, 2) contiguous=True
;   offset  24: d_out     shape=(16384, 832) dtype=bfloat16 (2 bytes/elem)
;   offset  32: d_debug   256 bytes
;   offset  40: d_ws      268435456 bytes workspace
; cluster of 4 workgroups = 256 rows; each workgroup owns 208 output features; layers exchange x through d_ws.""")
        L.append("; @launch grid=(256,1,1) block=(256,1,1) lds=163840")
        L.append('.amdgcn_target "amdgcn-amd-amdhsa--gfx950"')
        L.append(".text")
        L.append(f".globl {KNAME}\n.p2align 8\n.type {KNAME},@function\n{KNAME}:")
        for ins in self.out: L.append("  " + ins.text)
        if self.stamps:
            L.append("  s_memtime s[84:85]\n  s_memrealtime s[78:79]\n  s_waitcnt lgkmcnt(0)")
            L.append(f"  s_lshl_b32 s3, s2, 7\n  v_mov_b32 v2, s3\n  v_cmp_eq_u32 vcc, 0, v{vL16}\n  s_cmp_eq_u32 s{sWv}, 0\n  s_cbranch_scc0 Lnost\n  s_and_saveexec_b64 s[4:5], vcc")
            regs = [80, 82, 78, 84] + [86 + 2 * k for k in range(min(self.nstamp, 8))]
            for i, s in enumerate(regs):
                L.append(f"  v_mov_b32 v6, s{s}\n  v_mov_b32 v7, s{s+1}\n  buffer_store_dwordx2 v[6:7], v2, {srd(sWS_)}, 0 offen offset:{8*i}\n  s_nop 1")
            L.append("Lnost:")
        L.append("  s_waitcnt vmcnt(0)")
        L.append("Lend:\n  s_endpgm")
        L += self.slow
        L.append('.section .rodata,"a"\n.p2align 6')
        L.append(f".amdhsa_kernel {KNAME}")
        L.append("  .amdhsa_next_free_vgpr 512\n  .amdhsa_next_free_sgpr 102\n  .amdhsa_accum_offset 256\n  .amdhsa_group_segment_fixed_size 0\n  .amdhsa_kernarg_size 48\n  .amdhsa_user_sgpr_count 2\n  .amdhsa_user_sgpr_kernarg_segment_ptr 1\n  .amdhsa_system_sgpr_workgroup_id_x 1\n.end_amdhsa_kernel")
        return "\n".join(L) + "\n"

    LA = 3
    T_U0 = -26; T_U1 = 50; T_U2 = 120; XLEAD = 26; SPIN = 0x8000; E2LEAD = 2; T_POLL = 10; T_ST = 8; MAXL = 2
    MIN_VM = 10; MIN_LG = 1

    def run(self):
        self.flag_step = {}
        self.plan()
        self.prologue()
        self.build_streams()
        self.schedule()
        errs = self.check()
        return errs

if __name__ == "__main__":
    ap = argparse.ArgumentParser()
    ap.add_argument("-o", default="k.s")
    ap.add_argument("--nl", type=int, default=3)
    ap.add_argument("--interval", type=int, default=12)
    ap.add_argument("--stamps", action="store_true")
    a = ap.parse_args()
    g = Gen(NL=a.nl, interval=a.interval, stamps=a.stamps)
    errs = g.run()
    open(a.o, "w").write(g.text())
    from collections import Counter
    print("instrs", len(g.out), Counter(i.kind for i in g.out), "hazard errs", errs, "minlead(steps)", g.minlead, file=sys.stderr)
    print("xload steps", {k: v for k, v in g.vm_step.items() if k[0] in ("x", "fp", "fs") and (k[0] != "x" or k[3] == 3)}, file=sys.stderr)
    print("epi_fin", g.epi_fin, "bias", g.bias_done, "flags", g.flag_step, "nsteps", g.nsteps, file=sys.stderr)
```

```python
import sys, argparse

KNAME = "standalone__dcn_v2_cross__recsys_kernel"
D = 832; ROWB = 1664
LSTRIDE = D * ROWB
KSB = 32 * ROWB
RING = 54848
BIAS = 54848
XR = 57344
XRW = 26624
XBASE = 0x100000
FBASE = 0x40000
XLAYER = 64 * 4 * 106496
CH = 4128
XB = 4096

ACC0 = 48
def acc(j, mt): return ACC0 + 16 * j + 4 * mt
WF0 = 32; NB = 4
def wf(f): return WF0 + 4 * (f % NB)
vA = [1, 2]; vA2 = 3
vPW = 4; vPW2 = 5; vPE = 6; vPE2 = 7
vX = [8, 9]; vX2 = 10
vL16 = 11; vL8 = 12
vPX = 13; vOut = 30
vPXE = 14; vOutE = 31
vBias = 15
vFlagOff = 16; vFlagVal = 17; vPollOff = 18; vPoll = 19; vBase = 30
vPFX = 31; vPFW = 17; vPFG = 17
vXP = [20, 24]
vT = [28, 29]
vDummy = 0
sW_ = 8; sX0_ = 12; sOUT_ = 16; sWS_ = 20; sDBG_ = 24; sB_ = 28
sQ = 32; sC = 33; sWv = 34; sWq = 35; sW1032 = 36; sW8 = 37; sXq = 38; sW1024 = 39
sXb = 40; sRow = 41; sMask = 44; sXRw = 45
sOutMt = [46, 47, 48, 49]
sT = [50, 51, 52, 53, 54, 55]
sXs = [56, 57]
sXt = [77, 84]
sP = 58
sSpin = 59
sJ = [92, 93, 94, 95, 96, 97, 98, 99]
sStamp = 60
def srd(b): return f"s[{b}:{b+3}]"

class Ins:
    __slots__ = ("text", "kind", "rd", "wr", "vm", "lg", "need_vm", "need_lg", "earliest", "label", "note", "after", "minvm", "dl", "lines", "hard")
    def __init__(self, text, kind, rd=(), wr=(), vm=None, lg=None, need_vm=None, need_lg=None, earliest=None, note=None):
        self.text = text; self.kind = kind; self.rd = tuple(rd); self.wr = tuple(wr)
        self.vm = vm; self.lg = lg; self.need_vm = need_vm or []; self.need_lg = need_lg or []
        self.earliest = earliest; self.note = note; self.after = []; self.minvm = None; self.dl = None; self.lines = 8; self.hard = None
def vr(b, n=1): return [("v", b + i) for i in range(n)]
def ar(b, n=1): return [("a", b + i) for i in range(n)]

def S(t, **k): return Ins(t, "S", **k)
def V(t, rd=(), wr=(), **k): return Ins(t, "V", rd=rd, wr=wr, **k)

class Gen:
    def __init__(self, NL=3, interval=12, dbg=None, stamps=False, prof=False):
        self.prof = prof; self.prol_k = 0
        self.NL = NL; self.interval = interval; self.stamps = stamps
        self.out = []
        self.vmq = []; self.vm_done = 0; self.vm_pos = {}
        self.lgq = []; self.lg_done = 0; self.lg_pos = {}
        self.slow = []
        self.tcount = 0
        self.nstamp = 0

    def emit(self, ins):
        if ins.vm is not None:
            assert ins.vm not in self.vm_pos, ins.vm
            self.vm_pos[ins.vm] = len(self.vmq); self.vmq.append(ins.vm)
        if ins.lg is not None:
            assert ins.lg not in self.lg_pos, ins.lg
            self.lg_pos[ins.lg] = len(self.lgq); self.lgq.append(ins.lg)
        self.out.append(ins)
    def wait_for(self, need_vm, need_lg):
        nv = None; nl = None
        for t in need_vm:
            p = self.vm_pos[t]
            if p >= self.vm_done:
                n = len(self.vmq) - 1 - p
                nv = n if nv is None else min(nv, n)
        for t in need_lg:
            p = self.lg_pos[t]
            if p >= self.lg_done:
                n = len(self.lgq) - 1 - p
                nl = n if nl is None else min(nl, n)
        return nv, nl
    def emit_wait(self, need_vm, need_lg):
        nv, nl = self.wait_for(need_vm, need_lg)
        if nv is None and nl is None: return False
        parts = []
        if nv is not None:
            nv = min(nv, 63); parts.append(f"vmcnt({nv})"); self.vm_done = max(self.vm_done, len(self.vmq) - nv)
        if nl is not None:
            nl = min(nl, 15); parts.append(f"lgkmcnt({nl})"); self.lg_done = max(self.lg_done, len(self.lgq) - nl)
        self.emit(Ins("s_waitcnt " + " ".join(parts), "W"))
        return True
    def raw(self, text, kind="S", **k):
        for line in text.strip().split("\n"):
            self.emit(Ins(line.strip(), kind, **k))
    def pol(self, p):
        return ("", " sc0", " sc1", " sc0 sc1", " nt", " sc0 nt", " sc1 nt", " sc0 sc1 nt")[p]
    def stemp(self, stream=0):
        self.tcount += 1
        return sT[2 * stream + self.tcount % 2]

    def plan(self):
        NL = self.NL
        self.groups = []
        for l in range(NL):
            if l == 0:
                G = [[0, 1, 2], [3, 4, 5], [6, 7, 8, 9], [10, 11, 12], list(range(13, 26))]
            else:
                G = [[0, 6, 12], [18, 1, 7], [13, 19, 2, 8], [14, 20, 3],
                     [9, 15, 21, 4, 10, 16, 22, 5, 11, 17, 23, 24, 25]]
            SL = [[13, 14, 15], [0, 1, 2], [3, 4, 5, 6], [13, 14, 15], [7, 8, 9, 10, 11, 12, 0, 1, 2, 3, 4, 5, 6]]
            self.groups.append(list(zip(G, SL)))
        self.entries = []
        self.steps = []
        def seg_main(l, gi, u, lst):
            for ks, sl in lst:
                e = dict(kind="m", l=l, u=u, ks=[ks], size=CH, gi=gi, first=len(self.steps))
                self.entries.append(e)
                for sb in range(2):
                    for ee in range(2):
                        self.steps.append(dict(e=len(self.entries) - 1, j=4 * u + 2 * sb + ee, ks=ks, slot=sl,
                                               va=vA[sb], rel=8 * ee, rdoff=512, l=l, gi=gi, u=u))
                e["last"] = len(self.steps) - 1
        def seg_extra(l, gi, bt):
            e = dict(kind="x", l=l, u=3, ks=[k for k, _ in bt], size=XB, gi=gi, first=len(self.steps))
            self.entries.append(e)
            for i, (ks, sl) in enumerate(bt):
                self.steps.append(dict(e=len(self.entries) - 1, j=12, ks=ks, slot=sl,
                                       va=vA2, rel=1024 * i, rdoff=256, l=l, gi=gi, u=3))
            e["last"] = len(self.steps) - 1
        for l in range(NL):
            gl = [list(zip(G, SL)) for (G, SL) in self.groups[l]]
            a, b = gl[0], gl[1]
            if l == 0:
                for gi_, lst_ in ((0, a), (1, b)):
                    for it in lst_:
                        for u in range(3): seg_main(l, gi_, u, [it])
            else:
                seg_main(l, 0, 0, a); seg_main(l, 0, 1, a); seg_main(l, 1, 0, b); seg_main(l, 1, 1, b)
                seg_main(l, 0, 2, a); seg_main(l, 1, 2, b)
            ab = a + b
            seg_extra(l, 1, ab[0:4]); seg_extra(l, 1, ab[4:6])
            for gi in (2, 3, 4):
                lst = gl[gi]
                for u in range(3): seg_main(l, gi, u, lst)
                if gi < 4: batches = [lst]
                elif l == 0: batches = [lst[0:4], lst[4:8], lst[8:12], lst[12:13]]
                else: batches = [lst[0:4], lst[4:8], lst[8:11], lst[11:13]]
                for bt in batches: seg_extra(l, gi, bt)
        self.nsteps = len(self.steps)
        seen = set()
        for st in self.steps:
            if st["j"] not in seen: seen.add(st["j"]); st["init"] = True
        iv = self.interval
        LA = self.LA
        self.bars = [-LA - 1] + list(range(iv - LA - 1, self.nsteps - LA - 1, iv))
        pos = 0
        live = []
        for n, e in enumerate(self.entries):
            if pos + e["size"] > RING: pos = 0
            e["base"] = pos; s0, s1 = pos, pos + e["size"]
            ov = [m for (m, a, b) in live if a < s1 and s0 < b]
            live = live + [(n, s0, s1)]
            lastneed = max([self.entries[m]["last"] for m in ov], default=None)
            if lastneed is None: e["jf"] = -1
            else:
                e["jf"] = next(j for j, P in enumerate(self.bars) if lastneed <= P + 1)
            e["jl"] = max(j for j, P in enumerate(self.bars) if P + LA + 1 <= e["first"] or j == 0)
            assert e["jf"] < e["jl"] or e["jf"] == -1, (n, e)
            pos = s1
        self.minlead = min((self.bars[e["jl"]] - self.bars[e["jf"]]) for e in self.entries if e["jf"] >= 0)

    def tr_reads(self, f):
        st = self.steps[f]; e = self.entries[st["e"]]
        r = wf(f)
        res = []
        for rd in range(2):
            off = e["base"] + st["rel"] + rd * st["rdoff"]
            res.append(Ins(f"ds_read_b64_tr_b16 v[{r+2*rd}:{r+2*rd+1}], v{st['va']} offset:{off}", "D",
                           rd=vr(st["va"]), wr=vr(r + 2 * rd, 2), lg=("wf", f, rd)))
        return res
    def mfma(self, f, mt):
        st = self.steps[f]
        c = acc(st["j"], mt); a = wf(f); b = 16 * st["slot"] + 4 * mt
        if st.get("init"):
            return Ins(f"v_mfma_f32_16x16x32_bf16 v[{c}:{c+3}], v[{a}:{a+3}], a[{b}:{b+3}], 0", "M",
                       rd=vr(a, 4) + ar(b, 4), wr=vr(c, 4))
        return Ins(f"v_mfma_f32_16x16x32_bf16 v[{c}:{c+3}], v[{a}:{a+3}], a[{b}:{b+3}], v[{c}:{c+3}]", "M",
                   rd=vr(a, 4) + ar(b, 4) + vr(c, 4), wr=vr(c, 4))
    def dma_entry(self, n):
        e = self.entries[n]; l = e["l"]
        t = self.stemp()
        if e["kind"] == "m":
            ks = e["ks"][0]
            const = (0 if self.NOW else l) * LSTRIDE + ks * KSB + 128 * e["u"]
            pat = vPW2 if (l > 0 and ks >= 24) else vPW
            seq = [S(f"s_add_u32 s{t}, s{sWq}, {const}"),
                   S(f"s_add_u32 m0, s{sW1032}, {e['base']}", note="m0"),
                   Ins(f"buffer_load_dwordx4 v{pat}, {srd(sW_)}, s{t} offen lds", "A", rd=vr(pat), vm=("w", n))]
        else:
            ks = e["ks"] + [e["ks"][-1]] * (4 - len(e["ks"]))
            lit = 0
            for i, k in enumerate(ks): lit |= (26 * (0 if self.NOW else l) + k) << (8 * i)
            pat = vPE2 if (l > 0 and ks[0] >= 24) else vPE
            seq = [S(f"s_lshr_b32 s{t}, 0x{lit:x}, s{sW8}"),
                   S(f"s_and_b32 s{t}, s{t}, 0xff"),
                   S(f"s_mul_i32 s{t}, s{t}, {KSB}"),
                   S(f"s_add_u32 s{t}, s{t}, s{sXq}"),
                   S(f"s_add_u32 m0, s{sW1024}, {e['base']}", note="m0"),
                   Ins(f"buffer_load_dwordx4 v{pat}, {srd(sW_)}, s{t} offen lds", "A", rd=vr(pat), vm=("w", n))]
        return seq
    def xload(self, l, ks, slot):
        t = sXs[(ks + l) % 2]
        seq = [S(f"s_add_u32 s{t}, s{sXb}, {(l - 1) * XLAYER + 4096 * ks}")]
        for mt in range(4):
            d = 16 * slot + 4 * mt
            if ks < 24:
                seq.append(Ins(f"buffer_load_dwordx4 a[{d}:{d+3}], v{vL16}, {srd(60 if self.NOLD else sWS_)}, s{t} offen offset:{1024*mt}{self.pol(self.LDP)}", "L",
                               rd=vr(vL16), wr=ar(d, 4), vm=("x", l, ks, mt, 0)))
            else:
                for h in range(2):
                    seq.append(Ins(f"buffer_load_dwordx2 a[{d+2*h}:{d+2*h+1}], v{vL8}, {srd(60 if self.NOLD else sWS_)}, s{t} offen offset:{2048*h+512*mt}{self.pol(self.LDP)}", "L",
                                   rd=vr(vL8), wr=ar(d + 2 * h, 2), vm=("x", l, ks, mt, h)))
        return seq
    def xtags(self, l, ks, mt):
        if l == 0: return [], [("xs", ks, mt)]
        if ks < 24: return [("x", l, ks, mt, 0)], []
        return [("x", l, ks, mt, 0), ("x", l, ks, mt, 1)], []
    def stage_dma(self, line, slot=None, tag="st"):
        if slot is None: slot = line % 3
        seq = []
        for j in range(8):
            imm = 1024 * (j & 1) + 128 * line
            if j % 2 == 0:
                seq.append(S(f"s_add_u32 m0, s{sXRw}, {8192 * slot + 1024 * j - 128 * line}", note="m0"))
            ins = Ins(f"buffer_load_dwordx4 v{vPX}, {srd(sX0_)}, s{sJ[j]} offen offset:{imm} lds", "A", rd=vr(vPX), vm=(tag, line, j))
            if j % 2 == 0: ins.note = "m0keep"
            seq.append(ins)
        return seq
    def stage_read(self, ks, slot):
        line, sb = ks >> 1, ks & 1
        seq = []
        for mt in range(4):
            d = 16 * slot + 4 * mt
            seq.append(Ins(f"ds_read_b128 a[{d}:{d+3}], v{vX[sb]} offset:{8192 * (line % 3) + 2048 * mt}", "D",
                           rd=vr(vX[sb]), wr=ar(d, 4), lg=("xs", ks, mt), need_vm=[("st", line, 2 * mt), ("st", line, 2 * mt + 1)]))
            seq[-1].minvm = self.AGE if line < 8 else self.AGE2
        return seq
    def reload_dma(self, u):
        seq = []
        if u == 0: seq.append(V(f"v_add_u32 v{vPX}, s{sWq}, v{vPX}", rd=vr(vPX), wr=vr(vPX)))
        if u < 3: return seq + self.stage_dma(u, (u + 1) % 3, "rl")
        for h in range(2):
            t = self.stemp(1)
            seq += [S(f"s_add_u32 s{t}, s{sRow}, s{sXq}"),
                    S(f"s_add_u32 s{t}, s{t}, {h * 32 * ROWB}"),
                    S(f"s_add_u32 m0, s{sXRw}, {24576 + 1024 * h}", note="m0"),
                    Ins(f"buffer_load_dwordx4 v{vPXE}, {srd(sX0_)}, s{t} offen lds", "A", rd=vr(vPXE), vm=("rl", 3, h))]
            seq[-1].lines = 32
        return seq
    def epi_unit(self, l, u):
        last = (l == self.NL - 1)
        seq = []
        items = [(sb, mt) for sb in range(2) for mt in range(4)] if u < 3 else [(0, mt) for mt in range(4)]
        def rd(i):
            sb, mt = items[i]; xp = vXP[i % 2]
            if u < 3:
                nv = [("rl", u, 2 * mt), ("rl", u, 2 * mt + 1)] if l == 0 else []
                return Ins(f"ds_read_b128 v[{xp}:{xp+3}], v{vX[sb]} offset:{8192 * ((u + 1) % 3) + 2048 * mt}", "D", rd=vr(vX[sb]), wr=vr(xp, 4),
                           lg=("xp", l, u, i), need_vm=nv)
            nv = [("rl", 3, mt >> 1)] if l == 0 else []
            return Ins(f"ds_read_b64 v[{xp}:{xp+1}], v{vX2} offset:{512 * mt}", "D", rd=vr(vX2), wr=vr(xp, 2), lg=("xp", l, u, i), need_vm=nv)
        seq2 = [rd(0), rd(1)]
        for b_ in range(2):
            if self.last_reader[b_] is not None: seq2[b_].after = [self.last_reader[b_]]
        for i, (sb, mt) in enumerate(items):
            xp = vXP[i % 2]
            ne = 2 if u < 3 else 1
            first = True
            for e in range(ne):
                j = 4 * u + 2 * sb + e if u < 3 else 12
                c = acc(j, mt)
                for p in range(2):
                    x = xp + 2 * e + p; t = vT[p]
                    i0 = V(f"v_lshlrev_b32 v{t}, 16, v{x}", rd=vr(x), wr=vr(t))
                    if first: i0.need_lg = [("xp", l, u, i)]; first = False
                    seq += [i0,
                            V(f"v_and_b32 v{x}, s{sMask}, v{x}", rd=vr(x), wr=vr(x)),
                            V(f"v_mul_f32 v{t}, v{t}, v{c+2*p}", rd=vr(t) + vr(c + 2 * p), wr=vr(t)),
                            V(f"v_mul_f32 v{x}, v{x}, v{c+2*p+1}", rd=vr(x) + vr(c + 2 * p + 1), wr=vr(x)),
                            V(f"v_cvt_pk_bf16_f32 v{x}, v{t}, v{x}", rd=vr(t) + vr(x), wr=vr(x))]
            lastv = seq[-1]
            if not last:
                t = sXt[i % 2]
                if u < 3:
                    b = 2 * u + sb
                    seq2.append(S(f"s_add_u32 s{t}, s42, {l * XLAYER + 4096 * b}"))
                    st = Ins(f"buffer_store_dwordx4 v[{xp}:{xp+3}], v{vL16}, {srd(60 if self.NOST else sWS_)}, s{t} offen offset:{1024*mt}{self.pol(self.STP)}", "T",
                             rd=vr(xp, 4) + vr(vL16), vm=("xo", l, u, i))
                else:
                    seq2.append(S(f"s_add_u32 s{t}, s43, {l * XLAYER}"))
                    st = Ins(f"buffer_store_dwordx2 v[{xp}:{xp+1}], v{vL8}, {srd(60 if self.NOST else sWS_)}, s{t} offen offset:{512*mt}{self.pol(self.STP)}", "T",
                             rd=vr(xp, 2) + vr(vL8), vm=("xo", l, u, i))
            else:
                if u < 3:
                    b = 2 * u + sb
                    st = Ins(f"buffer_store_dwordx4 v[{xp}:{xp+3}], v{vOut}, {srd(sOUT_)}, s{sOutMt[mt]} offen offset:{64*b}{self.pol(self.OUTP)}", "T",
                             rd=vr(xp, 4) + vr(vOut), vm=("xo", l, u, i))
                else:
                    t = sXt[i % 2]
                    seq2.append(S(f"s_add_u32 s{t}, s{sOutMt[mt]}, s76"))
                    st = Ins(f"buffer_store_dwordx2 v[{xp}:{xp+1}], v{vOutE}, {srd(sOUT_)}, s{t} offen{self.pol(self.OUTP)}", "T",
                             rd=vr(xp, 2) + vr(vOutE), vm=("xo", l, u, i))
            st.after = [lastv]; st.lines = 8 if u < 3 else 4; st.dl = -2000; st.hard = -2000
            self.last_reader[i % 2] = st
            seq2.append(st)
            if i + 2 < len(items): seq2.append(rd(i + 2))
        return seq, seq2
    def bias_unit(self, l, u):
        seq = []
        tiles = [4 * u + i for i in range(4)] if u < 3 else [12]
        def rd(i):
            xp = vXP[i % 2]
            return Ins(f"ds_read_b128 v[{xp}:{xp+3}], v{vBias} offset:{832 * l + 64 * tiles[i]}", "D", rd=vr(vBias), wr=vr(xp, 4), lg=("bi", l, tiles[i]))
        seq2 = [rd(0)] + ([rd(1)] if len(tiles) > 1 else [])
        for b_ in range(len(seq2)):
            if self.last_reader[b_] is not None: seq2[b_].after = [self.last_reader[b_]]
        for i, j in enumerate(tiles):
            xp = vXP[i % 2]
            first = True
            for mt in range(4):
                c = acc(j, mt)
                for r in range(4):
                    x = V(f"v_add_f32 v{c+r}, v{c+r}, v{xp+r}", rd=vr(c + r) + vr(xp + r), wr=vr(c + r))
                    if first: x.need_lg = [("bi", l, j)]; first = False
                    seq.append(x)
            self.last_reader[i % 2] = seq[-1]
            if i + 2 < len(tiles):
                r2 = rd(i + 2); r2.after = [seq[-1]]; seq2.append(r2)
        return seq, seq2
    def flag_set(self, val, need):
        v = V(f"v_add_u32 v{vFlagVal}, {val}, v{vBase}", rd=vr(vBase), wr=vr(vFlagVal), need_vm=list(need) + [("fb",)])
        v.minvm = self.T_ST
        st = Ins(f"buffer_store_dword v{vFlagVal}, v{vFlagOff}, {srd(sWS_)}, 0 offen sc1", "T", rd=vr(vFlagVal) + vr(vFlagOff), vm=("fs", val))
        st.lines = 1; st.dl = -3000; st.hard = -3000
        return [v, st]
    def flag_poll(self, val):
        k = val
        ld = Ins(f"buffer_load_dword v{vPoll}, v{vPollOff}, {srd(sWS_)}, 0 offen sc1", "L", rd=vr(vPollOff), wr=vr(vPoll), vm=("fp", val))
        chk = [V(f"v_sub_u32 v{vPoll}, v{vPoll}, v{vBase}", rd=vr(vPoll) + vr(vBase), wr=vr(vPoll), need_vm=[("fp", val), ("fb",)]),
               V(f"v_cmp_gt_u32 vcc, {val}, v{vPoll}", rd=vr(vPoll)),
               S("s_nop 0"),
               Ins(f"s_cbranch_vccnz Lslow{k}\nLback{k}:", "S")]
        self.slow.append(f"""Lslow{k}:
  s_mov_b32 s{sSpin}, 0x{self.SPIN:x}
Lspin{k}:
  buffer_load_dword v{vPoll}, v{vPollOff}, {srd(sWS_)}, 0 offen sc1
  s_waitcnt vmcnt(0)
  v_sub_u32 v{vPoll}, v{vPoll}, v{vBase}
  v_cmp_gt_u32 vcc, {val}, v{vPoll}
  s_sub_u32 s{sSpin}, s{sSpin}, 1
{"  s_add_u32 s90, s90, 0x%x" % (1 << (5 * (k - 1))) if self.prof else ""}
  s_cbranch_vccz Lback{k}
  s_cmp_lg_u32 s{sSpin}, 0
  s_cbranch_scc1 Lspin{k}
  s_branch Lback{k}""")
        return ld, chk
    def out_patterns(self):
        t0, t1 = vT
        return [V(f"v_lshrrev_b32 v{t0}, 4, v{vL16}", rd=vr(vL16), wr=vr(t0)),
                V(f"v_and_b32 v{t1}, 15, v{t0}", rd=vr(t0), wr=vr(t1)),
                V(f"v_mul_u32_u24 v{t1}, {ROWB}, v{t1}", rd=vr(t1), wr=vr(t1)),
                V(f"v_lshrrev_b32 v{t0}, 4, v{t0}", rd=vr(t0), wr=vr(t0)),
                V(f"v_lshlrev_b32 v{t0}, 3, v{t0}", rd=vr(t0), wr=vr(t0)),
                V(f"v_add_u32 v{vOutE}, v{t1}, v{t0}", rd=vr(t0) + vr(t1), wr=vr(vOutE)),
                V(f"v_add_u32 v{vOut}, v{vOutE}, v{t0}", rd=vr(t0) + vr(vOutE), wr=vr(vOut))]

    def prologue(self):
        R = self.raw
        VV = lambda t: self.emit(Ins(t, "V"))
        R("s_cmp_ge_u32 s2, 256\ns_cbranch_scc1 Lend")
        R("s_load_dwordx4 s[64:67], s[0:1], 0\ns_load_dwordx4 s[68:71], s[0:1], 16\ns_load_dwordx4 s[72:75], s[0:1], 32")
        if self.stamps:
            R("s_memrealtime s[80:81]\ns_memtime s[82:83]")
        if self.prof:
            R("s_memtime s[88:89]\ns_mov_b32 s90, 0")
        VV("v_lshrrev_b32 v31, 6, v0")
        VV("v_and_b32 v0, 63, v0")
        R(f"""s_and_b32 s{sC}, s2, 7
s_lshr_b32 s3, s2, 5""")
        VV(f"v_readfirstlane_b32 s{sWv}, v31")
        R(f"""s_lshl_b32 s55, s3, 2
s_lshl_b32 s3, s3, 3
s_add_u32 s{sC}, s{sC}, s3
s_lshr_b32 s{sQ}, s2, 3
s_and_b32 s{sQ}, s{sQ}, 3
s_mul_i32 s{sWq}, s{sQ}, 384
s_lshl_b32 s3, s{sC}, 2
s_add_u32 s3, s3, s{sWv}
s_mul_i32 s{sRow}, s3, {64 * ROWB}
s_add_u32 s55, s55, s{sWv}
s_mul_i32 s55, s55, {ROWB}
s_mul_i32 s{sW1032}, s{sWv}, 1032
s_lshl_b32 s{sW8}, s{sWv}, 3
s_mul_i32 s{sXRw}, s{sWv}, {XRW}
s_add_u32 s{sXRw}, s{sXRw}, {XR}
s_nop 0""")
        for j in range(8):
            R(f"s_add_u32 s{sJ[j]}, s{sRow}, {j * 8 * ROWB - 1024 * (j & 1)}")
        VV(f"v_lshlrev_b32 v{vL16}, 4, v0")
        VV("v_lshrrev_b32 v20, 3, v0")
        VV("v_and_b32 v21, 7, v0")
        VV("v_and_b32 v23, 6, v20")
        VV("v_lshlrev_b32 v22, 1, v20")
        VV("v_xor_b32 v23, v21, v23")
        VV("v_and_b32 v22, 4, v22")
        VV("v_lshlrev_b32 v23, 4, v23")
        VV(f"v_mul_u32_u24 v24, {ROWB}, v20")
        VV("v_xor_b32 v22, v21, v22")
        VV(f"v_add_u32 v{vPX}, v23, v24")
        VV("v_lshlrev_b32 v22, 4, v22")
        VV(f"v_add_u32 v23, s{sW8}, v20")
        VV(f"v_mul_u32_u24 v23, {ROWB}, v23")
        VV(f"v_add_u32 v{vPW}, v23, v22")
        self.pstamp()
        R("s_waitcnt lgkmcnt(0)")
        self.pstamp()
        self.mk(sX0_, 64, 16384 * ROWB)
        self.mk(sW_, 66, 3 * LSTRIDE)
    def prologue2(self):
        R = self.raw
        R(f"""s_lshl_b32 s{sXq}, s{sQ}, 5
s_add_u32 s{sXq}, s{sXq}, 1536
s_lshl_b32 s{sW1024}, s{sWv}, 10
s_lshl_b32 s3, s{sC}, 2
s_add_u32 s3, s3, s{sWv}
s_mul_i32 s{sXb}, s3, 106496
s_add_u32 s{sXb}, s{sXb}, {self.XB0}
s_mov_b32 s{sMask}, 0xffff0000
s_mul_i32 s42, s{sQ}, 24576
s_add_u32 s42, s42, s{sXb}
s_lshr_b32 s43, s{sQ}, 1
s_add_u32 s43, s43, 24
s_lshl_b32 s43, s43, 12
s_and_b32 s3, s{sQ}, 1
s_lshl_b32 s3, s3, 11
s_add_u32 s43, s43, s3
s_add_u32 s43, s43, s{sXb}
s_mul_i32 s76, s{sQ}, 352
s_sub_u32 s76, 1536, s76""")
        for mt in range(4):
            R(f"s_add_u32 s{sOutMt[mt]}, s{sRow}, {mt * 16 * ROWB}\ns_add_u32 s{sOutMt[mt]}, s{sOutMt[mt]}, s{sWq}")
        self.mk(sB_, 68, 3 * ROWB)
        self.mk(sOUT_, 70, 16384 * ROWB)
        self.mk(sWS_, 74, 0x10000000)
        if self.NOST or self.NOLD or self.NOW: self.mk(60, 74, 0)
        self.prologue_rest()
    def mk(self, b, lo, size):
        self.raw(f"s_mov_b32 s{b}, s{lo}\ns_and_b32 s{b+1}, s{lo+1}, 0xffff\ns_mov_b32 s{b+2}, {size}\ns_mov_b32 s{b+3}, 0x20000")
    def prologue_rest(self):
        R = self.raw
        VV = lambda t: self.emit(Ins(t, "V"))
        VV("v_lshrrev_b32 v23, 2, v20")
        VV("v_lshlrev_b32 v23, 4, v23")
        VV("v_and_b32 v24, 3, v20")
        VV("v_add_u32 v23, v23, v24")
        R(f"s_lshl_b32 s3, s{sWv}, 2")
        VV("v_add_u32 v23, s3, v23")
        VV(f"v_mul_u32_u24 v23, {ROWB}, v23")
        VV(f"v_add_u32 v{vPW2}, v23, v22")
        VV("v_lshrrev_b32 v20, 1, v0")
        VV("v_and_b32 v21, 1, v0")
        VV("v_lshlrev_b32 v21, 4, v21")
        VV(f"v_mul_u32_u24 v23, {ROWB}, v20")
        VV(f"v_add_u32 v{vPXE}, v23, v21")
        VV("v_and_b32 v23, 19, v20")
        VV("v_and_b32 v24, 4, v20")
        VV("v_lshlrev_b32 v24, 1, v24")
        VV("v_or_b32 v23, v23, v24")
        VV("v_and_b32 v24, 8, v20")
        VV("v_lshrrev_b32 v24, 1, v24")
        VV("v_or_b32 v23, v23, v24")
        VV(f"v_mul_u32_u24 v23, {ROWB}, v23")
        VV(f"v_add_u32 v{vPE}, v23, v21")
        VV("v_and_b32 v23, 7, v20")
        VV("v_and_b32 v24, 8, v20")
        VV("v_lshlrev_b32 v24, 1, v24")
        VV("v_or_b32 v23, v23, v24")
        VV("v_and_b32 v24, 16, v20")
        VV("v_lshrrev_b32 v24, 1, v24")
        VV("v_or_b32 v23, v23, v24")
        VV(f"v_mul_u32_u24 v23, {ROWB}, v23")
        VV(f"v_add_u32 v{vPE2}, v23, v21")
        VV("v_lshrrev_b32 v20, 4, v0")
        VV("v_and_b32 v21, 15, v0")
        VV("v_lshrrev_b32 v22, 2, v0")
        VV("v_and_b32 v22, 3, v22")
        VV("v_and_b32 v23, 3, v0")
        VV("v_mul_u32_u24 v24, 1032, v20")
        VV("v_lshlrev_b32 v25, 7, v22")
        VV("v_add_u32 v24, v24, v25")
        VV("v_lshlrev_b32 v25, 4, v23")
        VV("v_add_u32 v24, v24, v25")
        VV("v_lshrrev_b32 v25, 1, v22")
        VV("v_lshlrev_b32 v25, 6, v25")
        VV(f"v_add_u32 v{vA[0]}, v24, v25")
        VV("v_sub_u32 v25, 64, v25")
        VV(f"v_add_u32 v{vA[1]}, v24, v25")
        VV("v_lshrrev_b32 v24, 1, v20")
        VV("v_lshlrev_b32 v24, 9, v24")
        VV("v_and_b32 v25, 1, v20")
        VV("v_lshlrev_b32 v25, 7, v25")
        VV("v_add_u32 v24, v24, v25")
        VV("v_lshlrev_b32 v25, 5, v22")
        VV("v_add_u32 v24, v24, v25")
        VV("v_lshlrev_b32 v25, 3, v23")
        VV(f"v_add_u32 v{vA2}, v24, v25")
        VV("v_and_b32 v24, 6, v21")
        VV("v_xor_b32 v24, v20, v24")
        VV("v_lshlrev_b32 v24, 4, v24")
        VV("v_lshlrev_b32 v25, 7, v21")
        VV("v_add_u32 v24, v24, v25")
        VV(f"v_add_u32 v{vX[0]}, s{sXRw}, v24")
        VV(f"v_xor_b32 v{vX[1]}, 64, v{vX[0]}")
        VV("v_lshlrev_b32 v24, 5, v21")
        VV("v_lshlrev_b32 v25, 3, v20")
        VV("v_add_u32 v24, v24, v25")
        VV(f"v_add_u32 v24, s{sXRw}, v24")
        VV(f"v_add_u32 v{vX2}, 24576, v24")
        VV(f"v_lshlrev_b32 v{vL16}, 4, v0")
        VV(f"v_lshlrev_b32 v{vL8}, 3, v0")
        VV("v_lshlrev_b32 v24, 4, v20")
        VV(f"v_add_u32 v{vBias}, {BIAS}, v24")
        R(f"s_lshl_b32 s3, s{sC}, 2\ns_add_u32 s3, s3, s{sWv}\ns_lshl_b32 s3, s3, 9\ns_add_u32 s3, s3, {FBASE}")
        VV("v_and_b32 v24, 3, v0")
        VV("v_lshlrev_b32 v24, 7, v24")
        VV(f"v_add_u32 v{vPollOff}, s3, v24")
        VV(f"v_mov_b32 v{vFlagOff}, 0x7fffff00")
        VV(f"v_cmp_eq_u32 vcc, s{sQ}, v0")
        R("s_nop 1")
        VV(f"v_cndmask_b32 v{vFlagOff}, v{vFlagOff}, v{vPollOff}, vcc")
        R(f"s_lshl_b32 s56, s{sQ}, 4")
        VV("v_and_b32 v24, 15, v0")
        VV("v_lshrrev_b32 v25, 4, v0")
        VV("v_add_u32 v24, s56, v24")
        VV("v_lshlrev_b32 v25, 7, v25")
        VV(f"v_mul_u32_u24 v24, {ROWB}, v24")
        VV(f"v_add_u32 v{vPFX}, v24, v25")
        VV("v_lshrrev_b32 v25, 5, v0")
        VV("v_lshlrev_b32 v25, 30, v25")
        VV(f"v_add_u32 v{vPFX}, v{vPFX}, v25")
        for i in self.pfw_pattern(vPFW, False): self.emit(i)
        self.bias_prologue()
        R(f"s_lshl_b32 s91, s2, 2\ns_add_u32 s91, s91, s{sWv}\ns_lshl_b32 s91, s91, 12")

    def bias_prologue(self):
        R = self.raw; VV = lambda t: self.emit(Ins(t, "V"))
        R(f"s_lshl_b32 s3, s{sWv}, 6")
        VV("v_add_u32 v20, s3, v0")
        VV("v_min_u32 v20, 207, v20")
        VV("v_lshrrev_b32 v21, 4, v20")
        VV("v_and_b32 v22, 15, v20")
        VV("v_lshrrev_b32 v23, 1, v21")
        VV("v_lshlrev_b32 v23, 5, v23")
        VV("v_lshrrev_b32 v24, 2, v22")
        VV("v_lshlrev_b32 v24, 3, v24")
        VV("v_add_u32 v23, v23, v24")
        VV("v_and_b32 v24, 1, v21")
        VV("v_lshlrev_b32 v24, 2, v24")
        VV("v_add_u32 v23, v23, v24")
        VV("v_and_b32 v24, 3, v22")
        VV("v_add_u32 v23, v23, v24")
        R(f"s_mul_i32 s3, s{sQ}, 192")
        VV("v_add_u32 v23, s3, v23")
        R(f"s_lshl_b32 s3, s{sQ}, 4\ns_add_u32 s3, s3, 768")
        VV("v_add_u32 v24, s3, v22")
        VV("v_cmp_eq_u32 vcc, 12, v21")
        R("s_nop 1")
        VV("v_cndmask_b32 v23, v23, v24, vcc")
        VV("v_lshlrev_b32 v23, 1, v23")
        VV("v_lshlrev_b32 v22, 2, v20")
        VV(f"v_add_u32 v22, {BIAS}, v22")
    def bias_loads(self):
        for l in range(3):
            self.emit(Ins(f"buffer_load_ushort v{25+l}, v23, {srd(sB_)}, 0 offen offset:{l*ROWB}", "L", vm=("bl", l)))
            self.vm_step[("bl", l)] = -100
    def bias_write(self):
        a = [V(f"v_lshlrev_b32 v{25+l}, 16, v{25+l}", rd=vr(25 + l), wr=vr(25 + l)) for l in range(3)]
        a[0].need_vm = [("bl", 2)]
        a.append(V("v_add_f32 v25, 1.0, v25", rd=vr(25), wr=vr(25)))
        b = [Ins(f"ds_write_b32 v22, v{25+l} offset:{832*l}", "D", rd=vr(22) + vr(25 + l), lg=("bw", l)) for l in range(3)]
        b[0].after = [a[-1]]
        self.last_reader = [b[-1], b[-1]]
        return a, b

    COST = {"S": 4, "W": 4, "X": 4, "SS": 8, "V": 4, "D": 8, "L": 8, "A": 12, "T": 12}
    def fits(self, kinds):
        t = 4
        for i, k in enumerate(kinds):
            if k == "V": t = max(t, 8) + 4
            else: t += self.COST[k]
            if k == "L" and (i + 1 == len(kinds)): t += 4
            if k == "L" and i + 1 < len(kinds) and kinds[i + 1] != "V": return False
            if k in ("A", "T") and (i != 0 or len(kinds) > 1): return False
        return t <= 16

    def first_step(self, l, gi, u=0):
        for f, st in enumerate(self.steps):
            if st["l"] == l and st["gi"] == gi and st["u"] == u: return f
    def last_step(self, l, gi, u):
        r = None
        for f, st in enumerate(self.steps):
            if st["l"] == l and st["gi"] == gi and st["u"] == u: r = f
        return r
    def group_range(self, l, gi):
        fs = [f for f, st in enumerate(self.steps) if st["l"] == l and st["gi"] == gi]
        return fs[0], fs[-1]

    def build_streams(self):
        NL = self.NL
        self.last_reader = [None, None]
        M1 = []
        M2 = []
        E = []
        E2 = []
        M3 = []
        for n, e in enumerate(self.entries):
            es = -100 if e["jf"] < 0 else self.bars[e["jf"]]
            sq = self.dma_entry(n)
            for i_ in sq: i_.dl = min(self.bars[e["jl"]] - self.LATW, max(es, 0) + self.RSL)
            for i_ in sq: i_.hard = self.bars[e["jl"]] - 14
            sq[-1].lines = 8 if e["kind"] == "m" else 32
            M1.append([es, 0, sq, ("bar", e["jf"])])
        G = self.groups[0]
        slot_of = {}
        for gi, (ks_l, sl_l) in enumerate(G):
            for ks, sl in zip(ks_l, sl_l): slot_of[ks] = (gi, sl)
        def first_use(l, ks):
            for f, st in enumerate(self.steps):
                if st["l"] == l and st["ks"] == ks: return f
        self.first_use = first_use
        def slot_free(l, ks, sl):
            f0 = first_use(l, ks)
            r = -100
            for f in range(f0):
                if self.steps[f]["slot"] == sl: r = f
            return r
        self.stage_reads = {}
        stage_free = {}
        DM = []
        rd_earliest = {}
        for ks in range(26):
            gi, sl = slot_of[ks]
            rd_earliest[ks] = slot_free(0, ks, sl) + 1 if slot_free(0, ks, sl) >= 0 else -100
        cur = -100
        for ks in range(26):
            cur = max(cur, rd_earliest[ks]); rd_earliest[ks] = cur
        self.rd_earliest = rd_earliest
        self.slot_of0 = slot_of
        for line in range(13):
            seq = self.stage_dma(line)
            if line >= 3: seq[0].need_lg = [("xs", 2 * (line - 3) + 1, 3)]
            if line < self.PRO_X: es = -100
            else:
                es = self.T_STG0 + self.T_STGD * (line - self.PRO_X)
                k = 0
                for i_ in seq:
                    i_.earliest = int(es + self.PSP * k); i_.dl = i_.earliest + 8
                    if i_.kind == "A": k += 1
            M3.append([es, 1, seq, None])
        for u in (0, 3, 1, 2):
            seq = self.reload_dma(u)
            if u < 3: seq[0 if u else 1].need_lg = [("xs", 2 * (10 + u) + 1, 3)]
            es = self.T_RL[u]; k = 0
            for i_ in seq:
                i_.earliest = int(es + self.PSP * k); i_.dl = i_.earliest + 8
                if i_.kind == "A": k += 1
            M3.append([es, 1, seq, None])
        for ks in range(26):
            gi, sl = slot_of[ks]
            M2.append([rd_earliest[ks], 0, self.stage_read(ks, sl), None])
        for l in range(1, NL):
            base = 3 * (l - 1)
            def cls(ks):
                if ks >= 24: return 3
                return (ks % 6) // 2 + 1
            polled = set()
            lst = []
            for gi, (ks_l, sl_l) in enumerate(self.groups[l]):
                for ks, sl in zip(ks_l, sl_l):
                    lst.append((gi, ks, sl))
            gb0, gb1 = self.group_range(l - 1, 4)
            l0 = gb1 + 1
            exp = {1: l0 + self.T_U0, 2: l0 + self.T_U1, 3: l0 + self.T_U2}
            items = []
            for gi, ks, sl in lst:
                es = max(slot_free(l, ks, sl) + 1, exp[cls(ks)], first_use(l, ks) - self.XLEAD)
                items.append([es, cls(ks), first_use(l, ks), ks, sl])
            items.sort(key=lambda it: (it[0], it[2]))
            for es, c, gi, ks, sl in items:
                seq = []
                if c not in polled:
                    polled.add(c)
                    ld, chk = self.flag_poll(base + c)
                    ld.lines = 4; ld.dl = es - self.T_POLL
                    M2.append([es - self.T_POLL, 2, [ld], None])
                    seq += chk
                xl = self.xload(l, ks, sl)
                for i_ in xl:
                    i_.dl = first_use(l, ks) - self.LATX
                    if i_.kind == "L": i_.lines = 8 if ks < 24 else 4
                seq += xl
                M2.append([es, 3, seq, None])
        if NL > 1:
            E.append([self.T_PAT, 0, self.pfw_pattern(vPFX, True), ("pat",)])
        a, b = self.bias_write()
        E.append([self.T_BW, 0, a, None]); E2.append([self.T_BW, 0, b, ("bw",)])
        for l in range(NL):
            g3 = 2
            for u in range(4):
                lastf = self.last_step(l, g3, u)
                a, b = self.bias_unit(l, u)
                E.append([lastf + 2, 1, a, ("bias", l, u)]); E2.append([lastf + 2 - self.E2LEAD, 1, b, None])
            if l == NL - 1:
                E.append([self.group_range(l, 4)[0] + 8, 0, self.out_patterns(), ("outpat",)])
            for u in range(4):
                lastf = self.last_step(l, 4, u)
                a, b = self.epi_unit(l, u)
                E.append([lastf + 2, 0, a, None]); E2.append([lastf + 2 - self.E2LEAD, 0, b, ("epi", l, u)])
        PFs = self.pf_streams()
        E.append([self.T_PW0[-1] + 2, 0, self.pfg_pat, None])
        M1.sort(key=lambda x: (x[0], x[1])); M2.sort(key=lambda x: (x[0], x[1])); E.sort(key=lambda x: (x[0], x[1]))
        flat = lambda Q: [(max(es, ins.earliest) if ins.earliest is not None else es, ins, tag, idx == len(seq) - 1) for es, _, seq, tag in Q for idx, ins in enumerate(seq)]
        M3.sort(key=lambda x: (x[0], x[1]))
        E2.sort(key=lambda x: (x[0], x[1]))
        self.PF = flat(PFs)
        self.M1, self.M2, self.E, self.M3, self.E2 = flat(M1), flat(M2), flat(E), flat(M3), flat(E2)

    def try_emit_from(self, Q, f, gap_kinds, allow, post_w):
        if not Q: return False
        es, ins, tag, lastflag = Q[0]
        if es > f: return False
        if isinstance(tag, tuple) and tag[0] == "bar" and tag[1] >= 0 and tag[1] > self.bar_passed: return False
        if ins.kind not in allow: return False
        if ins.note == 'm0' and self.m0_owner is not None: return False
        for a in ins.after:
            if id(a) not in self.issue_step: return False
        for t in ins.need_vm:
            if t not in self.vm_pos: return False
        for t in ins.need_lg:
            if t not in self.lg_pos: return False
        nv, nl = self.wait_for(ins.need_vm, ins.need_lg)
        needw = nv is not None or nl is not None
        kinds = gap_kinds + (["W"] if needw else []) + [ins.kind] + post_w
        if not self.fits(kinds):
            if needw and self.fits(gap_kinds + ["W"] + post_w) and self.wait_ok(ins, f):
                self.emit_wait(ins.need_vm, ins.need_lg); gap_kinds.append("W"); return True
            return False
        if needw and not self.wait_ok(ins, f): return False
        if not self.hazard_ok(ins): return False
        if needw:
            self.emit_wait(ins.need_vm, ins.need_lg); gap_kinds.append("W")
        self.emit(ins); gap_kinds.append(ins.kind)
        if ins.note == 'm0': self.m0_owner = id(Q)
        if ins.kind == 'A' and ins.note != "m0keep": self.m0_owner = None
        self.issue_step[id(ins)] = f
        if ins.vm is not None: self.vm_step[ins.vm] = f
        if ins.lg is not None: self.lg_step[ins.lg] = f
        Q.pop(0)
        if isinstance(tag, tuple) and tag[0] == "flag": self.flag_step[tag[1]] = f
        if isinstance(tag, tuple) and tag[0] == "pat":
            assert ("pf", "x", 12) in self.vm_pos, ("prefetch pattern overwrites vPX before reload issued", f, {k: v for k, v in self.vm_step.items() if k[0] in ("st", "rl")}, {k: v for k, v in self.lg_step.items() if k[0] == "xs"})
            self.pat_done = lastflag
        if ins.vm is not None and ins.vm[0] == "pf" and ins.vm[1] == "w" and ins.vm[2] > 0: assert self.pat_done and ("rl", 3, 1) in self.vm_pos
        if isinstance(tag, tuple) and tag[0] == "outpat":
            assert not any(i.kind == "L" and i.vm[0] == "fp" for _, i, _, _ in self.M2) and not any("v_cmp_gt_u32 vcc" in i.text for _, i, _, _ in self.M2) and not self.F
        if lastflag and isinstance(tag, tuple) and tag[0] == "epi":
            self.epi_done(tag, f)
        if lastflag and isinstance(tag, tuple) and tag[0] == "bias":
            self.bias_done[(tag[1], tag[2])] = f
        return True
    def wait_ok(self, ins, f):
        for t in ins.need_vm:
            if self.vm_pos[t] >= self.vm_done and f - self.vm_step.get(t, -1000) < (ins.minvm or self.MIN_VM): return False
        for t in ins.need_lg:
            if self.lg_pos[t] >= self.lg_done and f - self.lg_step.get(t, -1000) < self.MIN_LG: return False
        return True
    def hazard_ok(self, ins):
        if ins.kind in ("V", "D", "L"):
            regs = set(ins.rd) | set(ins.wr) if ins.kind == "V" else set(ins.wr)
            n = 0
            for prev in reversed(self.out):
                if n >= 9: break
                if prev.kind == "M" and (set(prev.wr) & regs): return False
                n += 1 if prev.kind != "SS" else 2
        if ins.kind == "V":
            n = 0
            for prev in reversed(self.out):
                if n >= 2: break
                if prev.kind == "T" and (set(prev.rd) & set(ins.wr)): return False
                n += 1
        if ins.kind == "V" and not getattr(self, "drain", False):
            f, g = self.cur
            nxt = []
            for d in (1, 2):
                gg = g + d; ff = f + gg // 4; gg %= 4
                if ff < self.nsteps: nxt.append(self.mfma(ff, gg))
            for m in nxt:
                if set(m.rd) & set(ins.wr): return False
        if ins.kind == "A":
            if self.out and self.out[-1].note == "m0": return False
        return True
    def epi_done(self, tag, f):
        _, l, u = tag
        self.epi_fin[(l, u)] = f
        if l == self.NL - 1: return
        n = 8 if u < 3 else 4
        tags = [("xo", l, u, i) for i in range(n)]
        val = None
        if u == 0: val = 3 * l + 1
        elif u == 1: val = 3 * l + 2
        elif u == 3: val = 3 * l + 3; tags = tags + [("xo", l, 2, i) for i in range(8)]
        if val is not None:
            self.F += [(f, ins, ("flag", val), False) for ins in self.flag_set(val, tags)]

    def schedule(self):
        self.issue_step = {}; self.vm_step = {}; self.lg_step = {}
        self.pending = []; self.epi_fin = {}; self.bias_done = {}
        self.bar_passed = -1
        self.F = []; self.pat_done = False; self.B = 0.0; self.Bhist = []
        self.m0_owner = None
        N = self.nsteps
        barat = {P: j for j, P in enumerate(self.bars)}
        need_at = {}
        for n, e in enumerate(self.entries): need_at.setdefault(e["jl"], []).append(("w", n))
        self.pro_issue()
        self.emit_wait(need_at.get(0, []), [])
        self.emit(Ins("s_barrier", "X")); self.bar_passed = 0
        self.pstamp()
        for f in range(self.LA):
            for r in self.tr_reads(f): self.emit(r); self.lg_step[r.lg] = -10
        if self.stamps: self.stamp()
        self.epi_started = set()
        for f in range(N):
            st = self.steps[f]
            if f == 0:
                nv, nl = self.step_needs(0)
                self.emit_wait(nv, nl)
            if st["l"] > 0 and (st["l"], st["u"]) not in self.epi_started:
                self.epi_started.add((st["l"], st["u"]))
                assert (st["l"] - 1, st["u"]) in self.epi_fin, ("epilogue late", st["l"] - 1, st["u"], f, self.epi_fin, self.flag_step, {k: v for k, v in self.vm_step.items() if k[0] in ("x", "fp", "fs", "xo")})
            if self.PROL and f == 0: self.pstamp()
            if self.prof and not self.PROL and f >= self.PS and (f - self.PS) % self.PI == 0 and (f - self.PS) // self.PI <= 60:
                k = (f - self.PS) // self.PI
                if k > 0: self.emit(Ins(f"v_writelane_b32 v0, s86, {k}", "V"))
                self.emit(Ins("s_memtime s[86:87]", "S"))
                self.prof_k = k
            nL = 0; dynbar = False
            for g in range(4):
                self.emit(self.mfma(f, g))
                self.cur = (f, g)
                kinds = []
                if g < 2 and f + self.LA < N:
                    r = self.tr_reads(f + self.LA)[g]
                    if g == 0:
                        pass
                    self.emit(r); self.lg_step[r.lg] = f; kinds.append("D")
                if g == 1 and f + 1 < N:
                    nv, nl = self.step_needs(f + 1)
                    if f in barat: nv = nv + need_at.get(barat[f], [])
                    for val, tags in self.pending:
                        if all(f - self.vm_step[t] >= self.T_ST for t in tags):
                            nv = nv + tags; dynbar = True
                    if self.emit_wait(nv, nl): kinds.append("W")
                if g == 2 and (f in barat or dynbar):
                    self.emit(Ins("s_barrier", "X")); kinds.append("X")
                    if f in barat: self.bar_passed = barat[f]
                    for val, tags in list(self.pending):
                        if all(self.vm_pos[t] < self.vm_done for t in tags):
                            self.pending.remove((val, tags))
                            seq = self.flag_set(val, tags)
                            self.F += [(f, ins, None, False) for ins in seq]
                            self.flag_step[val] = f
                self.B = max(0.0, self.B - 16 * (self.ETA if f > 215 else self.ETA0))
                progress = True
                allk = ("S", "SS", "V", "A", "L", "T", "D")
                order = [self.F, self.M1, self.M2, self.PF, self.M3, self.E2, self.E]
                while progress:
                    progress = False
                    cands = []
                    for qi, Q in enumerate(order):
                        if Q and (Q[0][1].kind in ("A", "L", "T") or Q[0][1].note == "m0") and Q[0][0] <= f:
                            ins = Q[0][1]
                            dl = ins.dl if ins.dl is not None else Q[0][0] + 10
                            cands.append((dl, qi, Q))
                    cands.sort(key=lambda c: (c[0], c[1]))
                    for dl, qi, Q in cands:
                        ins = Q[0][1]
                        th = self.TH_URG if dl <= f + self.URG else self.TH
                        if ins.note == "m0": th += 16
                        hard = getattr(ins, "hard", None)
                        if self.B > th and not (hard is not None and hard <= f): continue
                        if Q is self.PF and g < 2: continue
                        if self.try_emit_from(Q, f, kinds, allk, []):
                            if ins.kind in ("A", "L", "T"): self.B += ins.lines * self.CPL
                            progress = True; break
                    if progress: continue
                    for Q in order:
                        if Q and (Q[0][1].kind in ("A", "L", "T") or Q[0][1].note == "m0"): continue
                        if self.try_emit_from(Q, f, kinds, allk, []):
                            progress = True; break
                self.Bhist.append(self.B)
            if self.stamps and f + 1 < N and (self.steps[f + 1]["l"] != st["l"] or (self.steps[f + 1]["gi"] == 4 and st["gi"] == 3)):
                self.stamp()
        self.drain = True
        guard = 0
        assert not self.PF
        while self.M1 or self.M2 or self.E or self.M3 or self.F or self.E2:
            guard += 1
            assert guard < 100000
            done = False
            for Q in (self.F, self.E2, self.E, self.M2, self.M3, self.M1):
                if Q:
                    es, ins, tag, lastflag = Q[0]
                    if any(id(a) not in self.issue_step for a in ins.after): continue
                    if any(t not in self.lg_pos for t in ins.need_lg): continue
                    while not self.hazard_ok(ins): self.emit(Ins("s_nop 0", "S"))
                    self.emit_wait(ins.need_vm, ins.need_lg)
                    while not self.hazard_ok(ins): self.emit(Ins("s_nop 0", "S"))
                    self.emit(ins); Q.pop(0); self.issue_step[id(ins)] = N
                    if ins.vm is not None: self.vm_step[ins.vm] = N
                    if lastflag and isinstance(tag, tuple) and tag[0] == "epi": self.epi_done(tag, N)
                    done = True; break
            assert done
        if self.stamps: self.stamp()
        if self.prof:
            k = (self.prof_k + 1) if not self.PROL else 40
            self.raw(f"""v_writelane_b32 v0, s86, {k}
s_waitcnt vmcnt(0)
s_memtime s[86:87]
s_waitcnt lgkmcnt(0)
s_nop 4""")
            self.emit(Ins("v_writelane_b32 v0, s88, 0", "V"))
            if self.PROL:
                for kk in range(self.prol_k):
                    self.emit(Ins(f"v_writelane_b32 v0, s{[60, 62, 78, 80, 82, 100, 100, 100][kk]}, {kk + 1}", "V"))
            if k + 1 < 64: self.emit(Ins(f"v_writelane_b32 v0, s86, {k+1}", "V"))
            self.emit(Ins(f"v_writelane_b32 v0, s90, 63", "V"))
            self.raw(f"""s_lshl_b32 s3, s2, 2
s_add_u32 s3, s3, s{sWv}
s_lshl_b32 s3, s3, 8""")
            self.emit(Ins(f"v_lshrrev_b32 v2, 2, v{vL16}", "V"))
            self.raw("s_nop 4")
            self.emit(Ins(f"buffer_store_dword v0, v2, {srd(sWS_)}, s3 offen", "T"))

    def step_needs(self, f):
        st = self.steps[f]
        nl = [("wf", f, 0), ("wf", f, 1)]
        nv = []
        for mt in range(4):
            a, b = self.xtags(st["l"], st["ks"], mt)
            for t in a:
                assert t in self.vm_pos, ("x load not issued before use", t, f, self.epi_fin, self.flag_step, {k: v for k, v in self.vm_step.items() if k[0] in ("x", "fp", "fs")}, self.M2[0][0], self.M2[0][1].text)
            for t in b:
                assert t in self.lg_pos, ("stage read not issued before use", t, f)
            nv += a; nl += b
        return nv, nl

    def pstamp(self):
        if self.prof and self.PROL:
            k = self.prol_k; self.prol_k += 1
            r = [60, 62, 78, 80, 82, 100, 100, 100][k]
            self.emit(Ins(f"s_memtime s[{r}:{r+1}]", "S"))
    def pro_issue(self):
        def take(Q, pred):
            out = []
            while Q and pred(Q[0]): out.append(Q.pop(0))
            return out
        items = take(self.M1, lambda it: it[0] <= -50) + take(self.M3, lambda it: it[0] <= -50)
        seqs = []; cur = []
        for it in items:
            cur.append(it[1])
            if it[1].kind == "A": seqs.append(cur); cur = []
        wseq = [s for s in seqs if s[-1].vm[0] == "w"]; xseq = [s for s in seqs if s[-1].vm[0] == "st"]
        while self.PF and self.PF[0][0] <= -90:
            es, ins, tag, lf = self.PF.pop(0)
            self.emit(ins); self.issue_step[id(ins)] = -100
            if ins.vm is not None: self.vm_step[ins.vm] = -100
        nW, nX = self.PRO_W, self.PRO_X
        order = [("x", 0), ("w", 0, 3), ("w", 3, nW), ("x", 1), ("x", 2)]
        emit_list = xseq[0:8] + wseq[0:3] + wseq[3:nW] + xseq[8:8 * nX]
        assert 4 * nW >= 12
        rest_w = wseq[nW:]; rest_x = xseq[8 * nX:]
        for s in emit_list:
            for k, ins in enumerate(s):
                if ins.kind == "A" and self.out[-1].note == "m0": self.emit(Ins("s_nop 0", "S"))
                self.emit(ins)
                if ins.vm is not None: self.vm_step[ins.vm] = -100
        self.M1[0:0] = [(-40, ins, ("bar", -1), False) for s in rest_w for ins in s]
        self.M3[0:0] = [(-40, ins, None, False) for s in rest_x for ins in s]
        self.pstamp()
        self.prologue2()
        self.emit(Ins(f"buffer_load_dword v{vBase}, v{vPollOff}, {srd(sWS_)}, 0 offen sc1", "L", vm=("fb",)))
        self.vm_step[("fb",)] = -100
        self.bias_loads()
        while self.PF and self.PF[0][0] <= -50:
            es, ins, tag, lf = self.PF.pop(0)
            self.emit(ins); self.issue_step[id(ins)] = -100
            if ins.vm is not None: self.vm_step[ins.vm] = -100
        self.pstamp()
        n = 0
        while self.M2 and n < 8:
            es, ins, tag, lf = self.M2[0]
            assert ins.kind == "D"
            self.emit_wait(ins.need_vm, ins.need_lg)
            self.emit(ins); self.M2.pop(0); n += 1
            if ins.lg is not None: self.lg_step[ins.lg] = -100
        self.pstamp()

    def pf_streams(self):
        PF = []
        def ld(pat, dst, base, soff, tag, pre=(), off=0):
            i = Ins(f"buffer_load_dword v{dst}, v{pat}, {srd(base)}, {soff} offen" + (f" offset:{off}" if off else ""), "L", rd=vr(pat), wr=vr(dst), vm=tag)
            i.lines = {"x": 32, "w": 16, "g": 32}[tag[1]]
            return list(pre) + [i]
        t = 54
        for k, (a, es) in enumerate(zip(self.PX_L, self.T_PX)):
            PF.append([es, 0, ld(vPFX, vPoll, sX0_, f"s{t}", ("pf", "x", a), [S(f"s_add_u32 s{t}, s{sRow}, {128 * a}")]), None])
        for j, es in enumerate(self.T_PW0):
            PF.append([es, 1, ld(vPFW, vPoll, sW_, f"s{t}", ("pf", "w", 0, j), [S(f"s_mov_b32 s{t}, {4 * j * KSB}")]), None])
        lastw0 = PF[-1][2][-1]
        t0 = vT[0]
        pat = [V(f"v_lshlrev_b32 v{vPFG}, 3, v{vL16}", rd=vr(vL16), wr=vr(vPFG)),
               V(f"v_lshrrev_b32 v{t0}, 9, v{vL16}", rd=vr(vL16), wr=vr(t0)),
               V(f"v_lshlrev_b32 v{t0}, 30, v{t0}", rd=vr(t0), wr=vr(t0)),
               V(f"v_add_u32 v{vPFG}, v{vPFG}, v{t0}", rd=vr(t0) + vr(vPFG), wr=vr(vPFG))]
        pat[0].after = [lastw0]
        self.pfg_pat = pat
        g = ld(vPFG, vPoll, sW_, "s91", ("pf", "g"))
        g[-1].after = [pat[-1]]
        PF.append([self.T_WG, 0, g, None])
        if self.NL > 1:
            pass
            for l in range(1, self.NL):
                l0 = self.group_range(l - 1, 4)[1] + 1
                for j, dt in enumerate(self.T_PWL):
                    PF.append([l0 + dt, 1, ld(vPFX, vPXE, sW_, f"s{t}", ("pf", "w", l, j), [S(f"s_mov_b32 s{t}, {(0 if self.NOW else l) * LSTRIDE + j * KSB}")]), None])
        PF.sort(key=lambda x: (x[0], x[1]))
        return PF
    def pfw_pattern(self, dst, perm):
        t0, t1 = vT
        seq = [V(f"v_lshrrev_b32 v{t0}, 6, v{vL16}", rd=vr(vL16), wr=vr(t0)),
               V(f"v_mul_u32_u24 v{dst}, {(6 if perm else 1) * KSB}, v{t0}", rd=vr(t0), wr=vr(dst)),
               V(f"v_lshrrev_b32 v{t0}, 2, v{t0}", rd=vr(t0), wr=vr(t0)),
               V(f"v_min_u32 v{t0}, 1, v{t0}", rd=vr(t0), wr=vr(t0)),
               V(f"v_lshlrev_b32 v{t0}, 30, v{t0}", rd=vr(t0), wr=vr(t0)),
               V(f"v_and_b32 v{dst}, 0x3fffffff, v{dst}", rd=vr(dst), wr=vr(dst)),
               V(f"v_add_u32 v{dst}, v{dst}, v{t0}", rd=vr(t0) + vr(dst), wr=vr(dst)),
               V(f"v_lshrrev_b32 v{t0}, 4, v{vL16}", rd=vr(vL16), wr=vr(t0)),
               V(f"v_and_b32 v{t0}, 3, v{t0}", rd=vr(t0), wr=vr(t0)),
               V(f"v_lshlrev_b32 v{t1}, 7, v{t0}", rd=vr(t0), wr=vr(t1)),
               V(f"v_add_u32 v{t1}, s{sWq}, v{t1}", rd=vr(t1), wr=vr(t1)),
               V(f"v_cmp_eq_u32 vcc, 3, v{t0}", rd=vr(t0)),
               V(f"v_mov_b32 v{t0}, 0x600", wr=vr(t0)),
               V(f"v_cndmask_b32 v{t1}, v{t1}, v{t0}, vcc", rd=vr(t0) + vr(t1), wr=vr(t1)),
               V(f"v_add_u32 v{dst}, v{dst}, v{t1}", rd=vr(dst) + vr(t1), wr=vr(dst)),
               V(f"v_add_u32 v{dst}, s55, v{dst}", rd=vr(dst), wr=vr(dst))]
        return seq

    def stamp(self):
        k = self.nstamp; self.nstamp += 1
        if k < 8:
            self.emit(Ins(f"s_memtime s[{86 + 2*k}:{87 + 2*k}]", "S"))

    def check(self):
        out = self.out
        errs = 0
        for i, ins in enumerate(out):
            if ins.kind == "M":
                n = 0
                for prev in reversed(out[max(0, i - 4):i]):
                    if n >= 2: break
                    if prev.kind == "V" and set(prev.wr) & set(ins.rd):
                        print("HAZARD V->M", i, prev.text, "|", ins.text, file=sys.stderr); errs += 1
                    n += 1
            if ins.kind == "V":
                n = 0
                for prev in reversed(out[max(0, i - 10):i]):
                    if n >= 8: break
                    if prev.kind == "M" and set(prev.wr) & (set(ins.rd) | set(ins.wr)):
                        print("HAZARD M->V", i, prev.text, "|", ins.text, file=sys.stderr); errs += 1
                    n += 1
        return errs

    def text(self):
        NL = self.NL
        L = []
        L.append("""; Kernarg layout for this problem (48 bytes, ptrs only, base s[0:1]):
;   offset   0: d_in[0] x0  shape=(16384, 832) dtype=bfloat16 strides=(1664, 2) contiguous=True
;   offset   8: d_in[1] ws  shape=(3, 832, 832) dtype=bfloat16 strides=(1384448, 1664, 2) contiguous=True
;   offset  16: d_in[2] bs  shape=(3, 832) dtype=bfloat16 strides=(1664, 2) contiguous=True
;   offset  24: d_out     shape=(16384, 832) dtype=bfloat16 (2 bytes/elem)
;   offset  32: d_debug   256 bytes
;   offset  40: d_ws      268435456 bytes workspace
; cluster of 4 workgroups = 256 rows; each workgroup owns 208 output features; layers exchange x through d_ws.""")
        L.append("; @launch grid=(256,1,1) block=(256,1,1) lds=163840")
        L.append('.amdgcn_target "amdgcn-amd-amdhsa--gfx950"')
        L.append(".text")
        L.append(f".globl {KNAME}\n.p2align 8\n.type {KNAME},@function\n{KNAME}:")
        for ins in self.out: L.append("  " + ins.text)
        if self.stamps:
            L.append("  s_memtime s[84:85]\n  s_memrealtime s[78:79]\n  s_waitcnt lgkmcnt(0)")
            L.append(f"  s_lshl_b32 s3, s2, 7\n  v_mov_b32 v2, s3\n  v_cmp_eq_u32 vcc, 0, v{vL16}\n  s_cmp_eq_u32 s{sWv}, 0\n  s_cbranch_scc0 Lnost\n  s_and_saveexec_b64 s[4:5], vcc")
            regs = [80, 82, 78, 84] + [86 + 2 * k for k in range(min(self.nstamp, 8))]
            for i, s in enumerate(regs):
                L.append(f"  v_mov_b32 v6, s{s}\n  v_mov_b32 v7, s{s+1}\n  buffer_store_dwordx2 v[6:7], v2, {srd(sWS_)}, 0 offen offset:{8*i}\n  s_nop 1")
            L.append("Lnost:")
        L.append("  s_waitcnt vmcnt(0)")
        L.append("Lend:\n  s_endpgm")
        L += self.slow
        L.append('.section .rodata,"a"\n.p2align 6')
        L.append(f".amdhsa_kernel {KNAME}")
        L.append("  .amdhsa_next_free_vgpr 512\n  .amdhsa_next_free_sgpr 102\n  .amdhsa_accum_offset 256\n  .amdhsa_group_segment_fixed_size 0\n  .amdhsa_kernarg_size 48\n  .amdhsa_user_sgpr_count 2\n  .amdhsa_user_sgpr_kernarg_segment_ptr 1\n  .amdhsa_system_sgpr_workgroup_id_x 1\n.end_amdhsa_kernel")
        return "\n".join(L) + "\n"

    LA = 3
    XB0 = XBASE
    ETA0 = 1.3
    RSL = 2
    ETA = 1.0; CPL = 9; TH = 120; TH_URG = 280; URG = 2; LATW = 16; LATX = 20; T_STG0 = 8; T_STGD = 15; PSP = 1.6; T_RL = [185, 228, 262, 214]
    PROL = 0; T_BW = 20; PRO_W = 6; PRO_X = 2; PX_L = [2, 4, 6, 8, 10, 12]; T_PX = [7, 30, 56, 82, 108, 134]; T_PW0 = [-60, 9, 32, 70, 90, 110, 126]; T_WG = 226; T_PWL = [-90, -70, 20, 60, 90, 110, 120, 130]; T_PAT = 200; AGE2 = 12; T_PWA = -100; T_PWB = 70; AGE = 16
    NOST = 0; NOLD = 0; NOW = 0
    LDP = 2; STP = 2; OUTP = 0
    IV = 12
    PS = 0; PI = 17
    T_U0 = -32; T_U1 = 50; T_U2 = 120; XLEAD = 26; SPIN = 0x8000; E2LEAD = 2; T_POLL = 10; T_ST = 8; MAXL = 2
    MIN_VM = 10; MIN_LG = 1

    def run(self):
        self.flag_step = {}
        self.plan()
        self.prologue()
        self.build_streams()
        self.schedule()
        errs = self.check()
        return errs

if __name__ == "__main__":
    ap = argparse.ArgumentParser()
    ap.add_argument("-o", default="k.s")
    ap.add_argument("--nl", type=int, default=3)
    ap.add_argument("--interval", type=int, default=12)
    ap.add_argument("--stamps", action="store_true")
    ap.add_argument("--prof", action="store_true")
    ap.add_argument("--set", action="append", default=[])
    a = ap.parse_args()
    for kv in a.set:
        k, v = kv.split("="); setattr(Gen, k, int(v, 0))
    g = Gen(NL=a.nl, interval=Gen.IV, stamps=a.stamps, prof=a.prof)
    errs = g.run()
    open(a.o, "w").write(g.text())
    from collections import Counter
    print("instrs", len(g.out), Counter(i.kind for i in g.out), "hazard errs", errs, "minlead(steps)", g.minlead, file=sys.stderr)
    print("xload steps", {k: v for k, v in g.vm_step.items() if k[0] in ("x", "fp", "fs") and (k[0] != "x" or k[3] == 3)}, file=sys.stderr)
    import statistics
    print("B mean", statistics.mean(g.Bhist), "max", max(g.Bhist), "frac>150", sum(b > 150 for b in g.Bhist) / len(g.Bhist), file=sys.stderr)
    leads = [g.bars[e["jl"]] - g.vm_step[("w", n)] for n, e in enumerate(g.entries) if g.vm_step[("w", n)] > -50]
    print("ring leads min/mean", min(leads), statistics.mean(leads), "hist", sorted(leads)[:20], file=sys.stderr)
    print("stage", {k: v for k, v in g.vm_step.items() if k[0] in ("st", "rl") and k[2] in (0, 7)}, file=sys.stderr)
    print("pf", {k: v for k, v in g.vm_step.items() if k[0] == "pf"}, file=sys.stderr)
    print("epi_fin", g.epi_fin, "bias", g.bias_done, "flags", g.flag_step, "nsteps", g.nsteps, file=sys.stderr)
```

```python
import sys, argparse

KNAME = "standalone__dcn_v2_cross__recsys_kernel"
D = 832; ROWB = 1664
LSTRIDE = D * ROWB
KSB = 32 * ROWB
RING = 54848
BIAS = 54848
XR = 57344
XRW = 26624
XBASE = 0x100000
FBASE = 0x40000
XLAYER = 64 * 4 * 106496
CH = 4128
XB = 4096

ACC0 = 48
def acc(j, mt): return ACC0 + 16 * j + 4 * mt
WF0 = 32; NB = 4
def wf(f): return WF0 + 4 * (f % NB)
vA = [1, 2]; vA2 = 3
vPW = 4; vPW2 = 5; vPE = 6; vPE2 = 7
vX = [8, 9]; vX2 = 10
vL16 = 11; vL8 = 12
vPX = 13; vOut = 30
vPXE = 14; vOutE = 31
vBias = 15
vFlagOff = 16; vFlagVal = 17; vPollOff = 18; vPoll = 19; vBase = 30
vPFX = 31; vPFW = 17; vPFG = 17
vXP = [20, 24]
vT = [28, 29]
vDummy = 0
sW_ = 8; sX0_ = 12; sOUT_ = 16; sWS_ = 20; sDBG_ = 24; sB_ = 28
sQ = 32; sC = 33; sWv = 34; sWq = 35; sW1032 = 36; sW8 = 37; sXq = 38; sW1024 = 39
sXb = 40; sRow = 41; sMask = 44; sXRw = 45
sOutMt = [46, 47, 48, 49]
sT = [50, 51, 52, 53, 54, 55]
sXs = [56, 57]
sXt = [77, 84]
sP = 58
sSpin = 59
sJ = [92, 93, 94, 95, 96, 97, 98, 99]
sStamp = 60
def srd(b): return f"s[{b}:{b+3}]"

class Ins:
    __slots__ = ("text", "kind", "rd", "wr", "vm", "lg", "need_vm", "need_lg", "earliest", "label", "note", "after", "minvm", "dl", "lines", "hard")
    def __init__(self, text, kind, rd=(), wr=(), vm=None, lg=None, need_vm=None, need_lg=None, earliest=None, note=None):
        self.text = text; self.kind = kind; self.rd = tuple(rd); self.wr = tuple(wr)
        self.vm = vm; self.lg = lg; self.need_vm = need_vm or []; self.need_lg = need_lg or []
        self.earliest = earliest; self.note = note; self.after = []; self.minvm = None; self.dl = None; self.lines = 8; self.hard = None
def vr(b, n=1): return [("v", b + i) for i in range(n)]
def ar(b, n=1): return [("a", b + i) for i in range(n)]

def S(t, **k): return Ins(t, "S", **k)
def V(t, rd=(), wr=(), **k): return Ins(t, "V", rd=rd, wr=wr, **k)

class Gen:
    def __init__(self, NL=3, interval=12, dbg=None, stamps=False, prof=False):
        self.prof = prof; self.prol_k = 0
        self.NL = NL; self.interval = interval; self.stamps = stamps
        self.out = []
        self.vmq = []; self.vm_done = 0; self.vm_pos = {}
        self.lgq = []; self.lg_done = 0; self.lg_pos = {}
        self.slow = []
        self.tcount = 0
        self.nstamp = 0

    def emit(self, ins):
        if ins.vm is not None:
            assert ins.vm not in self.vm_pos, ins.vm
            self.vm_pos[ins.vm] = len(self.vmq); self.vmq.append(ins.vm)
        if ins.lg is not None:
            assert ins.lg not in self.lg_pos, ins.lg
            self.lg_pos[ins.lg] = len(self.lgq); self.lgq.append(ins.lg)
        self.out.append(ins)
    def wait_for(self, need_vm, need_lg):
        nv = None; nl = None
        for t in need_vm:
            p = self.vm_pos[t]
            if p >= self.vm_done:
                n = len(self.vmq) - 1 - p
                nv = n if nv is None else min(nv, n)
        for t in need_lg:
            p = self.lg_pos[t]
            if p >= self.lg_done:
                n = len(self.lgq) - 1 - p
                nl = n if nl is None else min(nl, n)
        return nv, nl
    def emit_wait(self, need_vm, need_lg):
        nv, nl = self.wait_for(need_vm, need_lg)
        if nv is None and nl is None: return False
        parts = []
        if nv is not None:
            nv = min(nv, 63); parts.append(f"vmcnt({nv})"); self.vm_done = max(self.vm_done, len(self.vmq) - nv)
        if nl is not None:
            nl = min(nl, 15); parts.append(f"lgkmcnt({nl})"); self.lg_done = max(self.lg_done, len(self.lgq) - nl)
        self.emit(Ins("s_waitcnt " + " ".join(parts), "W"))
        return True
    def raw(self, text, kind="S", **k):
        for line in text.strip().split("\n"):
            self.emit(Ins(line.strip(), kind, **k))
    def xch(self, l):
        if self.XMODE == 2: return (sOUT_, -self.XB0) if l == 0 else (sWS_, 0)
        if self.XMODE == 1: return (sWS_, 0)
        return (sWS_, l * XLAYER)
    def pol(self, p):
        return ("", " sc0", " sc1", " sc0 sc1", " nt", " sc0 nt", " sc1 nt", " sc0 sc1 nt")[p]
    def stemp(self, stream=0):
        self.tcount += 1
        return sT[2 * stream + self.tcount % 2]

    def plan(self):
        NL = self.NL
        self.groups = []
        for l in range(NL):
            if l == 0:
                G = [[0, 1, 2], [3, 4, 5], [6, 7, 8, 9], [10, 11, 12], list(range(13, 26))]
            else:
                G = [[0, 6, 12], [18, 1, 7], [13, 19, 2, 8], [14, 20, 3],
                     [9, 15, 21, 4, 10, 16, 22, 5, 11, 17, 23, 24, 25]]
            SL = [[13, 14, 15], [0, 1, 2], [3, 4, 5, 6], [13, 14, 15], [7, 8, 9, 10, 11, 12, 0, 1, 2, 3, 4, 5, 6]]
            self.groups.append(list(zip(G, SL)))
        self.entries = []
        self.steps = []
        def seg_main(l, gi, u, lst):
            for ks, sl in lst:
                e = dict(kind="m", l=l, u=u, ks=[ks], size=CH, gi=gi, first=len(self.steps))
                self.entries.append(e)
                for sb in range(2):
                    for ee in range(2):
                        self.steps.append(dict(e=len(self.entries) - 1, j=4 * u + 2 * sb + ee, ks=ks, slot=sl,
                                               va=vA[sb], rel=8 * ee, rdoff=512, l=l, gi=gi, u=u))
                e["last"] = len(self.steps) - 1
        def seg_extra(l, gi, bt):
            e = dict(kind="x", l=l, u=3, ks=[k for k, _ in bt], size=XB, gi=gi, first=len(self.steps))
            self.entries.append(e)
            for i, (ks, sl) in enumerate(bt):
                self.steps.append(dict(e=len(self.entries) - 1, j=12, ks=ks, slot=sl,
                                       va=vA2, rel=1024 * i, rdoff=256, l=l, gi=gi, u=3))
            e["last"] = len(self.steps) - 1
        for l in range(NL):
            gl = [list(zip(G, SL)) for (G, SL) in self.groups[l]]
            a, b = gl[0], gl[1]
            if l == 0:
                for gi_, lst_ in ((0, a), (1, b)):
                    for it in lst_:
                        for u in range(3): seg_main(l, gi_, u, [it])
            else:
                seg_main(l, 0, 0, a); seg_main(l, 0, 1, a); seg_main(l, 1, 0, b); seg_main(l, 1, 1, b)
                seg_main(l, 0, 2, a); seg_main(l, 1, 2, b)
            ab = a + b
            seg_extra(l, 1, ab[0:4]); seg_extra(l, 1, ab[4:6])
            for gi in (2, 3, 4):
                lst = gl[gi]
                for u in range(3): seg_main(l, gi, u, lst)
                if gi < 4: batches = [lst]
                elif l == 0: batches = [lst[0:4], lst[4:8], lst[8:12], lst[12:13]]
                else: batches = [lst[0:4], lst[4:8], lst[8:11], lst[11:13]]
                for bt in batches: seg_extra(l, gi, bt)
        self.nsteps = len(self.steps)
        seen = set()
        for st in self.steps:
            if st["j"] not in seen: seen.add(st["j"]); st["init"] = True
        iv = self.interval
        LA = self.LA
        self.bars = [-LA - 1] + list(range(iv - LA - 1, self.nsteps - LA - 1, iv))
        pos = 0
        live = []
        for n, e in enumerate(self.entries):
            if pos + e["size"] > RING: pos = 0
            e["base"] = pos; s0, s1 = pos, pos + e["size"]
            ov = [m for (m, a, b) in live if a < s1 and s0 < b]
            live = live + [(n, s0, s1)]
            lastneed = max([self.entries[m]["last"] for m in ov], default=None)
            if lastneed is None: e["jf"] = -1
            else:
                e["jf"] = next(j for j, P in enumerate(self.bars) if lastneed <= P + 1)
            e["jl"] = max(j for j, P in enumerate(self.bars) if P + LA + 1 <= e["first"] or j == 0)
            assert e["jf"] < e["jl"] or e["jf"] == -1, (n, e)
            pos = s1
        self.minlead = min((self.bars[e["jl"]] - self.bars[e["jf"]]) for e in self.entries if e["jf"] >= 0)

    def tr_reads(self, f):
        st = self.steps[f]; e = self.entries[st["e"]]
        r = wf(f)
        res = []
        for rd in range(2):
            off = e["base"] + st["rel"] + rd * st["rdoff"]
            res.append(Ins(f"ds_read_b64_tr_b16 v[{r+2*rd}:{r+2*rd+1}], v{st['va']} offset:{off}", "D",
                           rd=vr(st["va"]), wr=vr(r + 2 * rd, 2), lg=("wf", f, rd)))
        return res
    def mfma(self, f, mt):
        st = self.steps[f]
        c = acc(st["j"], mt); a = wf(f); b = 16 * st["slot"] + 4 * mt
        if st.get("init"):
            return Ins(f"v_mfma_f32_16x16x32_bf16 v[{c}:{c+3}], v[{a}:{a+3}], a[{b}:{b+3}], 0", "M",
                       rd=vr(a, 4) + ar(b, 4), wr=vr(c, 4))
        return Ins(f"v_mfma_f32_16x16x32_bf16 v[{c}:{c+3}], v[{a}:{a+3}], a[{b}:{b+3}], v[{c}:{c+3}]", "M",
                   rd=vr(a, 4) + ar(b, 4) + vr(c, 4), wr=vr(c, 4))
    def dma_entry(self, n):
        e = self.entries[n]; l = e["l"]
        t = self.stemp()
        if e["kind"] == "m":
            ks = e["ks"][0]
            const = (0 if self.NOW else l) * LSTRIDE + ks * KSB + 128 * e["u"]
            pat = vPW2 if (l > 0 and ks >= 24) else vPW
            seq = [S(f"s_add_u32 s{t}, s{sWq}, {const}"),
                   S(f"s_add_u32 m0, s{sW1032}, {e['base']}", note="m0"),
                   Ins(f"buffer_load_dwordx4 v{pat}, {srd(sW_)}, s{t} offen lds", "A", rd=vr(pat), vm=("w", n))]
        else:
            ks = e["ks"] + [e["ks"][-1]] * (4 - len(e["ks"]))
            lit = 0
            for i, k in enumerate(ks): lit |= (26 * (0 if self.NOW else l) + k) << (8 * i)
            pat = vPE2 if (l > 0 and ks[0] >= 24) else vPE
            seq = [S(f"s_lshr_b32 s{t}, 0x{lit:x}, s{sW8}"),
                   S(f"s_and_b32 s{t}, s{t}, 0xff"),
                   S(f"s_mul_i32 s{t}, s{t}, {KSB}"),
                   S(f"s_add_u32 s{t}, s{t}, s{sXq}"),
                   S(f"s_add_u32 m0, s{sW1024}, {e['base']}", note="m0"),
                   Ins(f"buffer_load_dwordx4 v{pat}, {srd(sW_)}, s{t} offen lds", "A", rd=vr(pat), vm=("w", n))]
        return seq
    def xload(self, l, ks, slot):
        t = sXs[(ks + l) % 2]
        xs, xo = self.xch(l - 1)
        seq = [S(f"s_add_u32 s{t}, s{sXb}, {(xo + 4096 * ks) & 0xffffffff}")]
        for mt in range(4):
            d = 16 * slot + 4 * mt
            if ks < 24:
                seq.append(Ins(f"buffer_load_dwordx4 a[{d}:{d+3}], v{vL16}, {srd(60 if self.NOLD else xs)}, s{t} offen offset:{1024*mt}{self.pol(self.LDP)}", "L",
                               rd=vr(vL16), wr=ar(d, 4), vm=("x", l, ks, mt, 0)))
            else:
                for h in range(2):
                    seq.append(Ins(f"buffer_load_dwordx2 a[{d+2*h}:{d+2*h+1}], v{vL8}, {srd(60 if self.NOLD else xs)}, s{t} offen offset:{2048*h+512*mt}{self.pol(self.LDP)}", "L",
                                   rd=vr(vL8), wr=ar(d + 2 * h, 2), vm=("x", l, ks, mt, h)))
        return seq
    def xtags(self, l, ks, mt):
        if l == 0: return [], [("xs", ks, mt)]
        if ks < 24: return [("x", l, ks, mt, 0)], []
        return [("x", l, ks, mt, 0), ("x", l, ks, mt, 1)], []
    def stage_dma(self, line, slot=None, tag="st"):
        if slot is None: slot = line % 3
        seq = []
        for j in range(8):
            imm = 1024 * (j & 1) + 128 * line
            if j % 2 == 0:
                seq.append(S(f"s_add_u32 m0, s{sXRw}, {8192 * slot + 1024 * j - 128 * line}", note="m0"))
            ins = Ins(f"buffer_load_dwordx4 v{vPX}, {srd(sX0_)}, s{sJ[j]} offen offset:{imm} lds", "A", rd=vr(vPX), vm=(tag, line, j))
            if j % 2 == 0: ins.note = "m0keep"
            seq.append(ins)
        return seq
    def stage_read(self, ks, slot):
        line, sb = ks >> 1, ks & 1
        seq = []
        for mt in range(4):
            d = 16 * slot + 4 * mt
            seq.append(Ins(f"ds_read_b128 a[{d}:{d+3}], v{vX[sb]} offset:{8192 * (line % 3) + 2048 * mt}", "D",
                           rd=vr(vX[sb]), wr=ar(d, 4), lg=("xs", ks, mt), need_vm=[("st", line, 2 * mt), ("st", line, 2 * mt + 1)]))
            seq[-1].minvm = self.AGE if line < 8 else self.AGE2
        return seq
    def reload_dma(self, u):
        seq = []
        if u == 0: seq.append(V(f"v_add_u32 v{vPX}, s{sWq}, v{vPX}", rd=vr(vPX), wr=vr(vPX)))
        if u < 3: return seq + self.stage_dma(u, (u + 1) % 3, "rl")
        for h in range(2):
            t = self.stemp(1)
            seq += [S(f"s_add_u32 s{t}, s{sRow}, s{sXq}"),
                    S(f"s_add_u32 s{t}, s{t}, {h * 32 * ROWB}"),
                    S(f"s_add_u32 m0, s{sXRw}, {24576 + 1024 * h}", note="m0"),
                    Ins(f"buffer_load_dwordx4 v{vPXE}, {srd(sX0_)}, s{t} offen lds", "A", rd=vr(vPXE), vm=("rl", 3, h))]
            seq[-1].lines = 32
        return seq
    def epi_unit(self, l, u):
        last = (l == self.NL - 1)
        seq = []
        items = [(sb, mt) for sb in range(2) for mt in range(4)] if u < 3 else [(0, mt) for mt in range(4)]
        def rd(i):
            sb, mt = items[i]; xp = vXP[i % 2]
            if u < 3:
                nv = [("rl", u, 2 * mt), ("rl", u, 2 * mt + 1)] if l == 0 else []
                return Ins(f"ds_read_b128 v[{xp}:{xp+3}], v{vX[sb]} offset:{8192 * ((u + 1) % 3) + 2048 * mt}", "D", rd=vr(vX[sb]), wr=vr(xp, 4),
                           lg=("xp", l, u, i), need_vm=nv)
            nv = [("rl", 3, mt >> 1)] if l == 0 else []
            return Ins(f"ds_read_b64 v[{xp}:{xp+1}], v{vX2} offset:{512 * mt}", "D", rd=vr(vX2), wr=vr(xp, 2), lg=("xp", l, u, i), need_vm=nv)
        seq2 = [rd(0), rd(1)]
        for b_ in range(2):
            if self.last_reader[b_] is not None: seq2[b_].after = [self.last_reader[b_]]
        for i, (sb, mt) in enumerate(items):
            xp = vXP[i % 2]
            ne = 2 if u < 3 else 1
            first = True
            for e in range(ne):
                j = 4 * u + 2 * sb + e if u < 3 else 12
                c = acc(j, mt)
                for p in range(2):
                    x = xp + 2 * e + p; t = vT[p]
                    i0 = V(f"v_lshlrev_b32 v{t}, 16, v{x}", rd=vr(x), wr=vr(t))
                    if first: i0.need_lg = [("xp", l, u, i)]; first = False
                    seq += [i0,
                            V(f"v_and_b32 v{x}, s{sMask}, v{x}", rd=vr(x), wr=vr(x)),
                            V(f"v_mul_f32 v{t}, v{t}, v{c+2*p}", rd=vr(t) + vr(c + 2 * p), wr=vr(t)),
                            V(f"v_mul_f32 v{x}, v{x}, v{c+2*p+1}", rd=vr(x) + vr(c + 2 * p + 1), wr=vr(x)),
                            V(f"v_cvt_pk_bf16_f32 v{x}, v{t}, v{x}", rd=vr(t) + vr(x), wr=vr(x))]
            lastv = seq[-1]
            if not last:
                t = sXt[i % 2]
                if u < 3:
                    b = 2 * u + sb
                    xs, xo = self.xch(l)
                    seq2.append(S(f"s_add_u32 s{t}, s42, {(xo + 4096 * b) & 0xffffffff}"))
                    st = Ins(f"buffer_store_dwordx4 v[{xp}:{xp+3}], v{vL16}, {srd(60 if self.NOST else xs)}, s{t} offen offset:{1024*mt}{self.pol(self.STP)}", "T",
                             rd=vr(xp, 4) + vr(vL16), vm=("xo", l, u, i))
                else:
                    xs, xo = self.xch(l)
                    seq2.append(S(f"s_add_u32 s{t}, s43, {xo & 0xffffffff}"))
                    st = Ins(f"buffer_store_dwordx2 v[{xp}:{xp+1}], v{vL8}, {srd(60 if self.NOST else xs)}, s{t} offen offset:{512*mt}{self.pol(self.STP)}", "T",
                             rd=vr(xp, 2) + vr(vL8), vm=("xo", l, u, i))
            else:
                if u < 3:
                    b = 2 * u + sb
                    st = Ins(f"buffer_store_dwordx4 v[{xp}:{xp+3}], v{vOut}, {srd(sOUT_)}, s{sOutMt[mt]} offen offset:{64*b}{self.pol(self.OUTP)}", "T",
                             rd=vr(xp, 4) + vr(vOut), vm=("xo", l, u, i))
                else:
                    t = sXt[i % 2]
                    seq2.append(S(f"s_add_u32 s{t}, s{sOutMt[mt]}, s76"))
                    st = Ins(f"buffer_store_dwordx2 v[{xp}:{xp+1}], v{vOutE}, {srd(sOUT_)}, s{t} offen{self.pol(self.OUTP)}", "T",
                             rd=vr(xp, 2) + vr(vOutE), vm=("xo", l, u, i))
            st.after = [lastv]; st.lines = 8 if u < 3 else 4; st.dl = -2000; st.hard = -2000
            self.last_reader[i % 2] = st
            seq2.append(st)
            if i + 2 < len(items): seq2.append(rd(i + 2))
        return seq, seq2
    def bias_unit(self, l, u):
        seq = []
        tiles = [4 * u + i for i in range(4)] if u < 3 else [12]
        def rd(i):
            xp = vXP[i % 2]
            return Ins(f"ds_read_b128 v[{xp}:{xp+3}], v{vBias} offset:{832 * l + 64 * tiles[i]}", "D", rd=vr(vBias), wr=vr(xp, 4), lg=("bi", l, tiles[i]))
        seq2 = [rd(0)] + ([rd(1)] if len(tiles) > 1 else [])
        for b_ in range(len(seq2)):
            if self.last_reader[b_] is not None: seq2[b_].after = [self.last_reader[b_]]
        for i, j in enumerate(tiles):
            xp = vXP[i % 2]
            first = True
            for mt in range(4):
                c = acc(j, mt)
                for r in range(4):
                    x = V(f"v_add_f32 v{c+r}, v{c+r}, v{xp+r}", rd=vr(c + r) + vr(xp + r), wr=vr(c + r))
                    if first: x.need_lg = [("bi", l, j)]; first = False
                    seq.append(x)
            self.last_reader[i % 2] = seq[-1]
            if i + 2 < len(tiles):
                r2 = rd(i + 2); r2.after = [seq[-1]]; seq2.append(r2)
        return seq, seq2
    def flag_set(self, val, need):
        v = V(f"v_add_u32 v{vFlagVal}, {val}, v{vBase}", rd=vr(vBase), wr=vr(vFlagVal), need_vm=list(need) + [("fb",)])
        v.minvm = self.T_ST
        st = Ins(f"buffer_store_dword v{vFlagVal}, v{vFlagOff}, {srd(sWS_)}, 0 offen sc1", "T", rd=vr(vFlagVal) + vr(vFlagOff), vm=("fs", val))
        st.lines = 1; st.dl = -3000; st.hard = -3000
        return [v, st]
    def flag_poll(self, val):
        k = val
        ld = Ins(f"buffer_load_dword v{vPoll}, v{vPollOff}, {srd(sWS_)}, 0 offen sc1", "L", rd=vr(vPollOff), wr=vr(vPoll), vm=("fp", val))
        chk = [V(f"v_sub_u32 v{vPoll}, v{vPoll}, v{vBase}", rd=vr(vPoll) + vr(vBase), wr=vr(vPoll), need_vm=[("fp", val), ("fb",)]),
               V(f"v_cmp_gt_u32 vcc, {val}, v{vPoll}", rd=vr(vPoll)),
               S("s_nop 0"),
               Ins(f"s_cbranch_vccnz Lslow{k}\nLback{k}:", "S")]
        self.slow.append(f"""Lslow{k}:
  s_mov_b32 s{sSpin}, 0x{self.SPIN:x}
Lspin{k}:
  buffer_load_dword v{vPoll}, v{vPollOff}, {srd(sWS_)}, 0 offen sc1
  s_waitcnt vmcnt(0)
  v_sub_u32 v{vPoll}, v{vPoll}, v{vBase}
  v_cmp_gt_u32 vcc, {val}, v{vPoll}
  s_sub_u32 s{sSpin}, s{sSpin}, 1
{"  s_add_u32 s90, s90, 0x%x" % (1 << (5 * (k - 1))) if self.prof else ""}
  s_cbranch_vccz Lback{k}
  s_cmp_lg_u32 s{sSpin}, 0
  s_cbranch_scc1 Lspin{k}
  s_branch Lback{k}""")
        return ld, chk
    def out_patterns(self):
        t0, t1 = vT
        return [V(f"v_lshrrev_b32 v{t0}, 4, v{vL16}", rd=vr(vL16), wr=vr(t0)),
                V(f"v_and_b32 v{t1}, 15, v{t0}", rd=vr(t0), wr=vr(t1)),
                V(f"v_mul_u32_u24 v{t1}, {ROWB}, v{t1}", rd=vr(t1), wr=vr(t1)),
                V(f"v_lshrrev_b32 v{t0}, 4, v{t0}", rd=vr(t0), wr=vr(t0)),
                V(f"v_lshlrev_b32 v{t0}, 3, v{t0}", rd=vr(t0), wr=vr(t0)),
                V(f"v_add_u32 v{vOutE}, v{t1}, v{t0}", rd=vr(t0) + vr(t1), wr=vr(vOutE)),
                V(f"v_add_u32 v{vOut}, v{vOutE}, v{t0}", rd=vr(t0) + vr(vOutE), wr=vr(vOut))]

    def prologue(self):
        R = self.raw
        VV = lambda t: self.emit(Ins(t, "V"))
        R("s_cmp_ge_u32 s2, 256\ns_cbranch_scc1 Lend")
        R("s_load_dwordx4 s[64:67], s[0:1], 0\ns_load_dwordx4 s[68:71], s[0:1], 16\ns_load_dwordx4 s[72:75], s[0:1], 32")
        if self.stamps:
            R("s_memrealtime s[80:81]\ns_memtime s[82:83]")
        if self.prof:
            R("s_memtime s[88:89]\ns_mov_b32 s90, 0")
        VV("v_lshrrev_b32 v31, 6, v0")
        VV("v_and_b32 v0, 63, v0")
        R(f"""s_and_b32 s{sC}, s2, 7
s_lshr_b32 s3, s2, 5""")
        VV(f"v_readfirstlane_b32 s{sWv}, v31")
        R(f"""s_lshl_b32 s55, s3, 2
s_lshl_b32 s3, s3, 3
s_add_u32 s{sC}, s{sC}, s3
s_lshr_b32 s{sQ}, s2, 3
s_and_b32 s{sQ}, s{sQ}, 3
s_mul_i32 s{sWq}, s{sQ}, 384
s_lshl_b32 s3, s{sC}, 2
s_add_u32 s3, s3, s{sWv}
s_mul_i32 s{sRow}, s3, {64 * ROWB}
s_add_u32 s55, s55, s{sWv}
s_mul_i32 s55, s55, {ROWB}
s_mul_i32 s{sW1032}, s{sWv}, 1032
s_lshl_b32 s{sW8}, s{sWv}, 3
s_mul_i32 s{sXRw}, s{sWv}, {XRW}
s_add_u32 s{sXRw}, s{sXRw}, {XR}
s_nop 0""")
        for j in range(8):
            R(f"s_add_u32 s{sJ[j]}, s{sRow}, {j * 8 * ROWB - 1024 * (j & 1)}")
        VV(f"v_lshlrev_b32 v{vL16}, 4, v0")
        VV("v_lshrrev_b32 v20, 3, v0")
        VV("v_and_b32 v21, 7, v0")
        VV("v_and_b32 v23, 6, v20")
        VV("v_lshlrev_b32 v22, 1, v20")
        VV("v_xor_b32 v23, v21, v23")
        VV("v_and_b32 v22, 4, v22")
        VV("v_lshlrev_b32 v23, 4, v23")
        VV(f"v_mul_u32_u24 v24, {ROWB}, v20")
        VV("v_xor_b32 v22, v21, v22")
        VV(f"v_add_u32 v{vPX}, v23, v24")
        VV("v_lshlrev_b32 v22, 4, v22")
        VV(f"v_add_u32 v23, s{sW8}, v20")
        VV(f"v_mul_u32_u24 v23, {ROWB}, v23")
        VV(f"v_add_u32 v{vPW}, v23, v22")
        self.pstamp()
        R("s_waitcnt lgkmcnt(0)")
        self.pstamp()
        self.mk(sX0_, 64, 16384 * ROWB)
        self.mk(sW_, 66, 3 * LSTRIDE)
        if self.CPF:
            self.emit(Ins("s_getpc_b64 s[64:65]\nLpc:", "S"))
            R(f"s_and_b32 s65, s65, 0xffff\ns_mov_b32 s66, Lcode_end-Lpc\ns_mov_b32 s67, 0x20000\ns_lshr_b32 s72, s2, 3\ns_lshl_b32 s72, s72, 2\ns_add_u32 s72, s72, s{sWv}\ns_lshl_b32 s72, s72, 7")
    def prologue2(self):
        R = self.raw
        R(f"""s_lshl_b32 s{sXq}, s{sQ}, 5
s_add_u32 s{sXq}, s{sXq}, 1536
s_lshl_b32 s{sW1024}, s{sWv}, 10
s_lshl_b32 s3, s{sC}, 2
s_add_u32 s3, s3, s{sWv}
s_mul_i32 s{sXb}, s3, 106496
s_add_u32 s{sXb}, s{sXb}, {self.XB0}
s_mov_b32 s{sMask}, 0xffff0000
s_mul_i32 s42, s{sQ}, 24576
s_add_u32 s42, s42, s{sXb}
s_lshr_b32 s43, s{sQ}, 1
s_add_u32 s43, s43, 24
s_lshl_b32 s43, s43, 12
s_and_b32 s3, s{sQ}, 1
s_lshl_b32 s3, s3, 11
s_add_u32 s43, s43, s3
s_add_u32 s43, s43, s{sXb}
s_mul_i32 s76, s{sQ}, 352
s_sub_u32 s76, 1536, s76""")
        for mt in range(4):
            R(f"s_add_u32 s{sOutMt[mt]}, s{sRow}, {mt * 16 * ROWB}\ns_add_u32 s{sOutMt[mt]}, s{sOutMt[mt]}, s{sWq}")
        self.mk(sB_, 68, 3 * ROWB)
        self.mk(sOUT_, 70, 16384 * ROWB)
        self.mk(sWS_, 74, 0x10000000)
        if self.NOST or self.NOLD or self.NOW: self.mk(60, 74, 0)
        self.prologue_rest()
    def mk(self, b, lo, size):
        self.raw(f"s_mov_b32 s{b}, s{lo}\ns_and_b32 s{b+1}, s{lo+1}, 0xffff\ns_mov_b32 s{b+2}, {size}\ns_mov_b32 s{b+3}, 0x20000")
    def prologue_rest(self):
        R = self.raw
        VV = lambda t: self.emit(Ins(t, "V"))
        VV("v_lshrrev_b32 v23, 2, v20")
        VV("v_lshlrev_b32 v23, 4, v23")
        VV("v_and_b32 v24, 3, v20")
        VV("v_add_u32 v23, v23, v24")
        R(f"s_lshl_b32 s3, s{sWv}, 2")
        VV("v_add_u32 v23, s3, v23")
        VV(f"v_mul_u32_u24 v23, {ROWB}, v23")
        VV(f"v_add_u32 v{vPW2}, v23, v22")
        VV("v_lshrrev_b32 v20, 1, v0")
        VV("v_and_b32 v21, 1, v0")
        VV("v_lshlrev_b32 v21, 4, v21")
        VV(f"v_mul_u32_u24 v23, {ROWB}, v20")
        VV(f"v_add_u32 v{vPXE}, v23, v21")
        VV("v_and_b32 v23, 19, v20")
        VV("v_and_b32 v24, 4, v20")
        VV("v_lshlrev_b32 v24, 1, v24")
        VV("v_or_b32 v23, v23, v24")
        VV("v_and_b32 v24, 8, v20")
        VV("v_lshrrev_b32 v24, 1, v24")
        VV("v_or_b32 v23, v23, v24")
        VV(f"v_mul_u32_u24 v23, {ROWB}, v23")
        VV(f"v_add_u32 v{vPE}, v23, v21")
        VV("v_and_b32 v23, 7, v20")
        VV("v_and_b32 v24, 8, v20")
        VV("v_lshlrev_b32 v24, 1, v24")
        VV("v_or_b32 v23, v23, v24")
        VV("v_and_b32 v24, 16, v20")
        VV("v_lshrrev_b32 v24, 1, v24")
        VV("v_or_b32 v23, v23, v24")
        VV(f"v_mul_u32_u24 v23, {ROWB}, v23")
        VV(f"v_add_u32 v{vPE2}, v23, v21")
        VV("v_lshrrev_b32 v20, 4, v0")
        VV("v_and_b32 v21, 15, v0")
        VV("v_lshrrev_b32 v22, 2, v0")
        VV("v_and_b32 v22, 3, v22")
        VV("v_and_b32 v23, 3, v0")
        VV("v_mul_u32_u24 v24, 1032, v20")
        VV("v_lshlrev_b32 v25, 7, v22")
        VV("v_add_u32 v24, v24, v25")
        VV("v_lshlrev_b32 v25, 4, v23")
        VV("v_add_u32 v24, v24, v25")
        VV("v_lshrrev_b32 v25, 1, v22")
        VV("v_lshlrev_b32 v25, 6, v25")
        VV(f"v_add_u32 v{vA[0]}, v24, v25")
        VV("v_sub_u32 v25, 64, v25")
        VV(f"v_add_u32 v{vA[1]}, v24, v25")
        VV("v_lshrrev_b32 v24, 1, v20")
        VV("v_lshlrev_b32 v24, 9, v24")
        VV("v_and_b32 v25, 1, v20")
        VV("v_lshlrev_b32 v25, 7, v25")
        VV("v_add_u32 v24, v24, v25")
        VV("v_lshlrev_b32 v25, 5, v22")
        VV("v_add_u32 v24, v24, v25")
        VV("v_lshlrev_b32 v25, 3, v23")
        VV(f"v_add_u32 v{vA2}, v24, v25")
        VV("v_and_b32 v24, 6, v21")
        VV("v_xor_b32 v24, v20, v24")
        VV("v_lshlrev_b32 v24, 4, v24")
        VV("v_lshlrev_b32 v25, 7, v21")
        VV("v_add_u32 v24, v24, v25")
        VV(f"v_add_u32 v{vX[0]}, s{sXRw}, v24")
        VV(f"v_xor_b32 v{vX[1]}, 64, v{vX[0]}")
        VV("v_lshlrev_b32 v24, 5, v21")
        VV("v_lshlrev_b32 v25, 3, v20")
        VV("v_add_u32 v24, v24, v25")
        VV(f"v_add_u32 v24, s{sXRw}, v24")
        VV(f"v_add_u32 v{vX2}, 24576, v24")
        VV(f"v_lshlrev_b32 v{vL16}, 4, v0")
        VV(f"v_lshlrev_b32 v{vL8}, 3, v0")
        VV("v_lshlrev_b32 v24, 4, v20")
        VV(f"v_add_u32 v{vBias}, {BIAS}, v24")
        R(f"s_lshl_b32 s3, s{sC}, 2\ns_add_u32 s3, s3, s{sWv}\ns_lshl_b32 s3, s3, 9\ns_add_u32 s3, s3, {FBASE}")
        VV("v_and_b32 v24, 3, v0")
        VV("v_lshlrev_b32 v24, 7, v24")
        VV(f"v_add_u32 v{vPollOff}, s3, v24")
        VV(f"v_mov_b32 v{vFlagOff}, 0x7fffff00")
        VV(f"v_cmp_eq_u32 vcc, s{sQ}, v0")
        R("s_nop 1")
        VV(f"v_cndmask_b32 v{vFlagOff}, v{vFlagOff}, v{vPollOff}, vcc")
        R(f"s_lshl_b32 s56, s{sQ}, 4")
        VV("v_and_b32 v24, 15, v0")
        VV("v_lshrrev_b32 v25, 4, v0")
        VV("v_add_u32 v24, s56, v24")
        VV("v_lshlrev_b32 v25, 7, v25")
        VV(f"v_mul_u32_u24 v24, {ROWB}, v24")
        VV(f"v_add_u32 v{vPFX}, v24, v25")
        VV("v_lshrrev_b32 v25, 5, v0")
        VV("v_lshlrev_b32 v25, 30, v25")
        VV(f"v_add_u32 v{vPFX}, v{vPFX}, v25")
        for i in self.pfw_pattern(vPFW, False): self.emit(i)
        self.bias_prologue()
        R(f"s_lshl_b32 s91, s2, 2\ns_add_u32 s91, s91, s{sWv}\ns_lshl_b32 s91, s91, 12")

    def bias_prologue(self):
        R = self.raw; VV = lambda t: self.emit(Ins(t, "V"))
        R(f"s_lshl_b32 s3, s{sWv}, 6")
        VV("v_add_u32 v20, s3, v0")
        VV("v_min_u32 v20, 207, v20")
        VV("v_lshrrev_b32 v21, 4, v20")
        VV("v_and_b32 v22, 15, v20")
        VV("v_lshrrev_b32 v23, 1, v21")
        VV("v_lshlrev_b32 v23, 5, v23")
        VV("v_lshrrev_b32 v24, 2, v22")
        VV("v_lshlrev_b32 v24, 3, v24")
        VV("v_add_u32 v23, v23, v24")
        VV("v_and_b32 v24, 1, v21")
        VV("v_lshlrev_b32 v24, 2, v24")
        VV("v_add_u32 v23, v23, v24")
        VV("v_and_b32 v24, 3, v22")
        VV("v_add_u32 v23, v23, v24")
        R(f"s_mul_i32 s3, s{sQ}, 192")
        VV("v_add_u32 v23, s3, v23")
        R(f"s_lshl_b32 s3, s{sQ}, 4\ns_add_u32 s3, s3, 768")
        VV("v_add_u32 v24, s3, v22")
        VV("v_cmp_eq_u32 vcc, 12, v21")
        R("s_nop 1")
        VV("v_cndmask_b32 v23, v23, v24, vcc")
        VV("v_lshlrev_b32 v23, 1, v23")
        VV("v_lshlrev_b32 v22, 2, v20")
        VV(f"v_add_u32 v22, {BIAS}, v22")
    def bias_loads(self):
        for l in range(3):
            self.emit(Ins(f"buffer_load_ushort v{25+l}, v23, {srd(sB_)}, 0 offen offset:{l*ROWB}", "L", vm=("bl", l)))
            self.vm_step[("bl", l)] = -100
    def bias_write(self):
        a = [V(f"v_lshlrev_b32 v{25+l}, 16, v{25+l}", rd=vr(25 + l), wr=vr(25 + l)) for l in range(3)]
        a[0].need_vm = [("bl", 2)]
        a.append(V("v_add_f32 v25, 1.0, v25", rd=vr(25), wr=vr(25)))
        b = [Ins(f"ds_write_b32 v22, v{25+l} offset:{832*l}", "D", rd=vr(22) + vr(25 + l), lg=("bw", l)) for l in range(3)]
        b[0].after = [a[-1]]
        self.last_reader = [b[-1], b[-1]]
        return a, b

    COST = {"S": 4, "W": 4, "X": 4, "SS": 8, "V": 4, "D": 8, "L": 8, "A": 12, "T": 12}
    def fits(self, kinds):
        t = 4
        for i, k in enumerate(kinds):
            if k == "V": t = max(t, 8) + 4
            else: t += self.COST[k]
            if k == "L" and (i + 1 == len(kinds)): t += 4
            if k == "L" and i + 1 < len(kinds) and kinds[i + 1] != "V": return False
            if k in ("A", "T") and (i != 0 or len(kinds) > 1): return False
        return t <= 16

    def first_step(self, l, gi, u=0):
        for f, st in enumerate(self.steps):
            if st["l"] == l and st["gi"] == gi and st["u"] == u: return f
    def last_step(self, l, gi, u):
        r = None
        for f, st in enumerate(self.steps):
            if st["l"] == l and st["gi"] == gi and st["u"] == u: r = f
        return r
    def group_range(self, l, gi):
        fs = [f for f, st in enumerate(self.steps) if st["l"] == l and st["gi"] == gi]
        return fs[0], fs[-1]

    def build_streams(self):
        NL = self.NL
        self.last_reader = [None, None]
        M1 = []
        M2 = []
        E = []
        E2 = []
        M3 = []
        for n, e in enumerate(self.entries):
            es = -100 if e["jf"] < 0 else self.bars[e["jf"]]
            sq = self.dma_entry(n)
            for i_ in sq: i_.dl = min(self.bars[e["jl"]] - self.LATW, max(es, 0) + self.RSL)
            for i_ in sq: i_.hard = self.bars[e["jl"]] - 14
            sq[-1].lines = 8 if e["kind"] == "m" else 32
            M1.append([es, 0, sq, ("bar", e["jf"])])
        G = self.groups[0]
        slot_of = {}
        for gi, (ks_l, sl_l) in enumerate(G):
            for ks, sl in zip(ks_l, sl_l): slot_of[ks] = (gi, sl)
        def first_use(l, ks):
            for f, st in enumerate(self.steps):
                if st["l"] == l and st["ks"] == ks: return f
        self.first_use = first_use
        def slot_free(l, ks, sl):
            f0 = first_use(l, ks)
            r = -100
            for f in range(f0):
                if self.steps[f]["slot"] == sl: r = f
            return r
        self.stage_reads = {}
        stage_free = {}
        DM = []
        rd_earliest = {}
        for ks in range(26):
            gi, sl = slot_of[ks]
            rd_earliest[ks] = slot_free(0, ks, sl) + 1 if slot_free(0, ks, sl) >= 0 else -100
        cur = -100
        for ks in range(26):
            cur = max(cur, rd_earliest[ks]); rd_earliest[ks] = cur
        self.rd_earliest = rd_earliest
        self.slot_of0 = slot_of
        for line in range(13):
            seq = self.stage_dma(line)
            if line >= 3: seq[0].need_lg = [("xs", 2 * (line - 3) + 1, 3)]
            if line < self.PRO_X: es = -100
            else:
                es = self.T_STG0 + self.T_STGD * (line - self.PRO_X)
                k = 0
                for i_ in seq:
                    i_.earliest = int(es + self.PSP * k); i_.dl = i_.earliest + 8
                    if i_.kind == "A": k += 1
            M3.append([es, 1, seq, None])
        for u in (0, 3, 1, 2):
            seq = self.reload_dma(u)
            if u < 3: seq[0 if u else 1].need_lg = [("xs", 2 * (10 + u) + 1, 3)]
            es = self.T_RL[u]; k = 0
            for i_ in seq:
                i_.earliest = int(es + self.PSP * k); i_.dl = i_.earliest + 8
                if i_.kind == "A": k += 1
            M3.append([es, 1, seq, None])
        for ks in range(26):
            gi, sl = slot_of[ks]
            M2.append([rd_earliest[ks], 0, self.stage_read(ks, sl), None])
        for l in range(1, NL):
            base = 3 * (l - 1)
            def cls(ks):
                if ks >= 24: return 3
                return (ks % 6) // 2 + 1
            polled = set()
            lst = []
            for gi, (ks_l, sl_l) in enumerate(self.groups[l]):
                for ks, sl in zip(ks_l, sl_l):
                    lst.append((gi, ks, sl))
            gb0, gb1 = self.group_range(l - 1, 4)
            l0 = gb1 + 1
            exp = {1: l0 + self.T_U0, 2: l0 + self.T_U1, 3: l0 + self.T_U2}
            items = []
            for gi, ks, sl in lst:
                es = max(slot_free(l, ks, sl) + 1, exp[cls(ks)], first_use(l, ks) - self.XLEAD)
                items.append([es, cls(ks), first_use(l, ks), ks, sl])
            items.sort(key=lambda it: (it[0], it[2]))
            for es, c, gi, ks, sl in items:
                seq = []
                if c not in polled:
                    polled.add(c)
                    ld, chk = self.flag_poll(base + c)
                    ld.lines = 4; ld.dl = es - self.T_POLL
                    M2.append([es - self.T_POLL, 2, [ld], None])
                    seq += chk
                xl = self.xload(l, ks, sl)
                for i_ in xl:
                    i_.dl = first_use(l, ks) - self.LATX
                    if i_.kind == "L": i_.lines = 8 if ks < 24 else 4
                seq += xl
                M2.append([es, 3, seq, None])
        if NL > 1:
            E.append([self.T_PAT, 0, self.pfw_pattern(vPFX, True), ("pat",)])
        a, b = self.bias_write()
        E.append([self.T_BW, 0, a, None]); E2.append([self.T_BW, 0, b, ("bw",)])
        for l in range(NL):
            g3 = 2
            for u in range(4):
                lastf = self.last_step(l, g3, u)
                a, b = self.bias_unit(l, u)
                E.append([lastf + 2, 1, a, ("bias", l, u)]); E2.append([lastf + 2 - self.E2LEAD, 1, b, None])
            if l == NL - 1:
                E.append([self.group_range(l, 4)[0] + 8, 0, self.out_patterns(), ("outpat",)])
            for u in range(4):
                lastf = self.last_step(l, 4, u)
                a, b = self.epi_unit(l, u)
                E.append([lastf + 2, 0, a, None]); E2.append([lastf + 2 - self.E2LEAD, 0, b, ("epi", l, u)])
        PFs = self.pf_streams()
        E.append([self.T_PW0[-1] + 2, 0, self.pfg_pat, None])
        M1.sort(key=lambda x: (x[0], x[1])); M2.sort(key=lambda x: (x[0], x[1])); E.sort(key=lambda x: (x[0], x[1]))
        flat = lambda Q: [(max(es, ins.earliest) if ins.earliest is not None else es, ins, tag, idx == len(seq) - 1) for es, _, seq, tag in Q for idx, ins in enumerate(seq)]
        M3.sort(key=lambda x: (x[0], x[1]))
        E2.sort(key=lambda x: (x[0], x[1]))
        self.PF = flat(PFs)
        self.M1, self.M2, self.E, self.M3, self.E2 = flat(M1), flat(M2), flat(E), flat(M3), flat(E2)

    def try_emit_from(self, Q, f, gap_kinds, allow, post_w):
        if not Q: return False
        es, ins, tag, lastflag = Q[0]
        if es > f: return False
        if isinstance(tag, tuple) and tag[0] == "bar" and tag[1] >= 0 and tag[1] > self.bar_passed: return False
        if ins.kind not in allow: return False
        if ins.note == 'm0' and self.m0_owner is not None: return False
        for a in ins.after:
            if id(a) not in self.issue_step: return False
        for t in ins.need_vm:
            if t not in self.vm_pos: return False
        for t in ins.need_lg:
            if t not in self.lg_pos: return False
        nv, nl = self.wait_for(ins.need_vm, ins.need_lg)
        needw = nv is not None or nl is not None
        kinds = gap_kinds + (["W"] if needw else []) + [ins.kind] + post_w
        if not self.fits(kinds):
            if needw and self.fits(gap_kinds + ["W"] + post_w) and self.wait_ok(ins, f):
                self.emit_wait(ins.need_vm, ins.need_lg); gap_kinds.append("W"); return True
            return False
        if needw and not self.wait_ok(ins, f): return False
        if not self.hazard_ok(ins): return False
        if needw:
            self.emit_wait(ins.need_vm, ins.need_lg); gap_kinds.append("W")
        self.emit(ins); gap_kinds.append(ins.kind)
        if ins.note == 'm0': self.m0_owner = id(Q)
        if ins.kind == 'A' and ins.note != "m0keep": self.m0_owner = None
        self.issue_step[id(ins)] = f
        if ins.vm is not None: self.vm_step[ins.vm] = f
        if ins.lg is not None: self.lg_step[ins.lg] = f
        Q.pop(0)
        if isinstance(tag, tuple) and tag[0] == "flag": self.flag_step[tag[1]] = f
        if isinstance(tag, tuple) and tag[0] == "pat":
            assert ("pf", "x", 12) in self.vm_pos, ("prefetch pattern overwrites vPX before reload issued", f, {k: v for k, v in self.vm_step.items() if k[0] in ("st", "rl")}, {k: v for k, v in self.lg_step.items() if k[0] == "xs"})
            self.pat_done = lastflag
        if ins.vm is not None and ins.vm[0] == "pf" and ins.vm[1] == "w" and ins.vm[2] > 0: assert self.pat_done and ("rl", 3, 1) in self.vm_pos
        if isinstance(tag, tuple) and tag[0] == "outpat":
            assert not any(i.kind == "L" and i.vm[0] == "fp" for _, i, _, _ in self.M2) and not any("v_cmp_gt_u32 vcc" in i.text for _, i, _, _ in self.M2) and not self.F
        if lastflag and isinstance(tag, tuple) and tag[0] == "epi":
            self.epi_done(tag, f)
        if lastflag and isinstance(tag, tuple) and tag[0] == "bias":
            self.bias_done[(tag[1], tag[2])] = f
        return True
    def wait_ok(self, ins, f):
        for t in ins.need_vm:
            if self.vm_pos[t] >= self.vm_done and f - self.vm_step.get(t, -1000) < (ins.minvm or self.MIN_VM): return False
        for t in ins.need_lg:
            if self.lg_pos[t] >= self.lg_done and f - self.lg_step.get(t, -1000) < self.MIN_LG: return False
        return True
    def hazard_ok(self, ins):
        if ins.kind in ("V", "D", "L"):
            regs = set(ins.rd) | set(ins.wr) if ins.kind == "V" else set(ins.wr)
            n = 0
            for prev in reversed(self.out):
                if n >= 9: break
                if prev.kind == "M" and (set(prev.wr) & regs): return False
                n += 1 if prev.kind != "SS" else 2
        if ins.kind == "V":
            n = 0
            for prev in reversed(self.out):
                if n >= 2: break
                if prev.kind == "T" and (set(prev.rd) & set(ins.wr)): return False
                n += 1
        if ins.kind == "V" and not getattr(self, "drain", False):
            f, g = self.cur
            nxt = []
            for d in (1, 2):
                gg = g + d; ff = f + gg // 4; gg %= 4
                if ff < self.nsteps: nxt.append(self.mfma(ff, gg))
            for m in nxt:
                if set(m.rd) & set(ins.wr): return False
        if ins.kind == "A":
            if self.out and self.out[-1].note == "m0": return False
        return True
    def epi_done(self, tag, f):
        _, l, u = tag
        self.epi_fin[(l, u)] = f
        if l == self.NL - 1: return
        n = 8 if u < 3 else 4
        tags = [("xo", l, u, i) for i in range(n)]
        val = None
        if u == 0: val = 3 * l + 1
        elif u == 1: val = 3 * l + 2
        elif u == 3: val = 3 * l + 3; tags = tags + [("xo", l, 2, i) for i in range(8)]
        if val is not None:
            self.F += [(f, ins, ("flag", val), False) for ins in self.flag_set(val, tags)]

    def schedule(self):
        self.issue_step = {}; self.vm_step = {}; self.lg_step = {}
        self.pending = []; self.epi_fin = {}; self.bias_done = {}
        self.bar_passed = -1
        self.F = []; self.pat_done = False; self.B = 0.0; self.Bhist = []
        self.m0_owner = None
        N = self.nsteps
        barat = {P: j for j, P in enumerate(self.bars)}
        need_at = {}
        for n, e in enumerate(self.entries): need_at.setdefault(e["jl"], []).append(("w", n))
        self.pro_issue()
        self.emit_wait(need_at.get(0, []), [])
        self.emit(Ins("s_barrier", "X")); self.bar_passed = 0
        self.pstamp()
        for f in range(self.LA):
            for r in self.tr_reads(f): self.emit(r); self.lg_step[r.lg] = -10
        if self.stamps: self.stamp()
        self.epi_started = set()
        for f in range(N):
            st = self.steps[f]
            if f == 0:
                nv, nl = self.step_needs(0)
                self.emit_wait(nv, nl)
            if st["l"] > 0 and (st["l"], st["u"]) not in self.epi_started:
                self.epi_started.add((st["l"], st["u"]))
                assert (st["l"] - 1, st["u"]) in self.epi_fin, ("epilogue late", st["l"] - 1, st["u"], f, self.epi_fin, self.flag_step, {k: v for k, v in self.vm_step.items() if k[0] in ("x", "fp", "fs", "xo")})
            if self.PROL and f == 0: self.pstamp()
            if self.prof and not self.PROL and f >= self.PS and (f - self.PS) % self.PI == 0 and (f - self.PS) // self.PI <= 60:
                k = (f - self.PS) // self.PI
                if k > 0: self.emit(Ins(f"v_writelane_b32 v0, s86, {k}", "V"))
                self.emit(Ins("s_memtime s[86:87]", "S"))
                self.prof_k = k
            nL = 0; dynbar = False
            for g in range(4):
                self.emit(self.mfma(f, g))
                self.cur = (f, g)
                kinds = []
                if g < 2 and f + self.LA < N:
                    r = self.tr_reads(f + self.LA)[g]
                    if g == 0:
                        pass
                    self.emit(r); self.lg_step[r.lg] = f; kinds.append("D")
                if g == 1 and f + 1 < N:
                    nv, nl = self.step_needs(f + 1)
                    if f in barat: nv = nv + need_at.get(barat[f], [])
                    for val, tags in self.pending:
                        if all(f - self.vm_step[t] >= self.T_ST for t in tags):
                            nv = nv + tags; dynbar = True
                    if self.emit_wait(nv, nl): kinds.append("W")
                if g == 2 and (f in barat or dynbar):
                    self.emit(Ins("s_barrier", "X")); kinds.append("X")
                    if f in barat: self.bar_passed = barat[f]
                    for val, tags in list(self.pending):
                        if all(self.vm_pos[t] < self.vm_done for t in tags):
                            self.pending.remove((val, tags))
                            seq = self.flag_set(val, tags)
                            self.F += [(f, ins, None, False) for ins in seq]
                            self.flag_step[val] = f
                self.B = max(0.0, self.B - 16 * (self.ETA if f > 215 else self.ETA0))
                progress = True
                allk = ("S", "SS", "V", "A", "L", "T", "D")
                order = [self.F, self.M1, self.M2, self.PF, self.M3, self.E2, self.E]
                while progress:
                    progress = False
                    cands = []
                    for qi, Q in enumerate(order):
                        if Q and (Q[0][1].kind in ("A", "L", "T") or Q[0][1].note == "m0") and Q[0][0] <= f:
                            ins = Q[0][1]
                            dl = ins.dl if ins.dl is not None else Q[0][0] + 10
                            cands.append((dl, qi, Q))
                    cands.sort(key=lambda c: (c[0], c[1]))
                    for dl, qi, Q in cands:
                        ins = Q[0][1]
                        th = self.TH_URG if dl <= f + self.URG else self.TH
                        if ins.note == "m0": th += 16
                        hard = getattr(ins, "hard", None)
                        if self.B > th and not (hard is not None and hard <= f): continue
                        if Q is self.PF and g < 2: continue
                        if self.try_emit_from(Q, f, kinds, allk, []):
                            if ins.kind in ("A", "L", "T"): self.B += ins.lines * self.CPL
                            progress = True; break
                    if progress: continue
                    for Q in order:
                        if Q and (Q[0][1].kind in ("A", "L", "T") or Q[0][1].note == "m0"): continue
                        if self.try_emit_from(Q, f, kinds, allk, []):
                            progress = True; break
                self.Bhist.append(self.B)
            if self.stamps and f + 1 < N and (self.steps[f + 1]["l"] != st["l"] or (self.steps[f + 1]["gi"] == 4 and st["gi"] == 3)):
                self.stamp()
        self.drain = True
        guard = 0
        assert not self.PF
        while self.M1 or self.M2 or self.E or self.M3 or self.F or self.E2:
            guard += 1
            assert guard < 100000
            done = False
            for Q in (self.F, self.E2, self.E, self.M2, self.M3, self.M1):
                if Q:
                    es, ins, tag, lastflag = Q[0]
                    if any(id(a) not in self.issue_step for a in ins.after): continue
                    if any(t not in self.lg_pos for t in ins.need_lg): continue
                    while not self.hazard_ok(ins): self.emit(Ins("s_nop 0", "S"))
                    self.emit_wait(ins.need_vm, ins.need_lg)
                    while not self.hazard_ok(ins): self.emit(Ins("s_nop 0", "S"))
                    self.emit(ins); Q.pop(0); self.issue_step[id(ins)] = N
                    if ins.vm is not None: self.vm_step[ins.vm] = N
                    if lastflag and isinstance(tag, tuple) and tag[0] == "epi": self.epi_done(tag, N)
                    done = True; break
            assert done
        if self.stamps: self.stamp()
        if self.prof:
            k = (self.prof_k + 1) if not self.PROL else 40
            self.raw(f"""v_writelane_b32 v0, s86, {k}
s_waitcnt vmcnt(0)
s_memtime s[86:87]
s_waitcnt lgkmcnt(0)
s_nop 4""")
            self.emit(Ins("v_writelane_b32 v0, s88, 0", "V"))
            if self.PROL:
                for kk in range(self.prol_k):
                    self.emit(Ins(f"v_writelane_b32 v0, s{[60, 62, 78, 80, 82, 100, 100, 100][kk]}, {kk + 1}", "V"))
            if k + 1 < 64: self.emit(Ins(f"v_writelane_b32 v0, s86, {k+1}", "V"))
            self.emit(Ins(f"v_writelane_b32 v0, s90, 63", "V"))
            self.raw(f"""s_lshl_b32 s3, s2, 2
s_add_u32 s3, s3, s{sWv}
s_lshl_b32 s3, s3, 8""")
            self.emit(Ins(f"v_lshrrev_b32 v2, 2, v{vL16}", "V"))
            self.raw("s_nop 4")
            self.emit(Ins(f"buffer_store_dword v0, v2, {srd(sWS_)}, s3 offen", "T"))

    def step_needs(self, f):
        st = self.steps[f]
        nl = [("wf", f, 0), ("wf", f, 1)]
        nv = []
        for mt in range(4):
            a, b = self.xtags(st["l"], st["ks"], mt)
            for t in a:
                assert t in self.vm_pos, ("x load not issued before use", t, f, self.epi_fin, self.flag_step, {k: v for k, v in self.vm_step.items() if k[0] in ("x", "fp", "fs")}, self.M2[0][0], self.M2[0][1].text)
            for t in b:
                assert t in self.lg_pos, ("stage read not issued before use", t, f)
            nv += a; nl += b
        return nv, nl

    def pstamp(self):
        if self.prof and self.PROL:
            k = self.prol_k; self.prol_k += 1
            r = [60, 62, 78, 80, 82, 100, 100, 100][k]
            self.emit(Ins(f"s_memtime s[{r}:{r+1}]", "S"))
    def pro_issue(self):
        def take(Q, pred):
            out = []
            while Q and pred(Q[0]): out.append(Q.pop(0))
            return out
        items = take(self.M1, lambda it: it[0] <= -50) + take(self.M3, lambda it: it[0] <= -50)
        seqs = []; cur = []
        for it in items:
            cur.append(it[1])
            if it[1].kind == "A": seqs.append(cur); cur = []
        wseq = [s for s in seqs if s[-1].vm[0] == "w"]; xseq = [s for s in seqs if s[-1].vm[0] == "st"]
        while self.PF and self.PF[0][0] <= -90:
            es, ins, tag, lf = self.PF.pop(0)
            self.emit(ins); self.issue_step[id(ins)] = -100
            if ins.vm is not None: self.vm_step[ins.vm] = -100
        nW, nX = self.PRO_W, self.PRO_X
        order = [("x", 0), ("w", 0, 3), ("w", 3, nW), ("x", 1), ("x", 2)]
        emit_list = xseq[0:8] + wseq[0:3] + wseq[3:nW] + xseq[8:8 * nX]
        assert 4 * nW >= 12
        rest_w = wseq[nW:]; rest_x = xseq[8 * nX:]
        for s in emit_list:
            for k, ins in enumerate(s):
                if ins.kind == "A" and self.out[-1].note == "m0": self.emit(Ins("s_nop 0", "S"))
                self.emit(ins)
                if ins.vm is not None: self.vm_step[ins.vm] = -100
        self.M1[0:0] = [(-40, ins, ("bar", -1), False) for s in rest_w for ins in s]
        self.M3[0:0] = [(-40, ins, None, False) for s in rest_x for ins in s]
        self.pstamp()
        self.prologue2()
        self.emit(Ins(f"buffer_load_dword v{vBase}, v{vPollOff}, {srd(sWS_)}, 0 offen sc1", "L", vm=("fb",)))
        self.vm_step[("fb",)] = -100
        self.bias_loads()
        while self.PF and self.PF[0][0] <= -50:
            es, ins, tag, lf = self.PF.pop(0)
            self.emit(ins); self.issue_step[id(ins)] = -100
            if ins.vm is not None: self.vm_step[ins.vm] = -100
        self.pstamp()
        n = 0
        while self.M2 and n < 8:
            es, ins, tag, lf = self.M2[0]
            assert ins.kind == "D"
            self.emit_wait(ins.need_vm, ins.need_lg)
            self.emit(ins); self.M2.pop(0); n += 1
            if ins.lg is not None: self.lg_step[ins.lg] = -100
        self.pstamp()

    def pf_streams(self):
        PF = []
        def ld(pat, dst, base, soff, tag, pre=(), off=0):
            i = Ins(f"buffer_load_dword v{dst}, v{pat}, {srd(base)}, {soff} offen" + (f" offset:{off}" if off else ""), "L", rd=vr(pat), wr=vr(dst), vm=tag)
            i.lines = {"x": 32, "w": 16, "g": 32}[tag[1]]
            return list(pre) + [i]
        t = 54
        for k, (a, es) in enumerate(zip(self.PX_L, self.T_PX)):
            PF.append([es, 0, ld(vPFX, vPoll, sX0_, f"s{t}", ("pf", "x", a), [S(f"s_add_u32 s{t}, s{sRow}, {128 * a}")]), None])
        if self.CPF:
            for k, es in enumerate(self.T_CPF):
                i = Ins(f"buffer_load_dword v{vPoll if es < 200 else vPXE}, off, s[64:67], s{t}", "L", vm=("pf", "c", k)); i.lines = 1
                PF.append([es, 2, [S(f"s_add_u32 s{t}, s72, {16384 * k}"), i], None])
        for j, es in enumerate(self.T_PW0):
            PF.append([es, 1, ld(vPFW, vPoll, sW_, f"s{t}", ("pf", "w", 0, j), [S(f"s_mov_b32 s{t}, {4 * j * KSB}")]), None])
        lastw0 = PF[-1][2][-1]
        t0 = vT[0]
        pat = [V(f"v_lshlrev_b32 v{vPFG}, 3, v{vL16}", rd=vr(vL16), wr=vr(vPFG)),
               V(f"v_lshrrev_b32 v{t0}, 9, v{vL16}", rd=vr(vL16), wr=vr(t0)),
               V(f"v_lshlrev_b32 v{t0}, 30, v{t0}", rd=vr(t0), wr=vr(t0)),
               V(f"v_add_u32 v{vPFG}, v{vPFG}, v{t0}", rd=vr(t0) + vr(vPFG), wr=vr(vPFG))]
        pat[0].after = [lastw0]
        self.pfg_pat = pat
        g = ld(vPFG, vPoll, sW_, "s91", ("pf", "g"))
        g[-1].after = [pat[-1]]
        PF.append([self.T_WG, 0, g, None])
        if self.NL > 1:
            pass
            for l in range(1, self.NL):
                l0 = self.group_range(l - 1, 4)[1] + 1
                for j, dt in enumerate(self.T_PWL):
                    PF.append([l0 + dt, 1, ld(vPFX, vPXE, sW_, f"s{t}", ("pf", "w", l, j), [S(f"s_mov_b32 s{t}, {(0 if self.NOW else l) * LSTRIDE + j * KSB}")]), None])
        PF.sort(key=lambda x: (x[0], x[1]))
        return PF
    def pfw_pattern(self, dst, perm):
        t0, t1 = vT
        seq = [V(f"v_lshrrev_b32 v{t0}, 6, v{vL16}", rd=vr(vL16), wr=vr(t0)),
               V(f"v_mul_u32_u24 v{dst}, {(6 if perm else 1) * KSB}, v{t0}", rd=vr(t0), wr=vr(dst)),
               V(f"v_lshrrev_b32 v{t0}, 2, v{t0}", rd=vr(t0), wr=vr(t0)),
               V(f"v_min_u32 v{t0}, 1, v{t0}", rd=vr(t0), wr=vr(t0)),
               V(f"v_lshlrev_b32 v{t0}, 30, v{t0}", rd=vr(t0), wr=vr(t0)),
               V(f"v_and_b32 v{dst}, 0x3fffffff, v{dst}", rd=vr(dst), wr=vr(dst)),
               V(f"v_add_u32 v{dst}, v{dst}, v{t0}", rd=vr(t0) + vr(dst), wr=vr(dst)),
               V(f"v_lshrrev_b32 v{t0}, 4, v{vL16}", rd=vr(vL16), wr=vr(t0)),
               V(f"v_and_b32 v{t0}, 3, v{t0}", rd=vr(t0), wr=vr(t0)),
               V(f"v_lshlrev_b32 v{t1}, 7, v{t0}", rd=vr(t0), wr=vr(t1)),
               V(f"v_add_u32 v{t1}, s{sWq}, v{t1}", rd=vr(t1), wr=vr(t1)),
               V(f"v_cmp_eq_u32 vcc, 3, v{t0}", rd=vr(t0)),
               V(f"v_mov_b32 v{t0}, 0x600", wr=vr(t0)),
               V(f"v_cndmask_b32 v{t1}, v{t1}, v{t0}, vcc", rd=vr(t0) + vr(t1), wr=vr(t1)),
               V(f"v_add_u32 v{dst}, v{dst}, v{t1}", rd=vr(dst) + vr(t1), wr=vr(dst)),
               V(f"v_add_u32 v{dst}, s55, v{dst}", rd=vr(dst), wr=vr(dst))]
        return seq

    def stamp(self):
        k = self.nstamp; self.nstamp += 1
        if k < 8:
            self.emit(Ins(f"s_memtime s[{86 + 2*k}:{87 + 2*k}]", "S"))

    def check(self):
        out = self.out
        errs = 0
        for i, ins in enumerate(out):
            if ins.kind == "M":
                n = 0
                for prev in reversed(out[max(0, i - 4):i]):
                    if n >= 2: break
                    if prev.kind == "V" and set(prev.wr) & set(ins.rd):
                        print("HAZARD V->M", i, prev.text, "|", ins.text, file=sys.stderr); errs += 1
                    n += 1
            if ins.kind == "V":
                n = 0
                for prev in reversed(out[max(0, i - 10):i]):
                    if n >= 8: break
                    if prev.kind == "M" and set(prev.wr) & (set(ins.rd) | set(ins.wr)):
                        print("HAZARD M->V", i, prev.text, "|", ins.text, file=sys.stderr); errs += 1
                    n += 1
        return errs

    def text(self):
        NL = self.NL
        L = []
        L.append("""; Kernarg layout for this problem (48 bytes, ptrs only, base s[0:1]):
;   offset   0: d_in[0] x0  shape=(16384, 832) dtype=bfloat16 strides=(1664, 2) contiguous=True
;   offset   8: d_in[1] ws  shape=(3, 832, 832) dtype=bfloat16 strides=(1384448, 1664, 2) contiguous=True
;   offset  16: d_in[2] bs  shape=(3, 832) dtype=bfloat16 strides=(1664, 2) contiguous=True
;   offset  24: d_out     shape=(16384, 832) dtype=bfloat16 (2 bytes/elem)
;   offset  32: d_debug   256 bytes
;   offset  40: d_ws      268435456 bytes workspace
; cluster of 4 workgroups = 256 rows; each workgroup owns 208 output features; layers exchange x through d_ws.""")
        L.append("; @launch grid=(256,1,1) block=(256,1,1) lds=163840")
        L.append('.amdgcn_target "amdgcn-amd-amdhsa--gfx950"')
        L.append(".text")
        L.append(f".globl {KNAME}\n.p2align 8\n.type {KNAME},@function\n{KNAME}:")
        for ins in self.out: L.append("  " + ins.text)
        if self.stamps:
            L.append("  s_memtime s[84:85]\n  s_memrealtime s[78:79]\n  s_waitcnt lgkmcnt(0)")
            L.append(f"  s_lshl_b32 s3, s2, 7\n  v_mov_b32 v2, s3\n  v_cmp_eq_u32 vcc, 0, v{vL16}\n  s_cmp_eq_u32 s{sWv}, 0\n  s_cbranch_scc0 Lnost\n  s_and_saveexec_b64 s[4:5], vcc")
            regs = [80, 82, 78, 84] + [86 + 2 * k for k in range(min(self.nstamp, 8))]
            for i, s in enumerate(regs):
                L.append(f"  v_mov_b32 v6, s{s}\n  v_mov_b32 v7, s{s+1}\n  buffer_store_dwordx2 v[6:7], v2, {srd(sWS_)}, 0 offen offset:{8*i}\n  s_nop 1")
            L.append("Lnost:")
        L.append("  s_waitcnt vmcnt(0)")
        L.append("Lend:\n  s_endpgm")
        L += self.slow
        L.append("Lcode_end:")
        L.append('.section .rodata,"a"\n.p2align 6')
        L.append(f".amdhsa_kernel {KNAME}")
        L.append("  .amdhsa_next_free_vgpr 512\n  .amdhsa_next_free_sgpr 102\n  .amdhsa_accum_offset 256\n  .amdhsa_group_segment_fixed_size 0\n  .amdhsa_kernarg_size 48\n  .amdhsa_user_sgpr_count 2\n  .amdhsa_user_sgpr_kernarg_segment_ptr 1\n  .amdhsa_system_sgpr_workgroup_id_x 1\n.end_amdhsa_kernel")
        return "\n".join(L) + "\n"

    LA = 3
    CPF = 1; T_CPF = [-95, 30, 240, 440, 640]
    XMODE = 0
    XB0 = XBASE
    ETA0 = 1.3
    RSL = 2
    ETA = 1.0; CPL = 9; TH = 120; TH_URG = 280; URG = 2; LATW = 16; LATX = 20; T_STG0 = 8; T_STGD = 15; PSP = 1.6; T_RL = [185, 228, 262, 214]
    PROL = 0; T_BW = 20; PRO_W = 6; PRO_X = 2; PX_L = [2, 4, 6, 8, 10, 12]; T_PX = [7, 30, 56, 82, 108, 134]; T_PW0 = [-60, 9, 32, 70, 90, 110, 126]; T_WG = 226; T_PWL = [-90, -70, 20, 60, 90, 110, 120, 130]; T_PAT = 200; AGE2 = 12; T_PWA = -100; T_PWB = 70; AGE = 16
    NOST = 0; NOLD = 0; NOW = 0
    LDP = 2; STP = 2; OUTP = 0
    IV = 12
    PS = 0; PI = 17
    T_U0 = -32; T_U1 = 50; T_U2 = 120; XLEAD = 26; SPIN = 0x8000; E2LEAD = 2; T_POLL = 10; T_ST = 8; MAXL = 2
    MIN_VM = 10; MIN_LG = 1

    def run(self):
        self.flag_step = {}
        self.plan()
        self.prologue()
        self.build_streams()
        self.schedule()
        errs = self.check()
        return errs

if __name__ == "__main__":
    ap = argparse.ArgumentParser()
    ap.add_argument("-o", default="k.s")
    ap.add_argument("--nl", type=int, default=3)
    ap.add_argument("--interval", type=int, default=12)
    ap.add_argument("--stamps", action="store_true")
    ap.add_argument("--prof", action="store_true")
    ap.add_argument("--set", action="append", default=[])
    a = ap.parse_args()
    for kv in a.set:
        k, v = kv.split("="); setattr(Gen, k, int(v, 0))
    g = Gen(NL=a.nl, interval=Gen.IV, stamps=a.stamps, prof=a.prof)
    errs = g.run()
    open(a.o, "w").write(g.text())
    from collections import Counter
    print("instrs", len(g.out), Counter(i.kind for i in g.out), "hazard errs", errs, "minlead(steps)", g.minlead, file=sys.stderr)
    print("xload steps", {k: v for k, v in g.vm_step.items() if k[0] in ("x", "fp", "fs") and (k[0] != "x" or k[3] == 3)}, file=sys.stderr)
    import statistics
    print("B mean", statistics.mean(g.Bhist), "max", max(g.Bhist), "frac>150", sum(b > 150 for b in g.Bhist) / len(g.Bhist), file=sys.stderr)
    leads = [g.bars[e["jl"]] - g.vm_step[("w", n)] for n, e in enumerate(g.entries) if g.vm_step[("w", n)] > -50]
    print("ring leads min/mean", min(leads), statistics.mean(leads), "hist", sorted(leads)[:20], file=sys.stderr)
    print("stage", {k: v for k, v in g.vm_step.items() if k[0] in ("st", "rl") and k[2] in (0, 7)}, file=sys.stderr)
    print("pf", {k: v for k, v in g.vm_step.items() if k[0] == "pf"}, file=sys.stderr)
    print("epi_fin", g.epi_fin, "bias", g.bias_done, "flags", g.flag_step, "nsteps", g.nsteps, file=sys.stderr)
```

```python
import sys, argparse

KNAME = "standalone__dcn_v2_cross__recsys_kernel"
D = 832; ROWB = 1664
LSTRIDE = D * ROWB
KSB = 32 * ROWB
RING = 54848
BIAS = 54848
XR = 57344
XRW = 26624
XBASE = 0x100000
FBASE = 0x40000
XLAYER = 64 * 4 * 106496
CH = 4128
XB = 4096

ACC0 = 48
def acc(j, mt): return ACC0 + 16 * j + 4 * mt
WF0 = 32; NB = 4
def wf(f): return WF0 + 4 * (f % NB)
vA = [1, 2]; vA2 = 3
vPW = 4; vPW2 = 5; vPE = 6; vPE2 = 7
vX = [8, 9]; vX2 = 10
vL16 = 11; vL8 = 12
vPX = 13; vOut = 30
vPXE = 14; vOutE = 31
vBias = 15
vFlagOff = 16; vFlagVal = 17; vPollOff = 18; vPoll = 19; vBase = 30
vPFX = 31; vPFW = 17; vPFG = 17
vXP = [20, 24]
vT = [28, 29]
vDummy = 0
sW_ = 8; sX0_ = 12; sOUT_ = 16; sWS_ = 20; sDBG_ = 24; sB_ = 28
sQ = 32; sC = 33; sWv = 34; sWq = 35; sW1032 = 36; sW8 = 37; sXq = 38; sW1024 = 39
sXb = 40; sRow = 41; sMask = 44; sXRw = 45
sOutMt = [46, 47, 48, 49]
sT = [50, 51, 52, 53, 54, 55]
sXs = [56, 57]
sXt = [77, 84]
sP = 58
sSpin = 59
sJ = [92, 93, 94, 95, 96, 97, 98, 99]
sStamp = 60
def srd(b): return f"s[{b}:{b+3}]"

class Ins:
    __slots__ = ("text", "kind", "rd", "wr", "vm", "lg", "need_vm", "need_lg", "earliest", "label", "note", "after", "minvm", "dl", "lines", "hard")
    def __init__(self, text, kind, rd=(), wr=(), vm=None, lg=None, need_vm=None, need_lg=None, earliest=None, note=None):
        self.text = text; self.kind = kind; self.rd = tuple(rd); self.wr = tuple(wr)
        self.vm = vm; self.lg = lg; self.need_vm = need_vm or []; self.need_lg = need_lg or []
        self.earliest = earliest; self.note = note; self.after = []; self.minvm = None; self.dl = None; self.lines = 8; self.hard = None
def vr(b, n=1): return [("v", b + i) for i in range(n)]
def ar(b, n=1): return [("a", b + i) for i in range(n)]

def S(t, **k): return Ins(t, "S", **k)
def V(t, rd=(), wr=(), **k): return Ins(t, "V", rd=rd, wr=wr, **k)

class Gen:
    def __init__(self, NL=3, interval=12, dbg=None, stamps=False, prof=False):
        self.prof = prof; self.prol_k = 0
        self.NL = NL; self.interval = interval; self.stamps = stamps
        self.out = []
        self.vmq = []; self.vm_done = 0; self.vm_pos = {}
        self.lgq = []; self.lg_done = 0; self.lg_pos = {}
        self.slow = []
        self.tcount = 0
        self.nstamp = 0

    def emit(self, ins):
        if ins.vm is not None:
            assert ins.vm not in self.vm_pos, ins.vm
            self.vm_pos[ins.vm] = len(self.vmq); self.vmq.append(ins.vm)
        if ins.lg is not None:
            assert ins.lg not in self.lg_pos, ins.lg
            self.lg_pos[ins.lg] = len(self.lgq); self.lgq.append(ins.lg)
        self.out.append(ins)
    def wait_for(self, need_vm, need_lg):
        nv = None; nl = None
        for t in need_vm:
            p = self.vm_pos[t]
            if p >= self.vm_done:
                n = len(self.vmq) - 1 - p
                nv = n if nv is None else min(nv, n)
        for t in need_lg:
            p = self.lg_pos[t]
            if p >= self.lg_done:
                n = len(self.lgq) - 1 - p
                nl = n if nl is None else min(nl, n)
        return nv, nl
    def emit_wait(self, need_vm, need_lg):
        nv, nl = self.wait_for(need_vm, need_lg)
        if nv is None and nl is None: return False
        parts = []
        if nv is not None:
            nv = min(nv, 63); parts.append(f"vmcnt({nv})"); self.vm_done = max(self.vm_done, len(self.vmq) - nv)
        if nl is not None:
            nl = min(nl, 15); parts.append(f"lgkmcnt({nl})"); self.lg_done = max(self.lg_done, len(self.lgq) - nl)
        self.emit(Ins("s_waitcnt " + " ".join(parts), "W"))
        return True
    def raw(self, text, kind="S", **k):
        for line in text.strip().split("\n"):
            self.emit(Ins(line.strip(), kind, **k))
    def xch(self, l):
        if self.XMODE == 2: return (sOUT_, -self.XB0) if l == 0 else (sWS_, 0)
        if self.XMODE == 1: return (sWS_, 0)
        return (sWS_, l * XLAYER)
    def pol(self, p):
        return ("", " sc0", " sc1", " sc0 sc1", " nt", " sc0 nt", " sc1 nt", " sc0 sc1 nt")[p]
    def stemp(self, stream=0):
        self.tcount += 1
        return sT[2 * stream + self.tcount % 2]

    def plan(self):
        NL = self.NL
        self.groups = []
        for l in range(NL):
            if l == 0:
                G = [[0, 1, 2], [3, 4, 5], [6, 7, 8, 9], [10, 11, 12], list(range(13, 26))]
            else:
                G = [[0, 6, 12], [18, 1, 7], [13, 19, 2, 8], [14, 20, 3],
                     [9, 15, 21, 4, 10, 16, 22, 5, 11, 17, 23, 24, 25]]
            SL = [[13, 14, 15], [0, 1, 2], [3, 4, 5, 6], [13, 14, 15], [7, 8, 9, 10, 11, 12, 0, 1, 2, 3, 4, 5, 6]]
            self.groups.append(list(zip(G, SL)))
        self.entries = []
        self.steps = []
        def seg_main(l, gi, u, lst):
            for ks, sl in lst:
                e = dict(kind="m", l=l, u=u, ks=[ks], size=CH, gi=gi, first=len(self.steps))
                self.entries.append(e)
                for sb in range(2):
                    for ee in range(2):
                        self.steps.append(dict(e=len(self.entries) - 1, j=4 * u + 2 * sb + ee, ks=ks, slot=sl,
                                               va=vA[sb], rel=8 * ee, rdoff=512, l=l, gi=gi, u=u))
                e["last"] = len(self.steps) - 1
        def seg_extra(l, gi, bt):
            e = dict(kind="x", l=l, u=3, ks=[k for k, _ in bt], size=XB, gi=gi, first=len(self.steps))
            self.entries.append(e)
            for i, (ks, sl) in enumerate(bt):
                self.steps.append(dict(e=len(self.entries) - 1, j=12, ks=ks, slot=sl,
                                       va=vA2, rel=1024 * i, rdoff=256, l=l, gi=gi, u=3))
            e["last"] = len(self.steps) - 1
        for l in range(NL):
            gl = [list(zip(G, SL)) for (G, SL) in self.groups[l]]
            a, b = gl[0], gl[1]
            if l == 0:
                for gi_, lst_ in ((0, a), (1, b)):
                    for it in lst_:
                        for u in range(3): seg_main(l, gi_, u, [it])
            else:
                seg_main(l, 0, 0, a); seg_main(l, 0, 1, a); seg_main(l, 1, 0, b); seg_main(l, 1, 1, b)
                seg_main(l, 0, 2, a); seg_main(l, 1, 2, b)
            ab = a + b
            seg_extra(l, 1, ab[0:4]); seg_extra(l, 1, ab[4:6])
            for gi in (2, 3, 4):
                lst = gl[gi]
                for u in range(3): seg_main(l, gi, u, lst)
                if gi < 4: batches = [lst]
                elif l == 0: batches = [lst[0:4], lst[4:8], lst[8:12], lst[12:13]]
                else: batches = [lst[0:4], lst[4:8], lst[8:11], lst[11:13]]
                for bt in batches: seg_extra(l, gi, bt)
        self.nsteps = len(self.steps)
        seen = set()
        for st in self.steps:
            if st["j"] not in seen: seen.add(st["j"]); st["init"] = True
        iv = self.interval
        LA = self.LA
        self.bars = [-LA - 1] + list(range(iv - LA - 1, self.nsteps - LA - 1, iv))
        pos = 0
        live = []
        for n, e in enumerate(self.entries):
            if pos + e["size"] > RING: pos = 0
            e["base"] = pos; s0, s1 = pos, pos + e["size"]
            ov = [m for (m, a, b) in live if a < s1 and s0 < b]
            live = live + [(n, s0, s1)]
            lastneed = max([self.entries[m]["last"] for m in ov], default=None)
            if lastneed is None: e["jf"] = -1
            else:
                e["jf"] = next(j for j, P in enumerate(self.bars) if lastneed <= P + 1)
            e["jl"] = max(j for j, P in enumerate(self.bars) if P + LA + 1 <= e["first"] or j == 0)
            assert e["jf"] < e["jl"] or e["jf"] == -1, (n, e)
            pos = s1
        self.minlead = min((self.bars[e["jl"]] - self.bars[e["jf"]]) for e in self.entries if e["jf"] >= 0)

    def tr_reads(self, f):
        st = self.steps[f]; e = self.entries[st["e"]]
        r = wf(f)
        res = []
        for rd in range(2):
            off = e["base"] + st["rel"] + rd * st["rdoff"]
            res.append(Ins(f"ds_read_b64_tr_b16 v[{r+2*rd}:{r+2*rd+1}], v{st['va']} offset:{off}", "D",
                           rd=vr(st["va"]), wr=vr(r + 2 * rd, 2), lg=("wf", f, rd)))
        return res
    def mfma(self, f, mt):
        st = self.steps[f]
        c = acc(st["j"], mt); a = wf(f); b = 16 * st["slot"] + 4 * mt
        if st.get("init"):
            return Ins(f"v_mfma_f32_16x16x32_bf16 v[{c}:{c+3}], v[{a}:{a+3}], a[{b}:{b+3}], 0", "M",
                       rd=vr(a, 4) + ar(b, 4), wr=vr(c, 4))
        return Ins(f"v_mfma_f32_16x16x32_bf16 v[{c}:{c+3}], v[{a}:{a+3}], a[{b}:{b+3}], v[{c}:{c+3}]", "M",
                   rd=vr(a, 4) + ar(b, 4) + vr(c, 4), wr=vr(c, 4))
    def dma_entry(self, n):
        e = self.entries[n]; l = e["l"]
        t = self.stemp()
        if e["kind"] == "m":
            ks = e["ks"][0]
            const = (0 if self.NOW else l) * LSTRIDE + ks * KSB + 128 * e["u"]
            pat = vPW2 if (l > 0 and ks >= 24) else vPW
            seq = [S(f"s_add_u32 s{t}, s{sWq}, {const}"),
                   S(f"s_add_u32 m0, s{sW1032}, {e['base']}", note="m0"),
                   Ins(f"buffer_load_dwordx4 v{pat}, {srd(sW_)}, s{t} offen lds", "A", rd=vr(pat), vm=("w", n))]
        else:
            ks = e["ks"] + [e["ks"][-1]] * (4 - len(e["ks"]))
            lit = 0
            for i, k in enumerate(ks): lit |= (26 * (0 if self.NOW else l) + k) << (8 * i)
            pat = vPE2 if (l > 0 and ks[0] >= 24) else vPE
            seq = [S(f"s_lshr_b32 s{t}, 0x{lit:x}, s{sW8}"),
                   S(f"s_and_b32 s{t}, s{t}, 0xff"),
                   S(f"s_mul_i32 s{t}, s{t}, {KSB}"),
                   S(f"s_add_u32 s{t}, s{t}, s{sXq}"),
                   S(f"s_add_u32 m0, s{sW1024}, {e['base']}", note="m0"),
                   Ins(f"buffer_load_dwordx4 v{pat}, {srd(sW_)}, s{t} offen lds", "A", rd=vr(pat), vm=("w", n))]
        return seq
    def xload(self, l, ks, slot):
        t = sXs[(ks + l) % 2]
        xs, xo = self.xch(l - 1)
        seq = [S(f"s_add_u32 s{t}, s{sXb}, {(xo + 4096 * ks) & 0xffffffff}")]
        for mt in range(4):
            d = 16 * slot + 4 * mt
            if ks < 24:
                seq.append(Ins(f"buffer_load_dwordx4 a[{d}:{d+3}], v{vL16}, {srd(60 if self.NOLD else xs)}, s{t} offen offset:{1024*mt}{self.pol(self.LDP)}", "L",
                               rd=vr(vL16), wr=ar(d, 4), vm=("x", l, ks, mt, 0)))
            else:
                for h in range(2):
                    seq.append(Ins(f"buffer_load_dwordx2 a[{d+2*h}:{d+2*h+1}], v{vL8}, {srd(60 if self.NOLD else xs)}, s{t} offen offset:{2048*h+512*mt}{self.pol(self.LDP)}", "L",
                                   rd=vr(vL8), wr=ar(d + 2 * h, 2), vm=("x", l, ks, mt, h)))
        return seq
    def xtags(self, l, ks, mt):
        if l == 0: return [], [("xs", ks, mt)]
        if ks < 24: return [("x", l, ks, mt, 0)], []
        return [("x", l, ks, mt, 0), ("x", l, ks, mt, 1)], []
    def stage_dma(self, line, slot=None, tag="st"):
        if slot is None: slot = line % 3
        seq = []
        for j in range(8):
            imm = 1024 * (j & 1) + 128 * line
            if j % 2 == 0:
                seq.append(S(f"s_add_u32 m0, s{sXRw}, {8192 * slot + 1024 * j - 128 * line}", note="m0"))
            ins = Ins(f"buffer_load_dwordx4 v{vPX}, {srd(sX0_)}, s{sJ[j]} offen offset:{imm} lds", "A", rd=vr(vPX), vm=(tag, line, j))
            if j % 2 == 0: ins.note = "m0keep"
            seq.append(ins)
        return seq
    def stage_read(self, ks, slot):
        line, sb = ks >> 1, ks & 1
        seq = []
        for mt in range(4):
            d = 16 * slot + 4 * mt
            seq.append(Ins(f"ds_read_b128 a[{d}:{d+3}], v{vX[sb]} offset:{8192 * (line % 3) + 2048 * mt}", "D",
                           rd=vr(vX[sb]), wr=ar(d, 4), lg=("xs", ks, mt), need_vm=[("st", line, 2 * mt), ("st", line, 2 * mt + 1)]))
            seq[-1].minvm = self.AGE if line < 8 else self.AGE2
        return seq
    def reload_dma(self, u):
        seq = []
        if u == 0: seq.append(V(f"v_add_u32 v{vPX}, s{sWq}, v{vPX}", rd=vr(vPX), wr=vr(vPX)))
        if u < 3: return seq + self.stage_dma(u, (u + 1) % 3, "rl")
        for h in range(2):
            t = self.stemp(1)
            seq += [S(f"s_add_u32 s{t}, s{sRow}, s{sXq}"),
                    S(f"s_add_u32 s{t}, s{t}, {h * 32 * ROWB}"),
                    S(f"s_add_u32 m0, s{sXRw}, {24576 + 1024 * h}", note="m0"),
                    Ins(f"buffer_load_dwordx4 v{vPXE}, {srd(sX0_)}, s{t} offen lds", "A", rd=vr(vPXE), vm=("rl", 3, h))]
            seq[-1].lines = 32
        return seq
    def epi_unit(self, l, u):
        last = (l == self.NL - 1)
        seq = []
        items = [(sb, mt) for sb in range(2) for mt in range(4)] if u < 3 else [(0, mt) for mt in range(4)]
        def rd(i):
            sb, mt = items[i]; xp = vXP[i % 2]
            if u < 3:
                nv = [("rl", u, 2 * mt), ("rl", u, 2 * mt + 1)] if l == 0 else []
                return Ins(f"ds_read_b128 v[{xp}:{xp+3}], v{vX[sb]} offset:{8192 * ((u + 1) % 3) + 2048 * mt}", "D", rd=vr(vX[sb]), wr=vr(xp, 4),
                           lg=("xp", l, u, i), need_vm=nv)
            nv = [("rl", 3, mt >> 1)] if l == 0 else []
            return Ins(f"ds_read_b64 v[{xp}:{xp+1}], v{vX2} offset:{512 * mt}", "D", rd=vr(vX2), wr=vr(xp, 2), lg=("xp", l, u, i), need_vm=nv)
        seq2 = [rd(0), rd(1)]
        for b_ in range(2):
            if self.last_reader[b_] is not None: seq2[b_].after = [self.last_reader[b_]]
        for i, (sb, mt) in enumerate(items):
            xp = vXP[i % 2]
            ne = 2 if u < 3 else 1
            first = True; pend = None
            for e in range(ne):
                j = 4 * u + 2 * sb + e if u < 3 else 12
                c = acc(j, mt)
                for p in range(2):
                    x = xp + 2 * e + p; t = vT[p]
                    if self.PK & 1:
                        if p == 1: continue
                        t0, t1 = vT; x1 = x + 1
                        i0 = V(f"v_lshlrev_b32 v{t0}, 16, v{x}", rd=vr(x), wr=vr(t0))
                        if first: i0.need_lg = [("xp", l, u, i)]; first = False
                        seq += [i0, V(f"v_and_b32 v{t1}, s{sMask}, v{x}", rd=vr(x), wr=vr(t1)),
                                V(f"v_lshlrev_b32 v{x}, 16, v{x1}", rd=vr(x1), wr=vr(x)),
                                V(f"v_and_b32 v{x1}, s{sMask}, v{x1}", rd=vr(x1), wr=vr(x1)),
                                V(f"v_pk_mul_f32 v[{t0}:{t1}], v[{t0}:{t1}], v[{c}:{c+1}]", rd=vr(t0, 2) + vr(c, 2), wr=vr(t0, 2)),
                                V(f"v_pk_mul_f32 v[{x}:{x1}], v[{x}:{x1}], v[{c+2}:{c+3}]", rd=vr(x, 2) + vr(c + 2, 2), wr=vr(x, 2)),
                                V(f"v_cvt_pk_bf16_f32 v{x1}, v{x}, v{x1}", rd=vr(x, 2), wr=vr(x1)),
                                V(f"v_cvt_pk_bf16_f32 v{x}, v{t0}, v{t1}", rd=vr(t0, 2), wr=vr(x))]
                        continue
                    i0 = V(f"v_lshlrev_b32 v{t}, 16, v{x}", rd=vr(x), wr=vr(t))
                    if first: i0.need_lg = [("xp", l, u, i)]; first = False
                    seq += [i0,
                            V(f"v_and_b32 v{x}, s{sMask}, v{x}", rd=vr(x), wr=vr(x)),
                            V(f"v_mul_f32 v{t}, v{t}, v{c+2*p}", rd=vr(t) + vr(c + 2 * p), wr=vr(t)),
                            V(f"v_mul_f32 v{x}, v{x}, v{c+2*p+1}", rd=vr(x) + vr(c + 2 * p + 1), wr=vr(x)),
                            V(f"v_cvt_pk_bf16_f32 v{x}, v{t}, v{x}", rd=vr(t) + vr(x), wr=vr(x))]
            if pend is not None: seq.append(pend)
            lastv = seq[-1]
            if not last:
                t = sXt[i % 2]
                if u < 3:
                    b = 2 * u + sb
                    xs, xo = self.xch(l)
                    seq2.append(S(f"s_add_u32 s{t}, s42, {(xo + 4096 * b) & 0xffffffff}"))
                    st = Ins(f"buffer_store_dwordx4 v[{xp}:{xp+3}], v{vL16}, {srd(60 if self.NOST else xs)}, s{t} offen offset:{1024*mt}{self.pol(self.STP)}", "T",
                             rd=vr(xp, 4) + vr(vL16), vm=("xo", l, u, i))
                else:
                    xs, xo = self.xch(l)
                    seq2.append(S(f"s_add_u32 s{t}, s43, {xo & 0xffffffff}"))
                    st = Ins(f"buffer_store_dwordx2 v[{xp}:{xp+1}], v{vL8}, {srd(60 if self.NOST else xs)}, s{t} offen offset:{512*mt}{self.pol(self.STP)}", "T",
                             rd=vr(xp, 2) + vr(vL8), vm=("xo", l, u, i))
            else:
                if u < 3:
                    b = 2 * u + sb
                    st = Ins(f"buffer_store_dwordx4 v[{xp}:{xp+3}], v{vOut}, {srd(sOUT_)}, s{sOutMt[mt]} offen offset:{64*b}{self.pol(self.OUTP)}", "T",
                             rd=vr(xp, 4) + vr(vOut), vm=("xo", l, u, i))
                else:
                    t = sXt[i % 2]
                    seq2.append(S(f"s_add_u32 s{t}, s{sOutMt[mt]}, s76"))
                    st = Ins(f"buffer_store_dwordx2 v[{xp}:{xp+1}], v{vOutE}, {srd(sOUT_)}, s{t} offen{self.pol(self.OUTP)}", "T",
                             rd=vr(xp, 2) + vr(vOutE), vm=("xo", l, u, i))
            st.after = [lastv]; st.lines = 8 if u < 3 else 4; st.dl = -2000; st.hard = -2000
            self.last_reader[i % 2] = st
            seq2.append(st)
            if i + 2 < len(items): seq2.append(rd(i + 2))
        return seq, seq2
    def bias_unit(self, l, u):
        seq = []
        tiles = [4 * u + i for i in range(4)] if u < 3 else [12]
        def rd(i):
            xp = vXP[i % 2]
            return Ins(f"ds_read_b128 v[{xp}:{xp+3}], v{vBias} offset:{832 * l + 64 * tiles[i]}", "D", rd=vr(vBias), wr=vr(xp, 4), lg=("bi", l, tiles[i]))
        seq2 = [rd(0)] + ([rd(1)] if len(tiles) > 1 else [])
        for b_ in range(len(seq2)):
            if self.last_reader[b_] is not None: seq2[b_].after = [self.last_reader[b_]]
        for i, j in enumerate(tiles):
            xp = vXP[i % 2]
            first = True
            for mt in range(4):
                c = acc(j, mt)
                for r in range(0, 4, 2 if self.PK & 2 else 1):
                    if self.PK & 2: x = V(f"v_pk_add_f32 v[{c+r}:{c+r+1}], v[{c+r}:{c+r+1}], v[{xp+r}:{xp+r+1}]", rd=vr(c + r, 2) + vr(xp + r, 2), wr=vr(c + r, 2))
                    else: x = V(f"v_add_f32 v{c+r}, v{c+r}, v{xp+r}", rd=vr(c + r) + vr(xp + r), wr=vr(c + r))
                    if first: x.need_lg = [("bi", l, j)]; first = False
                    seq.append(x)
            self.last_reader[i % 2] = seq[-1]
            if i + 2 < len(tiles):
                r2 = rd(i + 2); r2.after = [seq[-1]]; seq2.append(r2)
        return seq, seq2
    def flag_set(self, val, need):
        v = V(f"v_add_u32 v{vFlagVal}, {val}, v{vBase}", rd=vr(vBase), wr=vr(vFlagVal), need_vm=list(need) + [("fb",)])
        v.minvm = self.T_ST
        st = Ins(f"buffer_store_dword v{vFlagVal}, v{vFlagOff}, {srd(sWS_)}, 0 offen sc1", "T", rd=vr(vFlagVal) + vr(vFlagOff), vm=("fs", val))
        st.lines = 1; st.dl = -3000; st.hard = -3000
        return [v, st]
    def flag_poll(self, val):
        k = val
        ld = Ins(f"buffer_load_dword v{vPoll}, v{vPollOff}, {srd(sWS_)}, 0 offen sc1", "L", rd=vr(vPollOff), wr=vr(vPoll), vm=("fp", val))
        chk = [V(f"v_sub_u32 v{vPoll}, v{vPoll}, v{vBase}", rd=vr(vPoll) + vr(vBase), wr=vr(vPoll), need_vm=[("fp", val), ("fb",)]),
               V(f"v_cmp_gt_u32 vcc, {val}, v{vPoll}", rd=vr(vPoll)),
               S("s_nop 0"),
               Ins(f"s_cbranch_vccnz Lslow{k}\nLback{k}:", "S")]
        self.slow.append(f"""Lslow{k}:
  s_mov_b32 s{sSpin}, 0x{self.SPIN:x}
Lspin{k}:
  buffer_load_dword v{vPoll}, v{vPollOff}, {srd(sWS_)}, 0 offen sc1
  s_waitcnt vmcnt(0)
  v_sub_u32 v{vPoll}, v{vPoll}, v{vBase}
  v_cmp_gt_u32 vcc, {val}, v{vPoll}
  s_sub_u32 s{sSpin}, s{sSpin}, 1
{"  s_add_u32 s90, s90, 0x%x" % (1 << (4 * (k - 1))) if self.prof else ""}
  s_cbranch_vccz Lback{k}
  s_cmp_lg_u32 s{sSpin}, 0
  s_cbranch_scc1 Lspin{k}
  s_branch Lback{k}""")
        return ld, chk
    def out_patterns(self):
        t0, t1 = vT
        return [V(f"v_lshrrev_b32 v{t0}, 4, v{vL16}", rd=vr(vL16), wr=vr(t0)),
                V(f"v_and_b32 v{t1}, 15, v{t0}", rd=vr(t0), wr=vr(t1)),
                V(f"v_mul_u32_u24 v{t1}, {ROWB}, v{t1}", rd=vr(t1), wr=vr(t1)),
                V(f"v_lshrrev_b32 v{t0}, 4, v{t0}", rd=vr(t0), wr=vr(t0)),
                V(f"v_lshlrev_b32 v{t0}, 3, v{t0}", rd=vr(t0), wr=vr(t0)),
                V(f"v_add_u32 v{vOutE}, v{t1}, v{t0}", rd=vr(t0) + vr(t1), wr=vr(vOutE)),
                V(f"v_add_u32 v{vOut}, v{vOutE}, v{t0}", rd=vr(t0) + vr(vOutE), wr=vr(vOut))]

    def prologue(self):
        R = self.raw
        VV = lambda t: self.emit(Ins(t, "V"))
        R("s_cmp_ge_u32 s2, 256\ns_cbranch_scc1 Lend")
        R("s_load_dwordx4 s[64:67], s[0:1], 0\ns_load_dwordx4 s[68:71], s[0:1], 16\ns_load_dwordx4 s[72:75], s[0:1], 32")
        if self.stamps:
            R("s_memrealtime s[80:81]\ns_memtime s[82:83]")
        if self.prof:
            R(("s_memrealtime" if self.PRT else "s_memtime") + " s[88:89]\ns_mov_b32 s90, 0")
        VV("v_lshrrev_b32 v31, 6, v0")
        VV("v_and_b32 v0, 63, v0")
        R(f"""s_and_b32 s{sC}, s2, 7
s_lshr_b32 s3, s2, 5""")
        VV(f"v_readfirstlane_b32 s{sWv}, v31")
        R(f"""s_lshl_b32 s55, s3, 2
s_lshl_b32 s3, s3, 3
s_add_u32 s{sC}, s{sC}, s3
s_lshr_b32 s{sQ}, s2, 3
s_and_b32 s{sQ}, s{sQ}, 3
s_mul_i32 s{sWq}, s{sQ}, 384
s_lshl_b32 s3, s{sC}, 2
s_add_u32 s3, s3, s{sWv}
s_mul_i32 s{sRow}, s3, {64 * ROWB}
s_add_u32 s55, s55, s{sWv}
s_mul_i32 s55, s55, {ROWB}
s_mul_i32 s{sW1032}, s{sWv}, 1032
s_lshl_b32 s{sW8}, s{sWv}, 3
s_mul_i32 s{sXRw}, s{sWv}, {XRW}
s_add_u32 s{sXRw}, s{sXRw}, {XR}
s_nop 0""")
        for j in range(8):
            R(f"s_add_u32 s{sJ[j]}, s{sRow}, {j * 8 * ROWB - 1024 * (j & 1)}")
        VV(f"v_lshlrev_b32 v{vL16}, 4, v0")
        VV("v_lshrrev_b32 v20, 3, v0")
        VV("v_and_b32 v21, 7, v0")
        VV("v_and_b32 v23, 6, v20")
        VV("v_lshlrev_b32 v22, 1, v20")
        VV("v_xor_b32 v23, v21, v23")
        VV("v_and_b32 v22, 4, v22")
        VV("v_lshlrev_b32 v23, 4, v23")
        VV(f"v_mul_u32_u24 v24, {ROWB}, v20")
        VV("v_xor_b32 v22, v21, v22")
        VV(f"v_add_u32 v{vPX}, v23, v24")
        VV("v_lshlrev_b32 v22, 4, v22")
        VV(f"v_add_u32 v23, s{sW8}, v20")
        VV(f"v_mul_u32_u24 v23, {ROWB}, v23")
        VV(f"v_add_u32 v{vPW}, v23, v22")
        if self.EARLYPF: self.pf_patterns()
        self.pstamp()
        R("s_waitcnt lgkmcnt(0)")
        self.pstamp()
        self.mk(sX0_, 64, 16384 * ROWB)
        self.mk(sW_, 66, 3 * LSTRIDE)
        if self.CPF:
            self.emit(Ins("s_getpc_b64 s[64:65]\nLpc:", "S"))
            R(f"s_and_b32 s65, s65, 0xffff\ns_mov_b32 s66, Lcode_end-Lpc\ns_mov_b32 s67, 0x20000\ns_lshr_b32 s72, s2, 3\ns_lshl_b32 s72, s72, 2\ns_add_u32 s72, s72, s{sWv}\ns_lshl_b32 s72, s72, 7")
    def prologue2(self):
        R = self.raw
        R(f"""s_lshl_b32 s{sXq}, s{sQ}, 5
s_add_u32 s{sXq}, s{sXq}, 1536
s_lshl_b32 s{sW1024}, s{sWv}, 10
s_lshl_b32 s3, s{sC}, 2
s_add_u32 s3, s3, s{sWv}
s_mul_i32 s{sXb}, s3, 106496
s_add_u32 s{sXb}, s{sXb}, {self.XB0}
s_mov_b32 s{sMask}, 0xffff0000
s_mul_i32 s42, s{sQ}, 24576
s_add_u32 s42, s42, s{sXb}
s_lshr_b32 s43, s{sQ}, 1
s_add_u32 s43, s43, 24
s_lshl_b32 s43, s43, 12
s_and_b32 s3, s{sQ}, 1
s_lshl_b32 s3, s3, 11
s_add_u32 s43, s43, s3
s_add_u32 s43, s43, s{sXb}
s_mul_i32 s76, s{sQ}, 352
s_sub_u32 s76, 1536, s76""")
        for mt in range(4):
            R(f"s_add_u32 s{sOutMt[mt]}, s{sRow}, {mt * 16 * ROWB}\ns_add_u32 s{sOutMt[mt]}, s{sOutMt[mt]}, s{sWq}")
        self.mk(sB_, 68, 3 * ROWB)
        self.mk(sOUT_, 70, 16384 * ROWB)
        self.mk(sWS_, 74, 0x10000000)
        if self.NOST or self.NOLD or self.NOW: self.mk(60, 74, 0)
        self.prologue_rest()
    def mk(self, b, lo, size):
        self.raw(f"s_mov_b32 s{b}, s{lo}\ns_and_b32 s{b+1}, s{lo+1}, 0xffff\ns_mov_b32 s{b+2}, {size}\ns_mov_b32 s{b+3}, 0x20000")
    def prologue_rest(self):
        R = self.raw
        VV = lambda t: self.emit(Ins(t, "V"))
        VV("v_lshrrev_b32 v23, 2, v20")
        VV("v_lshlrev_b32 v23, 4, v23")
        VV("v_and_b32 v24, 3, v20")
        VV("v_add_u32 v23, v23, v24")
        R(f"s_lshl_b32 s3, s{sWv}, 2")
        VV("v_add_u32 v23, s3, v23")
        VV(f"v_mul_u32_u24 v23, {ROWB}, v23")
        VV(f"v_add_u32 v{vPW2}, v23, v22")
        VV("v_lshrrev_b32 v20, 1, v0")
        VV("v_and_b32 v21, 1, v0")
        VV("v_lshlrev_b32 v21, 4, v21")
        VV(f"v_mul_u32_u24 v23, {ROWB}, v20")
        VV(f"v_add_u32 v{vPXE}, v23, v21")
        VV("v_and_b32 v23, 19, v20")
        VV("v_and_b32 v24, 4, v20")
        VV("v_lshlrev_b32 v24, 1, v24")
        VV("v_or_b32 v23, v23, v24")
        VV("v_and_b32 v24, 8, v20")
        VV("v_lshrrev_b32 v24, 1, v24")
        VV("v_or_b32 v23, v23, v24")
        VV(f"v_mul_u32_u24 v23, {ROWB}, v23")
        VV(f"v_add_u32 v{vPE}, v23, v21")
        VV("v_and_b32 v23, 7, v20")
        VV("v_and_b32 v24, 8, v20")
        VV("v_lshlrev_b32 v24, 1, v24")
        VV("v_or_b32 v23, v23, v24")
        VV("v_and_b32 v24, 16, v20")
        VV("v_lshrrev_b32 v24, 1, v24")
        VV("v_or_b32 v23, v23, v24")
        VV(f"v_mul_u32_u24 v23, {ROWB}, v23")
        VV(f"v_add_u32 v{vPE2}, v23, v21")
        VV("v_lshrrev_b32 v20, 4, v0")
        VV("v_and_b32 v21, 15, v0")
        VV("v_lshrrev_b32 v22, 2, v0")
        VV("v_and_b32 v22, 3, v22")
        VV("v_and_b32 v23, 3, v0")
        VV("v_mul_u32_u24 v24, 1032, v20")
        VV("v_lshlrev_b32 v25, 7, v22")
        VV("v_add_u32 v24, v24, v25")
        VV("v_lshlrev_b32 v25, 4, v23")
        VV("v_add_u32 v24, v24, v25")
        VV("v_lshrrev_b32 v25, 1, v22")
        VV("v_lshlrev_b32 v25, 6, v25")
        VV(f"v_add_u32 v{vA[0]}, v24, v25")
        VV("v_sub_u32 v25, 64, v25")
        VV(f"v_add_u32 v{vA[1]}, v24, v25")
        VV("v_lshrrev_b32 v24, 1, v20")
        VV("v_lshlrev_b32 v24, 9, v24")
        VV("v_and_b32 v25, 1, v20")
        VV("v_lshlrev_b32 v25, 7, v25")
        VV("v_add_u32 v24, v24, v25")
        VV("v_lshlrev_b32 v25, 5, v22")
        VV("v_add_u32 v24, v24, v25")
        VV("v_lshlrev_b32 v25, 3, v23")
        VV(f"v_add_u32 v{vA2}, v24, v25")
        VV("v_and_b32 v24, 6, v21")
        VV("v_xor_b32 v24, v20, v24")
        VV("v_lshlrev_b32 v24, 4, v24")
        VV("v_lshlrev_b32 v25, 7, v21")
        VV("v_add_u32 v24, v24, v25")
        VV(f"v_add_u32 v{vX[0]}, s{sXRw}, v24")
        VV(f"v_xor_b32 v{vX[1]}, 64, v{vX[0]}")
        VV("v_lshlrev_b32 v24, 5, v21")
        VV("v_lshlrev_b32 v25, 3, v20")
        VV("v_add_u32 v24, v24, v25")
        VV(f"v_add_u32 v24, s{sXRw}, v24")
        VV(f"v_add_u32 v{vX2}, 24576, v24")
        VV(f"v_lshlrev_b32 v{vL16}, 4, v0")
        VV(f"v_lshlrev_b32 v{vL8}, 3, v0")
        VV("v_lshlrev_b32 v24, 4, v20")
        VV(f"v_add_u32 v{vBias}, {BIAS}, v24")
        R(f"s_lshl_b32 s3, s{sC}, 2\ns_add_u32 s3, s3, s{sWv}\ns_lshl_b32 s3, s3, 9\ns_add_u32 s3, s3, {FBASE}")
        VV("v_and_b32 v24, 3, v0")
        VV("v_lshlrev_b32 v24, 7, v24")
        VV(f"v_add_u32 v{vPollOff}, s3, v24")
        VV(f"v_mov_b32 v{vFlagOff}, 0x7fffff00")
        VV(f"v_cmp_eq_u32 vcc, s{sQ}, v0")
        R("s_nop 1")
        VV(f"v_cndmask_b32 v{vFlagOff}, v{vFlagOff}, v{vPollOff}, vcc")
        if not self.EARLYPF: self.pf_patterns()
        self.bias_prologue()
        R(f"s_lshl_b32 s91, s2, 2\ns_add_u32 s91, s91, s{sWv}\ns_lshl_b32 s91, s91, 12")

    def pf_patterns(self):
        R = self.raw; VV = lambda t: self.emit(Ins(t, "V"))
        R(f"s_lshl_b32 s56, s{sQ}, 4")
        VV("v_and_b32 v26, 15, v0")
        VV("v_lshrrev_b32 v27, 4, v0")
        VV("v_add_u32 v26, s56, v26")
        VV("v_lshlrev_b32 v27, 7, v27")
        VV(f"v_mul_u32_u24 v26, {ROWB}, v26")
        VV(f"v_add_u32 v{vPFX}, v26, v27")
        VV("v_lshrrev_b32 v27, 5, v0")
        VV("v_lshlrev_b32 v27, 30, v27")
        VV(f"v_add_u32 v{vPFX}, v{vPFX}, v27")
        for i in self.pfw_pattern(vPFW, False): self.emit(i)
        if self.T_WG <= -50:
            VV("v_lshlrev_b32 v29, 7, v0")
            VV("v_lshrrev_b32 v28, 5, v0")
            VV("v_lshlrev_b32 v28, 30, v28")
            VV("v_add_u32 v29, v28, v29")
            R(f"s_lshl_b32 s91, s2, 2\ns_add_u32 s91, s91, s{sWv}\ns_lshl_b32 s91, s91, 12")
    def bias_prologue(self):
        R = self.raw; VV = lambda t: self.emit(Ins(t, "V"))
        R(f"s_lshl_b32 s3, s{sWv}, 6")
        VV("v_add_u32 v20, s3, v0")
        VV("v_min_u32 v20, 207, v20")
        VV("v_lshrrev_b32 v21, 4, v20")
        VV("v_and_b32 v22, 15, v20")
        VV("v_lshrrev_b32 v23, 1, v21")
        VV("v_lshlrev_b32 v23, 5, v23")
        VV("v_lshrrev_b32 v24, 2, v22")
        VV("v_lshlrev_b32 v24, 3, v24")
        VV("v_add_u32 v23, v23, v24")
        VV("v_and_b32 v24, 1, v21")
        VV("v_lshlrev_b32 v24, 2, v24")
        VV("v_add_u32 v23, v23, v24")
        VV("v_and_b32 v24, 3, v22")
        VV("v_add_u32 v23, v23, v24")
        R(f"s_mul_i32 s3, s{sQ}, 192")
        VV("v_add_u32 v23, s3, v23")
        R(f"s_lshl_b32 s3, s{sQ}, 4\ns_add_u32 s3, s3, 768")
        VV("v_add_u32 v24, s3, v22")
        VV("v_cmp_eq_u32 vcc, 12, v21")
        R("s_nop 1")
        VV("v_cndmask_b32 v23, v23, v24, vcc")
        VV("v_lshlrev_b32 v23, 1, v23")
        VV("v_lshlrev_b32 v22, 2, v20")
        VV(f"v_add_u32 v22, {BIAS}, v22")
    def bias_loads(self):
        for l in range(3):
            self.emit(Ins(f"buffer_load_ushort v{25+l}, v23, {srd(sB_)}, 0 offen offset:{l*ROWB}", "L", vm=("bl", l)))
            self.vm_step[("bl", l)] = -100
    def bias_write(self):
        a = [V(f"v_lshlrev_b32 v{25+l}, 16, v{25+l}", rd=vr(25 + l), wr=vr(25 + l)) for l in range(3)]
        a[0].need_vm = [("bl", 2)]
        a.append(V("v_add_f32 v25, 1.0, v25", rd=vr(25), wr=vr(25)))
        b = [Ins(f"ds_write_b32 v22, v{25+l} offset:{832*l}", "D", rd=vr(22) + vr(25 + l), lg=("bw", l)) for l in range(3)]
        b[0].after = [a[-1]]
        self.last_reader = [b[-1], b[-1]]
        return a, b

    COST = {"S": 4, "W": 4, "X": 4, "SS": 8, "V": 4, "D": 8, "L": 8, "A": 12, "T": 12}
    def fits(self, kinds):
        t = 4
        for i, k in enumerate(kinds):
            if k == "V": t = max(t, 8) + 4
            else: t += self.COST[k]
            if k == "L" and (i + 1 == len(kinds)): t += 4
            if k == "L" and i + 1 < len(kinds) and kinds[i + 1] != "V": return False
            if k in ("A", "T") and (i != 0 or len(kinds) > 1): return False
        return t <= 16

    def first_step(self, l, gi, u=0):
        for f, st in enumerate(self.steps):
            if st["l"] == l and st["gi"] == gi and st["u"] == u: return f
    def last_step(self, l, gi, u):
        r = None
        for f, st in enumerate(self.steps):
            if st["l"] == l and st["gi"] == gi and st["u"] == u: r = f
        return r
    def group_range(self, l, gi):
        fs = [f for f, st in enumerate(self.steps) if st["l"] == l and st["gi"] == gi]
        return fs[0], fs[-1]

    def build_streams(self):
        NL = self.NL
        self.last_reader = [None, None]
        M1 = []
        M2 = []
        E = []
        E2 = []
        M3 = []
        for n, e in enumerate(self.entries):
            es = -100 if e["jf"] < 0 else self.bars[e["jf"]]
            sq = self.dma_entry(n)
            for i_ in sq: i_.dl = min(self.bars[e["jl"]] - self.LATW, max(es, 0) + self.RSL)
            for i_ in sq: i_.hard = self.bars[e["jl"]] - 14
            sq[-1].lines = 8 if e["kind"] == "m" else 32
            M1.append([es, 0, sq, ("bar", e["jf"])])
        G = self.groups[0]
        slot_of = {}
        for gi, (ks_l, sl_l) in enumerate(G):
            for ks, sl in zip(ks_l, sl_l): slot_of[ks] = (gi, sl)
        def first_use(l, ks):
            for f, st in enumerate(self.steps):
                if st["l"] == l and st["ks"] == ks: return f
        self.first_use = first_use
        def slot_free(l, ks, sl):
            f0 = first_use(l, ks)
            r = -100
            for f in range(f0):
                if self.steps[f]["slot"] == sl: r = f
            return r
        self.stage_reads = {}
        stage_free = {}
        DM = []
        rd_earliest = {}
        for ks in range(26):
            gi, sl = slot_of[ks]
            rd_earliest[ks] = slot_free(0, ks, sl) + 1 if slot_free(0, ks, sl) >= 0 else -100
        cur = -100
        for ks in range(26):
            cur = max(cur, rd_earliest[ks]); rd_earliest[ks] = cur
        self.rd_earliest = rd_earliest
        self.slot_of0 = slot_of
        for line in range(13):
            seq = self.stage_dma(line)
            if line >= 3: seq[0].need_lg = [("xs", 2 * (line - 3) + 1, 3)]
            if line < self.PRO_X: es = -100
            else:
                es = self.T_STG0 + self.T_STGD * (line - self.PRO_X)
                k = 0
                for i_ in seq:
                    i_.earliest = int(es + self.PSP * k); i_.dl = i_.earliest + 8
                    if i_.kind == "A": k += 1
            M3.append([es, 1, seq, None])
        for u in (0, 3, 1, 2):
            seq = self.reload_dma(u)
            if u < 3: seq[0 if u else 1].need_lg = [("xs", 2 * (10 + u) + 1, 3)]
            es = self.T_RL[u]; k = 0
            for i_ in seq:
                i_.earliest = int(es + self.PSP * k); i_.dl = i_.earliest + 8
                if i_.kind == "A": k += 1
            M3.append([es, 1, seq, None])
        for ks in range(26):
            gi, sl = slot_of[ks]
            M2.append([rd_earliest[ks], 0, self.stage_read(ks, sl), None])
        for l in range(1, NL):
            base = 4 * (l - 1)
            def cls(ks):
                if ks >= 24: return 4
                return [1, 2, 3, 3, 4, 4][ks % 6]
            polled = set()
            lst = []
            for gi, (ks_l, sl_l) in enumerate(self.groups[l]):
                for ks, sl in zip(ks_l, sl_l):
                    lst.append((gi, ks, sl))
            gb0, gb1 = self.group_range(l - 1, 4)
            l0 = gb1 + 1
            exp = {1: l0 + self.T_U0, 2: l0 + self.T_U0B, 3: l0 + self.T_U1, 4: l0 + self.T_U2}
            items = []
            for gi, ks, sl in lst:
                es = max(slot_free(l, ks, sl) + 1, exp[cls(ks)], first_use(l, ks) - (self.XLEADG[gi] or self.XLEAD))
                items.append([es, cls(ks), first_use(l, ks), ks, sl])
            items.sort(key=lambda it: (it[0], it[2]))
            npaced = 0
            for es, c, gi, ks, sl in items:
                seq = []
                if c not in polled:
                    polled.add(c)
                    ld, chk = self.flag_poll(base + c)
                    ld.lines = 4; ld.dl = es - self.T_POLL
                    M2.append([es - self.T_POLL, 2, [ld], None])
                    seq += chk
                xl = self.xload(l, ks, sl)
                for i_ in xl:
                    i_.dl = first_use(l, ks) - self.LATX
                    if i_.kind == "L": i_.lines = 8 if ks < 24 else 4
                    if i_.kind == "L" and self.XPACE and npaced < self.XPN:
                        i_.earliest = int(l0 + self.T_U0 + self.XPACE * npaced); i_.dl = max(i_.earliest + 1, first_use(l, ks) - self.LATX2); npaced += 1
                seq += xl
                M2.append([es, 3, seq, None])
        if NL > 1:
            E.append([self.T_PAT, 0, self.pfw_pattern(vPFX, True), ("pat",)])
        a, b = self.bias_write()
        E.append([self.T_BW, 0, a, None]); E2.append([self.T_BW, 0, b, ("bw",)])
        for l in range(NL):
            g3 = 2
            for u in range(4):
                lastf = self.last_step(l, g3, u)
                a, b = self.bias_unit(l, u)
                E.append([lastf + 2, 1, a, ("bias", l, u)]); E2.append([lastf + 2 - self.E2LEAD, 1, b, None])
            if l == NL - 1:
                E.append([self.group_range(l, 4)[0] + 8, 0, self.out_patterns(), ("outpat",)])
            for u in range(4):
                lastf = self.last_step(l, 4, u)
                a, b = self.epi_unit(l, u)
                E.append([lastf + 2, 0, a, None]); E2.append([lastf + 2 - self.E2LEAD, 0, b, ("epi", l, u)])
        PFs = self.pf_streams()
        E.append([self.T_PW0[-1] + 2, 0, self.pfg_pat, None])
        M1.sort(key=lambda x: (x[0], x[1])); M2.sort(key=lambda x: (x[0], x[1])); E.sort(key=lambda x: (x[0], x[1]))
        flat = lambda Q: [(max(es, ins.earliest) if ins.earliest is not None else es, ins, tag, idx == len(seq) - 1) for es, _, seq, tag in Q for idx, ins in enumerate(seq)]
        M3.sort(key=lambda x: (x[0], x[1]))
        E2.sort(key=lambda x: (x[0], x[1]))
        self.PF = flat(PFs)
        self.M1, self.M2, self.E, self.M3, self.E2 = flat(M1), flat(M2), flat(E), flat(M3), flat(E2)

    def try_emit_from(self, Q, f, gap_kinds, allow, post_w):
        if not Q: return False
        es, ins, tag, lastflag = Q[0]
        if es > f: return False
        if isinstance(tag, tuple) and tag[0] == "bar" and tag[1] >= 0 and tag[1] > self.bar_passed: return False
        if ins.kind not in allow: return False
        if ins.note == 'm0' and self.m0_owner is not None: return False
        for a in ins.after:
            if id(a) not in self.issue_step: return False
        for t in ins.need_vm:
            if t not in self.vm_pos: return False
        for t in ins.need_lg:
            if t not in self.lg_pos: return False
        nv, nl = self.wait_for(ins.need_vm, ins.need_lg)
        needw = nv is not None or nl is not None
        kinds = gap_kinds + (["W"] if needw else []) + [ins.kind] + post_w
        if not self.fits(kinds):
            if needw and self.fits(gap_kinds + ["W"] + post_w) and self.wait_ok(ins, f):
                self.emit_wait(ins.need_vm, ins.need_lg); gap_kinds.append("W"); return True
            return False
        if needw and not self.wait_ok(ins, f): return False
        if not self.hazard_ok(ins): return False
        if needw:
            self.emit_wait(ins.need_vm, ins.need_lg); gap_kinds.append("W")
        self.emit(ins); gap_kinds.append(ins.kind)
        if ins.note == 'm0': self.m0_owner = id(Q)
        if ins.kind == 'A' and ins.note != "m0keep": self.m0_owner = None
        self.issue_step[id(ins)] = f
        if ins.vm is not None: self.vm_step[ins.vm] = f
        if ins.lg is not None: self.lg_step[ins.lg] = f
        Q.pop(0)
        if isinstance(tag, tuple) and tag[0] == "flag": self.flag_step[tag[1]] = f
        if isinstance(tag, tuple) and tag[0] == "pat":
            assert ("pf", "x", self.PX_L[-1]) in self.vm_pos, "prefetch pattern overwrites vPX before reload issued"
            self.pat_done = lastflag
        if ins.vm is not None and ins.vm[0] == "pf" and ins.vm[1] == "w" and ins.vm[2] > 0: assert self.pat_done and ("rl", 3, 1) in self.vm_pos
        if isinstance(tag, tuple) and tag[0] == "outpat":
            assert not any(i.kind == "L" and i.vm[0] == "fp" for _, i, _, _ in self.M2) and not any("v_cmp_gt_u32 vcc" in i.text for _, i, _, _ in self.M2) and not self.F
        if ins.vm is not None and ins.vm[0] == "xo" and ins.vm[2] == 0 and ins.vm[3] == 3 and ins.vm[1] < self.NL - 1:
            l_ = ins.vm[1]; val = 4 * l_ + 1
            self.F += [(f, i_, ("flag", val), False) for i_ in self.flag_set(val, [("xo", l_, 0, i) for i in range(4)])]
        if lastflag and isinstance(tag, tuple) and tag[0] == "epi":
            self.epi_done(tag, f)
        if lastflag and isinstance(tag, tuple) and tag[0] == "bias":
            self.bias_done[(tag[1], tag[2])] = f
        return True
    def wait_ok(self, ins, f):
        for t in ins.need_vm:
            if self.vm_pos[t] >= self.vm_done and f - self.vm_step.get(t, -1000) < (ins.minvm or self.MIN_VM): return False
        for t in ins.need_lg:
            if self.lg_pos[t] >= self.lg_done and f - self.lg_step.get(t, -1000) < self.MIN_LG: return False
        return True
    def hazard_ok(self, ins):
        if ins.kind in ("V", "D", "L"):
            regs = set(ins.rd) | set(ins.wr) if ins.kind == "V" else set(ins.wr)
            n = 0
            for prev in reversed(self.out):
                if n >= 9: break
                if prev.kind == "M" and (set(prev.wr) & regs): return False
                n += 1 if prev.kind != "SS" else 2
        if ins.kind == "V":
            n = 0
            for prev in reversed(self.out):
                if n >= 2: break
                if prev.kind == "T" and (set(prev.rd) & set(ins.wr)): return False
                n += 1
        if ins.kind == "V" and not getattr(self, "drain", False):
            f, g = self.cur
            nxt = []
            for d in (1, 2):
                gg = g + d; ff = f + gg // 4; gg %= 4
                if ff < self.nsteps: nxt.append(self.mfma(ff, gg))
            for m in nxt:
                if set(m.rd) & set(ins.wr): return False
        if ins.kind == "A":
            if self.out and self.out[-1].note == "m0": return False
        return True
    def epi_done(self, tag, f):
        _, l, u = tag
        self.epi_fin[(l, u)] = f
        if l == self.NL - 1: return
        n = 8 if u < 3 else 4
        tags = [("xo", l, u, i) for i in range(n)]
        val = None
        if u == 0: val = 4 * l + 2
        elif u == 1: val = 4 * l + 3
        elif u == 3: val = 4 * l + 4; tags = tags + [("xo", l, 2, i) for i in range(8)]
        if val is not None:
            self.F += [(f, ins, ("flag", val), False) for ins in self.flag_set(val, tags)]

    def schedule(self):
        self.issue_step = {}; self.vm_step = {}; self.lg_step = {}
        self.pending = []; self.epi_fin = {}; self.bias_done = {}
        self.bar_passed = -1
        self.F = []; self.pat_done = False; self.B = 0.0; self.Bhist = []
        self.m0_owner = None
        N = self.nsteps
        barat = {P: j for j, P in enumerate(self.bars)}
        need_at = {}
        for n, e in enumerate(self.entries): need_at.setdefault(e["jl"], []).append(("w", n))
        self.pro_issue()
        self.emit_wait(need_at.get(0, []), [])
        self.emit(Ins("s_barrier", "X")); self.bar_passed = 0
        self.pstamp()
        for f in range(self.LA):
            for r in self.tr_reads(f): self.emit(r); self.lg_step[r.lg] = -10
        if self.stamps: self.stamp()
        self.epi_started = set()
        for f in range(N):
            st = self.steps[f]
            if f == 0:
                nv, nl = self.step_needs(0)
                self.emit_wait(nv, nl)
            if st["l"] > 0 and (st["l"], st["u"]) not in self.epi_started:
                self.epi_started.add((st["l"], st["u"]))
                assert (st["l"] - 1, st["u"]) in self.epi_fin, ("epilogue late", st["l"] - 1, st["u"], f, self.epi_fin)
            if self.PROL and f == 0: self.pstamp()
            if self.prof and not self.PROL and f >= self.PS and (f - self.PS) % self.PI == 0 and (f - self.PS) // self.PI <= 60:
                k = (f - self.PS) // self.PI
                if k > 0: self.emit(Ins(f"v_writelane_b32 v0, s86, {k}", "V"))
                self.emit(Ins(("s_memrealtime" if self.PRT else "s_memtime") + " s[86:87]", "S"))
                self.prof_k = k
            nL = 0; dynbar = False; defer_w = None
            for g in range(4):
                self.emit(self.mfma(f, g))
                self.cur = (f, g)
                kinds = []
                if g < 2 and f + self.LA < N:
                    r = self.tr_reads(f + self.LA)[g]
                    if g == 0:
                        pass
                    self.emit(r); self.lg_step[r.lg] = f; kinds.append("D")
                if g == 1 and f + 1 < N:
                    nv, nl = self.step_needs(f + 1)
                    if f in barat: nv = nv + need_at.get(barat[f], [])
                    for val, tags in self.pending:
                        if all(f - self.vm_step[t] >= self.T_ST for t in tags):
                            nv = nv + tags; dynbar = True
                    vready = bool(self.E) and self.E[0][1].kind == "V" and self.E[0][0] <= f
                    if self.WDEF and vready and not (f in barat or dynbar): defer_w = (nv, nl)
                    elif self.emit_wait(nv, nl): kinds.append("W")
                if defer_w is not None and g >= 2:
                    vmready = any(Q and Q[0][0] <= f and (Q[0][1].kind in ("A", "L", "T") or Q[0][1].note == "m0") for Q in (self.F, self.M1, self.M2, self.PF, self.M3, self.E2))
                    if g == 3 or not vmready:
                        if self.emit_wait(*defer_w): kinds.append("W")
                        defer_w = None
                if g == 2 and (f in barat or dynbar):
                    self.emit(Ins("s_barrier", "X")); kinds.append("X")
                    if f in barat: self.bar_passed = barat[f]
                    for val, tags in list(self.pending):
                        if all(self.vm_pos[t] < self.vm_done for t in tags):
                            self.pending.remove((val, tags))
                            seq = self.flag_set(val, tags)
                            self.F += [(f, ins, None, False) for ins in seq]
                            self.flag_step[val] = f
                self.B = max(0.0, self.B - 16 * (self.ETA if f > 215 else self.ETA0))
                progress = True
                allk = ("S", "SS", "V", "A", "L", "T", "D")
                order = [self.F, self.M1, self.M2, self.PF, self.M3, self.E2, self.E]
                while progress:
                    progress = False
                    cands = []
                    for qi, Q in enumerate(order):
                        if Q and (Q[0][1].kind in ("A", "L", "T") or Q[0][1].note == "m0") and Q[0][0] <= f:
                            ins = Q[0][1]
                            dl = ins.dl if ins.dl is not None else Q[0][0] + 10
                            cands.append((dl, qi, Q))
                    cands.sort(key=lambda c: (c[0], c[1]))
                    for dl, qi, Q in cands:
                        ins = Q[0][1]
                        th = self.TH_URG if dl <= f + self.URG else self.TH
                        if ins.note == "m0": th += 16
                        hard = getattr(ins, "hard", None)
                        if self.B > th and not (hard is not None and hard <= f): continue
                        if Q is self.PF and g < 2: continue
                        if self.try_emit_from(Q, f, kinds, allk, []):
                            if ins.kind in ("A", "L", "T"): self.B += ins.lines * self.CPL
                            progress = True; break
                    if progress: continue
                    for Q in order:
                        if Q and (Q[0][1].kind in ("A", "L", "T") or Q[0][1].note == "m0"): continue
                        if self.try_emit_from(Q, f, kinds, allk, []):
                            progress = True; break
                self.Bhist.append(self.B)
            if self.stamps and f + 1 < N and (self.steps[f + 1]["l"] != st["l"] or (self.steps[f + 1]["gi"] == 4 and st["gi"] == 3)):
                self.stamp()
        self.drain = True
        guard = 0
        assert not self.PF
        while self.M1 or self.M2 or self.E or self.M3 or self.F or self.E2:
            guard += 1
            assert guard < 100000
            done = False
            for Q in (self.F, self.E2, self.E, self.M2, self.M3, self.M1):
                if Q:
                    es, ins, tag, lastflag = Q[0]
                    if any(id(a) not in self.issue_step for a in ins.after): continue
                    if any(t not in self.lg_pos for t in ins.need_lg): continue
                    while not self.hazard_ok(ins): self.emit(Ins("s_nop 0", "S"))
                    self.emit_wait(ins.need_vm, ins.need_lg)
                    while not self.hazard_ok(ins): self.emit(Ins("s_nop 0", "S"))
                    self.emit(ins); Q.pop(0); self.issue_step[id(ins)] = N
                    if ins.vm is not None: self.vm_step[ins.vm] = N
                    if lastflag and isinstance(tag, tuple) and tag[0] == "epi": self.epi_done(tag, N)
                    done = True; break
            assert done
        if self.stamps: self.stamp()
        if self.prof:
            k = (self.prof_k + 1) if not self.PROL else 40
            self.raw(f"""v_writelane_b32 v0, s86, {k}
s_waitcnt vmcnt(0)
{"s_memrealtime" if self.PRT else "s_memtime"} s[86:87]
s_waitcnt lgkmcnt(0)
s_nop 4""")
            self.emit(Ins("v_writelane_b32 v0, s88, 0", "V"))
            if self.PROL:
                for kk in range(self.prol_k):
                    self.emit(Ins(f"v_writelane_b32 v0, s{[60, 62, 78, 80, 82, 100, 100, 100][kk]}, {kk + 1}", "V"))
            if k + 1 < 64: self.emit(Ins(f"v_writelane_b32 v0, s86, {k+1}", "V"))
            self.emit(Ins(f"v_writelane_b32 v0, s90, 63", "V"))
            self.raw(f"""s_lshl_b32 s3, s2, 2
s_add_u32 s3, s3, s{sWv}
s_lshl_b32 s3, s3, 8""")
            self.emit(Ins(f"v_lshrrev_b32 v2, 2, v{vL16}", "V"))
            self.raw("s_nop 4")
            self.emit(Ins(f"buffer_store_dword v0, v2, {srd(sWS_)}, s3 offen", "T"))

    def step_needs(self, f):
        st = self.steps[f]
        nl = [("wf", f, 0), ("wf", f, 1)]
        nv = []
        for mt in range(4):
            a, b = self.xtags(st["l"], st["ks"], mt)
            for t in a:
                assert t in self.vm_pos, ("x load not issued before use", t, f)
            for t in b:
                assert t in self.lg_pos, ("stage read not issued before use", t, f)
            nv += a; nl += b
        return nv, nl

    def pstamp(self):
        if self.prof and self.PROL:
            k = self.prol_k; self.prol_k += 1
            r = [60, 62, 78, 80, 82, 100, 100, 100][k]
            self.emit(Ins(f"s_memtime s[{r}:{r+1}]", "S"))
    def pro_issue(self):
        def take(Q, pred):
            out = []
            while Q and pred(Q[0]): out.append(Q.pop(0))
            return out
        items = take(self.M1, lambda it: it[0] <= -50) + take(self.M3, lambda it: it[0] <= -50)
        seqs = []; cur = []
        for it in items:
            cur.append(it[1])
            if it[1].kind == "A": seqs.append(cur); cur = []
        wseq = [s for s in seqs if s[-1].vm[0] == "w"]; xseq = [s for s in seqs if s[-1].vm[0] == "st"]
        nW, nX = self.PRO_W, self.PRO_X
        assert 4 * nW >= 12
        rest_w = wseq[nW:]; rest_x = xseq[8 * nX:]
        self.M1[0:0] = [(-40, ins, ("bar", -1), False) for s in rest_w for ins in s]
        self.M3[0:0] = [(-40, ins, None, False) for s in rest_x for ins in s]
        def emit_seqs(L):
            for s in L:
                for k, ins in enumerate(s):
                    if ins.kind == "A" and self.out[-1].note == "m0": self.emit(Ins("s_nop 0", "S"))
                    self.emit(ins)
                    if ins.vm is not None: self.vm_step[ins.vm] = -100
        for tok in self.PORD:
            if tok.startswith("pf"):
                lim = int(tok[2:])
                while self.PF and self.PF[0][0] <= lim:
                    es, ins, tag, lf = self.PF.pop(0)
                    self.emit(ins); self.issue_step[id(ins)] = -100
                    if ins.vm is not None: self.vm_step[ins.vm] = -100
            elif tok[0] == "x": n = int(tok[1:]); assert n < nX; emit_seqs(xseq[8 * n:8 * n + 8])
            elif tok == "wA": emit_seqs(wseq[0:3])
            elif tok == "wB": emit_seqs(wseq[3:nW])
            elif tok == "p2": self.prologue2()
            elif tok == "fb":
                self.emit(Ins(f"buffer_load_dword v{vBase}, v{vPollOff}, {srd(sWS_)}, 0 offen sc1", "L", vm=("fb",)))
                self.vm_step[("fb",)] = -100
                self.bias_loads()
            elif tok == "st": self.pstamp()
            elif tok.startswith("wait"):
                n = int(tok[4:]); self.emit(Ins(f"s_waitcnt vmcnt({n})", "W")); self.vm_done = max(self.vm_done, len(self.vmq) - n)
            else: assert 0, tok
        self.pstamp()
        n = 0
        while self.M2 and n < 8:
            es, ins, tag, lf = self.M2[0]
            assert ins.kind == "D"
            self.emit_wait(ins.need_vm, ins.need_lg)
            self.emit(ins); self.M2.pop(0); n += 1
            if ins.lg is not None: self.lg_step[ins.lg] = -100
        self.pstamp()

    def pf_streams(self):
        PF = []
        def ld(pat, dst, base, soff, tag, pre=(), off=0):
            i = Ins(f"buffer_load_dword v{dst}, v{pat}, {srd(base)}, {soff} offen" + (f" offset:{off}" if off else ""), "L", rd=vr(pat), wr=vr(dst), vm=tag)
            i.lines = {"x": 32, "w": 16, "g": 32}[tag[1]]
            return list(pre) + [i]
        t = 54
        for k, (a, es) in enumerate(zip(self.PX_L, self.T_PX)):
            PF.append([es, 0, ld(vPFX, vPoll, sX0_, f"s{t}", ("pf", "x", a), [S(f"s_add_u32 s{t}, s{sRow}, {128 * a}")]), None])
        if self.CPF:
            for k, es in enumerate(self.T_CPF):
                i = Ins(f"buffer_load_dword v{vPoll if es < 200 else vPXE}, off, s[64:67], s{t}", "L", vm=("pf", "c", k)); i.lines = 1
                PF.append([es, 2, [S(f"s_add_u32 s{t}, s72, {16384 * k}"), i], None])
        for j, es in enumerate(self.T_PW0):
            PF.append([es, 1, ld(vPFW, vPoll, sW_, f"s{t}", ("pf", "w", 0, j), [S(f"s_mov_b32 s{t}, {4 * j * KSB}")]), None])
        lastw0 = PF[-1][2][-1]
        t0 = vT[0]
        pat = [V(f"v_lshlrev_b32 v{vPFG}, 3, v{vL16}", rd=vr(vL16), wr=vr(vPFG)),
               V(f"v_lshrrev_b32 v{t0}, 9, v{vL16}", rd=vr(vL16), wr=vr(t0)),
               V(f"v_lshlrev_b32 v{t0}, 30, v{t0}", rd=vr(t0), wr=vr(t0)),
               V(f"v_add_u32 v{vPFG}, v{vPFG}, v{t0}", rd=vr(t0) + vr(vPFG), wr=vr(vPFG))]
        pat[0].after = [lastw0]
        if self.T_WG <= -50:
            self.pfg_pat = []
            g = ld(29, vPoll, sW_, "s91", ("pf", "g"))
        else:
            self.pfg_pat = pat
            g = ld(vPFG, vPoll, sW_, "s91", ("pf", "g"))
            g[-1].after = [pat[-1]]
        PF.append([self.T_WG, 0, g, None])
        if self.NL > 1:
            pass
            for l in range(1, self.NL):
                l0 = self.group_range(l - 1, 4)[1] + 1
                for j, dt in enumerate(self.T_PWL):
                    PF.append([l0 + dt, 1, ld(vPFX, vPXE, sW_, f"s{t}", ("pf", "w", l, j), [S(f"s_mov_b32 s{t}, {(0 if self.NOW else l) * LSTRIDE + j * KSB}")]), None])
        PF.sort(key=lambda x: (x[0], x[1]))
        return PF
    def pfw_pattern(self, dst, perm):
        t0, t1 = vT
        seq = [V(f"v_lshrrev_b32 v{t0}, 6, v{vL16}", rd=vr(vL16), wr=vr(t0)),
               V(f"v_mul_u32_u24 v{dst}, {(6 if perm else 1) * KSB}, v{t0}", rd=vr(t0), wr=vr(dst)),
               V(f"v_lshrrev_b32 v{t0}, 2, v{t0}", rd=vr(t0), wr=vr(t0)),
               V(f"v_min_u32 v{t0}, 1, v{t0}", rd=vr(t0), wr=vr(t0)),
               V(f"v_lshlrev_b32 v{t0}, 30, v{t0}", rd=vr(t0), wr=vr(t0)),
               V(f"v_and_b32 v{dst}, 0x3fffffff, v{dst}", rd=vr(dst), wr=vr(dst)),
               V(f"v_add_u32 v{dst}, v{dst}, v{t0}", rd=vr(t0) + vr(dst), wr=vr(dst)),
               V(f"v_lshrrev_b32 v{t0}, 4, v{vL16}", rd=vr(vL16), wr=vr(t0)),
               V(f"v_and_b32 v{t0}, 3, v{t0}", rd=vr(t0), wr=vr(t0)),
               V(f"v_lshlrev_b32 v{t1}, 7, v{t0}", rd=vr(t0), wr=vr(t1)),
               V(f"v_add_u32 v{t1}, s{sWq}, v{t1}", rd=vr(t1), wr=vr(t1)),
               V(f"v_cmp_eq_u32 vcc, 3, v{t0}", rd=vr(t0)),
               V(f"v_mov_b32 v{t0}, 0x600", wr=vr(t0)),
               V(f"v_cndmask_b32 v{t1}, v{t1}, v{t0}, vcc", rd=vr(t0) + vr(t1), wr=vr(t1)),
               V(f"v_add_u32 v{dst}, v{dst}, v{t1}", rd=vr(dst) + vr(t1), wr=vr(dst)),
               V(f"v_add_u32 v{dst}, s55, v{dst}", rd=vr(dst), wr=vr(dst))]
        return seq

    def stamp(self):
        k = self.nstamp; self.nstamp += 1
        if k < 8:
            self.emit(Ins(f"s_memtime s[{86 + 2*k}:{87 + 2*k}]", "S"))

    def check(self):
        out = self.out
        errs = 0
        for i, ins in enumerate(out):
            if ins.kind == "M":
                n = 0
                for prev in reversed(out[max(0, i - 4):i]):
                    if n >= 2: break
                    if prev.kind == "V" and set(prev.wr) & set(ins.rd):
                        print("HAZARD V->M", i, prev.text, "|", ins.text, file=sys.stderr); errs += 1
                    n += 1
            if ins.kind == "V":
                n = 0
                for prev in reversed(out[max(0, i - 10):i]):
                    if n >= 8: break
                    if prev.kind == "M" and set(prev.wr) & (set(ins.rd) | set(ins.wr)):
                        print("HAZARD M->V", i, prev.text, "|", ins.text, file=sys.stderr); errs += 1
                    n += 1
        return errs

    def text(self):
        NL = self.NL
        L = []
        L.append("""; Kernarg layout for this problem (48 bytes, ptrs only, base s[0:1]):
;   offset   0: d_in[0] x0  shape=(16384, 832) dtype=bfloat16 strides=(1664, 2) contiguous=True
;   offset   8: d_in[1] ws  shape=(3, 832, 832) dtype=bfloat16 strides=(1384448, 1664, 2) contiguous=True
;   offset  16: d_in[2] bs  shape=(3, 832) dtype=bfloat16 strides=(1664, 2) contiguous=True
;   offset  24: d_out     shape=(16384, 832) dtype=bfloat16 (2 bytes/elem)
;   offset  32: d_debug   256 bytes
;   offset  40: d_ws      268435456 bytes workspace
; cluster of 4 workgroups = 256 rows; each workgroup owns 208 output features; layers exchange x through d_ws.""")
        L.append("; @launch grid=(256,1,1) block=(256,1,1) lds=163840")
        L.append('.amdgcn_target "amdgcn-amd-amdhsa--gfx950"')
        L.append(".text")
        L.append(f".globl {KNAME}\n.p2align 8\n.type {KNAME},@function\n{KNAME}:")
        for ins in self.out: L.append("  " + ins.text)
        if self.stamps:
            L.append("  s_memtime s[84:85]\n  s_memrealtime s[78:79]\n  s_waitcnt lgkmcnt(0)")
            L.append(f"  s_lshl_b32 s3, s2, 7\n  v_mov_b32 v2, s3\n  v_cmp_eq_u32 vcc, 0, v{vL16}\n  s_cmp_eq_u32 s{sWv}, 0\n  s_cbranch_scc0 Lnost\n  s_and_saveexec_b64 s[4:5], vcc")
            regs = [80, 82, 78, 84] + [86 + 2 * k for k in range(min(self.nstamp, 8))]
            for i, s in enumerate(regs):
                L.append(f"  v_mov_b32 v6, s{s}\n  v_mov_b32 v7, s{s+1}\n  buffer_store_dwordx2 v[6:7], v2, {srd(sWS_)}, 0 offen offset:{8*i}\n  s_nop 1")
            L.append("Lnost:")
        L.append("  s_waitcnt vmcnt(0)")
        L.append("Lend:\n  s_endpgm")
        L += self.slow
        L.append("Lcode_end:")
        L.append('.section .rodata,"a"\n.p2align 6')
        L.append(f".amdhsa_kernel {KNAME}")
        L.append("  .amdhsa_next_free_vgpr 512\n  .amdhsa_next_free_sgpr 102\n  .amdhsa_accum_offset 256\n  .amdhsa_group_segment_fixed_size 0\n  .amdhsa_kernarg_size 48\n  .amdhsa_user_sgpr_count 2\n  .amdhsa_user_sgpr_kernarg_segment_ptr 1\n  .amdhsa_system_sgpr_workgroup_id_x 1\n.end_amdhsa_kernel")
        return "\n".join(L) + "\n"

    LA = 3
    WDEF = 0
    XPACE = 0; XPN = 12; LATX2 = 12; T_U0B = 0
    PK = 0; XLEADG = [0, 0, 0, 0, 0]
    EARLYPF = 0
    PORD = ["pf-90", "x0", "wA", "wB", "x1", "st", "p2", "fb", "pf-50"]
    PRT = 0
    CPF = 1; T_CPF = [-95, 30, 240, 440, 640]
    XMODE = 0
    XB0 = XBASE
    ETA0 = 1.3
    RSL = 2
    ETA = 1.0; CPL = 9; TH = 120; TH_URG = 280; URG = 2; LATW = 16; LATX = 20; T_STG0 = 8; T_STGD = 15; PSP = 1.6; T_RL = [185, 228, 262, 214]
    PROL = 0; T_BW = 20; PRO_W = 6; PRO_X = 2; PX_L = [2, 4, 6, 8, 10, 12]; T_PX = [7, 30, 56, 82, 108, 134]; T_PW0 = [-60, 9, 32, 70, 90, 110, 126]; T_WG = 226; T_PWL = [-90, -70, 20, 60, 90, 110, 120, 130]; T_PAT = 200; AGE2 = 12; T_PWA = -100; T_PWB = 70; AGE = 16
    NOST = 0; NOLD = 0; NOW = 0
    LDP = 2; STP = 2; OUTP = 0
    IV = 12
    PS = 0; PI = 17
    T_U0 = -32; T_U1 = 50; T_U2 = 120; XLEAD = 26; SPIN = 0x8000; E2LEAD = 2; T_POLL = 10; T_ST = 8; MAXL = 2
    MIN_VM = 10; MIN_LG = 1

    def run(self):
        self.flag_step = {}
        self.plan()
        self.prologue()
        self.build_streams()
        self.schedule()
        errs = self.check()
        return errs

if __name__ == "__main__":
    ap = argparse.ArgumentParser()
    ap.add_argument("-o", default="k.s")
    ap.add_argument("--nl", type=int, default=3)
    ap.add_argument("--interval", type=int, default=12)
    ap.add_argument("--stamps", action="store_true")
    ap.add_argument("--prof", action="store_true")
    ap.add_argument("--set", action="append", default=[])
    a = ap.parse_args()
    for kv in a.set:
        k, v = kv.split("="); setattr(Gen, k, eval(v))
    g = Gen(NL=a.nl, interval=Gen.IV, stamps=a.stamps, prof=a.prof)
    errs = g.run()
    open(a.o, "w").write(g.text())
    from collections import Counter
    print("instrs", len(g.out), Counter(i.kind for i in g.out), "hazard errs", errs, "minlead(steps)", g.minlead, file=sys.stderr)
    print("xload steps", {k: v for k, v in g.vm_step.items() if k[0] in ("x", "fp", "fs") and (k[0] != "x" or k[3] == 3)}, file=sys.stderr)
    import statistics
    print("B mean", statistics.mean(g.Bhist), "max", max(g.Bhist), "frac>150", sum(b > 150 for b in g.Bhist) / len(g.Bhist), file=sys.stderr)
    leads = [g.bars[e["jl"]] - g.vm_step[("w", n)] for n, e in enumerate(g.entries) if g.vm_step[("w", n)] > -50]
    print("ring leads min/mean", min(leads), statistics.mean(leads), "hist", sorted(leads)[:20], file=sys.stderr)
    print("stage", {k: v for k, v in g.vm_step.items() if k[0] in ("st", "rl") and k[2] in (0, 7)}, file=sys.stderr)
    print("pf", {k: v for k, v in g.vm_step.items() if k[0] == "pf"}, file=sys.stderr)
    print("epi_fin", g.epi_fin, "bias", g.bias_done, "flags", g.flag_step, "nsteps", g.nsteps, file=sys.stderr)
```

```python
import sys, argparse

KNAME = "standalone__dcn_v2_cross__recsys_kernel"
D = 832; ROWB = 1664
LSTRIDE = D * ROWB
KSB = 32 * ROWB
RING = 54848
BIAS = 54848
XR = 57344
XRW = 26624
XBASE = 0x100000
FBASE = 0x40000
XLAYER = 64 * 4 * 106496
CH = 4128
XB = 4096

ACC0 = 48
def acc(j, mt): return ACC0 + 16 * j + 4 * mt
WF0 = 32; NB = 4
def wf(f): return WF0 + 4 * (f % NB)
vA = [1, 2]; vA2 = 3
vPW = 4; vPW2 = 5; vPE = 6; vPE2 = 7
vX = [8, 9]; vX2 = 10
vL16 = 11; vL8 = 12
vPX = 13; vOut = 30
vPXE = 14; vOutE = 31
vBias = 15
vFlagOff = 16; vFlagVal = 17; vPollOff = 18; vPoll = 19; vBase = 30
vPFX = 31; vPFW = 17; vPFG = 17
vXP = [20, 24]
vT = [28, 29]
vDummy = 0
sW_ = 8; sX0_ = 12; sOUT_ = 16; sWS_ = 20; sDBG_ = 24; sB_ = 28
sQ = 32; sC = 33; sWv = 34; sWq = 35; sW1032 = 36; sW8 = 37; sXq = 38; sW1024 = 39
sXb = 40; sRow = 41; sMask = 44; sXRw = 45
sOutMt = [46, 47, 48, 49]
sT = [50, 51, 52, 53, 54, 55]
sXs = [56, 57]
sXt = [77, 84]
sP = 58
sSpin = 59
sJ = [92, 93, 94, 95, 96, 97, 98, 99]
sStamp = 60
def srd(b): return f"s[{b}:{b+3}]"

class Ins:
    __slots__ = ("text", "kind", "rd", "wr", "vm", "lg", "need_vm", "need_lg", "earliest", "label", "note", "after", "minvm", "dl", "lines", "hard")
    def __init__(self, text, kind, rd=(), wr=(), vm=None, lg=None, need_vm=None, need_lg=None, earliest=None, note=None):
        self.text = text; self.kind = kind; self.rd = tuple(rd); self.wr = tuple(wr)
        self.vm = vm; self.lg = lg; self.need_vm = need_vm or []; self.need_lg = need_lg or []
        self.earliest = earliest; self.note = note; self.after = []; self.minvm = None; self.dl = None; self.lines = 8; self.hard = None
def vr(b, n=1): return [("v", b + i) for i in range(n)]
def ar(b, n=1): return [("a", b + i) for i in range(n)]

def S(t, **k): return Ins(t, "S", **k)
def V(t, rd=(), wr=(), **k): return Ins(t, "V", rd=rd, wr=wr, **k)

class Gen:
    def __init__(self, NL=3, interval=12, dbg=None, stamps=False, prof=False):
        self.prof = prof; self.prol_k = 0
        self.NL = NL; self.interval = interval; self.stamps = stamps
        self.out = []
        self.vmq = []; self.vm_done = 0; self.vm_pos = {}
        self.lgq = []; self.lg_done = 0; self.lg_pos = {}
        self.slow = []
        self.tcount = 0
        self.nstamp = 0

    def emit(self, ins):
        if ins.vm is not None:
            assert ins.vm not in self.vm_pos, ins.vm
            self.vm_pos[ins.vm] = len(self.vmq); self.vmq.append(ins.vm)
        if ins.lg is not None:
            assert ins.lg not in self.lg_pos, ins.lg
            self.lg_pos[ins.lg] = len(self.lgq); self.lgq.append(ins.lg)
        self.out.append(ins)
    def wait_for(self, need_vm, need_lg):
        nv = None; nl = None
        for t in need_vm:
            p = self.vm_pos[t]
            if p >= self.vm_done:
                n = len(self.vmq) - 1 - p
                nv = n if nv is None else min(nv, n)
        for t in need_lg:
            p = self.lg_pos[t]
            if p >= self.lg_done:
                n = len(self.lgq) - 1 - p
                nl = n if nl is None else min(nl, n)
        return nv, nl
    def emit_wait(self, need_vm, need_lg):
        nv, nl = self.wait_for(need_vm, need_lg)
        if nv is None and nl is None: return False
        parts = []
        if nv is not None:
            nv = min(nv, 63); parts.append(f"vmcnt({nv})"); self.vm_done = max(self.vm_done, len(self.vmq) - nv)
        if nl is not None:
            nl = min(nl, 15); parts.append(f"lgkmcnt({nl})"); self.lg_done = max(self.lg_done, len(self.lgq) - nl)
        self.emit(Ins("s_waitcnt " + " ".join(parts), "W"))
        return True
    def raw(self, text, kind="S", **k):
        for line in text.strip().split("\n"):
            self.emit(Ins(line.strip(), kind, **k))
    def xch(self, l):
        if self.XMODE == 2: return (sOUT_, -self.XB0) if l == 0 else (sWS_, 0)
        if self.XMODE == 1: return (sWS_, 0)
        return (sWS_, l * XLAYER)
    def pol(self, p):
        return ("", " sc0", " sc1", " sc0 sc1", " nt", " sc0 nt", " sc1 nt", " sc0 sc1 nt")[p]
    def stemp(self, stream=0):
        self.tcount += 1
        return sT[2 * stream + self.tcount % 2]

    def plan(self):
        NL = self.NL
        self.groups = []
        for l in range(NL):
            if l == 0:
                G = [[0, 1, 2], [3, 4, 5], [6, 7, 8, 9], [10, 11, 12], list(range(13, 26))]
            else:
                G = [[0, 6, 12], [18, 1, 7], [13, 19, 2, 8], [14, 20, 3],
                     [9, 15, 21, 4, 10, 16, 22, 5, 11, 17, 23, 24, 25]]
            SL = [[13, 14, 15], [0, 1, 2], [3, 4, 5, 6], [13, 14, 15], [7, 8, 9, 10, 11, 12, 0, 1, 2, 3, 4, 5, 6]]
            self.groups.append(list(zip(G, SL)))
        self.entries = []
        self.steps = []
        def seg_main(l, gi, u, lst):
            for ks, sl in lst:
                e = dict(kind="m", l=l, u=u, ks=[ks], size=CH, gi=gi, first=len(self.steps))
                self.entries.append(e)
                for sb in range(2):
                    for ee in range(2):
                        self.steps.append(dict(e=len(self.entries) - 1, j=4 * u + 2 * sb + ee, ks=ks, slot=sl,
                                               va=vA[sb], rel=8 * ee, rdoff=512, l=l, gi=gi, u=u))
                e["last"] = len(self.steps) - 1
        def seg_extra(l, gi, bt):
            e = dict(kind="x", l=l, u=3, ks=[k for k, _ in bt], size=XB, gi=gi, first=len(self.steps))
            self.entries.append(e)
            for i, (ks, sl) in enumerate(bt):
                self.steps.append(dict(e=len(self.entries) - 1, j=12, ks=ks, slot=sl,
                                       va=vA2, rel=1024 * i, rdoff=256, l=l, gi=gi, u=3))
            e["last"] = len(self.steps) - 1
        for l in range(NL):
            gl = [list(zip(G, SL)) for (G, SL) in self.groups[l]]
            a, b = gl[0], gl[1]
            if l == 0:
                for gi_, lst_ in ((0, a), (1, b)):
                    for it in lst_:
                        for u in range(3): seg_main(l, gi_, u, [it])
            else:
                seg_main(l, 0, 0, a); seg_main(l, 0, 1, a); seg_main(l, 1, 0, b); seg_main(l, 1, 1, b)
                seg_main(l, 0, 2, a); seg_main(l, 1, 2, b)
            ab = a + b
            seg_extra(l, 1, ab[0:4]); seg_extra(l, 1, ab[4:6])
            for gi in (2, 3, 4):
                lst = gl[gi]
                for u in range(3): seg_main(l, gi, u, lst)
                if gi < 4: batches = [lst]
                elif l == 0: batches = [lst[0:4], lst[4:8], lst[8:12], lst[12:13]]
                else: batches = [lst[0:4], lst[4:8], lst[8:11], lst[11:13]]
                for bt in batches: seg_extra(l, gi, bt)
        self.nsteps = len(self.steps)
        seen = set()
        for st in self.steps:
            if st["j"] not in seen: seen.add(st["j"]); st["init"] = True
        iv = self.interval
        LA = self.LA
        self.bars = [-LA - 1] + list(range(iv - LA - 1, self.nsteps - LA - 1, iv))
        pos = 0
        live = []
        for n, e in enumerate(self.entries):
            if pos + e["size"] > RING: pos = 0
            e["base"] = pos; s0, s1 = pos, pos + e["size"]
            ov = [m for (m, a, b) in live if a < s1 and s0 < b]
            live = live + [(n, s0, s1)]
            lastneed = max([self.entries[m]["last"] for m in ov], default=None)
            if lastneed is None: e["jf"] = -1
            else:
                e["jf"] = next(j for j, P in enumerate(self.bars) if lastneed <= P + 1)
            e["jl"] = max(j for j, P in enumerate(self.bars) if P + LA + 1 <= e["first"] or j == 0)
            assert e["jf"] < e["jl"] or e["jf"] == -1, (n, e)
            pos = s1
        self.minlead = min((self.bars[e["jl"]] - self.bars[e["jf"]]) for e in self.entries if e["jf"] >= 0)

    def tr_reads(self, f):
        st = self.steps[f]; e = self.entries[st["e"]]
        r = wf(f)
        res = []
        for rd in range(2):
            off = e["base"] + st["rel"] + rd * st["rdoff"]
            res.append(Ins(f"ds_read_b64_tr_b16 v[{r+2*rd}:{r+2*rd+1}], v{st['va']} offset:{off}", "D",
                           rd=vr(st["va"]), wr=vr(r + 2 * rd, 2), lg=("wf", f, rd)))
        return res
    def mfma(self, f, mt):
        st = self.steps[f]
        c = acc(st["j"], mt); a = wf(f); b = 16 * st["slot"] + 4 * mt
        if st.get("init"):
            return Ins(f"v_mfma_f32_16x16x32_bf16 v[{c}:{c+3}], v[{a}:{a+3}], a[{b}:{b+3}], 0", "M",
                       rd=vr(a, 4) + ar(b, 4), wr=vr(c, 4))
        return Ins(f"v_mfma_f32_16x16x32_bf16 v[{c}:{c+3}], v[{a}:{a+3}], a[{b}:{b+3}], v[{c}:{c+3}]", "M",
                   rd=vr(a, 4) + ar(b, 4) + vr(c, 4), wr=vr(c, 4))
    def dma_entry(self, n):
        e = self.entries[n]; l = e["l"]
        t = self.stemp()
        if e["kind"] == "m":
            ks = e["ks"][0]
            const = (0 if self.NOW else l) * LSTRIDE + ks * KSB + 128 * e["u"]
            pat = vPW2 if (l > 0 and ks >= 24) else vPW
            seq = [S(f"s_add_u32 s{t}, s{sWq}, {const}"),
                   S(f"s_add_u32 m0, s{sW1032}, {e['base']}", note="m0"),
                   Ins(f"buffer_load_dwordx4 v{pat}, {srd(sW_)}, s{t} offen lds", "A", rd=vr(pat), vm=("w", n))]
        else:
            ks = e["ks"] + [e["ks"][-1]] * (4 - len(e["ks"]))
            lit = 0
            for i, k in enumerate(ks): lit |= (26 * (0 if self.NOW else l) + k) << (8 * i)
            pat = vPE2 if (l > 0 and ks[0] >= 24) else vPE
            seq = [S(f"s_lshr_b32 s{t}, 0x{lit:x}, s{sW8}"),
                   S(f"s_and_b32 s{t}, s{t}, 0xff"),
                   S(f"s_mul_i32 s{t}, s{t}, {KSB}"),
                   S(f"s_add_u32 s{t}, s{t}, s{sXq}"),
                   S(f"s_add_u32 m0, s{sW1024}, {e['base']}", note="m0"),
                   Ins(f"buffer_load_dwordx4 v{pat}, {srd(sW_)}, s{t} offen lds", "A", rd=vr(pat), vm=("w", n))]
        return seq
    def xload(self, l, ks, slot):
        t = sXs[(ks + l) % 2]
        xs, xo = self.xch(l - 1)
        seq = [S(f"s_add_u32 s{t}, s{sXb}, {(xo + 4096 * ks) & 0xffffffff}")]
        for mt in range(4):
            d = 16 * slot + 4 * mt
            if ks < 24:
                seq.append(Ins(f"buffer_load_dwordx4 a[{d}:{d+3}], v{vL16}, {srd(60 if self.NOLD else xs)}, s{t} offen offset:{1024*mt}{self.pol(self.LDP)}", "L",
                               rd=vr(vL16), wr=ar(d, 4), vm=("x", l, ks, mt, 0)))
            else:
                for h in range(2):
                    seq.append(Ins(f"buffer_load_dwordx2 a[{d+2*h}:{d+2*h+1}], v{vL8}, {srd(60 if self.NOLD else xs)}, s{t} offen offset:{2048*h+512*mt}{self.pol(self.LDP)}", "L",
                                   rd=vr(vL8), wr=ar(d + 2 * h, 2), vm=("x", l, ks, mt, h)))
        return seq
    def xtags(self, l, ks, mt):
        if l == 0: return [], [("xs", ks, mt)]
        if ks < 24: return [("x", l, ks, mt, 0)], []
        return [("x", l, ks, mt, 0), ("x", l, ks, mt, 1)], []
    def stage_dma(self, line, slot=None, tag="st"):
        if slot is None: slot = line % 3
        seq = []
        for j in range(8):
            imm = 1024 * (j & 1) + 128 * line
            if j % 2 == 0:
                seq.append(S(f"s_add_u32 m0, s{sXRw}, {8192 * slot + 1024 * j - 128 * line}", note="m0"))
            ins = Ins(f"buffer_load_dwordx4 v{vPX}, {srd(sX0_)}, s{sJ[j]} offen offset:{imm} lds", "A", rd=vr(vPX), vm=(tag, line, j))
            if j % 2 == 0: ins.note = "m0keep"
            seq.append(ins)
        return seq
    def stage_read(self, ks, slot):
        line, sb = ks >> 1, ks & 1
        seq = []
        for mt in range(4):
            d = 16 * slot + 4 * mt
            seq.append(Ins(f"ds_read_b128 a[{d}:{d+3}], v{vX[sb]} offset:{8192 * (line % 3) + 2048 * mt}", "D",
                           rd=vr(vX[sb]), wr=ar(d, 4), lg=("xs", ks, mt), need_vm=[("st", line, 2 * mt), ("st", line, 2 * mt + 1)]))
            seq[-1].minvm = self.AGE if line < 8 else self.AGE2
        return seq
    def reload_dma(self, u):
        seq = []
        if u == 0: seq.append(V(f"v_add_u32 v{vPX}, s{sWq}, v{vPX}", rd=vr(vPX), wr=vr(vPX)))
        if u < 3: return seq + self.stage_dma(u, (u + 1) % 3, "rl")
        for h in range(2):
            t = self.stemp(1)
            seq += [S(f"s_add_u32 s{t}, s{sRow}, s{sXq}"),
                    S(f"s_add_u32 s{t}, s{t}, {h * 32 * ROWB}"),
                    S(f"s_add_u32 m0, s{sXRw}, {24576 + 1024 * h}", note="m0"),
                    Ins(f"buffer_load_dwordx4 v{vPXE}, {srd(sX0_)}, s{t} offen lds", "A", rd=vr(vPXE), vm=("rl", 3, h))]
            seq[-1].lines = 32
        return seq
    def epi_unit(self, l, u):
        last = (l == self.NL - 1)
        seq = []
        items = [(sb, mt) for sb in range(2) for mt in range(4)] if u < 3 else [(0, mt) for mt in range(4)]
        def rd(i):
            sb, mt = items[i]; xp = vXP[i % 2]
            if u < 3:
                nv = [("rl", u, 2 * mt), ("rl", u, 2 * mt + 1)] if l == 0 else []
                return Ins(f"ds_read_b128 v[{xp}:{xp+3}], v{vX[sb]} offset:{8192 * ((u + 1) % 3) + 2048 * mt}", "D", rd=vr(vX[sb]), wr=vr(xp, 4),
                           lg=("xp", l, u, i), need_vm=nv)
            nv = [("rl", 3, mt >> 1)] if l == 0 else []
            return Ins(f"ds_read_b64 v[{xp}:{xp+1}], v{vX2} offset:{512 * mt}", "D", rd=vr(vX2), wr=vr(xp, 2), lg=("xp", l, u, i), need_vm=nv)
        seq2 = [rd(0), rd(1)]
        for b_ in range(2):
            if self.last_reader[b_] is not None: seq2[b_].after = [self.last_reader[b_]]
        for i, (sb, mt) in enumerate(items):
            xp = vXP[i % 2]
            ne = 2 if u < 3 else 1
            first = True; pend = None
            for e in range(ne):
                j = 4 * u + 2 * sb + e if u < 3 else 12
                c = acc(j, mt)
                for p in range(2):
                    x = xp + 2 * e + p; t = vT[p]
                    if self.PK & 1:
                        if p == 1: continue
                        t0, t1 = vT; x1 = x + 1
                        i0 = V(f"v_lshlrev_b32 v{t0}, 16, v{x}", rd=vr(x), wr=vr(t0))
                        if first: i0.need_lg = [("xp", l, u, i)]; first = False
                        seq += [i0, V(f"v_and_b32 v{t1}, s{sMask}, v{x}", rd=vr(x), wr=vr(t1)),
                                V(f"v_lshlrev_b32 v{x}, 16, v{x1}", rd=vr(x1), wr=vr(x)),
                                V(f"v_and_b32 v{x1}, s{sMask}, v{x1}", rd=vr(x1), wr=vr(x1)),
                                V(f"v_pk_mul_f32 v[{t0}:{t1}], v[{t0}:{t1}], v[{c}:{c+1}]", rd=vr(t0, 2) + vr(c, 2), wr=vr(t0, 2)),
                                V(f"v_pk_mul_f32 v[{x}:{x1}], v[{x}:{x1}], v[{c+2}:{c+3}]", rd=vr(x, 2) + vr(c + 2, 2), wr=vr(x, 2)),
                                V(f"v_cvt_pk_bf16_f32 v{x1}, v{x}, v{x1}", rd=vr(x, 2), wr=vr(x1)),
                                V(f"v_cvt_pk_bf16_f32 v{x}, v{t0}, v{t1}", rd=vr(t0, 2), wr=vr(x))]
                        continue
                    i0 = V(f"v_lshlrev_b32 v{t}, 16, v{x}", rd=vr(x), wr=vr(t))
                    if first: i0.need_lg = [("xp", l, u, i)]; first = False
                    seq += [i0,
                            V(f"v_and_b32 v{x}, s{sMask}, v{x}", rd=vr(x), wr=vr(x)),
                            V(f"v_mul_f32 v{t}, v{t}, v{c+2*p}", rd=vr(t) + vr(c + 2 * p), wr=vr(t)),
                            V(f"v_mul_f32 v{x}, v{x}, v{c+2*p+1}", rd=vr(x) + vr(c + 2 * p + 1), wr=vr(x)),
                            V(f"v_cvt_pk_bf16_f32 v{x}, v{t}, v{x}", rd=vr(t) + vr(x), wr=vr(x))]
            if pend is not None: seq.append(pend)
            lastv = seq[-1]
            if not last:
                t = sXt[i % 2]
                if u < 3:
                    b = 2 * u + sb
                    xs, xo = self.xch(l)
                    seq2.append(S(f"s_add_u32 s{t}, s42, {(xo + 4096 * b) & 0xffffffff}"))
                    st = Ins(f"buffer_store_dwordx4 v[{xp}:{xp+3}], v{vL16}, {srd(60 if self.NOST else xs)}, s{t} offen offset:{1024*mt}{self.pol(self.STP)}", "T",
                             rd=vr(xp, 4) + vr(vL16), vm=("xo", l, u, i))
                else:
                    xs, xo = self.xch(l)
                    seq2.append(S(f"s_add_u32 s{t}, s43, {xo & 0xffffffff}"))
                    st = Ins(f"buffer_store_dwordx2 v[{xp}:{xp+1}], v{vL8}, {srd(60 if self.NOST else xs)}, s{t} offen offset:{512*mt}{self.pol(self.STP)}", "T",
                             rd=vr(xp, 2) + vr(vL8), vm=("xo", l, u, i))
            else:
                if u < 3:
                    b = 2 * u + sb
                    st = Ins(f"buffer_store_dwordx4 v[{xp}:{xp+3}], v{vOut}, {srd(sOUT_)}, s{sOutMt[mt]} offen offset:{64*b}{self.pol(self.OUTP)}", "T",
                             rd=vr(xp, 4) + vr(vOut), vm=("xo", l, u, i))
                else:
                    t = sXt[i % 2]
                    seq2.append(S(f"s_add_u32 s{t}, s{sOutMt[mt]}, s76"))
                    st = Ins(f"buffer_store_dwordx2 v[{xp}:{xp+1}], v{vOutE}, {srd(sOUT_)}, s{t} offen{self.pol(self.OUTP)}", "T",
                             rd=vr(xp, 2) + vr(vOutE), vm=("xo", l, u, i))
            st.after = [lastv]; st.lines = 8 if u < 3 else 4; st.dl = -2000; st.hard = -2000
            self.last_reader[i % 2] = st
            seq2.append(st)
            if i + 2 < len(items): seq2.append(rd(i + 2))
        return seq, seq2
    def bias_unit(self, l, u):
        seq = []
        tiles = [4 * u + i for i in range(4)] if u < 3 else [12]
        def rd(i):
            xp = vXP[i % 2]
            return Ins(f"ds_read_b128 v[{xp}:{xp+3}], v{vBias} offset:{832 * l + 64 * tiles[i]}", "D", rd=vr(vBias), wr=vr(xp, 4), lg=("bi", l, tiles[i]))
        seq2 = [rd(0)] + ([rd(1)] if len(tiles) > 1 else [])
        for b_ in range(len(seq2)):
            if self.last_reader[b_] is not None: seq2[b_].after = [self.last_reader[b_]]
        for i, j in enumerate(tiles):
            xp = vXP[i % 2]
            first = True
            for mt in range(4):
                c = acc(j, mt)
                for r in range(0, 4, 2 if self.PK & 2 else 1):
                    if self.PK & 2: x = V(f"v_pk_add_f32 v[{c+r}:{c+r+1}], v[{c+r}:{c+r+1}], v[{xp+r}:{xp+r+1}]", rd=vr(c + r, 2) + vr(xp + r, 2), wr=vr(c + r, 2))
                    else: x = V(f"v_add_f32 v{c+r}, v{c+r}, v{xp+r}", rd=vr(c + r) + vr(xp + r), wr=vr(c + r))
                    if first: x.need_lg = [("bi", l, j)]; first = False
                    seq.append(x)
            self.last_reader[i % 2] = seq[-1]
            if i + 2 < len(tiles):
                r2 = rd(i + 2); r2.after = [seq[-1]]; seq2.append(r2)
        return seq, seq2
    def flag_set(self, val, need):
        v = V(f"v_add_u32 v{vFlagVal}, {val}, v{vBase}", rd=vr(vBase), wr=vr(vFlagVal), need_vm=list(need) + [("fb",)])
        v.minvm = self.T_ST
        st = Ins(f"buffer_store_dword v{vFlagVal}, v{vFlagOff}, {srd(sWS_)}, 0 offen sc1", "T", rd=vr(vFlagVal) + vr(vFlagOff), vm=("fs", val))
        st.lines = 1; st.dl = -3000; st.hard = -3000
        return [v, st]
    def flag_poll(self, val):
        k = val
        ld = Ins(f"buffer_load_dword v{vPoll}, v{vPollOff}, {srd(sWS_)}, 0 offen sc1", "L", rd=vr(vPollOff), wr=vr(vPoll), vm=("fp", val))
        chk = [V(f"v_sub_u32 v{vPoll}, v{vPoll}, v{vBase}", rd=vr(vPoll) + vr(vBase), wr=vr(vPoll), need_vm=[("fp", val), ("fb",)]),
               V(f"v_cmp_gt_u32 vcc, {val}, v{vPoll}", rd=vr(vPoll)),
               S("s_nop 0"),
               Ins(f"s_cbranch_vccnz Lslow{k}\nLback{k}:", "S")]
        self.slow.append(f"""Lslow{k}:
  s_mov_b32 s{sSpin}, 0x{self.SPIN:x}
Lspin{k}:
  buffer_load_dword v{vPoll}, v{vPollOff}, {srd(sWS_)}, 0 offen sc1
  s_waitcnt vmcnt(0)
  v_sub_u32 v{vPoll}, v{vPoll}, v{vBase}
  v_cmp_gt_u32 vcc, {val}, v{vPoll}
  s_sub_u32 s{sSpin}, s{sSpin}, 1
{"  s_add_u32 s90, s90, 0x%x" % (1 << (4 * (k - 1))) if self.prof else ""}
  s_cbranch_vccz Lback{k}
  s_cmp_lg_u32 s{sSpin}, 0
  s_cbranch_scc1 Lspin{k}
  s_branch Lback{k}""")
        return ld, chk
    def out_patterns(self):
        t0, t1 = vT
        return [V(f"v_lshrrev_b32 v{t0}, 4, v{vL16}", rd=vr(vL16), wr=vr(t0)),
                V(f"v_and_b32 v{t1}, 15, v{t0}", rd=vr(t0), wr=vr(t1)),
                V(f"v_mul_u32_u24 v{t1}, {ROWB}, v{t1}", rd=vr(t1), wr=vr(t1)),
                V(f"v_lshrrev_b32 v{t0}, 4, v{t0}", rd=vr(t0), wr=vr(t0)),
                V(f"v_lshlrev_b32 v{t0}, 3, v{t0}", rd=vr(t0), wr=vr(t0)),
                V(f"v_add_u32 v{vOutE}, v{t1}, v{t0}", rd=vr(t0) + vr(t1), wr=vr(vOutE)),
                V(f"v_add_u32 v{vOut}, v{vOutE}, v{t0}", rd=vr(t0) + vr(vOutE), wr=vr(vOut))]

    def prologue(self):
        R = self.raw
        VV = lambda t: self.emit(Ins(t, "V"))
        R("s_cmp_ge_u32 s2, 256\ns_cbranch_scc1 Lend")
        R("s_load_dwordx4 s[64:67], s[0:1], 0\ns_load_dwordx4 s[68:71], s[0:1], 16\ns_load_dwordx4 s[72:75], s[0:1], 32")
        if self.stamps:
            R("s_memrealtime s[80:81]\ns_memtime s[82:83]")
        if self.SPAN: R("s_memrealtime s[88:89]")
        if self.prof:
            R(("s_memrealtime" if self.PRT else "s_memtime") + " s[88:89]\ns_mov_b32 s90, 0")
        VV("v_lshrrev_b32 v31, 6, v0")
        VV("v_and_b32 v0, 63, v0")
        R(f"""s_and_b32 s{sC}, s2, 7
s_lshr_b32 s3, s2, 5""")
        VV(f"v_readfirstlane_b32 s{sWv}, v31")
        R(f"""s_lshl_b32 s55, s3, 2
s_lshl_b32 s3, s3, 3
s_add_u32 s{sC}, s{sC}, s3
s_lshr_b32 s{sQ}, s2, 3
s_and_b32 s{sQ}, s{sQ}, 3
s_mul_i32 s{sWq}, s{sQ}, 384
s_lshl_b32 s3, s{sC}, 2
s_add_u32 s3, s3, s{sWv}
s_mul_i32 s{sRow}, s3, {64 * ROWB}
s_add_u32 s55, s55, s{sWv}
s_mul_i32 s55, s55, {ROWB}
s_mul_i32 s{sW1032}, s{sWv}, 1032
s_lshl_b32 s{sW8}, s{sWv}, 3
s_mul_i32 s{sXRw}, s{sWv}, {XRW}
s_add_u32 s{sXRw}, s{sXRw}, {XR}
s_nop 0""")
        for j in range(8):
            R(f"s_add_u32 s{sJ[j]}, s{sRow}, {j * 8 * ROWB - 1024 * (j & 1)}")
        VV(f"v_lshlrev_b32 v{vL16}, 4, v0")
        VV("v_lshrrev_b32 v20, 3, v0")
        VV("v_and_b32 v21, 7, v0")
        VV("v_and_b32 v23, 6, v20")
        VV("v_lshlrev_b32 v22, 1, v20")
        VV("v_xor_b32 v23, v21, v23")
        VV("v_and_b32 v22, 4, v22")
        VV("v_lshlrev_b32 v23, 4, v23")
        VV(f"v_mul_u32_u24 v24, {ROWB}, v20")
        VV("v_xor_b32 v22, v21, v22")
        VV(f"v_add_u32 v{vPX}, v23, v24")
        VV("v_lshlrev_b32 v22, 4, v22")
        VV(f"v_add_u32 v23, s{sW8}, v20")
        VV(f"v_mul_u32_u24 v23, {ROWB}, v23")
        VV(f"v_add_u32 v{vPW}, v23, v22")
        if self.EARLYPF: self.pf_patterns()
        self.pstamp()
        R("s_waitcnt lgkmcnt(0)")
        self.pstamp()
        self.mk(sX0_, 64, 16384 * ROWB)
        self.mk(sW_, 66, 3 * LSTRIDE)
        if self.CPF:
            self.emit(Ins("s_getpc_b64 s[64:65]\nLpc:", "S"))
            R(f"s_and_b32 s65, s65, 0xffff\ns_mov_b32 s66, Lcode_end-Lpc\ns_mov_b32 s67, 0x20000\ns_lshr_b32 s72, s2, 3\ns_lshl_b32 s72, s72, 2\ns_add_u32 s72, s72, s{sWv}\ns_lshl_b32 s72, s72, 7")
    def prologue2(self):
        R = self.raw
        R(f"""s_lshl_b32 s{sXq}, s{sQ}, 5
s_add_u32 s{sXq}, s{sXq}, 1536
s_lshl_b32 s{sW1024}, s{sWv}, 10
s_lshl_b32 s3, s{sC}, 2
s_add_u32 s3, s3, s{sWv}
s_mul_i32 s{sXb}, s3, 106496
s_add_u32 s{sXb}, s{sXb}, {self.XB0}
s_mov_b32 s{sMask}, 0xffff0000
s_mul_i32 s42, s{sQ}, 24576
s_add_u32 s42, s42, s{sXb}
s_lshr_b32 s43, s{sQ}, 1
s_add_u32 s43, s43, 24
s_lshl_b32 s43, s43, 12
s_and_b32 s3, s{sQ}, 1
s_lshl_b32 s3, s3, 11
s_add_u32 s43, s43, s3
s_add_u32 s43, s43, s{sXb}
s_mul_i32 s76, s{sQ}, 352
s_sub_u32 s76, 1536, s76""")
        for mt in range(4):
            R(f"s_add_u32 s{sOutMt[mt]}, s{sRow}, {mt * 16 * ROWB}\ns_add_u32 s{sOutMt[mt]}, s{sOutMt[mt]}, s{sWq}")
        self.mk(sB_, 68, 3 * ROWB)
        self.mk(sOUT_, 70, 16384 * ROWB)
        self.mk(sWS_, 74, 0x10000000)
        if self.NOST or self.NOLD or self.NOW: self.mk(60, 74, 0)
        self.prologue_rest()
    def mk(self, b, lo, size):
        self.raw(f"s_mov_b32 s{b}, s{lo}\ns_and_b32 s{b+1}, s{lo+1}, 0xffff\ns_mov_b32 s{b+2}, {size}\ns_mov_b32 s{b+3}, 0x20000")
    def prologue_rest(self):
        R = self.raw
        VV = lambda t: self.emit(Ins(t, "V"))
        VV("v_lshrrev_b32 v23, 2, v20")
        VV("v_lshlrev_b32 v23, 4, v23")
        VV("v_and_b32 v24, 3, v20")
        VV("v_add_u32 v23, v23, v24")
        R(f"s_lshl_b32 s3, s{sWv}, 2")
        VV("v_add_u32 v23, s3, v23")
        VV(f"v_mul_u32_u24 v23, {ROWB}, v23")
        VV(f"v_add_u32 v{vPW2}, v23, v22")
        VV("v_lshrrev_b32 v20, 1, v0")
        VV("v_and_b32 v21, 1, v0")
        VV("v_lshlrev_b32 v21, 4, v21")
        VV(f"v_mul_u32_u24 v23, {ROWB}, v20")
        VV(f"v_add_u32 v{vPXE}, v23, v21")
        VV("v_and_b32 v23, 19, v20")
        VV("v_and_b32 v24, 4, v20")
        VV("v_lshlrev_b32 v24, 1, v24")
        VV("v_or_b32 v23, v23, v24")
        VV("v_and_b32 v24, 8, v20")
        VV("v_lshrrev_b32 v24, 1, v24")
        VV("v_or_b32 v23, v23, v24")
        VV(f"v_mul_u32_u24 v23, {ROWB}, v23")
        VV(f"v_add_u32 v{vPE}, v23, v21")
        VV("v_and_b32 v23, 7, v20")
        VV("v_and_b32 v24, 8, v20")
        VV("v_lshlrev_b32 v24, 1, v24")
        VV("v_or_b32 v23, v23, v24")
        VV("v_and_b32 v24, 16, v20")
        VV("v_lshrrev_b32 v24, 1, v24")
        VV("v_or_b32 v23, v23, v24")
        VV(f"v_mul_u32_u24 v23, {ROWB}, v23")
        VV(f"v_add_u32 v{vPE2}, v23, v21")
        VV("v_lshrrev_b32 v20, 4, v0")
        VV("v_and_b32 v21, 15, v0")
        VV("v_lshrrev_b32 v22, 2, v0")
        VV("v_and_b32 v22, 3, v22")
        VV("v_and_b32 v23, 3, v0")
        VV("v_mul_u32_u24 v24, 1032, v20")
        VV("v_lshlrev_b32 v25, 7, v22")
        VV("v_add_u32 v24, v24, v25")
        VV("v_lshlrev_b32 v25, 4, v23")
        VV("v_add_u32 v24, v24, v25")
        VV("v_lshrrev_b32 v25, 1, v22")
        VV("v_lshlrev_b32 v25, 6, v25")
        VV(f"v_add_u32 v{vA[0]}, v24, v25")
        VV("v_sub_u32 v25, 64, v25")
        VV(f"v_add_u32 v{vA[1]}, v24, v25")
        VV("v_lshrrev_b32 v24, 1, v20")
        VV("v_lshlrev_b32 v24, 9, v24")
        VV("v_and_b32 v25, 1, v20")
        VV("v_lshlrev_b32 v25, 7, v25")
        VV("v_add_u32 v24, v24, v25")
        VV("v_lshlrev_b32 v25, 5, v22")
        VV("v_add_u32 v24, v24, v25")
        VV("v_lshlrev_b32 v25, 3, v23")
        VV(f"v_add_u32 v{vA2}, v24, v25")
        VV("v_and_b32 v24, 6, v21")
        VV("v_xor_b32 v24, v20, v24")
        VV("v_lshlrev_b32 v24, 4, v24")
        VV("v_lshlrev_b32 v25, 7, v21")
        VV("v_add_u32 v24, v24, v25")
        VV(f"v_add_u32 v{vX[0]}, s{sXRw}, v24")
        VV(f"v_xor_b32 v{vX[1]}, 64, v{vX[0]}")
        VV("v_lshlrev_b32 v24, 5, v21")
        VV("v_lshlrev_b32 v25, 3, v20")
        VV("v_add_u32 v24, v24, v25")
        VV(f"v_add_u32 v24, s{sXRw}, v24")
        VV(f"v_add_u32 v{vX2}, 24576, v24")
        VV(f"v_lshlrev_b32 v{vL16}, 4, v0")
        VV(f"v_lshlrev_b32 v{vL8}, 3, v0")
        VV("v_lshlrev_b32 v24, 4, v20")
        VV(f"v_add_u32 v{vBias}, {BIAS}, v24")
        R(f"s_lshl_b32 s3, s{sC}, 2\ns_add_u32 s3, s3, s{sWv}\ns_lshl_b32 s3, s3, 9\ns_add_u32 s3, s3, {FBASE}")
        VV("v_and_b32 v24, 3, v0")
        VV("v_lshlrev_b32 v24, 7, v24")
        VV(f"v_add_u32 v{vPollOff}, s3, v24")
        VV(f"v_mov_b32 v{vFlagOff}, 0x7fffff00")
        VV(f"v_cmp_eq_u32 vcc, s{sQ}, v0")
        R("s_nop 1")
        VV(f"v_cndmask_b32 v{vFlagOff}, v{vFlagOff}, v{vPollOff}, vcc")
        if not self.EARLYPF: self.pf_patterns()
        self.bias_prologue()
        R(f"s_lshl_b32 s91, s2, 2\ns_add_u32 s91, s91, s{sWv}\ns_lshl_b32 s91, s91, 12")

    def pf_patterns(self):
        R = self.raw; VV = lambda t: self.emit(Ins(t, "V"))
        R(f"s_lshl_b32 s56, s{sQ}, 4")
        VV("v_and_b32 v26, 15, v0")
        VV("v_lshrrev_b32 v27, 4, v0")
        VV("v_add_u32 v26, s56, v26")
        VV("v_lshlrev_b32 v27, 7, v27")
        VV(f"v_mul_u32_u24 v26, {ROWB}, v26")
        VV(f"v_add_u32 v{vPFX}, v26, v27")
        VV("v_lshrrev_b32 v27, 5, v0")
        VV("v_lshlrev_b32 v27, 30, v27")
        VV(f"v_add_u32 v{vPFX}, v{vPFX}, v27")
        for i in self.pfw_pattern(vPFW, False): self.emit(i)
        if self.T_WG < 190:
            VV("v_lshlrev_b32 v29, 7, v0")
            VV("v_lshrrev_b32 v28, 5, v0")
            VV("v_lshlrev_b32 v28, 30, v28")
            VV("v_add_u32 v29, v28, v29")
            R(f"s_lshl_b32 s91, s2, 2\ns_add_u32 s91, s91, s{sWv}\ns_lshl_b32 s91, s91, 12")
    def bias_prologue(self):
        R = self.raw; VV = lambda t: self.emit(Ins(t, "V"))
        R(f"s_lshl_b32 s3, s{sWv}, 6")
        VV("v_add_u32 v20, s3, v0")
        VV("v_min_u32 v20, 207, v20")
        VV("v_lshrrev_b32 v21, 4, v20")
        VV("v_and_b32 v22, 15, v20")
        VV("v_lshrrev_b32 v23, 1, v21")
        VV("v_lshlrev_b32 v23, 5, v23")
        VV("v_lshrrev_b32 v24, 2, v22")
        VV("v_lshlrev_b32 v24, 3, v24")
        VV("v_add_u32 v23, v23, v24")
        VV("v_and_b32 v24, 1, v21")
        VV("v_lshlrev_b32 v24, 2, v24")
        VV("v_add_u32 v23, v23, v24")
        VV("v_and_b32 v24, 3, v22")
        VV("v_add_u32 v23, v23, v24")
        R(f"s_mul_i32 s3, s{sQ}, 192")
        VV("v_add_u32 v23, s3, v23")
        R(f"s_lshl_b32 s3, s{sQ}, 4\ns_add_u32 s3, s3, 768")
        VV("v_add_u32 v24, s3, v22")
        VV("v_cmp_eq_u32 vcc, 12, v21")
        R("s_nop 1")
        VV("v_cndmask_b32 v23, v23, v24, vcc")
        VV("v_lshlrev_b32 v23, 1, v23")
        VV("v_lshlrev_b32 v22, 2, v20")
        VV(f"v_add_u32 v22, {BIAS}, v22")
    def bias_loads(self):
        for l in range(3):
            self.emit(Ins(f"buffer_load_ushort v{25+l}, v23, {srd(sB_)}, 0 offen offset:{l*ROWB}", "L", vm=("bl", l)))
            self.vm_step[("bl", l)] = -100
    def bias_write(self):
        a = [V(f"v_lshlrev_b32 v{25+l}, 16, v{25+l}", rd=vr(25 + l), wr=vr(25 + l)) for l in range(3)]
        a[0].need_vm = [("bl", 2)]
        a.append(V("v_add_f32 v25, 1.0, v25", rd=vr(25), wr=vr(25)))
        b = [Ins(f"ds_write_b32 v22, v{25+l} offset:{832*l}", "D", rd=vr(22) + vr(25 + l), lg=("bw", l)) for l in range(3)]
        b[0].after = [a[-1]]
        self.last_reader = [b[-1], b[-1]]
        return a, b

    COST = {"S": 4, "W": 4, "X": 4, "SS": 8, "V": 4, "D": 8, "L": 8, "A": 12, "T": 12}
    def fits(self, kinds):
        t = 4
        for i, k in enumerate(kinds):
            if k == "V": t = max(t, 8) + 4
            else: t += self.COST[k]
            if k == "L" and (i + 1 == len(kinds)): t += 4
            if k == "L" and i + 1 < len(kinds) and kinds[i + 1] != "V": return False
            if k in ("A", "T") and (i != 0 or len(kinds) > 1): return False
        return t <= 16

    def first_step(self, l, gi, u=0):
        for f, st in enumerate(self.steps):
            if st["l"] == l and st["gi"] == gi and st["u"] == u: return f
    def last_step(self, l, gi, u):
        r = None
        for f, st in enumerate(self.steps):
            if st["l"] == l and st["gi"] == gi and st["u"] == u: r = f
        return r
    def group_range(self, l, gi):
        fs = [f for f, st in enumerate(self.steps) if st["l"] == l and st["gi"] == gi]
        return fs[0], fs[-1]

    def build_streams(self):
        NL = self.NL
        self.last_reader = [None, None]
        M1 = []
        M2 = []
        E = []
        E2 = []
        M3 = []
        for n, e in enumerate(self.entries):
            es = -100 if e["jf"] < 0 else self.bars[e["jf"]]
            sq = self.dma_entry(n)
            for i_ in sq: i_.dl = min(self.bars[e["jl"]] - self.LATW, max(es, 0) + self.RSL)
            for i_ in sq: i_.hard = self.bars[e["jl"]] - 14
            sq[-1].lines = 8 if e["kind"] == "m" else 32
            M1.append([es, 0, sq, ("bar", e["jf"])])
        G = self.groups[0]
        slot_of = {}
        for gi, (ks_l, sl_l) in enumerate(G):
            for ks, sl in zip(ks_l, sl_l): slot_of[ks] = (gi, sl)
        def first_use(l, ks):
            for f, st in enumerate(self.steps):
                if st["l"] == l and st["ks"] == ks: return f
        self.first_use = first_use
        def slot_free(l, ks, sl):
            f0 = first_use(l, ks)
            r = -100
            for f in range(f0):
                if self.steps[f]["slot"] == sl: r = f
            return r
        self.stage_reads = {}
        stage_free = {}
        DM = []
        rd_earliest = {}
        for ks in range(26):
            gi, sl = slot_of[ks]
            rd_earliest[ks] = slot_free(0, ks, sl) + 1 if slot_free(0, ks, sl) >= 0 else -100
        cur = -100
        for ks in range(26):
            cur = max(cur, rd_earliest[ks]); rd_earliest[ks] = cur
        self.rd_earliest = rd_earliest
        self.slot_of0 = slot_of
        for line in range(13):
            seq = self.stage_dma(line)
            if line >= 3: seq[0].need_lg = [("xs", 2 * (line - 3) + 1, 3)]
            if line < self.PRO_X: es = -100
            else:
                es = self.T_STG0 + self.T_STGD * (line - self.PRO_X)
                k = 0
                for i_ in seq:
                    i_.earliest = int(es + self.PSP * k); i_.dl = i_.earliest + 8
                    if i_.kind == "A": k += 1
            M3.append([es, 1, seq, None])
        for u in (0, 3, 1, 2):
            seq = self.reload_dma(u)
            if u < 3: seq[0 if u else 1].need_lg = [("xs", 2 * (10 + u) + 1, 3)]
            es = self.T_RL[u]; k = 0
            for i_ in seq:
                i_.earliest = int(es + self.PSP * k); i_.dl = i_.earliest + 8
                if i_.kind == "A": k += 1
            M3.append([es, 1, seq, None])
        for ks in range(26):
            gi, sl = slot_of[ks]
            M2.append([rd_earliest[ks], 0, self.stage_read(ks, sl), None])
        for l in range(1, NL):
            base = 4 * (l - 1)
            def cls(ks):
                if ks >= 24: return 4
                return [1, 2, 3, 3, 4, 4][ks % 6]
            polled = set()
            lst = []
            for gi, (ks_l, sl_l) in enumerate(self.groups[l]):
                for ks, sl in zip(ks_l, sl_l):
                    lst.append((gi, ks, sl))
            gb0, gb1 = self.group_range(l - 1, 4)
            l0 = gb1 + 1
            exp = {1: l0 + self.T_U0, 2: l0 + self.T_U0B, 3: l0 + self.T_U1, 4: l0 + self.T_U2}
            items = []
            for gi, ks, sl in lst:
                es = max(slot_free(l, ks, sl) + 1, exp[cls(ks)], first_use(l, ks) - (self.XLEADG[gi] or self.XLEAD))
                items.append([es, cls(ks), first_use(l, ks), ks, sl])
            items.sort(key=lambda it: (it[0], it[2]))
            npaced = 0
            for es, c, gi, ks, sl in items:
                seq = []
                if c not in polled:
                    polled.add(c)
                    ld, chk = self.flag_poll(base + c)
                    ld.lines = 4; ld.dl = es - self.T_POLL
                    M2.append([es - self.T_POLL, 2, [ld], None])
                    seq += chk
                xl = self.xload(l, ks, sl)
                for i_ in xl:
                    i_.dl = first_use(l, ks) - self.LATX
                    if i_.kind == "L": i_.lines = 8 if ks < 24 else 4
                    if i_.kind == "L" and self.XPACE and npaced < self.XPN:
                        i_.earliest = int(l0 + self.T_U0 + self.XPACE * npaced); i_.dl = max(i_.earliest + 1, first_use(l, ks) - self.LATX2); npaced += 1
                seq += xl
                M2.append([es, 3, seq, None])
        if NL > 1:
            E.append([self.T_PAT, 0, self.pfw_pattern(vPFX, True), ("pat",)])
        a, b = self.bias_write()
        E.append([self.T_BW, 0, a, None]); E2.append([self.T_BW, 0, b, ("bw",)])
        for l in range(NL):
            g3 = 2
            for u in range(4):
                lastf = self.last_step(l, g3, u)
                a, b = self.bias_unit(l, u)
                E.append([lastf + 2, 1, a, ("bias", l, u)]); E2.append([lastf + 2 - self.E2LEAD, 1, b, None])
            if l == NL - 1:
                E.append([self.group_range(l, 4)[0] + 8, 0, self.out_patterns(), ("outpat",)])
            for u in range(4):
                lastf = self.last_step(l, 4, u)
                a, b = self.epi_unit(l, u)
                E.append([lastf + 2, 0, a, None]); E2.append([lastf + 2 - self.E2LEAD, 0, b, ("epi", l, u)])
        PFs = self.pf_streams()
        E.append([self.T_PW0[-1] + 2, 0, self.pfg_pat, None])
        M1.sort(key=lambda x: (x[0], x[1])); M2.sort(key=lambda x: (x[0], x[1])); E.sort(key=lambda x: (x[0], x[1]))
        flat = lambda Q: [(max(es, ins.earliest) if ins.earliest is not None else es, ins, tag, idx == len(seq) - 1) for es, _, seq, tag in Q for idx, ins in enumerate(seq)]
        M3.sort(key=lambda x: (x[0], x[1]))
        E2.sort(key=lambda x: (x[0], x[1]))
        self.PF = flat(PFs)
        self.M1, self.M2, self.E, self.M3, self.E2 = flat(M1), flat(M2), flat(E), flat(M3), flat(E2)

    def try_emit_from(self, Q, f, gap_kinds, allow, post_w):
        if not Q: return False
        es, ins, tag, lastflag = Q[0]
        if es > f: return False
        if isinstance(tag, tuple) and tag[0] == "bar" and tag[1] >= 0 and tag[1] > self.bar_passed: return False
        if ins.kind not in allow: return False
        if ins.note == 'm0' and self.m0_owner is not None: return False
        for a in ins.after:
            if id(a) not in self.issue_step: return False
        for t in ins.need_vm:
            if t not in self.vm_pos: return False
        for t in ins.need_lg:
            if t not in self.lg_pos: return False
        nv, nl = self.wait_for(ins.need_vm, ins.need_lg)
        needw = nv is not None or nl is not None
        kinds = gap_kinds + (["W"] if needw else []) + [ins.kind] + post_w
        if not self.fits(kinds):
            if needw and self.fits(gap_kinds + ["W"] + post_w) and self.wait_ok(ins, f):
                self.emit_wait(ins.need_vm, ins.need_lg); gap_kinds.append("W"); return True
            return False
        if needw and not self.wait_ok(ins, f): return False
        if not self.hazard_ok(ins): return False
        if needw:
            self.emit_wait(ins.need_vm, ins.need_lg); gap_kinds.append("W")
        self.emit(ins); gap_kinds.append(ins.kind)
        if ins.note == 'm0': self.m0_owner = id(Q)
        if ins.kind == 'A' and ins.note != "m0keep": self.m0_owner = None
        self.issue_step[id(ins)] = f
        if ins.vm is not None: self.vm_step[ins.vm] = f
        if ins.lg is not None: self.lg_step[ins.lg] = f
        Q.pop(0)
        if isinstance(tag, tuple) and tag[0] == "flag": self.flag_step[tag[1]] = f
        if isinstance(tag, tuple) and tag[0] == "pat":
            assert ("pf", "x", self.PX_L[-1]) in self.vm_pos, "prefetch pattern overwrites vPX before reload issued"
            self.pat_done = lastflag
        if ins.vm is not None and ins.vm[0] == "pf" and ins.vm[1] == "w" and ins.vm[2] > 0: assert self.pat_done and ("rl", 3, 1) in self.vm_pos
        if isinstance(tag, tuple) and tag[0] == "outpat":
            assert not any(i.kind == "L" and i.vm[0] == "fp" for _, i, _, _ in self.M2) and not any("v_cmp_gt_u32 vcc" in i.text for _, i, _, _ in self.M2) and not self.F
        if ins.vm is not None and ins.vm[0] == "xo" and ins.vm[2] == 0 and ins.vm[3] == 3 and ins.vm[1] < self.NL - 1:
            l_ = ins.vm[1]; val = 4 * l_ + 1
            self.F += [(f, i_, ("flag", val), False) for i_ in self.flag_set(val, [("xo", l_, 0, i) for i in range(4)])]
        if lastflag and isinstance(tag, tuple) and tag[0] == "epi":
            self.epi_done(tag, f)
        if lastflag and isinstance(tag, tuple) and tag[0] == "bias":
            self.bias_done[(tag[1], tag[2])] = f
        return True
    def wait_ok(self, ins, f):
        for t in ins.need_vm:
            if self.vm_pos[t] >= self.vm_done and f - self.vm_step.get(t, -1000) < (ins.minvm or self.MIN_VM): return False
        for t in ins.need_lg:
            if self.lg_pos[t] >= self.lg_done and f - self.lg_step.get(t, -1000) < self.MIN_LG: return False
        return True
    def hazard_ok(self, ins):
        if ins.kind in ("V", "D", "L"):
            regs = set(ins.rd) | set(ins.wr) if ins.kind == "V" else set(ins.wr)
            n = 0
            for prev in reversed(self.out):
                if n >= 9: break
                if prev.kind == "M" and (set(prev.wr) & regs): return False
                n += 1 if prev.kind != "SS" else 2
        if ins.kind == "V":
            n = 0
            for prev in reversed(self.out):
                if n >= 2: break
                if prev.kind == "T" and (set(prev.rd) & set(ins.wr)): return False
                n += 1
        if ins.kind == "V" and not getattr(self, "drain", False):
            f, g = self.cur
            nxt = []
            for d in (1, 2):
                gg = g + d; ff = f + gg // 4; gg %= 4
                if ff < self.nsteps: nxt.append(self.mfma(ff, gg))
            for m in nxt:
                if set(m.rd) & set(ins.wr): return False
        if ins.kind == "A":
            if self.out and self.out[-1].note == "m0": return False
        return True
    def epi_done(self, tag, f):
        _, l, u = tag
        self.epi_fin[(l, u)] = f
        if l == self.NL - 1: return
        n = 8 if u < 3 else 4
        tags = [("xo", l, u, i) for i in range(n)]
        val = None
        if u == 0: val = 4 * l + 2
        elif u == 1: val = 4 * l + 3
        elif u == 3: val = 4 * l + 4; tags = tags + [("xo", l, 2, i) for i in range(8)]
        if val is not None:
            self.F += [(f, ins, ("flag", val), False) for ins in self.flag_set(val, tags)]

    def schedule(self):
        self.issue_step = {}; self.vm_step = {}; self.lg_step = {}
        self.pending = []; self.epi_fin = {}; self.bias_done = {}
        self.bar_passed = -1
        self.F = []; self.pat_done = False; self.B = 0.0; self.Bhist = []
        self.m0_owner = None
        N = self.nsteps
        barat = {P: j for j, P in enumerate(self.bars)}
        need_at = {}
        for n, e in enumerate(self.entries): need_at.setdefault(e["jl"], []).append(("w", n))
        self.pro_issue()
        self.emit_wait(need_at.get(0, []), [])
        self.emit(Ins("s_barrier", "X")); self.bar_passed = 0
        self.pstamp()
        for f in range(self.LA):
            for r in self.tr_reads(f): self.emit(r); self.lg_step[r.lg] = -10
        if self.stamps: self.stamp()
        if self.SPAN: self.raw("s_memrealtime s[78:79]\ns_waitcnt lgkmcnt(0)\ns_mov_b32 s79, s78"); self.lg_done = len(self.lgq)
        self.epi_started = set()
        for f in range(N):
            st = self.steps[f]
            if f == 0:
                nv, nl = self.step_needs(0)
                self.emit_wait(nv, nl)
            if st["l"] > 0 and (st["l"], st["u"]) not in self.epi_started:
                self.epi_started.add((st["l"], st["u"]))
                assert (st["l"] - 1, st["u"]) in self.epi_fin, ("epilogue late", st["l"] - 1, st["u"], f, self.epi_fin)
            if self.PROL and f == 0: self.pstamp()
            if self.prof and not self.PROL and f >= self.PS and (f - self.PS) % self.PI == 0 and (f - self.PS) // self.PI <= 60:
                k = (f - self.PS) // self.PI
                if k > 0: self.emit(Ins(f"v_writelane_b32 v0, s86, {k}", "V"))
                self.emit(Ins(("s_memrealtime" if self.PRT else "s_memtime") + " s[86:87]", "S"))
                self.prof_k = k
            nL = 0; dynbar = False; defer_w = None
            for g in range(4):
                self.emit(self.mfma(f, g))
                self.cur = (f, g)
                kinds = []
                if g < 2 and f + self.LA < N:
                    r = self.tr_reads(f + self.LA)[g]
                    if g == 0:
                        pass
                    self.emit(r); self.lg_step[r.lg] = f; kinds.append("D")
                if g == 1 and f + 1 < N:
                    nv, nl = self.step_needs(f + 1)
                    if f in barat: nv = nv + need_at.get(barat[f], [])
                    for val, tags in self.pending:
                        if all(f - self.vm_step[t] >= self.T_ST for t in tags):
                            nv = nv + tags; dynbar = True
                    vready = bool(self.E) and self.E[0][1].kind == "V" and self.E[0][0] <= f
                    if self.WDEF and vready and not (f in barat or dynbar): defer_w = (nv, nl)
                    elif self.emit_wait(nv, nl): kinds.append("W")
                if defer_w is not None and g >= 2:
                    vmready = any(Q and Q[0][0] <= f and (Q[0][1].kind in ("A", "L", "T") or Q[0][1].note == "m0") for Q in (self.F, self.M1, self.M2, self.PF, self.M3, self.E2))
                    if g == 3 or not vmready:
                        if self.emit_wait(*defer_w): kinds.append("W")
                        defer_w = None
                if g == 2 and (f in barat or dynbar):
                    self.emit(Ins("s_barrier", "X")); kinds.append("X")
                    if f in barat: self.bar_passed = barat[f]
                    for val, tags in list(self.pending):
                        if all(self.vm_pos[t] < self.vm_done for t in tags):
                            self.pending.remove((val, tags))
                            seq = self.flag_set(val, tags)
                            self.F += [(f, ins, None, False) for ins in seq]
                            self.flag_step[val] = f
                self.B = max(0.0, self.B - 16 * (self.ETA if f > 215 else self.ETA0))
                progress = True
                allk = ("S", "SS", "V", "A", "L", "T", "D")
                order = [self.F, self.M1, self.M2, self.PF, self.M3, self.E2, self.E]
                while progress:
                    progress = False
                    cands = []
                    for qi, Q in enumerate(order):
                        if Q and (Q[0][1].kind in ("A", "L", "T") or Q[0][1].note == "m0") and Q[0][0] <= f:
                            ins = Q[0][1]
                            dl = ins.dl if ins.dl is not None else Q[0][0] + 10
                            cands.append((dl, qi, Q))
                    cands.sort(key=lambda c: (c[0], c[1]))
                    for dl, qi, Q in cands:
                        ins = Q[0][1]
                        th = self.TH_URG if dl <= f + self.URG else self.TH
                        if ins.note == "m0": th += 16
                        hard = getattr(ins, "hard", None)
                        if self.B > th and not (hard is not None and hard <= f): continue
                        if Q is self.PF and g < 2: continue
                        if self.try_emit_from(Q, f, kinds, allk, []):
                            if ins.kind in ("A", "L", "T"): self.B += ins.lines * self.CPL
                            progress = True; break
                    if progress: continue
                    for Q in order:
                        if Q and (Q[0][1].kind in ("A", "L", "T") or Q[0][1].note == "m0"): continue
                        if self.try_emit_from(Q, f, kinds, allk, []):
                            progress = True; break
                self.Bhist.append(self.B)
            if self.stamps and f + 1 < N and (self.steps[f + 1]["l"] != st["l"] or (self.steps[f + 1]["gi"] == 4 and st["gi"] == 3)):
                self.stamp()
        self.drain = True
        guard = 0
        assert not self.PF
        while self.M1 or self.M2 or self.E or self.M3 or self.F or self.E2:
            guard += 1
            assert guard < 100000
            done = False
            for Q in (self.F, self.E2, self.E, self.M2, self.M3, self.M1):
                if Q:
                    es, ins, tag, lastflag = Q[0]
                    if any(id(a) not in self.issue_step for a in ins.after): continue
                    if any(t not in self.lg_pos for t in ins.need_lg): continue
                    while not self.hazard_ok(ins): self.emit(Ins("s_nop 0", "S"))
                    self.emit_wait(ins.need_vm, ins.need_lg)
                    while not self.hazard_ok(ins): self.emit(Ins("s_nop 0", "S"))
                    self.emit(ins); Q.pop(0); self.issue_step[id(ins)] = N
                    if ins.vm is not None: self.vm_step[ins.vm] = N
                    if lastflag and isinstance(tag, tuple) and tag[0] == "epi": self.epi_done(tag, N)
                    done = True; break
            assert done
        if self.stamps: self.stamp()
        if self.prof:
            k = (self.prof_k + 1) if not self.PROL else 40
            self.raw(f"""v_writelane_b32 v0, s86, {k}
s_waitcnt vmcnt(0)
{"s_memrealtime" if self.PRT else "s_memtime"} s[86:87]
s_waitcnt lgkmcnt(0)
s_nop 4""")
            self.emit(Ins("v_writelane_b32 v0, s88, 0", "V"))
            if self.PROL:
                for kk in range(self.prol_k):
                    self.emit(Ins(f"v_writelane_b32 v0, s{[60, 62, 78, 80, 82, 100, 100, 100][kk]}, {kk + 1}", "V"))
            if k + 1 < 64: self.emit(Ins(f"v_writelane_b32 v0, s86, {k+1}", "V"))
            self.emit(Ins(f"v_writelane_b32 v0, s90, 63", "V"))
            self.raw(f"""s_lshl_b32 s3, s2, 2
s_add_u32 s3, s3, s{sWv}
s_lshl_b32 s3, s3, 8""")
            self.emit(Ins(f"v_lshrrev_b32 v2, 2, v{vL16}", "V"))
            self.raw("s_nop 4")
            self.emit(Ins(f"buffer_store_dword v0, v2, {srd(sWS_)}, s3 offen", "T"))

    def step_needs(self, f):
        st = self.steps[f]
        nl = [("wf", f, 0), ("wf", f, 1)]
        nv = []
        for mt in range(4):
            a, b = self.xtags(st["l"], st["ks"], mt)
            for t in a:
                assert t in self.vm_pos, ("x load not issued before use", t, f)
            for t in b:
                assert t in self.lg_pos, ("stage read not issued before use", t, f)
            nv += a; nl += b
        return nv, nl

    def pstamp(self):
        if self.prof and self.PROL:
            k = self.prol_k; self.prol_k += 1
            r = [60, 62, 78, 80, 82, 100, 100, 100][k]
            self.emit(Ins(f"s_memtime s[{r}:{r+1}]", "S"))
    def pro_issue(self):
        def take(Q, pred):
            out = []
            while Q and pred(Q[0]): out.append(Q.pop(0))
            return out
        items = take(self.M1, lambda it: it[0] <= -50) + take(self.M3, lambda it: it[0] <= -50)
        seqs = []; cur = []
        for it in items:
            cur.append(it[1])
            if it[1].kind == "A": seqs.append(cur); cur = []
        wseq = [s for s in seqs if s[-1].vm[0] == "w"]; xseq = [s for s in seqs if s[-1].vm[0] == "st"]
        nW, nX = self.PRO_W, self.PRO_X
        assert 4 * nW >= 12
        rest_w = wseq[nW:]; rest_x = xseq[8 * nX:]
        self.M1[0:0] = [(-40, ins, ("bar", -1), False) for s in rest_w for ins in s]
        self.M3[0:0] = [(-40, ins, None, False) for s in rest_x for ins in s]
        def emit_seqs(L):
            for s in L:
                for k, ins in enumerate(s):
                    if ins.kind == "A" and self.out[-1].note == "m0": self.emit(Ins("s_nop 0", "S"))
                    self.emit(ins)
                    if ins.vm is not None: self.vm_step[ins.vm] = -100
        for tok in self.PORD:
            if tok.startswith("pf"):
                lim = int(tok[2:])
                while self.PF and self.PF[0][0] <= lim:
                    es, ins, tag, lf = self.PF.pop(0)
                    self.emit(ins); self.issue_step[id(ins)] = -100
                    if ins.vm is not None: self.vm_step[ins.vm] = -100
            elif tok[0] == "x": n = int(tok[1:]); assert n < nX; emit_seqs(xseq[8 * n:8 * n + 8])
            elif tok == "wA": emit_seqs(wseq[0:3])
            elif tok == "wB": emit_seqs(wseq[3:nW])
            elif tok == "p2": self.prologue2()
            elif tok == "fb":
                self.emit(Ins(f"buffer_load_dword v{vBase}, v{vPollOff}, {srd(sWS_)}, 0 offen sc1", "L", vm=("fb",)))
                self.vm_step[("fb",)] = -100
                self.bias_loads()
            elif tok == "st": self.pstamp()
            elif tok.startswith("wait"):
                n = int(tok[4:]); self.emit(Ins(f"s_waitcnt vmcnt({n})", "W")); self.vm_done = max(self.vm_done, len(self.vmq) - n)
            else: assert 0, tok
        self.pstamp()
        n = 0
        while self.M2 and n < 8:
            es, ins, tag, lf = self.M2[0]
            assert ins.kind == "D"
            self.emit_wait(ins.need_vm, ins.need_lg)
            self.emit(ins); self.M2.pop(0); n += 1
            if ins.lg is not None: self.lg_step[ins.lg] = -100
        self.pstamp()

    def pf_streams(self):
        PF = []
        def ld(pat, dst, base, soff, tag, pre=(), off=0):
            i = Ins(f"buffer_load_dword v{dst}, v{pat}, {srd(base)}, {soff} offen" + (f" offset:{off}" if off else ""), "L", rd=vr(pat), wr=vr(dst), vm=tag)
            i.lines = {"x": 32, "w": 16, "g": 32}[tag[1]]
            return list(pre) + [i]
        t = 54
        for k, (a, es) in enumerate(zip(self.PX_L, self.T_PX)):
            PF.append([es, 0, ld(vPFX, vPoll, sX0_, f"s{t}", ("pf", "x", a), [S(f"s_add_u32 s{t}, s{sRow}, {128 * a}")]), None])
        if self.CPF:
            for k, es in enumerate(self.T_CPF):
                i = Ins(f"buffer_load_dword v{vPoll if es < 200 else vPXE}, off, s[64:67], s{t}", "L", vm=("pf", "c", k)); i.lines = 1
                PF.append([es, 2, [S(f"s_add_u32 s{t}, s72, {16384 * k}"), i], None])
        for j, es in enumerate(self.T_PW0):
            PF.append([es, 1, ld(vPFW, vPoll, sW_, f"s{t}", ("pf", "w", 0, j), [S(f"s_mov_b32 s{t}, {4 * j * KSB}")]), None])
        lastw0 = PF[-1][2][-1]
        t0 = vT[0]
        pat = [V(f"v_lshlrev_b32 v{vPFG}, 3, v{vL16}", rd=vr(vL16), wr=vr(vPFG)),
               V(f"v_lshrrev_b32 v{t0}, 9, v{vL16}", rd=vr(vL16), wr=vr(t0)),
               V(f"v_lshlrev_b32 v{t0}, 30, v{t0}", rd=vr(t0), wr=vr(t0)),
               V(f"v_add_u32 v{vPFG}, v{vPFG}, v{t0}", rd=vr(t0) + vr(vPFG), wr=vr(vPFG))]
        pat[0].after = [lastw0]
        if self.T_WG < 190:
            self.pfg_pat = []
            g = ld(29, vPoll, sW_, "s91", ("pf", "g"))
        else:
            self.pfg_pat = pat
            g = ld(vPFG, vPoll, sW_, "s91", ("pf", "g"))
            g[-1].after = [pat[-1]]
        PF.append([self.T_WG, 0, g, None])
        if self.NL > 1:
            pass
            for l in range(1, self.NL):
                l0 = self.group_range(l - 1, 4)[1] + 1
                for j, dt in enumerate(self.T_PWL):
                    PF.append([l0 + dt, 1, ld(vPFX, vPXE, sW_, f"s{t}", ("pf", "w", l, j), [S(f"s_mov_b32 s{t}, {(0 if self.NOW else l) * LSTRIDE + j * KSB}")]), None])
        PF.sort(key=lambda x: (x[0], x[1]))
        return PF
    def pfw_pattern(self, dst, perm):
        t0, t1 = vT
        seq = [V(f"v_lshrrev_b32 v{t0}, 6, v{vL16}", rd=vr(vL16), wr=vr(t0)),
               V(f"v_mul_u32_u24 v{dst}, {(6 if perm else 1) * KSB}, v{t0}", rd=vr(t0), wr=vr(dst)),
               V(f"v_lshrrev_b32 v{t0}, 2, v{t0}", rd=vr(t0), wr=vr(t0)),
               V(f"v_min_u32 v{t0}, 1, v{t0}", rd=vr(t0), wr=vr(t0)),
               V(f"v_lshlrev_b32 v{t0}, 30, v{t0}", rd=vr(t0), wr=vr(t0)),
               V(f"v_and_b32 v{dst}, 0x3fffffff, v{dst}", rd=vr(dst), wr=vr(dst)),
               V(f"v_add_u32 v{dst}, v{dst}, v{t0}", rd=vr(t0) + vr(dst), wr=vr(dst)),
               V(f"v_lshrrev_b32 v{t0}, 4, v{vL16}", rd=vr(vL16), wr=vr(t0)),
               V(f"v_and_b32 v{t0}, 3, v{t0}", rd=vr(t0), wr=vr(t0)),
               V(f"v_lshlrev_b32 v{t1}, 7, v{t0}", rd=vr(t0), wr=vr(t1)),
               V(f"v_add_u32 v{t1}, s{sWq}, v{t1}", rd=vr(t1), wr=vr(t1)),
               V(f"v_cmp_eq_u32 vcc, 3, v{t0}", rd=vr(t0)),
               V(f"v_mov_b32 v{t0}, 0x600", wr=vr(t0)),
               V(f"v_cndmask_b32 v{t1}, v{t1}, v{t0}, vcc", rd=vr(t0) + vr(t1), wr=vr(t1)),
               V(f"v_add_u32 v{dst}, v{dst}, v{t1}", rd=vr(dst) + vr(t1), wr=vr(dst)),
               V(f"v_add_u32 v{dst}, s55, v{dst}", rd=vr(dst), wr=vr(dst))]
        return seq

    def stamp(self):
        k = self.nstamp; self.nstamp += 1
        if k < 8:
            self.emit(Ins(f"s_memtime s[{86 + 2*k}:{87 + 2*k}]", "S"))

    def check(self):
        out = self.out
        errs = 0
        for i, ins in enumerate(out):
            if ins.kind == "M":
                n = 0
                for prev in reversed(out[max(0, i - 4):i]):
                    if n >= 2: break
                    if prev.kind == "V" and set(prev.wr) & set(ins.rd):
                        print("HAZARD V->M", i, prev.text, "|", ins.text, file=sys.stderr); errs += 1
                    n += 1
            if ins.kind == "V":
                n = 0
                for prev in reversed(out[max(0, i - 10):i]):
                    if n >= 8: break
                    if prev.kind == "M" and set(prev.wr) & (set(ins.rd) | set(ins.wr)):
                        print("HAZARD M->V", i, prev.text, "|", ins.text, file=sys.stderr); errs += 1
                    n += 1
        return errs

    def text(self):
        NL = self.NL
        L = []
        L.append("""; Kernarg layout for this problem (48 bytes, ptrs only, base s[0:1]):
;   offset   0: d_in[0] x0  shape=(16384, 832) dtype=bfloat16 strides=(1664, 2) contiguous=True
;   offset   8: d_in[1] ws  shape=(3, 832, 832) dtype=bfloat16 strides=(1384448, 1664, 2) contiguous=True
;   offset  16: d_in[2] bs  shape=(3, 832) dtype=bfloat16 strides=(1664, 2) contiguous=True
;   offset  24: d_out     shape=(16384, 832) dtype=bfloat16 (2 bytes/elem)
;   offset  32: d_debug   256 bytes
;   offset  40: d_ws      268435456 bytes workspace
; cluster of 4 workgroups = 256 rows; each workgroup owns 208 output features; layers exchange x through d_ws.""")
        L.append("; @launch grid=(256,1,1) block=(256,1,1) lds=163840")
        L.append('.amdgcn_target "amdgcn-amd-amdhsa--gfx950"')
        L.append(".text")
        L.append(f".globl {KNAME}\n.p2align 8\n.type {KNAME},@function\n{KNAME}:")
        for ins in self.out: L.append("  " + ins.text)
        if self.stamps:
            L.append("  s_memtime s[84:85]\n  s_memrealtime s[78:79]\n  s_waitcnt lgkmcnt(0)")
            L.append(f"  s_lshl_b32 s3, s2, 7\n  v_mov_b32 v2, s3\n  v_cmp_eq_u32 vcc, 0, v{vL16}\n  s_cmp_eq_u32 s{sWv}, 0\n  s_cbranch_scc0 Lnost\n  s_and_saveexec_b64 s[4:5], vcc")
            regs = [80, 82, 78, 84] + [86 + 2 * k for k in range(min(self.nstamp, 8))]
            for i, s in enumerate(regs):
                L.append(f"  v_mov_b32 v6, s{s}\n  v_mov_b32 v7, s{s+1}\n  buffer_store_dwordx2 v[6:7], v2, {srd(sWS_)}, 0 offen offset:{8*i}\n  s_nop 1")
            L.append("Lnost:")
        if self.SPAN:
            L.append(f"""  s_waitcnt vmcnt(0)
  s_memrealtime s[86:87]
  s_load_dwordx2 s[4:5], s[0:1], 32
  s_waitcnt lgkmcnt(0)
  s_and_b32 s5, s5, 0xffff
  s_mov_b32 s6, 256
  s_mov_b32 s7, 0x20000
  s_not_b32 s3, s88
  s_not_b32 s87, s86
  v_mov_b32 v2, s3
  v_writelane_b32 v2, s86, 1
  v_writelane_b32 v2, s88, 2
  v_writelane_b32 v2, s87, 3
  v_writelane_b32 v2, s79, 4
  s_not_b32 s79, s79
  v_writelane_b32 v2, s79, 5
  v_lshrrev_b32 v3, 2, v{vL16}
  v_cmp_gt_u32 vcc, 24, v3
  v_mov_b32 v4, 0x7fffff00
  v_cndmask_b32 v3, v4, v3, vcc
  s_cmp_eq_u32 s{sWv}, 0
  s_cbranch_scc0 Lnospan
  buffer_atomic_umax v2, v3, s[4:7], 0 offen""")
            L.append("Lnospan:")
        L.append("  s_waitcnt vmcnt(0)")
        L.append("Lend:\n  s_endpgm")
        L += self.slow
        L.append("Lcode_end:")
        L.append('.section .rodata,"a"\n.p2align 6')
        L.append(f".amdhsa_kernel {KNAME}")
        L.append("  .amdhsa_next_free_vgpr 512\n  .amdhsa_next_free_sgpr 102\n  .amdhsa_accum_offset 256\n  .amdhsa_group_segment_fixed_size 0\n  .amdhsa_kernarg_size 48\n  .amdhsa_user_sgpr_count 2\n  .amdhsa_user_sgpr_kernarg_segment_ptr 1\n  .amdhsa_system_sgpr_workgroup_id_x 1\n.end_amdhsa_kernel")
        return "\n".join(L) + "\n"

    LA = 3
    WDEF = 0
    SPAN = 0
    XPACE = 0; XPN = 12; LATX2 = 12; T_U0B = 0
    PK = 0; XLEADG = [0, 0, 0, 0, 0]
    EARLYPF = 0
    PORD = ["pf-90", "x0", "wA", "wB", "x1", "st", "p2", "fb", "pf-50"]
    PRT = 0
    CPF = 1; T_CPF = [-95, 30, 240, 440, 640]
    XMODE = 0
    XB0 = XBASE
    ETA0 = 1.3
    RSL = 2
    ETA = 1.0; CPL = 9; TH = 120; TH_URG = 280; URG = 2; LATW = 16; LATX = 20; T_STG0 = 8; T_STGD = 15; PSP = 1.6; T_RL = [185, 228, 262, 214]
    PROL = 0; T_BW = 20; PRO_W = 6; PRO_X = 2; PX_L = [2, 4, 6, 8, 10, 12]; T_PX = [7, 30, 56, 82, 108, 134]; T_PW0 = [-60, 9, 32, 70, 90, 110, 126]; T_WG = 226; T_PWL = [-90, -70, 20, 60, 90, 110, 120, 130]; T_PAT = 200; AGE2 = 12; T_PWA = -100; T_PWB = 70; AGE = 16
    NOST = 0; NOLD = 0; NOW = 0
    LDP = 2; STP = 2; OUTP = 0
    IV = 12
    PS = 0; PI = 17
    T_U0 = -32; T_U1 = 50; T_U2 = 120; XLEAD = 26; SPIN = 0x8000; E2LEAD = 2; T_POLL = 10; T_ST = 8; MAXL = 2
    MIN_VM = 10; MIN_LG = 1

    def run(self):
        self.flag_step = {}
        self.plan()
        self.prologue()
        self.build_streams()
        self.schedule()
        errs = self.check()
        return errs

if __name__ == "__main__":
    ap = argparse.ArgumentParser()
    ap.add_argument("-o", default="k.s")
    ap.add_argument("--nl", type=int, default=3)
    ap.add_argument("--interval", type=int, default=12)
    ap.add_argument("--stamps", action="store_true")
    ap.add_argument("--prof", action="store_true")
    ap.add_argument("--set", action="append", default=[])
    a = ap.parse_args()
    for kv in a.set:
        k, v = kv.split("="); setattr(Gen, k, eval(v))
    g = Gen(NL=a.nl, interval=Gen.IV, stamps=a.stamps, prof=a.prof)
    errs = g.run()
    open(a.o, "w").write(g.text())
    from collections import Counter
    print("instrs", len(g.out), Counter(i.kind for i in g.out), "hazard errs", errs, "minlead(steps)", g.minlead, file=sys.stderr)
    print("xload steps", {k: v for k, v in g.vm_step.items() if k[0] in ("x", "fp", "fs") and (k[0] != "x" or k[3] == 3)}, file=sys.stderr)
    import statistics
    print("B mean", statistics.mean(g.Bhist), "max", max(g.Bhist), "frac>150", sum(b > 150 for b in g.Bhist) / len(g.Bhist), file=sys.stderr)
    leads = [g.bars[e["jl"]] - g.vm_step[("w", n)] for n, e in enumerate(g.entries) if g.vm_step[("w", n)] > -50]
    print("ring leads min/mean", min(leads), statistics.mean(leads), "hist", sorted(leads)[:20], file=sys.stderr)
    print("stage", {k: v for k, v in g.vm_step.items() if k[0] in ("st", "rl") and k[2] in (0, 7)}, file=sys.stderr)
    print("pf", {k: v for k, v in g.vm_step.items() if k[0] == "pf"}, file=sys.stderr)
    print("epi_fin", g.epi_fin, "bias", g.bias_done, "flags", g.flag_step, "nsteps", g.nsteps, file=sys.stderr)
```

```python
import sys, argparse

KNAME = "standalone__dcn_v2_cross__recsys_kernel"
D = 832; ROWB = 1664
LSTRIDE = D * ROWB
KSB = 32 * ROWB
RING = 54848
BIAS = 54848
XR = 57344
XRW = 26624
XBASE = 0x100000
FBASE = 0x40000
XLAYER = 64 * 4 * 106496
CH = 4128
XB = 4096

ACC0 = 48
def acc(j, mt): return ACC0 + 16 * j + 4 * mt
WF0 = 32; NB = 4
def wf(f): return WF0 + 4 * (f % NB)
vA = [1, 2]; vA2 = 3
vPW = 4; vPW2 = 5; vPE = 6; vPE2 = 7
vX = [8, 9]; vX2 = 10
vL16 = 11; vL8 = 12
vPX = 13; vOut = 30
vPXE = 14; vOutE = 31
vBias = 15
vFlagOff = 16; vFlagVal = 17; vPollOff = 18; vPoll = 19; vBase = 30
vPFX = 31; vPFW = 17; vPFG = 17
vXP = [20, 24]
vT = [28, 29]
vDummy = 0
sW_ = 8; sX0_ = 12; sOUT_ = 16; sWS_ = 20; sDBG_ = 24; sB_ = 28
sQ = 32; sC = 33; sWv = 34; sWq = 35; sW1032 = 36; sW8 = 37; sXq = 38; sW1024 = 39
sXb = 40; sRow = 41; sMask = 44; sXRw = 45
sOutMt = [46, 47, 48, 49]
sT = [50, 51, 52, 53, 54, 55]
sXs = [56, 57]
sXt = [77, 84]
sP = 58
sSpin = 59
sJ = [92, 93, 94, 95, 96, 97, 98, 99]
sStamp = 60
def srd(b): return f"s[{b}:{b+3}]"

class Ins:
    __slots__ = ("text", "kind", "rd", "wr", "vm", "lg", "need_vm", "need_lg", "earliest", "label", "note", "after", "minvm", "dl", "lines", "hard")
    def __init__(self, text, kind, rd=(), wr=(), vm=None, lg=None, need_vm=None, need_lg=None, earliest=None, note=None):
        self.text = text; self.kind = kind; self.rd = tuple(rd); self.wr = tuple(wr)
        self.vm = vm; self.lg = lg; self.need_vm = need_vm or []; self.need_lg = need_lg or []
        self.earliest = earliest; self.note = note; self.after = []; self.minvm = None; self.dl = None; self.lines = 8; self.hard = None
def vr(b, n=1): return [("v", b + i) for i in range(n)]
def ar(b, n=1): return [("a", b + i) for i in range(n)]

def S(t, **k): return Ins(t, "S", **k)
def V(t, rd=(), wr=(), **k): return Ins(t, "V", rd=rd, wr=wr, **k)

class Gen:
    def __init__(self, NL=3, interval=12, dbg=None, stamps=False, prof=False):
        self.prof = prof; self.prol_k = 0
        self.NL = NL; self.interval = interval; self.stamps = stamps
        self.out = []
        self.vmq = []; self.vm_done = 0; self.vm_pos = {}
        self.lgq = []; self.lg_done = 0; self.lg_pos = {}
        self.slow = []
        self.tcount = 0
        self.nstamp = 0

    def emit(self, ins):
        if ins.vm is not None:
            assert ins.vm not in self.vm_pos, ins.vm
            self.vm_pos[ins.vm] = len(self.vmq); self.vmq.append(ins.vm)
        if ins.lg is not None:
            assert ins.lg not in self.lg_pos, ins.lg
            self.lg_pos[ins.lg] = len(self.lgq); self.lgq.append(ins.lg)
        self.out.append(ins)
    def wait_for(self, need_vm, need_lg):
        nv = None; nl = None
        for t in need_vm:
            p = self.vm_pos[t]
            if p >= self.vm_done:
                n = len(self.vmq) - 1 - p
                nv = n if nv is None else min(nv, n)
        for t in need_lg:
            p = self.lg_pos[t]
            if p >= self.lg_done:
                n = len(self.lgq) - 1 - p
                nl = n if nl is None else min(nl, n)
        return nv, nl
    def emit_wait(self, need_vm, need_lg):
        nv, nl = self.wait_for(need_vm, need_lg)
        if nv is None and nl is None: return False
        parts = []
        if nv is not None:
            nv = min(nv, 63); parts.append(f"vmcnt({nv})"); self.vm_done = max(self.vm_done, len(self.vmq) - nv)
        if nl is not None:
            nl = min(nl, 15); parts.append(f"lgkmcnt({nl})"); self.lg_done = max(self.lg_done, len(self.lgq) - nl)
        self.emit(Ins("s_waitcnt " + " ".join(parts), "W"))
        return True
    def raw(self, text, kind="S", **k):
        for line in text.strip().split("\n"):
            self.emit(Ins(line.strip(), kind, **k))
    def xch(self, l):
        if self.XMODE == 2: return (sOUT_, -self.XB0) if l == 0 else (sWS_, 0)
        if self.XMODE == 1: return (sWS_, 0)
        return (sWS_, l * XLAYER)
    def pol(self, p):
        return ("", " sc0", " sc1", " sc0 sc1", " nt", " sc0 nt", " sc1 nt", " sc0 sc1 nt")[p]
    def stemp(self, stream=0):
        self.tcount += 1
        return sT[2 * stream + self.tcount % 2]

    def plan(self):
        NL = self.NL
        self.groups = []
        for l in range(NL):
            if l == 0:
                G = [[0, 1, 2], [3, 4, 5], [6, 7, 8, 9], [10, 11, 12], list(range(13, 26))]
            else:
                G = [[0, 6, 12], [18, 1, 7], [13, 19, 2, 8], [14, 20, 3],
                     [9, 15, 21, 4, 10, 16, 22, 5, 11, 17, 23, 24, 25]]
            SL = [[13, 14, 15], [0, 1, 2], [3, 4, 5, 6], [13, 14, 15], [7, 8, 9, 10, 11, 12, 0, 1, 2, 3, 4, 5, 6]]
            self.groups.append(list(zip(G, SL)))
        self.entries = []
        self.steps = []
        def seg_main(l, gi, u, lst):
            for ks, sl in lst:
                e = dict(kind="m", l=l, u=u, ks=[ks], size=CH, gi=gi, first=len(self.steps))
                self.entries.append(e)
                for sb in range(2):
                    for ee in range(2):
                        self.steps.append(dict(e=len(self.entries) - 1, j=4 * u + 2 * sb + ee, ks=ks, slot=sl,
                                               va=vA[sb], rel=8 * ee, rdoff=512, l=l, gi=gi, u=u))
                e["last"] = len(self.steps) - 1
        def seg_extra(l, gi, bt):
            e = dict(kind="x", l=l, u=3, ks=[k for k, _ in bt], size=XB, gi=gi, first=len(self.steps))
            self.entries.append(e)
            for i, (ks, sl) in enumerate(bt):
                self.steps.append(dict(e=len(self.entries) - 1, j=12, ks=ks, slot=sl,
                                       va=vA2, rel=1024 * i, rdoff=256, l=l, gi=gi, u=3))
            e["last"] = len(self.steps) - 1
        for l in range(NL):
            gl = [list(zip(G, SL)) for (G, SL) in self.groups[l]]
            a, b = gl[0], gl[1]
            if l == 0:
                for gi_, lst_ in ((0, a), (1, b)):
                    for it in lst_:
                        for u in range(3): seg_main(l, gi_, u, [it])
            else:
                seg_main(l, 0, 0, a); seg_main(l, 0, 1, a); seg_main(l, 1, 0, b); seg_main(l, 1, 1, b)
                seg_main(l, 0, 2, a); seg_main(l, 1, 2, b)
            ab = a + b
            seg_extra(l, 1, ab[0:4]); seg_extra(l, 1, ab[4:6])
            for gi in (2, 3, 4):
                lst = gl[gi]
                for u in range(3): seg_main(l, gi, u, lst)
                if gi < 4: batches = [lst]
                elif l == 0: batches = [lst[0:4], lst[4:8], lst[8:12], lst[12:13]]
                else: batches = [lst[0:4], lst[4:8], lst[8:11], lst[11:13]]
                for bt in batches: seg_extra(l, gi, bt)
        self.nsteps = len(self.steps)
        seen = set()
        for st in self.steps:
            if st["j"] not in seen: seen.add(st["j"]); st["init"] = True
        iv = self.interval
        LA = self.LA
        self.bars = [-LA - 1] + list(range(iv - LA - 1, self.nsteps - LA - 1, iv))
        pos = 0
        live = []
        for n, e in enumerate(self.entries):
            if pos + e["size"] > RING: pos = 0
            e["base"] = pos; s0, s1 = pos, pos + e["size"]
            ov = [m for (m, a, b) in live if a < s1 and s0 < b]
            live = live + [(n, s0, s1)]
            lastneed = max([self.entries[m]["last"] for m in ov], default=None)
            if lastneed is None: e["jf"] = -1
            else:
                e["jf"] = next(j for j, P in enumerate(self.bars) if lastneed <= P + 1)
            e["jl"] = max(j for j, P in enumerate(self.bars) if P + LA + 1 <= e["first"] or j == 0)
            assert e["jf"] < e["jl"] or e["jf"] == -1, (n, e)
            pos = s1
        self.minlead = min((self.bars[e["jl"]] - self.bars[e["jf"]]) for e in self.entries if e["jf"] >= 0)

    def tr_reads(self, f):
        st = self.steps[f]; e = self.entries[st["e"]]
        r = wf(f)
        res = []
        for rd in range(2):
            off = e["base"] + st["rel"] + rd * st["rdoff"]
            res.append(Ins(f"ds_read_b64_tr_b16 v[{r+2*rd}:{r+2*rd+1}], v{st['va']} offset:{off}", "D",
                           rd=vr(st["va"]), wr=vr(r + 2 * rd, 2), lg=("wf", f, rd)))
        return res
    def mfma(self, f, mt):
        st = self.steps[f]
        c = acc(st["j"], mt); a = wf(f); b = 16 * st["slot"] + 4 * mt
        if st.get("init"):
            return Ins(f"v_mfma_f32_16x16x32_bf16 v[{c}:{c+3}], v[{a}:{a+3}], a[{b}:{b+3}], 0", "M",
                       rd=vr(a, 4) + ar(b, 4), wr=vr(c, 4))
        return Ins(f"v_mfma_f32_16x16x32_bf16 v[{c}:{c+3}], v[{a}:{a+3}], a[{b}:{b+3}], v[{c}:{c+3}]", "M",
                   rd=vr(a, 4) + ar(b, 4) + vr(c, 4), wr=vr(c, 4))
    def dma_entry(self, n):
        e = self.entries[n]; l = e["l"]
        t = self.stemp()
        if e["kind"] == "m":
            ks = e["ks"][0]
            const = (0 if self.NOW else l) * LSTRIDE + ks * KSB + 128 * e["u"]
            pat = vPW2 if (l > 0 and ks >= 24) else vPW
            seq = [S(f"s_add_u32 s{t}, s{sWq}, {const}"),
                   S(f"s_add_u32 m0, s{sW1032}, {e['base']}", note="m0"),
                   Ins(f"buffer_load_dwordx4 v{pat}, {srd(sW_)}, s{t} offen lds", "A", rd=vr(pat), vm=("w", n))]
        else:
            ks = e["ks"] + [e["ks"][-1]] * (4 - len(e["ks"]))
            lit = 0
            for i, k in enumerate(ks): lit |= (26 * (0 if self.NOW else l) + k) << (8 * i)
            pat = vPE2 if (l > 0 and ks[0] >= 24) else vPE
            seq = [S(f"s_lshr_b32 s{t}, 0x{lit:x}, s{sW8}"),
                   S(f"s_and_b32 s{t}, s{t}, 0xff"),
                   S(f"s_mul_i32 s{t}, s{t}, {KSB}"),
                   S(f"s_add_u32 s{t}, s{t}, s{sXq}"),
                   S(f"s_add_u32 m0, s{sW1024}, {e['base']}", note="m0"),
                   Ins(f"buffer_load_dwordx4 v{pat}, {srd(sW_)}, s{t} offen lds", "A", rd=vr(pat), vm=("w", n))]
        return seq
    def xload(self, l, ks, slot):
        t = sXs[(ks + l) % 2]
        xs, xo = self.xch(l - 1)
        seq = [S(f"s_add_u32 s{t}, s{sXb}, {(xo + 4096 * ks) & 0xffffffff}")]
        for mt in range(4):
            d = 16 * slot + 4 * mt
            if ks < 24:
                seq.append(Ins(f"buffer_load_dwordx4 a[{d}:{d+3}], v{vL16}, {srd(60 if self.NOLD else xs)}, s{t} offen offset:{1024*mt}{self.pol(self.LDP)}", "L",
                               rd=vr(vL16), wr=ar(d, 4), vm=("x", l, ks, mt, 0)))
            else:
                for h in range(2):
                    seq.append(Ins(f"buffer_load_dwordx2 a[{d+2*h}:{d+2*h+1}], v{vL8}, {srd(60 if self.NOLD else xs)}, s{t} offen offset:{2048*h+512*mt}{self.pol(self.LDP)}", "L",
                                   rd=vr(vL8), wr=ar(d + 2 * h, 2), vm=("x", l, ks, mt, h)))
        return seq
    def xtags(self, l, ks, mt):
        if l == 0: return [], [("xs", ks, mt)]
        if ks < 24: return [("x", l, ks, mt, 0)], []
        return [("x", l, ks, mt, 0), ("x", l, ks, mt, 1)], []
    def stage_dma(self, line, slot=None, tag="st"):
        if slot is None: slot = line % 3
        seq = []
        for j in range(8):
            imm = 1024 * (j & 1) + 128 * line
            if j % 2 == 0:
                seq.append(S(f"s_add_u32 m0, s{sXRw}, {8192 * slot + 1024 * j - 128 * line}", note="m0"))
            ins = Ins(f"buffer_load_dwordx4 v{vPX}, {srd(sX0_)}, s{sJ[j]} offen offset:{imm} lds", "A", rd=vr(vPX), vm=(tag, line, j))
            if j % 2 == 0: ins.note = "m0keep"
            seq.append(ins)
        return seq
    def stage_read(self, ks, slot):
        line, sb = ks >> 1, ks & 1
        seq = []
        for mt in range(4):
            d = 16 * slot + 4 * mt
            seq.append(Ins(f"ds_read_b128 a[{d}:{d+3}], v{vX[sb]} offset:{8192 * (line % 3) + 2048 * mt}", "D",
                           rd=vr(vX[sb]), wr=ar(d, 4), lg=("xs", ks, mt), need_vm=[("st", line, 2 * mt), ("st", line, 2 * mt + 1)]))
            seq[-1].minvm = self.AGE if line < 8 else self.AGE2
        return seq
    def reload_dma(self, u):
        seq = []
        if u == 0: seq.append(V(f"v_add_u32 v{vPX}, s{sWq}, v{vPX}", rd=vr(vPX), wr=vr(vPX)))
        if u < 3: return seq + self.stage_dma(u, (u + 1) % 3, "rl")
        for h in range(2):
            t = self.stemp(1)
            seq += [S(f"s_add_u32 s{t}, s{sRow}, s{sXq}"),
                    S(f"s_add_u32 s{t}, s{t}, {h * 32 * ROWB}"),
                    S(f"s_add_u32 m0, s{sXRw}, {24576 + 1024 * h}", note="m0"),
                    Ins(f"buffer_load_dwordx4 v{vPXE}, {srd(sX0_)}, s{t} offen lds", "A", rd=vr(vPXE), vm=("rl", 3, h))]
            seq[-1].lines = 32
        return seq
    def epi_unit(self, l, u):
        last = (l == self.NL - 1)
        seq = []
        items = [(sb, mt) for sb in range(2) for mt in range(4)] if u < 3 else [(0, mt) for mt in range(4)]
        def rd(i):
            sb, mt = items[i]; xp = vXP[i % 2]
            if u < 3:
                nv = [("rl", u, 2 * mt), ("rl", u, 2 * mt + 1)] if l == 0 else []
                return Ins(f"ds_read_b128 v[{xp}:{xp+3}], v{vX[sb]} offset:{8192 * ((u + 1) % 3) + 2048 * mt}", "D", rd=vr(vX[sb]), wr=vr(xp, 4),
                           lg=("xp", l, u, i), need_vm=nv)
            nv = [("rl", 3, mt >> 1)] if l == 0 else []
            return Ins(f"ds_read_b64 v[{xp}:{xp+1}], v{vX2} offset:{512 * mt}", "D", rd=vr(vX2), wr=vr(xp, 2), lg=("xp", l, u, i), need_vm=nv)
        seq2 = [rd(0), rd(1)]
        for b_ in range(2):
            if self.last_reader[b_] is not None: seq2[b_].after = [self.last_reader[b_]]
        for i, (sb, mt) in enumerate(items):
            xp = vXP[i % 2]
            ne = 2 if u < 3 else 1
            first = True; pend = None
            for e in range(ne):
                j = 4 * u + 2 * sb + e if u < 3 else 12
                c = acc(j, mt)
                for p in range(2):
                    x = xp + 2 * e + p; t = vT[p]
                    if self.PK & 1:
                        if p == 1: continue
                        t0, t1 = vT; x1 = x + 1
                        i0 = V(f"v_lshlrev_b32 v{t0}, 16, v{x}", rd=vr(x), wr=vr(t0))
                        if first: i0.need_lg = [("xp", l, u, i)]; first = False
                        seq += [i0, V(f"v_and_b32 v{t1}, s{sMask}, v{x}", rd=vr(x), wr=vr(t1)),
                                V(f"v_lshlrev_b32 v{x}, 16, v{x1}", rd=vr(x1), wr=vr(x)),
                                V(f"v_and_b32 v{x1}, s{sMask}, v{x1}", rd=vr(x1), wr=vr(x1)),
                                V(f"v_pk_mul_f32 v[{t0}:{t1}], v[{t0}:{t1}], v[{c}:{c+1}]", rd=vr(t0, 2) + vr(c, 2), wr=vr(t0, 2)),
                                V(f"v_pk_mul_f32 v[{x}:{x1}], v[{x}:{x1}], v[{c+2}:{c+3}]", rd=vr(x, 2) + vr(c + 2, 2), wr=vr(x, 2)),
                                V(f"v_cvt_pk_bf16_f32 v{x1}, v{x}, v{x1}", rd=vr(x, 2), wr=vr(x1)),
                                V(f"v_cvt_pk_bf16_f32 v{x}, v{t0}, v{t1}", rd=vr(t0, 2), wr=vr(x))]
                        continue
                    i0 = V(f"v_lshlrev_b32 v{t}, 16, v{x}", rd=vr(x), wr=vr(t))
                    if first: i0.need_lg = [("xp", l, u, i)]; first = False
                    seq += [i0,
                            V(f"v_and_b32 v{x}, s{sMask}, v{x}", rd=vr(x), wr=vr(x)),
                            V(f"v_mul_f32 v{t}, v{t}, v{c+2*p}", rd=vr(t) + vr(c + 2 * p), wr=vr(t)),
                            V(f"v_mul_f32 v{x}, v{x}, v{c+2*p+1}", rd=vr(x) + vr(c + 2 * p + 1), wr=vr(x)),
                            V(f"v_cvt_pk_bf16_f32 v{x}, v{t}, v{x}", rd=vr(t) + vr(x), wr=vr(x))]
            if pend is not None: seq.append(pend)
            lastv = seq[-1]
            if not last:
                t = sXt[i % 2]
                if u < 3:
                    b = 2 * u + sb
                    xs, xo = self.xch(l)
                    seq2.append(S(f"s_add_u32 s{t}, s42, {(xo + 4096 * b) & 0xffffffff}"))
                    st = Ins(f"buffer_store_dwordx4 v[{xp}:{xp+3}], v{vL16}, {srd(60 if self.NOST else xs)}, s{t} offen offset:{1024*mt}{self.pol(self.STP)}", "T",
                             rd=vr(xp, 4) + vr(vL16), vm=("xo", l, u, i))
                else:
                    xs, xo = self.xch(l)
                    seq2.append(S(f"s_add_u32 s{t}, s43, {xo & 0xffffffff}"))
                    st = Ins(f"buffer_store_dwordx2 v[{xp}:{xp+1}], v{vL8}, {srd(60 if self.NOST else xs)}, s{t} offen offset:{512*mt}{self.pol(self.STP)}", "T",
                             rd=vr(xp, 2) + vr(vL8), vm=("xo", l, u, i))
            else:
                if u < 3:
                    b = 2 * u + sb
                    st = Ins(f"buffer_store_dwordx4 v[{xp}:{xp+3}], v{vOut}, {srd(sOUT_)}, s{sOutMt[mt]} offen offset:{64*b}{self.pol(self.OUTP)}", "T",
                             rd=vr(xp, 4) + vr(vOut), vm=("xo", l, u, i))
                else:
                    t = sXt[i % 2]
                    seq2.append(S(f"s_add_u32 s{t}, s{sOutMt[mt]}, s76"))
                    st = Ins(f"buffer_store_dwordx2 v[{xp}:{xp+1}], v{vOutE}, {srd(sOUT_)}, s{t} offen{self.pol(self.OUTP)}", "T",
                             rd=vr(xp, 2) + vr(vOutE), vm=("xo", l, u, i))
            st.after = [lastv]; st.lines = 8 if u < 3 else 4; st.dl = -2000; st.hard = -2000
            self.last_reader[i % 2] = st
            seq2.append(st)
            if i + 2 < len(items): seq2.append(rd(i + 2))
        return seq, seq2
    def bias_unit(self, l, u):
        seq = []
        tiles = [4 * u + i for i in range(4)] if u < 3 else [12]
        def rd(i):
            xp = vXP[i % 2]
            return Ins(f"ds_read_b128 v[{xp}:{xp+3}], v{vBias} offset:{832 * l + 64 * tiles[i]}", "D", rd=vr(vBias), wr=vr(xp, 4), lg=("bi", l, tiles[i]))
        seq2 = [rd(0)] + ([rd(1)] if len(tiles) > 1 else [])
        for b_ in range(len(seq2)):
            if self.last_reader[b_] is not None: seq2[b_].after = [self.last_reader[b_]]
        for i, j in enumerate(tiles):
            xp = vXP[i % 2]
            first = True
            for mt in range(4):
                c = acc(j, mt)
                for r in range(0, 4, 2 if self.PK & 2 else 1):
                    if self.PK & 2: x = V(f"v_pk_add_f32 v[{c+r}:{c+r+1}], v[{c+r}:{c+r+1}], v[{xp+r}:{xp+r+1}]", rd=vr(c + r, 2) + vr(xp + r, 2), wr=vr(c + r, 2))
                    else: x = V(f"v_add_f32 v{c+r}, v{c+r}, v{xp+r}", rd=vr(c + r) + vr(xp + r), wr=vr(c + r))
                    if first: x.need_lg = [("bi", l, j)]; first = False
                    seq.append(x)
            self.last_reader[i % 2] = seq[-1]
            if i + 2 < len(tiles):
                r2 = rd(i + 2); r2.after = [seq[-1]]; seq2.append(r2)
        return seq, seq2
    def flag_set(self, val, need):
        v = V(f"v_add_u32 v{vFlagVal}, {val}, v{vBase}", rd=vr(vBase), wr=vr(vFlagVal), need_vm=list(need) + [("fb",)])
        v.minvm = self.T_ST
        st = Ins(f"buffer_store_dword v{vFlagVal}, v{vFlagOff}, {srd(sWS_)}, 0 offen sc1", "T", rd=vr(vFlagVal) + vr(vFlagOff), vm=("fs", val))
        st.lines = 1; st.dl = -3000; st.hard = -3000
        return [v, st]
    def flag_poll(self, val):
        k = val
        ld = Ins(f"buffer_load_dword v{vPoll}, v{vPollOff}, {srd(sWS_)}, 0 offen sc1", "L", rd=vr(vPollOff), wr=vr(vPoll), vm=("fp", val))
        chk = [V(f"v_sub_u32 v{vPoll}, v{vPoll}, v{vBase}", rd=vr(vPoll) + vr(vBase), wr=vr(vPoll), need_vm=[("fp", val), ("fb",)]),
               V(f"v_cmp_gt_u32 vcc, {val}, v{vPoll}", rd=vr(vPoll)),
               S("s_nop 0"),
               Ins(f"s_cbranch_vccnz Lslow{k}\nLback{k}:", "S")]
        self.slow.append(f"""Lslow{k}:
  s_mov_b32 s{sSpin}, 0x{self.SPIN:x}
Lspin{k}:
  buffer_load_dword v{vPoll}, v{vPollOff}, {srd(sWS_)}, 0 offen sc1
  s_waitcnt vmcnt(0)
  v_sub_u32 v{vPoll}, v{vPoll}, v{vBase}
  v_cmp_gt_u32 vcc, {val}, v{vPoll}
  s_sub_u32 s{sSpin}, s{sSpin}, 1
{"  s_add_u32 s90, s90, 0x%x" % (1 << (4 * (k - 1))) if self.prof else ""}
  s_cbranch_vccz Lback{k}
  s_cmp_lg_u32 s{sSpin}, 0
  s_cbranch_scc1 Lspin{k}
  s_branch Lback{k}""")
        return ld, chk
    def out_patterns(self):
        t0, t1 = vT
        return [V(f"v_lshrrev_b32 v{t0}, 4, v{vL16}", rd=vr(vL16), wr=vr(t0)),
                V(f"v_and_b32 v{t1}, 15, v{t0}", rd=vr(t0), wr=vr(t1)),
                V(f"v_mul_u32_u24 v{t1}, {ROWB}, v{t1}", rd=vr(t1), wr=vr(t1)),
                V(f"v_lshrrev_b32 v{t0}, 4, v{t0}", rd=vr(t0), wr=vr(t0)),
                V(f"v_lshlrev_b32 v{t0}, 3, v{t0}", rd=vr(t0), wr=vr(t0)),
                V(f"v_add_u32 v{vOutE}, v{t1}, v{t0}", rd=vr(t0) + vr(t1), wr=vr(vOutE)),
                V(f"v_add_u32 v{vOut}, v{vOutE}, v{t0}", rd=vr(t0) + vr(vOutE), wr=vr(vOut))]

    def prologue(self):
        R = self.raw
        VV = lambda t: self.emit(Ins(t, "V"))
        R("s_cmp_ge_u32 s2, 256\ns_cbranch_scc1 Lend")
        R("s_load_dwordx4 s[64:67], s[0:1], 0\ns_load_dwordx4 s[68:71], s[0:1], 16\ns_load_dwordx4 s[72:75], s[0:1], 32")
        if self.stamps:
            R("s_memrealtime s[80:81]\ns_memtime s[82:83]")
        if self.SPAN: R("s_memrealtime s[88:89]")
        if self.prof:
            R(("s_memrealtime" if self.PRT else "s_memtime") + " s[88:89]\ns_mov_b32 s90, 0")
        VV("v_lshrrev_b32 v31, 6, v0")
        VV("v_and_b32 v0, 63, v0")
        R(f"""s_and_b32 s{sC}, s2, 7
s_lshr_b32 s3, s2, 5""")
        VV(f"v_readfirstlane_b32 s{sWv}, v31")
        R(f"""s_lshl_b32 s55, s3, 2
s_lshl_b32 s3, s3, 3
s_add_u32 s{sC}, s{sC}, s3
s_lshr_b32 s{sQ}, s2, 3
s_and_b32 s{sQ}, s{sQ}, 3
s_mul_i32 s{sWq}, s{sQ}, 384
s_lshl_b32 s3, s{sC}, 2
s_add_u32 s3, s3, s{sWv}
s_mul_i32 s{sRow}, s3, {64 * ROWB}
s_add_u32 s55, s55, s{sWv}
s_mul_i32 s55, s55, {ROWB}
s_mul_i32 s{sW1032}, s{sWv}, 1032
s_lshl_b32 s{sW8}, s{sWv}, 3
s_mul_i32 s{sXRw}, s{sWv}, {XRW}
s_add_u32 s{sXRw}, s{sXRw}, {XR}
s_nop 0""")
        for j in range(8):
            R(f"s_add_u32 s{sJ[j]}, s{sRow}, {j * 8 * ROWB - 1024 * (j & 1)}")
        VV(f"v_lshlrev_b32 v{vL16}, 4, v0")
        VV("v_lshrrev_b32 v20, 3, v0")
        VV("v_and_b32 v21, 7, v0")
        VV("v_and_b32 v23, 6, v20")
        VV("v_lshlrev_b32 v22, 1, v20")
        VV("v_xor_b32 v23, v21, v23")
        VV("v_and_b32 v22, 4, v22")
        VV("v_lshlrev_b32 v23, 4, v23")
        VV(f"v_mul_u32_u24 v24, {ROWB}, v20")
        VV("v_xor_b32 v22, v21, v22")
        VV(f"v_add_u32 v{vPX}, v23, v24")
        VV("v_lshlrev_b32 v22, 4, v22")
        VV(f"v_add_u32 v23, s{sW8}, v20")
        VV(f"v_mul_u32_u24 v23, {ROWB}, v23")
        VV(f"v_add_u32 v{vPW}, v23, v22")
        if self.EARLYPF: self.pf_patterns()
        self.pstamp()
        R("s_waitcnt lgkmcnt(0)")
        self.pstamp()
        self.mk(sX0_, 64, 16384 * ROWB)
        self.mk(sW_, 66, 3 * LSTRIDE)
        if self.CPF:
            self.emit(Ins("s_getpc_b64 s[64:65]\nLpc:", "S"))
            R(f"s_and_b32 s65, s65, 0xffff\ns_mov_b32 s66, Lcode_end-Lpc\ns_mov_b32 s67, 0x20000\ns_lshr_b32 s72, s2, 3\ns_lshl_b32 s72, s72, 2\ns_add_u32 s72, s72, s{sWv}\ns_lshl_b32 s72, s72, 7")
    def prologue2(self):
        R = self.raw
        R(f"""s_lshl_b32 s{sXq}, s{sQ}, 5
s_add_u32 s{sXq}, s{sXq}, 1536
s_lshl_b32 s{sW1024}, s{sWv}, 10
s_lshl_b32 s3, s{sC}, 2
s_add_u32 s3, s3, s{sWv}
s_mul_i32 s{sXb}, s3, 106496
s_add_u32 s{sXb}, s{sXb}, {self.XB0}
s_mov_b32 s{sMask}, 0xffff0000
s_mul_i32 s42, s{sQ}, 24576
s_add_u32 s42, s42, s{sXb}
s_lshr_b32 s43, s{sQ}, 1
s_add_u32 s43, s43, 24
s_lshl_b32 s43, s43, 12
s_and_b32 s3, s{sQ}, 1
s_lshl_b32 s3, s3, 11
s_add_u32 s43, s43, s3
s_add_u32 s43, s43, s{sXb}
s_mul_i32 s76, s{sQ}, 352
s_sub_u32 s76, 1536, s76""")
        for mt in range(4):
            R(f"s_add_u32 s{sOutMt[mt]}, s{sRow}, {mt * 16 * ROWB}\ns_add_u32 s{sOutMt[mt]}, s{sOutMt[mt]}, s{sWq}")
        self.mk(sB_, 68, 3 * ROWB)
        self.mk(sOUT_, 70, 16384 * ROWB)
        self.mk(sWS_, 74, 0x10000000)
        if self.NOST or self.NOLD or self.NOW: self.mk(60, 74, 0)
        self.prologue_rest()
    def mk(self, b, lo, size):
        self.raw(f"s_mov_b32 s{b}, s{lo}\ns_and_b32 s{b+1}, s{lo+1}, 0xffff\ns_mov_b32 s{b+2}, {size}\ns_mov_b32 s{b+3}, 0x20000")
    def prologue_rest(self):
        R = self.raw
        VV = lambda t: self.emit(Ins(t, "V"))
        VV("v_lshrrev_b32 v23, 2, v20")
        VV("v_lshlrev_b32 v23, 4, v23")
        VV("v_and_b32 v24, 3, v20")
        VV("v_add_u32 v23, v23, v24")
        R(f"s_lshl_b32 s3, s{sWv}, 2")
        VV("v_add_u32 v23, s3, v23")
        VV(f"v_mul_u32_u24 v23, {ROWB}, v23")
        VV(f"v_add_u32 v{vPW2}, v23, v22")
        VV("v_lshrrev_b32 v20, 1, v0")
        VV("v_and_b32 v21, 1, v0")
        VV("v_lshlrev_b32 v21, 4, v21")
        VV(f"v_mul_u32_u24 v23, {ROWB}, v20")
        VV(f"v_add_u32 v{vPXE}, v23, v21")
        VV("v_and_b32 v23, 19, v20")
        VV("v_and_b32 v24, 4, v20")
        VV("v_lshlrev_b32 v24, 1, v24")
        VV("v_or_b32 v23, v23, v24")
        VV("v_and_b32 v24, 8, v20")
        VV("v_lshrrev_b32 v24, 1, v24")
        VV("v_or_b32 v23, v23, v24")
        VV(f"v_mul_u32_u24 v23, {ROWB}, v23")
        VV(f"v_add_u32 v{vPE}, v23, v21")
        VV("v_and_b32 v23, 7, v20")
        VV("v_and_b32 v24, 8, v20")
        VV("v_lshlrev_b32 v24, 1, v24")
        VV("v_or_b32 v23, v23, v24")
        VV("v_and_b32 v24, 16, v20")
        VV("v_lshrrev_b32 v24, 1, v24")
        VV("v_or_b32 v23, v23, v24")
        VV(f"v_mul_u32_u24 v23, {ROWB}, v23")
        VV(f"v_add_u32 v{vPE2}, v23, v21")
        VV("v_lshrrev_b32 v20, 4, v0")
        VV("v_and_b32 v21, 15, v0")
        VV("v_lshrrev_b32 v22, 2, v0")
        VV("v_and_b32 v22, 3, v22")
        VV("v_and_b32 v23, 3, v0")
        VV("v_mul_u32_u24 v24, 1032, v20")
        VV("v_lshlrev_b32 v25, 7, v22")
        VV("v_add_u32 v24, v24, v25")
        VV("v_lshlrev_b32 v25, 4, v23")
        VV("v_add_u32 v24, v24, v25")
        VV("v_lshrrev_b32 v25, 1, v22")
        VV("v_lshlrev_b32 v25, 6, v25")
        VV(f"v_add_u32 v{vA[0]}, v24, v25")
        VV("v_sub_u32 v25, 64, v25")
        VV(f"v_add_u32 v{vA[1]}, v24, v25")
        VV("v_lshrrev_b32 v24, 1, v20")
        VV("v_lshlrev_b32 v24, 9, v24")
        VV("v_and_b32 v25, 1, v20")
        VV("v_lshlrev_b32 v25, 7, v25")
        VV("v_add_u32 v24, v24, v25")
        VV("v_lshlrev_b32 v25, 5, v22")
        VV("v_add_u32 v24, v24, v25")
        VV("v_lshlrev_b32 v25, 3, v23")
        VV(f"v_add_u32 v{vA2}, v24, v25")
        VV("v_and_b32 v24, 6, v21")
        VV("v_xor_b32 v24, v20, v24")
        VV("v_lshlrev_b32 v24, 4, v24")
        VV("v_lshlrev_b32 v25, 7, v21")
        VV("v_add_u32 v24, v24, v25")
        VV(f"v_add_u32 v{vX[0]}, s{sXRw}, v24")
        VV(f"v_xor_b32 v{vX[1]}, 64, v{vX[0]}")
        VV("v_lshlrev_b32 v24, 5, v21")
        VV("v_lshlrev_b32 v25, 3, v20")
        VV("v_add_u32 v24, v24, v25")
        VV(f"v_add_u32 v24, s{sXRw}, v24")
        VV(f"v_add_u32 v{vX2}, 24576, v24")
        VV(f"v_lshlrev_b32 v{vL16}, 4, v0")
        VV(f"v_lshlrev_b32 v{vL8}, 3, v0")
        VV("v_lshlrev_b32 v24, 4, v20")
        VV(f"v_add_u32 v{vBias}, {BIAS}, v24")
        R(f"s_lshl_b32 s3, s{sC}, 2\ns_add_u32 s3, s3, s{sWv}\ns_lshl_b32 s3, s3, 9\ns_add_u32 s3, s3, {FBASE}")
        VV("v_and_b32 v24, 3, v0")
        VV("v_lshlrev_b32 v24, 7, v24")
        VV(f"v_add_u32 v{vPollOff}, s3, v24")
        VV(f"v_mov_b32 v{vFlagOff}, 0x7fffff00")
        VV(f"v_cmp_eq_u32 vcc, s{sQ}, v0")
        R("s_nop 1")
        VV(f"v_cndmask_b32 v{vFlagOff}, v{vFlagOff}, v{vPollOff}, vcc")
        if not self.EARLYPF: self.pf_patterns()
        self.bias_prologue()
        R(f"s_lshl_b32 s91, s2, 2\ns_add_u32 s91, s91, s{sWv}\ns_lshl_b32 s91, s91, 12")

    def pf_patterns(self):
        R = self.raw; VV = lambda t: self.emit(Ins(t, "V"))
        R(f"s_lshl_b32 s56, s{sQ}, 4")
        VV("v_and_b32 v26, 15, v0")
        VV("v_lshrrev_b32 v27, 4, v0")
        VV("v_add_u32 v26, s56, v26")
        VV("v_lshlrev_b32 v27, 7, v27")
        VV(f"v_mul_u32_u24 v26, {ROWB}, v26")
        VV(f"v_add_u32 v{vPFX}, v26, v27")
        VV("v_lshrrev_b32 v27, 5, v0")
        VV("v_lshlrev_b32 v27, 30, v27")
        VV(f"v_add_u32 v{vPFX}, v{vPFX}, v27")
        for i in self.pfw_pattern(vPFW, False): self.emit(i)
        if self.T_WG < 190:
            VV("v_lshlrev_b32 v29, 7, v0")
            VV("v_lshrrev_b32 v28, 5, v0")
            VV("v_lshlrev_b32 v28, 30, v28")
            VV("v_add_u32 v29, v28, v29")
            R(f"s_lshl_b32 s91, s2, 2\ns_add_u32 s91, s91, s{sWv}\ns_lshl_b32 s91, s91, 12")
    def bias_prologue(self):
        R = self.raw; VV = lambda t: self.emit(Ins(t, "V"))
        R(f"s_lshl_b32 s3, s{sWv}, 6")
        VV("v_add_u32 v20, s3, v0")
        VV("v_min_u32 v20, 207, v20")
        VV("v_lshrrev_b32 v21, 4, v20")
        VV("v_and_b32 v22, 15, v20")
        VV("v_lshrrev_b32 v23, 1, v21")
        VV("v_lshlrev_b32 v23, 5, v23")
        VV("v_lshrrev_b32 v24, 2, v22")
        VV("v_lshlrev_b32 v24, 3, v24")
        VV("v_add_u32 v23, v23, v24")
        VV("v_and_b32 v24, 1, v21")
        VV("v_lshlrev_b32 v24, 2, v24")
        VV("v_add_u32 v23, v23, v24")
        VV("v_and_b32 v24, 3, v22")
        VV("v_add_u32 v23, v23, v24")
        R(f"s_mul_i32 s3, s{sQ}, 192")
        VV("v_add_u32 v23, s3, v23")
        R(f"s_lshl_b32 s3, s{sQ}, 4\ns_add_u32 s3, s3, 768")
        VV("v_add_u32 v24, s3, v22")
        VV("v_cmp_eq_u32 vcc, 12, v21")
        R("s_nop 1")
        VV("v_cndmask_b32 v23, v23, v24, vcc")
        VV("v_lshlrev_b32 v23, 1, v23")
        VV("v_lshlrev_b32 v22, 2, v20")
        VV(f"v_add_u32 v22, {BIAS}, v22")
    def bias_loads(self):
        for l in range(3):
            self.emit(Ins(f"buffer_load_ushort v{25+l}, v23, {srd(sB_)}, 0 offen offset:{l*ROWB}", "L", vm=("bl", l)))
            self.vm_step[("bl", l)] = -100
    def bias_write(self):
        a = [V(f"v_lshlrev_b32 v{25+l}, 16, v{25+l}", rd=vr(25 + l), wr=vr(25 + l)) for l in range(3)]
        a[0].need_vm = [("bl", 2)]
        a.append(V("v_add_f32 v25, 1.0, v25", rd=vr(25), wr=vr(25)))
        b = [Ins(f"ds_write_b32 v22, v{25+l} offset:{832*l}", "D", rd=vr(22) + vr(25 + l), lg=("bw", l)) for l in range(3)]
        b[0].after = [a[-1]]
        self.last_reader = [b[-1], b[-1]]
        return a, b

    COST = {"S": 4, "W": 4, "X": 4, "SS": 8, "V": 4, "D": 8, "L": 8, "A": 12, "T": 12}
    def fits(self, kinds):
        t = 4
        for i, k in enumerate(kinds):
            if k == "V": t = max(t, 8) + 4
            else: t += self.COST[k]
            if k == "L" and (i + 1 == len(kinds)): t += 4
            if k == "L" and i + 1 < len(kinds) and kinds[i + 1] != "V": return False
            if k in ("A", "T") and (i != 0 or len(kinds) > 1): return False
        return t <= 16

    def first_step(self, l, gi, u=0):
        for f, st in enumerate(self.steps):
            if st["l"] == l and st["gi"] == gi and st["u"] == u: return f
    def last_step(self, l, gi, u):
        r = None
        for f, st in enumerate(self.steps):
            if st["l"] == l and st["gi"] == gi and st["u"] == u: r = f
        return r
    def group_range(self, l, gi):
        fs = [f for f, st in enumerate(self.steps) if st["l"] == l and st["gi"] == gi]
        return fs[0], fs[-1]

    def build_streams(self):
        NL = self.NL
        self.last_reader = [None, None]
        M1 = []
        M2 = []
        E = []
        E2 = []
        M3 = []
        for n, e in enumerate(self.entries):
            es = -100 if e["jf"] < 0 else self.bars[e["jf"]]
            sq = self.dma_entry(n)
            for i_ in sq: i_.dl = min(self.bars[e["jl"]] - self.LATW, max(es, 0) + self.RSL)
            for i_ in sq: i_.hard = self.bars[e["jl"]] - 14
            sq[-1].lines = 8 if e["kind"] == "m" else 32
            M1.append([es, 0, sq, ("bar", e["jf"])])
        G = self.groups[0]
        slot_of = {}
        for gi, (ks_l, sl_l) in enumerate(G):
            for ks, sl in zip(ks_l, sl_l): slot_of[ks] = (gi, sl)
        def first_use(l, ks):
            for f, st in enumerate(self.steps):
                if st["l"] == l and st["ks"] == ks: return f
        self.first_use = first_use
        def slot_free(l, ks, sl):
            f0 = first_use(l, ks)
            r = -100
            for f in range(f0):
                if self.steps[f]["slot"] == sl: r = f
            return r
        self.stage_reads = {}
        stage_free = {}
        DM = []
        rd_earliest = {}
        for ks in range(26):
            gi, sl = slot_of[ks]
            rd_earliest[ks] = slot_free(0, ks, sl) + 1 if slot_free(0, ks, sl) >= 0 else -100
        cur = -100
        for ks in range(26):
            cur = max(cur, rd_earliest[ks]); rd_earliest[ks] = cur
        self.rd_earliest = rd_earliest
        self.slot_of0 = slot_of
        for line in range(13):
            seq = self.stage_dma(line)
            if line >= 3: seq[0].need_lg = [("xs", 2 * (line - 3) + 1, 3)]
            if line < self.PRO_X: es = -100
            else:
                es = self.T_STG0 + self.T_STGD * (line - self.PRO_X)
                k = 0
                for i_ in seq:
                    i_.earliest = int(es + self.PSP * k); i_.dl = i_.earliest + 8
                    if i_.kind == "A": k += 1
            M3.append([es, 1, seq, None])
        for u in (0, 3, 1, 2):
            seq = self.reload_dma(u)
            if u < 3: seq[0 if u else 1].need_lg = [("xs", 2 * (10 + u) + 1, 3)]
            es = self.T_RL[u]; k = 0
            for i_ in seq:
                i_.earliest = int(es + self.PSP * k); i_.dl = i_.earliest + 8
                if i_.kind == "A": k += 1
            M3.append([es, 1, seq, None])
        for ks in range(26):
            gi, sl = slot_of[ks]
            M2.append([rd_earliest[ks], 0, self.stage_read(ks, sl), None])
        for l in range(1, NL):
            base = 4 * (l - 1)
            def cls(ks):
                if ks >= 24: return 4
                return [1, 2, 3, 3, 4, 4][ks % 6]
            polled = set()
            lst = []
            for gi, (ks_l, sl_l) in enumerate(self.groups[l]):
                for ks, sl in zip(ks_l, sl_l):
                    lst.append((gi, ks, sl))
            gb0, gb1 = self.group_range(l - 1, 4)
            l0 = gb1 + 1
            exp = {1: l0 + self.T_U0, 2: l0 + self.T_U0B, 3: l0 + self.T_U1, 4: l0 + self.T_U2}
            items = []
            for gi, ks, sl in lst:
                es = max(slot_free(l, ks, sl) + 1, exp[cls(ks)], first_use(l, ks) - (self.XLEADG[gi] or self.XLEAD))
                items.append([es, cls(ks), first_use(l, ks), ks, sl])
            items.sort(key=lambda it: (it[0], it[2]))
            npaced = 0
            for es, c, gi, ks, sl in items:
                seq = []
                if c not in polled:
                    polled.add(c)
                    ld, chk = self.flag_poll(base + c)
                    ld.lines = 4; ld.dl = es - self.T_POLL
                    M2.append([es - self.T_POLL, 2, [ld], None])
                    seq += chk
                xl = self.xload(l, ks, sl)
                for i_ in xl:
                    i_.dl = first_use(l, ks) - self.LATX
                    if i_.kind == "L": i_.lines = 8 if ks < 24 else 4
                    if i_.kind == "L" and self.XPACE and npaced < self.XPN:
                        i_.earliest = int(l0 + self.T_U0 + self.XPACE * npaced); i_.dl = max(i_.earliest + 1, first_use(l, ks) - self.LATX2); npaced += 1
                seq += xl
                M2.append([es, 3, seq, None])
        if NL > 1:
            E.append([self.T_PAT, 0, self.pfw_pattern(vPFX, True), ("pat",)])
        a, b = self.bias_write()
        E.append([self.T_BW, 0, a, None]); E2.append([self.T_BW, 0, b, ("bw",)])
        for l in range(NL):
            g3 = 2
            for u in range(4):
                lastf = self.last_step(l, g3, u)
                a, b = self.bias_unit(l, u)
                E.append([lastf + 2, 1, a, ("bias", l, u)]); E2.append([lastf + 2 - self.E2LEAD, 1, b, None])
            if l == NL - 1:
                E.append([self.group_range(l, 4)[0] + 8, 0, self.out_patterns(), ("outpat",)])
            for u in range(4):
                lastf = self.last_step(l, 4, u)
                a, b = self.epi_unit(l, u)
                E.append([lastf + 2, 0, a, None]); E2.append([lastf + 2 - self.E2LEAD, 0, b, ("epi", l, u)])
        PFs = self.pf_streams()
        E.append([self.T_PW0[-1] + 2, 0, self.pfg_pat, None])
        M1.sort(key=lambda x: (x[0], x[1])); M2.sort(key=lambda x: (x[0], x[1])); E.sort(key=lambda x: (x[0], x[1]))
        flat = lambda Q: [(max(es, ins.earliest) if ins.earliest is not None else es, ins, tag, idx == len(seq) - 1) for es, _, seq, tag in Q for idx, ins in enumerate(seq)]
        M3.sort(key=lambda x: (x[0], x[1]))
        E2.sort(key=lambda x: (x[0], x[1]))
        self.PF = flat(PFs)
        self.M1, self.M2, self.E, self.M3, self.E2 = flat(M1), flat(M2), flat(E), flat(M3), flat(E2)

    def try_emit_from(self, Q, f, gap_kinds, allow, post_w):
        if not Q: return False
        es, ins, tag, lastflag = Q[0]
        if es > f: return False
        if isinstance(tag, tuple) and tag[0] == "bar" and tag[1] >= 0 and tag[1] > self.bar_passed: return False
        if ins.kind not in allow: return False
        if ins.note == 'm0' and self.m0_owner is not None: return False
        for a in ins.after:
            if id(a) not in self.issue_step: return False
        for t in ins.need_vm:
            if t not in self.vm_pos: return False
        for t in ins.need_lg:
            if t not in self.lg_pos: return False
        nv, nl = self.wait_for(ins.need_vm, ins.need_lg)
        needw = nv is not None or nl is not None
        kinds = gap_kinds + (["W"] if needw else []) + [ins.kind] + post_w
        if not self.fits(kinds):
            if needw and self.fits(gap_kinds + ["W"] + post_w) and self.wait_ok(ins, f):
                self.emit_wait(ins.need_vm, ins.need_lg); gap_kinds.append("W"); return True
            return False
        if needw and not self.wait_ok(ins, f): return False
        if not self.hazard_ok(ins): return False
        if needw:
            self.emit_wait(ins.need_vm, ins.need_lg); gap_kinds.append("W")
        self.emit(ins); gap_kinds.append(ins.kind)
        if ins.note == 'm0': self.m0_owner = id(Q)
        if ins.kind == 'A' and ins.note != "m0keep": self.m0_owner = None
        self.issue_step[id(ins)] = f
        if ins.vm is not None: self.vm_step[ins.vm] = f
        if ins.lg is not None: self.lg_step[ins.lg] = f
        Q.pop(0)
        if isinstance(tag, tuple) and tag[0] == "flag": self.flag_step[tag[1]] = f
        if isinstance(tag, tuple) and tag[0] == "pat":
            assert ("pf", "x", self.PX_L[-1]) in self.vm_pos, "prefetch pattern overwrites vPX before reload issued"
            self.pat_done = lastflag
        if ins.vm is not None and ins.vm[0] == "pf" and ins.vm[1] == "w" and ins.vm[2] > 0: assert self.pat_done and ("rl", 3, 1) in self.vm_pos
        if isinstance(tag, tuple) and tag[0] == "outpat":
            assert not any(i.kind == "L" and i.vm[0] == "fp" for _, i, _, _ in self.M2) and not any("v_cmp_gt_u32 vcc" in i.text for _, i, _, _ in self.M2) and not self.F
        if ins.vm is not None and ins.vm[0] == "xo" and ins.vm[2] == 0 and ins.vm[3] == 3 and ins.vm[1] < self.NL - 1:
            l_ = ins.vm[1]; val = 4 * l_ + 1
            self.F += [(f, i_, ("flag", val), False) for i_ in self.flag_set(val, [("xo", l_, 0, i) for i in range(4)])]
        if lastflag and isinstance(tag, tuple) and tag[0] == "epi":
            self.epi_done(tag, f)
        if lastflag and isinstance(tag, tuple) and tag[0] == "bias":
            self.bias_done[(tag[1], tag[2])] = f
        return True
    def wait_ok(self, ins, f):
        for t in ins.need_vm:
            if self.vm_pos[t] >= self.vm_done and f - self.vm_step.get(t, -1000) < (ins.minvm or self.MIN_VM): return False
        for t in ins.need_lg:
            if self.lg_pos[t] >= self.lg_done and f - self.lg_step.get(t, -1000) < self.MIN_LG: return False
        return True
    def hazard_ok(self, ins):
        if ins.kind in ("V", "D", "L"):
            regs = set(ins.rd) | set(ins.wr) if ins.kind == "V" else set(ins.wr)
            n = 0
            for prev in reversed(self.out):
                if n >= 9: break
                if prev.kind == "M" and (set(prev.wr) & regs): return False
                n += 1 if prev.kind != "SS" else 2
        if ins.kind == "V":
            n = 0
            for prev in reversed(self.out):
                if n >= 2: break
                if prev.kind == "T" and (set(prev.rd) & set(ins.wr)): return False
                n += 1
        if ins.kind == "V" and not getattr(self, "drain", False):
            f, g = self.cur
            nxt = []
            for d in (1, 2):
                gg = g + d; ff = f + gg // 4; gg %= 4
                if ff < self.nsteps: nxt.append(self.mfma(ff, gg))
            for m in nxt:
                if set(m.rd) & set(ins.wr): return False
        if ins.kind == "A":
            if self.out and self.out[-1].note == "m0": return False
        return True
    def epi_done(self, tag, f):
        _, l, u = tag
        self.epi_fin[(l, u)] = f
        if l == self.NL - 1: return
        n = 8 if u < 3 else 4
        tags = [("xo", l, u, i) for i in range(n)]
        val = None
        if u == 0: val = 4 * l + 2
        elif u == 1: val = 4 * l + 3
        elif u == 3: val = 4 * l + 4; tags = tags + [("xo", l, 2, i) for i in range(8)]
        if val is not None:
            self.F += [(f, ins, ("flag", val), False) for ins in self.flag_set(val, tags)]

    def schedule(self):
        self.issue_step = {}; self.vm_step = {}; self.lg_step = {}
        self.pending = []; self.epi_fin = {}; self.bias_done = {}
        self.bar_passed = -1
        self.F = []; self.pat_done = False; self.B = 0.0; self.Bhist = []
        self.m0_owner = None
        N = self.nsteps
        barat = {P: j for j, P in enumerate(self.bars)}
        need_at = {}
        for n, e in enumerate(self.entries): need_at.setdefault(e["jl"], []).append(("w", n))
        self.pro_issue()
        self.emit_wait(need_at.get(0, []), [])
        self.emit(Ins("s_barrier", "X")); self.bar_passed = 0
        self.pstamp()
        for f in range(self.LA):
            for r in self.tr_reads(f): self.emit(r); self.lg_step[r.lg] = -10
        if self.stamps: self.stamp()
        if self.SPAN: self.raw("s_memrealtime s[78:79]\ns_waitcnt lgkmcnt(0)\ns_mov_b32 s79, s78"); self.lg_done = len(self.lgq)
        self.epi_started = set()
        for f in range(N):
            st = self.steps[f]
            if f == 0:
                nv, nl = self.step_needs(0)
                self.emit_wait(nv, nl)
            if st["l"] > 0 and (st["l"], st["u"]) not in self.epi_started:
                self.epi_started.add((st["l"], st["u"]))
                assert (st["l"] - 1, st["u"]) in self.epi_fin, ("epilogue late", st["l"] - 1, st["u"], f, self.epi_fin)
            if self.PROL and f == 0: self.pstamp()
            if self.prof and not self.PROL and f >= self.PS and (f - self.PS) % self.PI == 0 and (f - self.PS) // self.PI <= 60:
                k = (f - self.PS) // self.PI
                if k > 0: self.emit(Ins(f"v_writelane_b32 v0, s86, {k}", "V"))
                self.emit(Ins(("s_memrealtime" if self.PRT else "s_memtime") + " s[86:87]", "S"))
                self.prof_k = k
            nL = 0; dynbar = False; defer_w = None
            for g in range(4):
                self.emit(self.mfma(f, g))
                self.cur = (f, g)
                kinds = []
                if g < 2 and f + self.LA < N:
                    r = self.tr_reads(f + self.LA)[g]
                    if g == 0:
                        pass
                    self.emit(r); self.lg_step[r.lg] = f; kinds.append("D")
                if g == 1 and f + 1 < N:
                    nv, nl = self.step_needs(f + 1)
                    if f in barat: nv = nv + need_at.get(barat[f], [])
                    for val, tags in self.pending:
                        if all(f - self.vm_step[t] >= self.T_ST for t in tags):
                            nv = nv + tags; dynbar = True
                    vready = bool(self.E) and self.E[0][1].kind == "V" and self.E[0][0] <= f
                    if self.WDEF and vready and not (f in barat or dynbar): defer_w = (nv, nl)
                    elif self.emit_wait(nv, nl): kinds.append("W")
                if defer_w is not None and g >= 2:
                    vmready = any(Q and Q[0][0] <= f and (Q[0][1].kind in ("A", "L", "T") or Q[0][1].note == "m0") for Q in (self.F, self.M1, self.M2, self.PF, self.M3, self.E2))
                    if g == 3 or not vmready:
                        if self.emit_wait(*defer_w): kinds.append("W")
                        defer_w = None
                if g == 2 and (f in barat or dynbar):
                    self.emit(Ins("s_barrier", "X")); kinds.append("X")
                    if f in barat: self.bar_passed = barat[f]
                    for val, tags in list(self.pending):
                        if all(self.vm_pos[t] < self.vm_done for t in tags):
                            self.pending.remove((val, tags))
                            seq = self.flag_set(val, tags)
                            self.F += [(f, ins, None, False) for ins in seq]
                            self.flag_step[val] = f
                self.B = max(0.0, self.B - 16 * (self.ETA if f > 215 else self.ETA0))
                progress = True
                allk = ("S", "SS", "V", "A", "L", "T", "D")
                order = [self.F, self.M1, self.M2, self.PF, self.M3, self.E2, self.E]
                while progress:
                    progress = False
                    cands = []
                    for qi, Q in enumerate(order):
                        if Q and (Q[0][1].kind in ("A", "L", "T") or Q[0][1].note == "m0") and Q[0][0] <= f:
                            ins = Q[0][1]
                            dl = ins.dl if ins.dl is not None else Q[0][0] + 10
                            cands.append((dl, qi, Q))
                    cands.sort(key=lambda c: (c[0], c[1]))
                    for dl, qi, Q in cands:
                        ins = Q[0][1]
                        th = self.TH_URG if dl <= f + self.URG else self.TH
                        if ins.note == "m0": th += 16
                        hard = getattr(ins, "hard", None)
                        if self.B > th and not (hard is not None and hard <= f): continue
                        if Q is self.PF and g < 2: continue
                        if self.try_emit_from(Q, f, kinds, allk, []):
                            if ins.kind in ("A", "L", "T"): self.B += ins.lines * self.CPL
                            progress = True; break
                    if progress: continue
                    for Q in order:
                        if Q and (Q[0][1].kind in ("A", "L", "T") or Q[0][1].note == "m0"): continue
                        if self.try_emit_from(Q, f, kinds, allk, []):
                            progress = True; break
                self.Bhist.append(self.B)
            if self.stamps and f + 1 < N and (self.steps[f + 1]["l"] != st["l"] or (self.steps[f + 1]["gi"] == 4 and st["gi"] == 3)):
                self.stamp()
        self.drain = True
        guard = 0
        assert not self.PF
        while self.M1 or self.M2 or self.E or self.M3 or self.F or self.E2:
            guard += 1
            assert guard < 100000
            done = False
            for Q in (self.F, self.E2, self.E, self.M2, self.M3, self.M1):
                if Q:
                    es, ins, tag, lastflag = Q[0]
                    if any(id(a) not in self.issue_step for a in ins.after): continue
                    if any(t not in self.lg_pos for t in ins.need_lg): continue
                    while not self.hazard_ok(ins): self.emit(Ins("s_nop 0", "S"))
                    self.emit_wait(ins.need_vm, ins.need_lg)
                    while not self.hazard_ok(ins): self.emit(Ins("s_nop 0", "S"))
                    self.emit(ins); Q.pop(0); self.issue_step[id(ins)] = N
                    if ins.vm is not None: self.vm_step[ins.vm] = N
                    if lastflag and isinstance(tag, tuple) and tag[0] == "epi": self.epi_done(tag, N)
                    done = True; break
            assert done
        if self.stamps: self.stamp()
        if self.prof:
            k = (self.prof_k + 1) if not self.PROL else 40
            self.raw(f"""v_writelane_b32 v0, s86, {k}
s_waitcnt vmcnt(0)
{"s_memrealtime" if self.PRT else "s_memtime"} s[86:87]
s_waitcnt lgkmcnt(0)
s_nop 4""")
            self.emit(Ins("v_writelane_b32 v0, s88, 0", "V"))
            if self.PROL:
                for kk in range(self.prol_k):
                    self.emit(Ins(f"v_writelane_b32 v0, s{[60, 62, 78, 80, 82, 100, 100, 100][kk]}, {kk + 1}", "V"))
            if k + 1 < 64: self.emit(Ins(f"v_writelane_b32 v0, s86, {k+1}", "V"))
            self.emit(Ins(f"v_writelane_b32 v0, s90, 63", "V"))
            self.raw(f"""s_lshl_b32 s3, s2, 2
s_add_u32 s3, s3, s{sWv}
s_lshl_b32 s3, s3, 8""")
            self.emit(Ins(f"v_lshrrev_b32 v2, 2, v{vL16}", "V"))
            self.raw("s_nop 4")
            self.emit(Ins(f"buffer_store_dword v0, v2, {srd(sWS_)}, s3 offen", "T"))
            if self.DBGT:
                self.raw(f"""s_load_dwordx2 s[4:5], s[0:1], 32
s_waitcnt lgkmcnt(0)
s_and_b32 s5, s5, 0xffff
s_mov_b32 s6, 64
s_mov_b32 s7, 0x20000""")
                self.emit(Ins("v_subrev_u32 v0, s88, v0", "V"))
                self.raw(f"s_cmp_eq_u32 s{sWv}, 0\ns_cbranch_scc0 Lnodbg")
                self.emit(Ins("buffer_atomic_add v0, v2, s[4:7], 0 offen\nLnodbg:", "T"))

    def step_needs(self, f):
        st = self.steps[f]
        nl = [("wf", f, 0), ("wf", f, 1)]
        nv = []
        for mt in range(4):
            a, b = self.xtags(st["l"], st["ks"], mt)
            for t in a:
                assert t in self.vm_pos, ("x load not issued before use", t, f)
            for t in b:
                assert t in self.lg_pos, ("stage read not issued before use", t, f)
            nv += a; nl += b
        return nv, nl

    def pstamp(self):
        if self.prof and self.PROL:
            k = self.prol_k; self.prol_k += 1
            r = [60, 62, 78, 80, 82, 100, 100, 100][k]
            self.emit(Ins(f"s_memtime s[{r}:{r+1}]", "S"))
    def pro_issue(self):
        def take(Q, pred):
            out = []
            while Q and pred(Q[0]): out.append(Q.pop(0))
            return out
        items = take(self.M1, lambda it: it[0] <= -50) + take(self.M3, lambda it: it[0] <= -50)
        seqs = []; cur = []
        for it in items:
            cur.append(it[1])
            if it[1].kind == "A": seqs.append(cur); cur = []
        wseq = [s for s in seqs if s[-1].vm[0] == "w"]; xseq = [s for s in seqs if s[-1].vm[0] == "st"]
        nW, nX = self.PRO_W, self.PRO_X
        assert 4 * nW >= 12
        rest_w = wseq[nW:]; rest_x = xseq[8 * nX:]
        self.M1[0:0] = [(-40, ins, ("bar", -1), False) for s in rest_w for ins in s]
        self.M3[0:0] = [(-40, ins, None, False) for s in rest_x for ins in s]
        def emit_seqs(L):
            for s in L:
                for k, ins in enumerate(s):
                    if ins.kind == "A" and self.out[-1].note == "m0": self.emit(Ins("s_nop 0", "S"))
                    self.emit(ins)
                    if ins.vm is not None: self.vm_step[ins.vm] = -100
        for tok in self.PORD:
            if tok.startswith("pf"):
                lim = int(tok[2:])
                while self.PF and self.PF[0][0] <= lim:
                    es, ins, tag, lf = self.PF.pop(0)
                    self.emit(ins); self.issue_step[id(ins)] = -100
                    if ins.vm is not None: self.vm_step[ins.vm] = -100
            elif tok[0] == "x": n = int(tok[1:]); assert n < nX; emit_seqs(xseq[8 * n:8 * n + 8])
            elif tok == "wA": emit_seqs(wseq[0:3])
            elif tok == "wB": emit_seqs(wseq[3:nW])
            elif tok == "p2": self.prologue2()
            elif tok == "fb":
                self.emit(Ins(f"buffer_load_dword v{vBase}, v{vPollOff}, {srd(sWS_)}, 0 offen sc1", "L", vm=("fb",)))
                self.vm_step[("fb",)] = -100
                self.bias_loads()
            elif tok == "st": self.pstamp()
            elif tok.startswith("wait"):
                n = int(tok[4:]); self.emit(Ins(f"s_waitcnt vmcnt({n})", "W")); self.vm_done = max(self.vm_done, len(self.vmq) - n)
            else: assert 0, tok
        self.pstamp()
        n = 0
        while self.M2 and n < 8:
            es, ins, tag, lf = self.M2[0]
            assert ins.kind == "D"
            self.emit_wait(ins.need_vm, ins.need_lg)
            self.emit(ins); self.M2.pop(0); n += 1
            if ins.lg is not None: self.lg_step[ins.lg] = -100
        self.pstamp()

    def pf_streams(self):
        PF = []
        def ld(pat, dst, base, soff, tag, pre=(), off=0):
            i = Ins(f"buffer_load_dword v{dst}, v{pat}, {srd(base)}, {soff} offen" + (f" offset:{off}" if off else ""), "L", rd=vr(pat), wr=vr(dst), vm=tag)
            i.lines = {"x": 32, "w": 16, "g": 32}[tag[1]]
            return list(pre) + [i]
        t = 54
        for k, (a, es) in enumerate(zip(self.PX_L, self.T_PX)):
            PF.append([es, 0, ld(vPFX, vPoll, sX0_, f"s{t}", ("pf", "x", a), [S(f"s_add_u32 s{t}, s{sRow}, {128 * a}")]), None])
        if self.CPF:
            for k, es in enumerate(self.T_CPF):
                i = Ins(f"buffer_load_dword v{vPoll if es < 200 else vPXE}, off, s[64:67], s{t}", "L", vm=("pf", "c", k)); i.lines = 1
                PF.append([es, 2, [S(f"s_add_u32 s{t}, s72, {16384 * k}"), i], None])
        for j, es in enumerate(self.T_PW0):
            PF.append([es, 1, ld(vPFW, vPoll, sW_, f"s{t}", ("pf", "w", 0, j), [S(f"s_mov_b32 s{t}, {4 * j * KSB}")]), None])
        lastw0 = PF[-1][2][-1]
        t0 = vT[0]
        pat = [V(f"v_lshlrev_b32 v{vPFG}, 3, v{vL16}", rd=vr(vL16), wr=vr(vPFG)),
               V(f"v_lshrrev_b32 v{t0}, 9, v{vL16}", rd=vr(vL16), wr=vr(t0)),
               V(f"v_lshlrev_b32 v{t0}, 30, v{t0}", rd=vr(t0), wr=vr(t0)),
               V(f"v_add_u32 v{vPFG}, v{vPFG}, v{t0}", rd=vr(t0) + vr(vPFG), wr=vr(vPFG))]
        pat[0].after = [lastw0]
        if self.T_WG < 190:
            self.pfg_pat = []
            g = ld(29, vPoll, sW_, "s91", ("pf", "g"))
        else:
            self.pfg_pat = pat
            g = ld(vPFG, vPoll, sW_, "s91", ("pf", "g"))
            g[-1].after = [pat[-1]]
        PF.append([self.T_WG, 0, g, None])
        if self.NL > 1:
            pass
            for l in range(1, self.NL):
                l0 = self.group_range(l - 1, 4)[1] + 1
                for j, dt in enumerate(self.T_PWL):
                    PF.append([l0 + dt, 1, ld(vPFX, vPXE, sW_, f"s{t}", ("pf", "w", l, j), [S(f"s_mov_b32 s{t}, {(0 if self.NOW else l) * LSTRIDE + j * KSB}")]), None])
        PF.sort(key=lambda x: (x[0], x[1]))
        return PF
    def pfw_pattern(self, dst, perm):
        t0, t1 = vT
        seq = [V(f"v_lshrrev_b32 v{t0}, 6, v{vL16}", rd=vr(vL16), wr=vr(t0)),
               V(f"v_mul_u32_u24 v{dst}, {(6 if perm else 1) * KSB}, v{t0}", rd=vr(t0), wr=vr(dst)),
               V(f"v_lshrrev_b32 v{t0}, 2, v{t0}", rd=vr(t0), wr=vr(t0)),
               V(f"v_min_u32 v{t0}, 1, v{t0}", rd=vr(t0), wr=vr(t0)),
               V(f"v_lshlrev_b32 v{t0}, 30, v{t0}", rd=vr(t0), wr=vr(t0)),
               V(f"v_and_b32 v{dst}, 0x3fffffff, v{dst}", rd=vr(dst), wr=vr(dst)),
               V(f"v_add_u32 v{dst}, v{dst}, v{t0}", rd=vr(t0) + vr(dst), wr=vr(dst)),
               V(f"v_lshrrev_b32 v{t0}, 4, v{vL16}", rd=vr(vL16), wr=vr(t0)),
               V(f"v_and_b32 v{t0}, 3, v{t0}", rd=vr(t0), wr=vr(t0)),
               V(f"v_lshlrev_b32 v{t1}, 7, v{t0}", rd=vr(t0), wr=vr(t1)),
               V(f"v_add_u32 v{t1}, s{sWq}, v{t1}", rd=vr(t1), wr=vr(t1)),
               V(f"v_cmp_eq_u32 vcc, 3, v{t0}", rd=vr(t0)),
               V(f"v_mov_b32 v{t0}, 0x600", wr=vr(t0)),
               V(f"v_cndmask_b32 v{t1}, v{t1}, v{t0}, vcc", rd=vr(t0) + vr(t1), wr=vr(t1)),
               V(f"v_add_u32 v{dst}, v{dst}, v{t1}", rd=vr(dst) + vr(t1), wr=vr(dst)),
               V(f"v_add_u32 v{dst}, s55, v{dst}", rd=vr(dst), wr=vr(dst))]
        return seq

    def stamp(self):
        k = self.nstamp; self.nstamp += 1
        if k < 8:
            self.emit(Ins(f"s_memtime s[{86 + 2*k}:{87 + 2*k}]", "S"))

    def check(self):
        out = self.out
        errs = 0
        for i, ins in enumerate(out):
            if ins.kind == "M":
                n = 0
                for prev in reversed(out[max(0, i - 4):i]):
                    if n >= 2: break
                    if prev.kind == "V" and set(prev.wr) & set(ins.rd):
                        print("HAZARD V->M", i, prev.text, "|", ins.text, file=sys.stderr); errs += 1
                    n += 1
            if ins.kind == "V":
                n = 0
                for prev in reversed(out[max(0, i - 10):i]):
                    if n >= 8: break
                    if prev.kind == "M" and set(prev.wr) & (set(ins.rd) | set(ins.wr)):
                        print("HAZARD M->V", i, prev.text, "|", ins.text, file=sys.stderr); errs += 1
                    n += 1
        return errs

    def text(self):
        NL = self.NL
        L = []
        L.append("""; Kernarg layout for this problem (48 bytes, ptrs only, base s[0:1]):
;   offset   0: d_in[0] x0  shape=(16384, 832) dtype=bfloat16 strides=(1664, 2) contiguous=True
;   offset   8: d_in[1] ws  shape=(3, 832, 832) dtype=bfloat16 strides=(1384448, 1664, 2) contiguous=True
;   offset  16: d_in[2] bs  shape=(3, 832) dtype=bfloat16 strides=(1664, 2) contiguous=True
;   offset  24: d_out     shape=(16384, 832) dtype=bfloat16 (2 bytes/elem)
;   offset  32: d_debug   256 bytes
;   offset  40: d_ws      268435456 bytes workspace
; cluster of 4 workgroups = 256 rows; each workgroup owns 208 output features; layers exchange x through d_ws.""")
        L.append("; @launch grid=(256,1,1) block=(256,1,1) lds=163840")
        L.append('.amdgcn_target "amdgcn-amd-amdhsa--gfx950"')
        L.append(".text")
        L.append(f".globl {KNAME}\n.p2align 8\n.type {KNAME},@function\n{KNAME}:")
        for ins in self.out: L.append("  " + ins.text)
        if self.stamps:
            L.append("  s_memtime s[84:85]\n  s_memrealtime s[78:79]\n  s_waitcnt lgkmcnt(0)")
            L.append(f"  s_lshl_b32 s3, s2, 7\n  v_mov_b32 v2, s3\n  v_cmp_eq_u32 vcc, 0, v{vL16}\n  s_cmp_eq_u32 s{sWv}, 0\n  s_cbranch_scc0 Lnost\n  s_and_saveexec_b64 s[4:5], vcc")
            regs = [80, 82, 78, 84] + [86 + 2 * k for k in range(min(self.nstamp, 8))]
            for i, s in enumerate(regs):
                L.append(f"  v_mov_b32 v6, s{s}\n  v_mov_b32 v7, s{s+1}\n  buffer_store_dwordx2 v[6:7], v2, {srd(sWS_)}, 0 offen offset:{8*i}\n  s_nop 1")
            L.append("Lnost:")
        if self.SPAN:
            L.append(f"""  s_waitcnt vmcnt(0)
  s_memrealtime s[86:87]
  s_load_dwordx2 s[4:5], s[0:1], 32
  s_waitcnt lgkmcnt(0)
  s_and_b32 s5, s5, 0xffff
  s_mov_b32 s6, 256
  s_mov_b32 s7, 0x20000
  s_not_b32 s3, s88
  s_not_b32 s87, s86
  v_mov_b32 v2, s3
  v_writelane_b32 v2, s86, 1
  v_writelane_b32 v2, s88, 2
  v_writelane_b32 v2, s87, 3
  v_writelane_b32 v2, s79, 4
  s_not_b32 s79, s79
  v_writelane_b32 v2, s79, 5
  v_lshrrev_b32 v3, 2, v{vL16}
  v_cmp_gt_u32 vcc, 24, v3
  v_mov_b32 v4, 0x7fffff00
  v_cndmask_b32 v3, v4, v3, vcc
  s_cmp_eq_u32 s{sWv}, 0
  s_cbranch_scc0 Lnospan
  buffer_atomic_umax v2, v3, s[4:7], 0 offen""")
            L.append("Lnospan:")
        L.append("  s_waitcnt vmcnt(0)")
        L.append("Lend:\n  s_endpgm")
        L += self.slow
        L.append("Lcode_end:")
        L.append('.section .rodata,"a"\n.p2align 6')
        L.append(f".amdhsa_kernel {KNAME}")
        L.append("  .amdhsa_next_free_vgpr 512\n  .amdhsa_next_free_sgpr 102\n  .amdhsa_accum_offset 256\n  .amdhsa_group_segment_fixed_size 0\n  .amdhsa_kernarg_size 48\n  .amdhsa_user_sgpr_count 2\n  .amdhsa_user_sgpr_kernarg_segment_ptr 1\n  .amdhsa_system_sgpr_workgroup_id_x 1\n.end_amdhsa_kernel")
        return "\n".join(L) + "\n"

    LA = 3
    WDEF = 0
    DBGT = 0
    SPAN = 0
    XPACE = 0; XPN = 12; LATX2 = 12; T_U0B = 0
    PK = 0; XLEADG = [0, 0, 0, 0, 0]
    EARLYPF = 0
    PORD = ["pf-90", "x0", "wA", "wB", "x1", "st", "p2", "fb", "pf-50"]
    PRT = 0
    CPF = 1; T_CPF = [-95, 30, 240, 440, 640]
    XMODE = 0
    XB0 = XBASE
    ETA0 = 1.3
    RSL = 2
    ETA = 1.0; CPL = 9; TH = 120; TH_URG = 280; URG = 2; LATW = 16; LATX = 20; T_STG0 = 8; T_STGD = 15; PSP = 1.6; T_RL = [185, 228, 262, 214]
    PROL = 0; T_BW = 20; PRO_W = 6; PRO_X = 2; PX_L = [2, 4, 6, 8, 10, 12]; T_PX = [7, 30, 56, 82, 108, 134]; T_PW0 = [-60, 9, 32, 70, 90, 110, 126]; T_WG = 226; T_PWL = [-90, -70, 20, 60, 90, 110, 120, 130]; T_PAT = 200; AGE2 = 12; T_PWA = -100; T_PWB = 70; AGE = 16
    NOST = 0; NOLD = 0; NOW = 0
    LDP = 2; STP = 2; OUTP = 0
    IV = 12
    PS = 0; PI = 17
    T_U0 = -32; T_U1 = 50; T_U2 = 120; XLEAD = 26; SPIN = 0x8000; E2LEAD = 2; T_POLL = 10; T_ST = 8; MAXL = 2
    MIN_VM = 10; MIN_LG = 1

    def run(self):
        self.flag_step = {}
        self.plan()
        self.prologue()
        self.build_streams()
        self.schedule()
        errs = self.check()
        return errs

if __name__ == "__main__":
    ap = argparse.ArgumentParser()
    ap.add_argument("-o", default="k.s")
    ap.add_argument("--nl", type=int, default=3)
    ap.add_argument("--interval", type=int, default=12)
    ap.add_argument("--stamps", action="store_true")
    ap.add_argument("--prof", action="store_true")
    ap.add_argument("--set", action="append", default=[])
    a = ap.parse_args()
    for kv in a.set:
        k, v = kv.split("="); setattr(Gen, k, eval(v))
    g = Gen(NL=a.nl, interval=Gen.IV, stamps=a.stamps, prof=a.prof)
    errs = g.run()
    open(a.o, "w").write(g.text())
    from collections import Counter
    print("instrs", len(g.out), Counter(i.kind for i in g.out), "hazard errs", errs, "minlead(steps)", g.minlead, file=sys.stderr)
    print("xload steps", {k: v for k, v in g.vm_step.items() if k[0] in ("x", "fp", "fs") and (k[0] != "x" or k[3] == 3)}, file=sys.stderr)
    import statistics
    print("B mean", statistics.mean(g.Bhist), "max", max(g.Bhist), "frac>150", sum(b > 150 for b in g.Bhist) / len(g.Bhist), file=sys.stderr)
    leads = [g.bars[e["jl"]] - g.vm_step[("w", n)] for n, e in enumerate(g.entries) if g.vm_step[("w", n)] > -50]
    print("ring leads min/mean", min(leads), statistics.mean(leads), "hist", sorted(leads)[:20], file=sys.stderr)
    print("stage", {k: v for k, v in g.vm_step.items() if k[0] in ("st", "rl") and k[2] in (0, 7)}, file=sys.stderr)
    print("pf", {k: v for k, v in g.vm_step.items() if k[0] == "pf"}, file=sys.stderr)
    print("epi_fin", g.epi_fin, "bias", g.bias_done, "flags", g.flag_step, "nsteps", g.nsteps, file=sys.stderr)
```

```python
import sys, argparse

KNAME = "standalone__dcn_v2_cross__recsys_kernel"
D = 832; ROWB = 1664
LSTRIDE = D * ROWB
KSB = 32 * ROWB
RING = 54848
BIAS = 54848
XR = 57344
XRW = 26624
XBASE = 0x100000
FBASE = 0x40000
XLAYER = 64 * 4 * 106496
CH = 4128
XB = 4096

ACC0 = 48
def acc(j, mt): return ACC0 + 16 * j + 4 * mt
WF0 = 32; NB = 4
def wf(f): return WF0 + 4 * (f % NB)
vA = [1, 2]; vA2 = 3
vPW = 4; vPW2 = 5; vPE = 6; vPE2 = 7
vX = [8, 9]; vX2 = 10
vL16 = 11; vL8 = 12
vPX = 13; vOut = 30
vPXE = 14; vOutE = 31
vBias = 15
vFlagOff = 16; vFlagVal = 17; vPollOff = 18; vPoll = 19; vBase = 30
vPFX = 31; vPFW = 17; vPFG = 17
vXP = [20, 24]
vT = [28, 29]
vDummy = 0
sW_ = 8; sX0_ = 12; sOUT_ = 16; sWS_ = 20; sDBG_ = 24; sB_ = 28
sQ = 32; sC = 33; sWv = 34; sWq = 35; sW1032 = 36; sW8 = 37; sXq = 38; sW1024 = 39
sXb = 40; sRow = 41; sMask = 44; sXRw = 45
sOutMt = [46, 47, 48, 49]
sT = [50, 51, 52, 53, 54, 55]
sXs = [56, 57]
sXt = [77, 84]
sP = 58
sSpin = 59
sJ = [92, 93, 94, 95, 96, 97, 98, 99]
sStamp = 60
def srd(b): return f"s[{b}:{b+3}]"

class Ins:
    __slots__ = ("text", "kind", "rd", "wr", "vm", "lg", "need_vm", "need_lg", "earliest", "label", "note", "after", "minvm", "dl", "lines", "hard")
    def __init__(self, text, kind, rd=(), wr=(), vm=None, lg=None, need_vm=None, need_lg=None, earliest=None, note=None):
        self.text = text; self.kind = kind; self.rd = tuple(rd); self.wr = tuple(wr)
        self.vm = vm; self.lg = lg; self.need_vm = need_vm or []; self.need_lg = need_lg or []
        self.earliest = earliest; self.note = note; self.after = []; self.minvm = None; self.dl = None; self.lines = 8; self.hard = None
def vr(b, n=1): return [("v", b + i) for i in range(n)]
def ar(b, n=1): return [("a", b + i) for i in range(n)]

def S(t, **k): return Ins(t, "S", **k)
def V(t, rd=(), wr=(), **k): return Ins(t, "V", rd=rd, wr=wr, **k)

class Gen:
    def __init__(self, NL=3, interval=12, dbg=None, stamps=False, prof=False):
        self.prof = prof; self.prol_k = 0
        self.NL = NL; self.interval = interval; self.stamps = stamps
        self.out = []
        self.vmq = []; self.vm_done = 0; self.vm_pos = {}
        self.lgq = []; self.lg_done = 0; self.lg_pos = {}
        self.slow = []
        self.tcount = 0
        self.nstamp = 0

    def emit(self, ins):
        if ins.vm is not None:
            assert ins.vm not in self.vm_pos, ins.vm
            self.vm_pos[ins.vm] = len(self.vmq); self.vmq.append(ins.vm)
        if ins.lg is not None:
            assert ins.lg not in self.lg_pos, ins.lg
            self.lg_pos[ins.lg] = len(self.lgq); self.lgq.append(ins.lg)
        self.out.append(ins)
    def wait_for(self, need_vm, need_lg):
        nv = None; nl = None
        for t in need_vm:
            p = self.vm_pos[t]
            if p >= self.vm_done:
                n = len(self.vmq) - 1 - p
                nv = n if nv is None else min(nv, n)
        for t in need_lg:
            p = self.lg_pos[t]
            if p >= self.lg_done:
                n = len(self.lgq) - 1 - p
                nl = n if nl is None else min(nl, n)
        return nv, nl
    def emit_wait(self, need_vm, need_lg):
        nv, nl = self.wait_for(need_vm, need_lg)
        if nv is None and nl is None: return False
        parts = []
        if nv is not None:
            nv = min(nv, 63); parts.append(f"vmcnt({nv})"); self.vm_done = max(self.vm_done, len(self.vmq) - nv)
        if nl is not None:
            nl = min(nl, 15); parts.append(f"lgkmcnt({nl})"); self.lg_done = max(self.lg_done, len(self.lgq) - nl)
        self.emit(Ins("s_waitcnt " + " ".join(parts), "W"))
        return True
    def raw(self, text, kind="S", **k):
        for line in text.strip().split("\n"):
            self.emit(Ins(line.strip(), kind, **k))
    def xch(self, l):
        if self.XMODE == 2: return (sOUT_, -self.XB0) if l == 0 else (sWS_, 0)
        if self.XMODE == 1: return (sWS_, 0)
        return (sWS_, l * XLAYER)
    def pol(self, p):
        return ("", " sc0", " sc1", " sc0 sc1", " nt", " sc0 nt", " sc1 nt", " sc0 sc1 nt")[p]
    def stemp(self, stream=0):
        self.tcount += 1
        return sT[2 * stream + self.tcount % 2]

    def plan(self):
        NL = self.NL
        self.groups = []
        for l in range(NL):
            if l == 0:
                G = [[0, 1, 2], [3, 4, 5], [6, 7, 8, 9], [10, 11, 12], list(range(13, 26))]
            else:
                G = [[0, 6, 12], [18, 1, 7], [13, 19, 2, 8], [14, 20, 3],
                     [9, 15, 21, 4, 10, 16, 22, 5, 11, 17, 23, 24, 25]]
            SL = [[13, 14, 15], [0, 1, 2], [3, 4, 5, 6], [13, 14, 15], [7, 8, 9, 10, 11, 12, 0, 1, 2, 3, 4, 5, 6]]
            self.groups.append(list(zip(G, SL)))
        self.entries = []
        self.steps = []
        def seg_main(l, gi, u, lst):
            for ks, sl in lst:
                e = dict(kind="m", l=l, u=u, ks=[ks], size=CH, gi=gi, first=len(self.steps))
                self.entries.append(e)
                for sb in range(2):
                    for ee in range(2):
                        self.steps.append(dict(e=len(self.entries) - 1, j=4 * u + 2 * sb + ee, ks=ks, slot=sl,
                                               va=vA[sb], rel=8 * ee, rdoff=512, l=l, gi=gi, u=u))
                e["last"] = len(self.steps) - 1
        def seg_extra(l, gi, bt):
            e = dict(kind="x", l=l, u=3, ks=[k for k, _ in bt], size=XB, gi=gi, first=len(self.steps))
            self.entries.append(e)
            for i, (ks, sl) in enumerate(bt):
                self.steps.append(dict(e=len(self.entries) - 1, j=12, ks=ks, slot=sl,
                                       va=vA2, rel=1024 * i, rdoff=256, l=l, gi=gi, u=3))
            e["last"] = len(self.steps) - 1
        for l in range(NL):
            gl = [list(zip(G, SL)) for (G, SL) in self.groups[l]]
            a, b = gl[0], gl[1]
            if l == 0:
                for gi_, lst_ in ((0, a), (1, b)):
                    for it in lst_:
                        for u in range(3): seg_main(l, gi_, u, [it])
            else:
                seg_main(l, 0, 0, a); seg_main(l, 0, 1, a); seg_main(l, 1, 0, b); seg_main(l, 1, 1, b)
                seg_main(l, 0, 2, a); seg_main(l, 1, 2, b)
            ab = a + b
            seg_extra(l, 1, ab[0:4]); seg_extra(l, 1, ab[4:6])
            for gi in (2, 3, 4):
                lst = gl[gi]
                if gi == 4 and l == NL - 1 and self.TSPLIT:
                    seg_main(l, gi, 0, lst); seg_main(l, gi, 1, lst)
                    for bt in [lst[0:4], lst[4:8], lst[8:11], lst[11:13]]: seg_extra(l, gi, bt)
                    ns = self.TSPLIT
                    seg_main(l, gi, 2, lst[:13 - ns])
                    es_ = []
                    for ks, sl in lst[13 - ns:]:
                        e = dict(kind="m", l=l, u=2, ks=[ks], size=CH, gi=gi, first=len(self.steps))
                        self.entries.append(e); es_.append((len(self.entries) - 1, ks, sl))
                        for ee in range(2):
                            self.steps.append(dict(e=len(self.entries) - 1, j=8 + ee, ks=ks, slot=sl, va=vA[0], rel=8 * ee, rdoff=512, l=l, gi=gi, u=2))
                    self.tsplit_step = len(self.steps) - 1
                    for n_, ks, sl in es_:
                        for ee in range(2):
                            self.steps.append(dict(e=n_, j=10 + ee, ks=ks, slot=sl, va=vA[1], rel=8 * ee, rdoff=512, l=l, gi=gi, u=2))
                        self.entries[n_]["last"] = len(self.steps) - 1
                    continue
                for u in range(3): seg_main(l, gi, u, lst)
                if gi < 4: batches = [lst]
                elif l == 0: batches = [lst[0:4], lst[4:8], lst[8:12], lst[12:13]]
                else: batches = [lst[0:4], lst[4:8], lst[8:11], lst[11:13]]
                for bt in batches: seg_extra(l, gi, bt)
        self.nsteps = len(self.steps)
        seen = set()
        for st in self.steps:
            if st["j"] not in seen: seen.add(st["j"]); st["init"] = True
        iv = self.interval
        LA = self.LA
        self.bars = [-LA - 1] + list(range(iv - LA - 1, self.nsteps - LA - 1, iv))
        pos = 0
        live = []
        for n, e in enumerate(self.entries):
            if pos + e["size"] > RING: pos = 0
            e["base"] = pos; s0, s1 = pos, pos + e["size"]
            ov = [m for (m, a, b) in live if a < s1 and s0 < b]
            live = live + [(n, s0, s1)]
            lastneed = max([self.entries[m]["last"] for m in ov], default=None)
            if lastneed is None: e["jf"] = -1
            else:
                e["jf"] = next(j for j, P in enumerate(self.bars) if lastneed <= P + 1)
            e["jl"] = max(j for j, P in enumerate(self.bars) if P + LA + 1 <= e["first"] or j == 0)
            assert e["jf"] < e["jl"] or e["jf"] == -1, (n, e)
            pos = s1
        self.minlead = min((self.bars[e["jl"]] - self.bars[e["jf"]]) for e in self.entries if e["jf"] >= 0)

    def tr_reads(self, f):
        st = self.steps[f]; e = self.entries[st["e"]]
        r = wf(f)
        res = []
        for rd in range(2):
            off = e["base"] + st["rel"] + rd * st["rdoff"]
            res.append(Ins(f"ds_read_b64_tr_b16 v[{r+2*rd}:{r+2*rd+1}], v{st['va']} offset:{off}", "D",
                           rd=vr(st["va"]), wr=vr(r + 2 * rd, 2), lg=("wf", f, rd)))
        return res
    def mfma(self, f, mt):
        st = self.steps[f]
        c = acc(st["j"], mt); a = wf(f); b = 16 * st["slot"] + 4 * mt
        if st.get("init"):
            return Ins(f"v_mfma_f32_16x16x32_bf16 v[{c}:{c+3}], v[{a}:{a+3}], a[{b}:{b+3}], 0", "M",
                       rd=vr(a, 4) + ar(b, 4), wr=vr(c, 4))
        return Ins(f"v_mfma_f32_16x16x32_bf16 v[{c}:{c+3}], v[{a}:{a+3}], a[{b}:{b+3}], v[{c}:{c+3}]", "M",
                   rd=vr(a, 4) + ar(b, 4) + vr(c, 4), wr=vr(c, 4))
    def dma_entry(self, n):
        e = self.entries[n]; l = e["l"]
        t = self.stemp()
        if e["kind"] == "m":
            ks = e["ks"][0]
            const = (0 if self.NOW else l) * LSTRIDE + ks * KSB + 128 * e["u"]
            pat = vPW2 if (l > 0 and ks >= 24) else vPW
            seq = [S(f"s_add_u32 s{t}, s{sWq}, {const}"),
                   S(f"s_add_u32 m0, s{sW1032}, {e['base']}", note="m0"),
                   Ins(f"buffer_load_dwordx4 v{pat}, {srd(sW_)}, s{t} offen lds", "A", rd=vr(pat), vm=("w", n))]
        else:
            ks = e["ks"] + [e["ks"][-1]] * (4 - len(e["ks"]))
            lit = 0
            for i, k in enumerate(ks): lit |= (26 * (0 if self.NOW else l) + k) << (8 * i)
            pat = vPE2 if (l > 0 and ks[0] >= 24) else vPE
            seq = [S(f"s_lshr_b32 s{t}, 0x{lit:x}, s{sW8}"),
                   S(f"s_and_b32 s{t}, s{t}, 0xff"),
                   S(f"s_mul_i32 s{t}, s{t}, {KSB}"),
                   S(f"s_add_u32 s{t}, s{t}, s{sXq}"),
                   S(f"s_add_u32 m0, s{sW1024}, {e['base']}", note="m0"),
                   Ins(f"buffer_load_dwordx4 v{pat}, {srd(sW_)}, s{t} offen lds", "A", rd=vr(pat), vm=("w", n))]
        return seq
    def xload(self, l, ks, slot):
        t = sXs[(ks + l) % 2]
        xs, xo = self.xch(l - 1)
        seq = [S(f"s_add_u32 s{t}, s{sXb}, {(xo + 4096 * ks) & 0xffffffff}")]
        for mt in range(4):
            d = 16 * slot + 4 * mt
            if ks < 24:
                seq.append(Ins(f"buffer_load_dwordx4 a[{d}:{d+3}], v{vL16}, {srd(60 if self.NOLD else xs)}, s{t} offen offset:{1024*mt}{self.pol(self.LDP)}", "L",
                               rd=vr(vL16), wr=ar(d, 4), vm=("x", l, ks, mt, 0)))
            else:
                for h in range(2):
                    seq.append(Ins(f"buffer_load_dwordx2 a[{d+2*h}:{d+2*h+1}], v{vL8}, {srd(60 if self.NOLD else xs)}, s{t} offen offset:{2048*h+512*mt}{self.pol(self.LDP)}", "L",
                                   rd=vr(vL8), wr=ar(d + 2 * h, 2), vm=("x", l, ks, mt, h)))
        return seq
    def xtags(self, l, ks, mt):
        if l == 0: return [], [("xs", ks, mt)]
        if ks < 24: return [("x", l, ks, mt, 0)], []
        return [("x", l, ks, mt, 0), ("x", l, ks, mt, 1)], []
    def stage_dma(self, line, slot=None, tag="st"):
        if slot is None: slot = line % 3
        seq = []
        for j in range(8):
            imm = 1024 * (j & 1) + 128 * line
            if j % 2 == 0:
                seq.append(S(f"s_add_u32 m0, s{sXRw}, {8192 * slot + 1024 * j - 128 * line}", note="m0"))
            ins = Ins(f"buffer_load_dwordx4 v{vPX}, {srd(sX0_)}, s{sJ[j]} offen offset:{imm} lds", "A", rd=vr(vPX), vm=(tag, line, j))
            if j % 2 == 0: ins.note = "m0keep"
            seq.append(ins)
        return seq
    def stage_read(self, ks, slot):
        line, sb = ks >> 1, ks & 1
        seq = []
        for mt in range(4):
            d = 16 * slot + 4 * mt
            seq.append(Ins(f"ds_read_b128 a[{d}:{d+3}], v{vX[sb]} offset:{8192 * (line % 3) + 2048 * mt}", "D",
                           rd=vr(vX[sb]), wr=ar(d, 4), lg=("xs", ks, mt), need_vm=[("st", line, 2 * mt), ("st", line, 2 * mt + 1)]))
            seq[-1].minvm = self.AGE if line < 8 else self.AGE2
        return seq
    def reload_dma(self, u):
        seq = []
        if u == 0: seq.append(V(f"v_add_u32 v{vPX}, s{sWq}, v{vPX}", rd=vr(vPX), wr=vr(vPX)))
        if u < 3: return seq + self.stage_dma(u, (u + 1) % 3, "rl")
        for h in range(2):
            t = self.stemp(1)
            seq += [S(f"s_add_u32 s{t}, s{sRow}, s{sXq}"),
                    S(f"s_add_u32 s{t}, s{t}, {h * 32 * ROWB}"),
                    S(f"s_add_u32 m0, s{sXRw}, {24576 + 1024 * h}", note="m0"),
                    Ins(f"buffer_load_dwordx4 v{vPXE}, {srd(sX0_)}, s{t} offen lds", "A", rd=vr(vPXE), vm=("rl", 3, h))]
            seq[-1].lines = 32
        return seq
    def epi_unit(self, l, u):
        last = (l == self.NL - 1)
        seq = []
        items = [(sb, mt) for sb in range(2) for mt in range(4)] if u < 3 else [(0, mt) for mt in range(4)]
        def rd(i):
            sb, mt = items[i]; xp = vXP[i % 2]
            if u < 3:
                nv = [("rl", u, 2 * mt), ("rl", u, 2 * mt + 1)] if l == 0 else []
                return Ins(f"ds_read_b128 v[{xp}:{xp+3}], v{vX[sb]} offset:{8192 * ((u + 1) % 3) + 2048 * mt}", "D", rd=vr(vX[sb]), wr=vr(xp, 4),
                           lg=("xp", l, u, i), need_vm=nv)
            nv = [("rl", 3, mt >> 1)] if l == 0 else []
            return Ins(f"ds_read_b64 v[{xp}:{xp+1}], v{vX2} offset:{512 * mt}", "D", rd=vr(vX2), wr=vr(xp, 2), lg=("xp", l, u, i), need_vm=nv)
        seq2 = [rd(0), rd(1)]
        for b_ in range(2):
            if self.last_reader[b_] is not None: seq2[b_].after = [self.last_reader[b_]]
        for i, (sb, mt) in enumerate(items):
            xp = vXP[i % 2]
            ne = 2 if u < 3 else 1
            first = True; pend = None
            for e in range(ne):
                j = 4 * u + 2 * sb + e if u < 3 else 12
                c = acc(j, mt)
                for p in range(2):
                    x = xp + 2 * e + p; t = vT[p]
                    if self.PK & 1:
                        if p == 1: continue
                        t0, t1 = vT; x1 = x + 1
                        i0 = V(f"v_lshlrev_b32 v{t0}, 16, v{x}", rd=vr(x), wr=vr(t0))
                        if first: i0.need_lg = [("xp", l, u, i)]; first = False
                        seq += [i0, V(f"v_and_b32 v{t1}, s{sMask}, v{x}", rd=vr(x), wr=vr(t1)),
                                V(f"v_lshlrev_b32 v{x}, 16, v{x1}", rd=vr(x1), wr=vr(x)),
                                V(f"v_and_b32 v{x1}, s{sMask}, v{x1}", rd=vr(x1), wr=vr(x1)),
                                V(f"v_pk_mul_f32 v[{t0}:{t1}], v[{t0}:{t1}], v[{c}:{c+1}]", rd=vr(t0, 2) + vr(c, 2), wr=vr(t0, 2)),
                                V(f"v_pk_mul_f32 v[{x}:{x1}], v[{x}:{x1}], v[{c+2}:{c+3}]", rd=vr(x, 2) + vr(c + 2, 2), wr=vr(x, 2)),
                                V(f"v_cvt_pk_bf16_f32 v{x1}, v{x}, v{x1}", rd=vr(x, 2), wr=vr(x1)),
                                V(f"v_cvt_pk_bf16_f32 v{x}, v{t0}, v{t1}", rd=vr(t0, 2), wr=vr(x))]
                        continue
                    i0 = V(f"v_lshlrev_b32 v{t}, 16, v{x}", rd=vr(x), wr=vr(t))
                    if first: i0.need_lg = [("xp", l, u, i)]; first = False
                    seq += [i0,
                            V(f"v_and_b32 v{x}, s{sMask}, v{x}", rd=vr(x), wr=vr(x)),
                            V(f"v_mul_f32 v{t}, v{t}, v{c+2*p}", rd=vr(t) + vr(c + 2 * p), wr=vr(t)),
                            V(f"v_mul_f32 v{x}, v{x}, v{c+2*p+1}", rd=vr(x) + vr(c + 2 * p + 1), wr=vr(x)),
                            V(f"v_cvt_pk_bf16_f32 v{x}, v{t}, v{x}", rd=vr(t) + vr(x), wr=vr(x))]
            if pend is not None: seq.append(pend)
            lastv = seq[-1]
            if not last:
                t = sXt[i % 2]
                if u < 3:
                    b = 2 * u + sb
                    xs, xo = self.xch(l)
                    seq2.append(S(f"s_add_u32 s{t}, s42, {(xo + 4096 * b) & 0xffffffff}"))
                    st = Ins(f"buffer_store_dwordx4 v[{xp}:{xp+3}], v{vL16}, {srd(60 if self.NOST else xs)}, s{t} offen offset:{1024*mt}{self.pol(self.STP)}", "T",
                             rd=vr(xp, 4) + vr(vL16), vm=("xo", l, u, i))
                else:
                    xs, xo = self.xch(l)
                    seq2.append(S(f"s_add_u32 s{t}, s43, {xo & 0xffffffff}"))
                    st = Ins(f"buffer_store_dwordx2 v[{xp}:{xp+1}], v{vL8}, {srd(60 if self.NOST else xs)}, s{t} offen offset:{512*mt}{self.pol(self.STP)}", "T",
                             rd=vr(xp, 2) + vr(vL8), vm=("xo", l, u, i))
            else:
                if u < 3:
                    b = 2 * u + sb
                    st = Ins(f"buffer_store_dwordx4 v[{xp}:{xp+3}], v{vOut}, {srd(sOUT_)}, s{sOutMt[mt]} offen offset:{64*b}{self.pol(self.OUTP)}", "T",
                             rd=vr(xp, 4) + vr(vOut), vm=("xo", l, u, i))
                else:
                    t = sXt[i % 2]
                    seq2.append(S(f"s_add_u32 s{t}, s{sOutMt[mt]}, s76"))
                    st = Ins(f"buffer_store_dwordx2 v[{xp}:{xp+1}], v{vOutE}, {srd(sOUT_)}, s{t} offen{self.pol(self.OUTP)}", "T",
                             rd=vr(xp, 2) + vr(vOutE), vm=("xo", l, u, i))
            st.after = [lastv]; st.lines = 8 if u < 3 else 4; st.dl = -2000; st.hard = -2000
            self.last_reader[i % 2] = st
            seq2.append(st)
            if i + 2 < len(items): seq2.append(rd(i + 2))
        return seq, seq2
    def bias_unit(self, l, u):
        seq = []
        tiles = [4 * u + i for i in range(4)] if u < 3 else [12]
        def rd(i):
            xp = vXP[i % 2]
            return Ins(f"ds_read_b128 v[{xp}:{xp+3}], v{vBias} offset:{832 * l + 64 * tiles[i]}", "D", rd=vr(vBias), wr=vr(xp, 4), lg=("bi", l, tiles[i]))
        seq2 = [rd(0)] + ([rd(1)] if len(tiles) > 1 else [])
        for b_ in range(len(seq2)):
            if self.last_reader[b_] is not None: seq2[b_].after = [self.last_reader[b_]]
        for i, j in enumerate(tiles):
            xp = vXP[i % 2]
            first = True
            for mt in range(4):
                c = acc(j, mt)
                for r in range(0, 4, 2 if self.PK & 2 else 1):
                    if self.PK & 2: x = V(f"v_pk_add_f32 v[{c+r}:{c+r+1}], v[{c+r}:{c+r+1}], v[{xp+r}:{xp+r+1}]", rd=vr(c + r, 2) + vr(xp + r, 2), wr=vr(c + r, 2))
                    else: x = V(f"v_add_f32 v{c+r}, v{c+r}, v{xp+r}", rd=vr(c + r) + vr(xp + r), wr=vr(c + r))
                    if first: x.need_lg = [("bi", l, j)]; first = False
                    seq.append(x)
            self.last_reader[i % 2] = seq[-1]
            if i + 2 < len(tiles):
                r2 = rd(i + 2); r2.after = [seq[-1]]; seq2.append(r2)
        return seq, seq2
    def flag_set(self, val, need):
        v = V(f"v_add_u32 v{vFlagVal}, {val}, v{vBase}", rd=vr(vBase), wr=vr(vFlagVal), need_vm=list(need) + [("fb",)])
        v.minvm = self.T_ST
        st = Ins(f"buffer_store_dword v{vFlagVal}, v{vFlagOff}, {srd(sWS_)}, 0 offen sc1", "T", rd=vr(vFlagVal) + vr(vFlagOff), vm=("fs", val))
        st.lines = 1; st.dl = -3000; st.hard = -3000
        return [v, st]
    def flag_poll(self, val):
        k = val
        ld = Ins(f"buffer_load_dword v{vPoll}, v{vPollOff}, {srd(sWS_)}, 0 offen sc1", "L", rd=vr(vPollOff), wr=vr(vPoll), vm=("fp", val))
        chk = [V(f"v_sub_u32 v{vPoll}, v{vPoll}, v{vBase}", rd=vr(vPoll) + vr(vBase), wr=vr(vPoll), need_vm=[("fp", val), ("fb",)]),
               V(f"v_cmp_gt_u32 vcc, {val}, v{vPoll}", rd=vr(vPoll)),
               S("s_nop 0"),
               Ins(f"s_cbranch_vccnz Lslow{k}\nLback{k}:", "S")]
        self.slow.append(f"""Lslow{k}:
  s_mov_b32 s{sSpin}, 0x{self.SPIN:x}
Lspin{k}:
  buffer_load_dword v{vPoll}, v{vPollOff}, {srd(sWS_)}, 0 offen sc1
  s_waitcnt vmcnt(0)
  v_sub_u32 v{vPoll}, v{vPoll}, v{vBase}
  v_cmp_gt_u32 vcc, {val}, v{vPoll}
  s_sub_u32 s{sSpin}, s{sSpin}, 1
{"  s_add_u32 s90, s90, 0x%x" % (1 << (4 * (k - 1))) if self.prof else ""}
  s_cbranch_vccz Lback{k}
  s_cmp_lg_u32 s{sSpin}, 0
  s_cbranch_scc1 Lspin{k}
  s_branch Lback{k}""")
        return ld, chk
    def out_patterns(self):
        t0, t1 = vT
        return [V(f"v_lshrrev_b32 v{t0}, 4, v{vL16}", rd=vr(vL16), wr=vr(t0)),
                V(f"v_and_b32 v{t1}, 15, v{t0}", rd=vr(t0), wr=vr(t1)),
                V(f"v_mul_u32_u24 v{t1}, {ROWB}, v{t1}", rd=vr(t1), wr=vr(t1)),
                V(f"v_lshrrev_b32 v{t0}, 4, v{t0}", rd=vr(t0), wr=vr(t0)),
                V(f"v_lshlrev_b32 v{t0}, 3, v{t0}", rd=vr(t0), wr=vr(t0)),
                V(f"v_add_u32 v{vOutE}, v{t1}, v{t0}", rd=vr(t0) + vr(t1), wr=vr(vOutE)),
                V(f"v_add_u32 v{vOut}, v{vOutE}, v{t0}", rd=vr(t0) + vr(vOutE), wr=vr(vOut))]

    def prologue(self):
        R = self.raw
        VV = lambda t: self.emit(Ins(t, "V"))
        R("s_cmp_ge_u32 s2, 256\ns_cbranch_scc1 Lend")
        R("s_load_dwordx4 s[64:67], s[0:1], 0\ns_load_dwordx4 s[68:71], s[0:1], 16\ns_load_dwordx4 s[72:75], s[0:1], 32")
        if self.stamps:
            R("s_memrealtime s[80:81]\ns_memtime s[82:83]")
        if self.SPAN: R("s_memrealtime s[88:89]")
        if self.prof:
            R(("s_memrealtime" if self.PRT else "s_memtime") + " s[88:89]\ns_mov_b32 s90, 0")
        VV("v_lshrrev_b32 v31, 6, v0")
        VV("v_and_b32 v0, 63, v0")
        R(f"""s_and_b32 s{sC}, s2, 7
s_lshr_b32 s3, s2, 5""")
        VV(f"v_readfirstlane_b32 s{sWv}, v31")
        R(f"""s_lshl_b32 s55, s3, 2
s_lshl_b32 s3, s3, 3
s_add_u32 s{sC}, s{sC}, s3
s_lshr_b32 s{sQ}, s2, 3
s_and_b32 s{sQ}, s{sQ}, 3
s_mul_i32 s{sWq}, s{sQ}, 384
s_lshl_b32 s3, s{sC}, 2
s_add_u32 s3, s3, s{sWv}
s_mul_i32 s{sRow}, s3, {64 * ROWB}
s_add_u32 s55, s55, s{sWv}
s_mul_i32 s55, s55, {ROWB}
s_mul_i32 s{sW1032}, s{sWv}, 1032
s_lshl_b32 s{sW8}, s{sWv}, 3
s_mul_i32 s{sXRw}, s{sWv}, {XRW}
s_add_u32 s{sXRw}, s{sXRw}, {XR}
s_nop 0""")
        for j in range(8):
            R(f"s_add_u32 s{sJ[j]}, s{sRow}, {j * 8 * ROWB - 1024 * (j & 1)}")
        VV(f"v_lshlrev_b32 v{vL16}, 4, v0")
        VV("v_lshrrev_b32 v20, 3, v0")
        VV("v_and_b32 v21, 7, v0")
        VV("v_and_b32 v23, 6, v20")
        VV("v_lshlrev_b32 v22, 1, v20")
        VV("v_xor_b32 v23, v21, v23")
        VV("v_and_b32 v22, 4, v22")
        VV("v_lshlrev_b32 v23, 4, v23")
        VV(f"v_mul_u32_u24 v24, {ROWB}, v20")
        VV("v_xor_b32 v22, v21, v22")
        VV(f"v_add_u32 v{vPX}, v23, v24")
        VV("v_lshlrev_b32 v22, 4, v22")
        VV(f"v_add_u32 v23, s{sW8}, v20")
        VV(f"v_mul_u32_u24 v23, {ROWB}, v23")
        VV(f"v_add_u32 v{vPW}, v23, v22")
        if self.EARLYPF: self.pf_patterns()
        self.pstamp()
        R("s_waitcnt lgkmcnt(0)")
        self.pstamp()
        self.mk(sX0_, 64, 16384 * ROWB)
        self.mk(sW_, 66, 3 * LSTRIDE)
        if self.CPF:
            self.emit(Ins("s_getpc_b64 s[64:65]\nLpc:", "S"))
            R(f"s_and_b32 s65, s65, 0xffff\ns_mov_b32 s66, Lcode_end-Lpc\ns_mov_b32 s67, 0x20000\ns_lshr_b32 s72, s2, 3\ns_lshl_b32 s72, s72, 2\ns_add_u32 s72, s72, s{sWv}\ns_lshl_b32 s72, s72, 7")
    def prologue2(self):
        R = self.raw
        R(f"""s_lshl_b32 s{sXq}, s{sQ}, 5
s_add_u32 s{sXq}, s{sXq}, 1536
s_lshl_b32 s{sW1024}, s{sWv}, 10
s_lshl_b32 s3, s{sC}, 2
s_add_u32 s3, s3, s{sWv}
s_mul_i32 s{sXb}, s3, 106496
s_add_u32 s{sXb}, s{sXb}, {self.XB0}
s_mov_b32 s{sMask}, 0xffff0000
s_mul_i32 s42, s{sQ}, 24576
s_add_u32 s42, s42, s{sXb}
s_lshr_b32 s43, s{sQ}, 1
s_add_u32 s43, s43, 24
s_lshl_b32 s43, s43, 12
s_and_b32 s3, s{sQ}, 1
s_lshl_b32 s3, s3, 11
s_add_u32 s43, s43, s3
s_add_u32 s43, s43, s{sXb}
s_mul_i32 s76, s{sQ}, 352
s_sub_u32 s76, 1536, s76""")
        for mt in range(4):
            R(f"s_add_u32 s{sOutMt[mt]}, s{sRow}, {mt * 16 * ROWB}\ns_add_u32 s{sOutMt[mt]}, s{sOutMt[mt]}, s{sWq}")
        self.mk(sB_, 68, 3 * ROWB)
        self.mk(sOUT_, 70, 16384 * ROWB)
        self.mk(sWS_, 74, 0x10000000)
        if self.NOST or self.NOLD or self.NOW: self.mk(60, 74, 0)
        self.prologue_rest()
    def mk(self, b, lo, size):
        self.raw(f"s_mov_b32 s{b}, s{lo}\ns_and_b32 s{b+1}, s{lo+1}, 0xffff\ns_mov_b32 s{b+2}, {size}\ns_mov_b32 s{b+3}, 0x20000")
    def prologue_rest(self):
        R = self.raw
        VV = lambda t: self.emit(Ins(t, "V"))
        VV("v_lshrrev_b32 v23, 2, v20")
        VV("v_lshlrev_b32 v23, 4, v23")
        VV("v_and_b32 v24, 3, v20")
        VV("v_add_u32 v23, v23, v24")
        R(f"s_lshl_b32 s3, s{sWv}, 2")
        VV("v_add_u32 v23, s3, v23")
        VV(f"v_mul_u32_u24 v23, {ROWB}, v23")
        VV(f"v_add_u32 v{vPW2}, v23, v22")
        VV("v_lshrrev_b32 v20, 1, v0")
        VV("v_and_b32 v21, 1, v0")
        VV("v_lshlrev_b32 v21, 4, v21")
        VV(f"v_mul_u32_u24 v23, {ROWB}, v20")
        VV(f"v_add_u32 v{vPXE}, v23, v21")
        VV("v_and_b32 v23, 19, v20")
        VV("v_and_b32 v24, 4, v20")
        VV("v_lshlrev_b32 v24, 1, v24")
        VV("v_or_b32 v23, v23, v24")
        VV("v_and_b32 v24, 8, v20")
        VV("v_lshrrev_b32 v24, 1, v24")
        VV("v_or_b32 v23, v23, v24")
        VV(f"v_mul_u32_u24 v23, {ROWB}, v23")
        VV(f"v_add_u32 v{vPE}, v23, v21")
        VV("v_and_b32 v23, 7, v20")
        VV("v_and_b32 v24, 8, v20")
        VV("v_lshlrev_b32 v24, 1, v24")
        VV("v_or_b32 v23, v23, v24")
        VV("v_and_b32 v24, 16, v20")
        VV("v_lshrrev_b32 v24, 1, v24")
        VV("v_or_b32 v23, v23, v24")
        VV(f"v_mul_u32_u24 v23, {ROWB}, v23")
        VV(f"v_add_u32 v{vPE2}, v23, v21")
        VV("v_lshrrev_b32 v20, 4, v0")
        VV("v_and_b32 v21, 15, v0")
        VV("v_lshrrev_b32 v22, 2, v0")
        VV("v_and_b32 v22, 3, v22")
        VV("v_and_b32 v23, 3, v0")
        VV("v_mul_u32_u24 v24, 1032, v20")
        VV("v_lshlrev_b32 v25, 7, v22")
        VV("v_add_u32 v24, v24, v25")
        VV("v_lshlrev_b32 v25, 4, v23")
        VV("v_add_u32 v24, v24, v25")
        VV("v_lshrrev_b32 v25, 1, v22")
        VV("v_lshlrev_b32 v25, 6, v25")
        VV(f"v_add_u32 v{vA[0]}, v24, v25")
        VV("v_sub_u32 v25, 64, v25")
        VV(f"v_add_u32 v{vA[1]}, v24, v25")
        VV("v_lshrrev_b32 v24, 1, v20")
        VV("v_lshlrev_b32 v24, 9, v24")
        VV("v_and_b32 v25, 1, v20")
        VV("v_lshlrev_b32 v25, 7, v25")
        VV("v_add_u32 v24, v24, v25")
        VV("v_lshlrev_b32 v25, 5, v22")
        VV("v_add_u32 v24, v24, v25")
        VV("v_lshlrev_b32 v25, 3, v23")
        VV(f"v_add_u32 v{vA2}, v24, v25")
        VV("v_and_b32 v24, 6, v21")
        VV("v_xor_b32 v24, v20, v24")
        VV("v_lshlrev_b32 v24, 4, v24")
        VV("v_lshlrev_b32 v25, 7, v21")
        VV("v_add_u32 v24, v24, v25")
        VV(f"v_add_u32 v{vX[0]}, s{sXRw}, v24")
        VV(f"v_xor_b32 v{vX[1]}, 64, v{vX[0]}")
        VV("v_lshlrev_b32 v24, 5, v21")
        VV("v_lshlrev_b32 v25, 3, v20")
        VV("v_add_u32 v24, v24, v25")
        VV(f"v_add_u32 v24, s{sXRw}, v24")
        VV(f"v_add_u32 v{vX2}, 24576, v24")
        VV(f"v_lshlrev_b32 v{vL16}, 4, v0")
        VV(f"v_lshlrev_b32 v{vL8}, 3, v0")
        VV("v_lshlrev_b32 v24, 4, v20")
        VV(f"v_add_u32 v{vBias}, {BIAS}, v24")
        R(f"s_lshl_b32 s3, s{sC}, 2\ns_add_u32 s3, s3, s{sWv}\ns_lshl_b32 s3, s3, 9\ns_add_u32 s3, s3, {FBASE}")
        VV("v_and_b32 v24, 3, v0")
        VV("v_lshlrev_b32 v24, 7, v24")
        VV(f"v_add_u32 v{vPollOff}, s3, v24")
        VV(f"v_mov_b32 v{vFlagOff}, 0x7fffff00")
        VV(f"v_cmp_eq_u32 vcc, s{sQ}, v0")
        R("s_nop 1")
        VV(f"v_cndmask_b32 v{vFlagOff}, v{vFlagOff}, v{vPollOff}, vcc")
        if not self.EARLYPF: self.pf_patterns()
        self.bias_prologue()
        R(f"s_lshl_b32 s91, s2, 2\ns_add_u32 s91, s91, s{sWv}\ns_lshl_b32 s91, s91, 12")

    def pf_patterns(self):
        R = self.raw; VV = lambda t: self.emit(Ins(t, "V"))
        R(f"s_lshl_b32 s56, s{sQ}, 4")
        VV("v_and_b32 v26, 15, v0")
        VV("v_lshrrev_b32 v27, 4, v0")
        VV("v_add_u32 v26, s56, v26")
        VV("v_lshlrev_b32 v27, 7, v27")
        VV(f"v_mul_u32_u24 v26, {ROWB}, v26")
        VV(f"v_add_u32 v{vPFX}, v26, v27")
        VV("v_lshrrev_b32 v27, 5, v0")
        VV("v_lshlrev_b32 v27, 30, v27")
        VV(f"v_add_u32 v{vPFX}, v{vPFX}, v27")
        for i in self.pfw_pattern(vPFW, False): self.emit(i)
        if self.T_WG < 190:
            VV("v_lshlrev_b32 v29, 7, v0")
            VV("v_lshrrev_b32 v28, 5, v0")
            VV("v_lshlrev_b32 v28, 30, v28")
            VV("v_add_u32 v29, v28, v29")
            R(f"s_lshl_b32 s91, s2, 2\ns_add_u32 s91, s91, s{sWv}\ns_lshl_b32 s91, s91, 12")
    def bias_prologue(self):
        R = self.raw; VV = lambda t: self.emit(Ins(t, "V"))
        R(f"s_lshl_b32 s3, s{sWv}, 6")
        VV("v_add_u32 v20, s3, v0")
        VV("v_min_u32 v20, 207, v20")
        VV("v_lshrrev_b32 v21, 4, v20")
        VV("v_and_b32 v22, 15, v20")
        VV("v_lshrrev_b32 v23, 1, v21")
        VV("v_lshlrev_b32 v23, 5, v23")
        VV("v_lshrrev_b32 v24, 2, v22")
        VV("v_lshlrev_b32 v24, 3, v24")
        VV("v_add_u32 v23, v23, v24")
        VV("v_and_b32 v24, 1, v21")
        VV("v_lshlrev_b32 v24, 2, v24")
        VV("v_add_u32 v23, v23, v24")
        VV("v_and_b32 v24, 3, v22")
        VV("v_add_u32 v23, v23, v24")
        R(f"s_mul_i32 s3, s{sQ}, 192")
        VV("v_add_u32 v23, s3, v23")
        R(f"s_lshl_b32 s3, s{sQ}, 4\ns_add_u32 s3, s3, 768")
        VV("v_add_u32 v24, s3, v22")
        VV("v_cmp_eq_u32 vcc, 12, v21")
        R("s_nop 1")
        VV("v_cndmask_b32 v23, v23, v24, vcc")
        VV("v_lshlrev_b32 v23, 1, v23")
        VV("v_lshlrev_b32 v22, 2, v20")
        VV(f"v_add_u32 v22, {BIAS}, v22")
    def bias_loads(self):
        for l in range(3):
            self.emit(Ins(f"buffer_load_ushort v{25+l}, v23, {srd(sB_)}, 0 offen offset:{l*ROWB}", "L", vm=("bl", l)))
            self.vm_step[("bl", l)] = -100
    def bias_write(self):
        a = [V(f"v_lshlrev_b32 v{25+l}, 16, v{25+l}", rd=vr(25 + l), wr=vr(25 + l)) for l in range(3)]
        a[0].need_vm = [("bl", 2)]
        a.append(V("v_add_f32 v25, 1.0, v25", rd=vr(25), wr=vr(25)))
        b = [Ins(f"ds_write_b32 v22, v{25+l} offset:{832*l}", "D", rd=vr(22) + vr(25 + l), lg=("bw", l)) for l in range(3)]
        b[0].after = [a[-1]]
        self.last_reader = [b[-1], b[-1]]
        return a, b

    COST = {"S": 4, "W": 4, "X": 4, "SS": 8, "V": 4, "D": 8, "L": 8, "A": 12, "T": 12}
    def fits(self, kinds):
        t = 4
        for i, k in enumerate(kinds):
            if k == "V": t = max(t, 8) + 4
            else: t += self.COST[k]
            if k == "L" and (i + 1 == len(kinds)): t += 4
            if k == "L" and i + 1 < len(kinds) and kinds[i + 1] != "V": return False
            if k in ("A", "T") and (i != 0 or len(kinds) > 1): return False
        return t <= 16

    def first_step(self, l, gi, u=0):
        for f, st in enumerate(self.steps):
            if st["l"] == l and st["gi"] == gi and st["u"] == u: return f
    def last_step(self, l, gi, u):
        r = None
        for f, st in enumerate(self.steps):
            if st["l"] == l and st["gi"] == gi and st["u"] == u: r = f
        return r
    def group_range(self, l, gi):
        fs = [f for f, st in enumerate(self.steps) if st["l"] == l and st["gi"] == gi]
        return fs[0], fs[-1]

    def build_streams(self):
        NL = self.NL
        self.last_reader = [None, None]
        M1 = []
        M2 = []
        E = []
        E2 = []
        M3 = []
        for n, e in enumerate(self.entries):
            es = -100 if e["jf"] < 0 else self.bars[e["jf"]]
            sq = self.dma_entry(n)
            for i_ in sq: i_.dl = min(self.bars[e["jl"]] - self.LATW, max(es, 0) + self.RSL)
            for i_ in sq: i_.hard = self.bars[e["jl"]] - 14
            sq[-1].lines = 8 if e["kind"] == "m" else 32
            M1.append([es, 0, sq, ("bar", e["jf"])])
        G = self.groups[0]
        slot_of = {}
        for gi, (ks_l, sl_l) in enumerate(G):
            for ks, sl in zip(ks_l, sl_l): slot_of[ks] = (gi, sl)
        def first_use(l, ks):
            for f, st in enumerate(self.steps):
                if st["l"] == l and st["ks"] == ks: return f
        self.first_use = first_use
        def slot_free(l, ks, sl):
            f0 = first_use(l, ks)
            r = -100
            for f in range(f0):
                if self.steps[f]["slot"] == sl: r = f
            return r
        self.stage_reads = {}
        stage_free = {}
        DM = []
        rd_earliest = {}
        for ks in range(26):
            gi, sl = slot_of[ks]
            rd_earliest[ks] = slot_free(0, ks, sl) + 1 if slot_free(0, ks, sl) >= 0 else -100
        cur = -100
        for ks in range(26):
            cur = max(cur, rd_earliest[ks]); rd_earliest[ks] = cur
        self.rd_earliest = rd_earliest
        self.slot_of0 = slot_of
        for line in range(13):
            seq = self.stage_dma(line)
            if line >= 3: seq[0].need_lg = [("xs", 2 * (line - 3) + 1, 3)]
            if line < self.PRO_X: es = -100
            else:
                es = self.T_STG0 + self.T_STGD * (line - self.PRO_X)
                k = 0
                for i_ in seq:
                    i_.earliest = int(es + self.PSP * k); i_.dl = i_.earliest + 8
                    if i_.kind == "A": k += 1
            M3.append([es, 1, seq, None])
        for u in (0, 3, 1, 2):
            seq = self.reload_dma(u)
            if u < 3: seq[0 if u else 1].need_lg = [("xs", 2 * (10 + u) + 1, 3)]
            es = self.T_RL[u]; k = 0
            for i_ in seq:
                i_.earliest = int(es + self.PSP * k); i_.dl = i_.earliest + 8
                if i_.kind == "A": k += 1
            M3.append([es, 1, seq, None])
        for ks in range(26):
            gi, sl = slot_of[ks]
            M2.append([rd_earliest[ks], 0, self.stage_read(ks, sl), None])
        for l in range(1, NL):
            base = 4 * (l - 1)
            def cls(ks):
                if ks >= 24: return 4
                return [1, 2, 3, 3, 4, 4][ks % 6]
            polled = set()
            lst = []
            for gi, (ks_l, sl_l) in enumerate(self.groups[l]):
                for ks, sl in zip(ks_l, sl_l):
                    lst.append((gi, ks, sl))
            gb0, gb1 = self.group_range(l - 1, 4)
            l0 = gb1 + 1
            exp = {1: l0 + self.T_U0, 2: l0 + self.T_U0B, 3: l0 + self.T_U1, 4: l0 + self.T_U2}
            items = []
            for gi, ks, sl in lst:
                es = max(slot_free(l, ks, sl) + 1, exp[cls(ks)], first_use(l, ks) - (self.XLEADG[gi] or self.XLEAD))
                items.append([es, cls(ks), first_use(l, ks), ks, sl])
            items.sort(key=lambda it: (it[0], it[2]))
            npaced = 0
            for es, c, gi, ks, sl in items:
                seq = []
                if c not in polled:
                    polled.add(c)
                    ld, chk = self.flag_poll(base + c)
                    ld.lines = 4; ld.dl = es - self.T_POLL
                    M2.append([es - self.T_POLL, 2, [ld], None])
                    seq += chk
                xl = self.xload(l, ks, sl)
                for i_ in xl:
                    i_.dl = first_use(l, ks) - self.LATX
                    if i_.kind == "L": i_.lines = 8 if ks < 24 else 4
                    if i_.kind == "L" and self.XPACE and npaced < self.XPN:
                        i_.earliest = int(l0 + self.T_U0 + self.XPACE * npaced); i_.dl = max(i_.earliest + 1, first_use(l, ks) - self.LATX2); npaced += 1
                seq += xl
                M2.append([es, 3, seq, None])
        if NL > 1:
            E.append([self.T_PAT, 0, self.pfw_pattern(vPFX, True), ("pat",)])
        a, b = self.bias_write()
        E.append([self.T_BW, 0, a, None]); E2.append([self.T_BW, 0, b, ("bw",)])
        for l in range(NL):
            g3 = 2
            for u in range(4):
                lastf = self.last_step(l, g3, u)
                a, b = self.bias_unit(l, u)
                E.append([lastf + 2, 1, a, ("bias", l, u)]); E2.append([lastf + 2 - self.E2LEAD, 1, b, None])
            if l == NL - 1:
                E.append([self.group_range(l, 4)[0] + 8, 0, self.out_patterns(), ("outpat",)])
            for u in ([0, 1, 3, 2] if (l == NL - 1 and self.TSPLIT) else range(4)):
                lastf = self.last_step(l, 4, u)
                a, b = self.epi_unit(l, u)
                if l == NL - 1 and u == 2 and self.TSPLIT:
                    for i_ in a[len(a) // 2:]: i_.earliest = lastf + 2
                    lastf = self.tsplit_step
                E.append([lastf + 2, 0, a, None]); E2.append([lastf + 2 - self.E2LEAD, 0, b, ("epi", l, u)])
        PFs = self.pf_streams()
        E.append([self.T_PW0[-1] + 2, 0, self.pfg_pat, None])
        M1.sort(key=lambda x: (x[0], x[1])); M2.sort(key=lambda x: (x[0], x[1])); E.sort(key=lambda x: (x[0], x[1]))
        flat = lambda Q: [(max(es, ins.earliest) if ins.earliest is not None else es, ins, tag, idx == len(seq) - 1) for es, _, seq, tag in Q for idx, ins in enumerate(seq)]
        M3.sort(key=lambda x: (x[0], x[1]))
        E2.sort(key=lambda x: (x[0], x[1]))
        self.PF = flat(PFs)
        self.M1, self.M2, self.E, self.M3, self.E2 = flat(M1), flat(M2), flat(E), flat(M3), flat(E2)

    def try_emit_from(self, Q, f, gap_kinds, allow, post_w):
        if not Q: return False
        es, ins, tag, lastflag = Q[0]
        if es > f: return False
        if isinstance(tag, tuple) and tag[0] == "bar" and tag[1] >= 0 and tag[1] > self.bar_passed: return False
        if ins.kind not in allow: return False
        if ins.note == 'm0' and self.m0_owner is not None: return False
        for a in ins.after:
            if id(a) not in self.issue_step: return False
        for t in ins.need_vm:
            if t not in self.vm_pos: return False
        for t in ins.need_lg:
            if t not in self.lg_pos: return False
        nv, nl = self.wait_for(ins.need_vm, ins.need_lg)
        needw = nv is not None or nl is not None
        kinds = gap_kinds + (["W"] if needw else []) + [ins.kind] + post_w
        if not self.fits(kinds):
            if needw and self.fits(gap_kinds + ["W"] + post_w) and self.wait_ok(ins, f):
                self.emit_wait(ins.need_vm, ins.need_lg); gap_kinds.append("W"); return True
            return False
        if needw and not self.wait_ok(ins, f): return False
        if not self.hazard_ok(ins): return False
        if needw:
            self.emit_wait(ins.need_vm, ins.need_lg); gap_kinds.append("W")
        self.emit(ins); gap_kinds.append(ins.kind)
        if ins.note == 'm0': self.m0_owner = id(Q)
        if ins.kind == 'A' and ins.note != "m0keep": self.m0_owner = None
        self.issue_step[id(ins)] = f
        if ins.vm is not None: self.vm_step[ins.vm] = f
        if ins.lg is not None: self.lg_step[ins.lg] = f
        Q.pop(0)
        if isinstance(tag, tuple) and tag[0] == "flag": self.flag_step[tag[1]] = f
        if isinstance(tag, tuple) and tag[0] == "pat":
            assert ("pf", "x", self.PX_L[-1]) in self.vm_pos, "prefetch pattern overwrites vPX before reload issued"
            self.pat_done = lastflag
        if ins.vm is not None and ins.vm[0] == "pf" and ins.vm[1] == "w" and ins.vm[2] > 0: assert self.pat_done and ("rl", 3, 1) in self.vm_pos
        if isinstance(tag, tuple) and tag[0] == "outpat":
            assert not any(i.kind == "L" and i.vm[0] == "fp" for _, i, _, _ in self.M2) and not any("v_cmp_gt_u32 vcc" in i.text for _, i, _, _ in self.M2) and not self.F
        if ins.vm is not None and ins.vm[0] == "xo" and ins.vm[2] == 0 and ins.vm[3] == 3 and ins.vm[1] < self.NL - 1:
            l_ = ins.vm[1]; val = 4 * l_ + 1
            self.F += [(f, i_, ("flag", val), False) for i_ in self.flag_set(val, [("xo", l_, 0, i) for i in range(4)])]
        if lastflag and isinstance(tag, tuple) and tag[0] == "epi":
            self.epi_done(tag, f)
        if lastflag and isinstance(tag, tuple) and tag[0] == "bias":
            self.bias_done[(tag[1], tag[2])] = f
        return True
    def wait_ok(self, ins, f):
        for t in ins.need_vm:
            if self.vm_pos[t] >= self.vm_done and f - self.vm_step.get(t, -1000) < (ins.minvm or self.MIN_VM): return False
        for t in ins.need_lg:
            if self.lg_pos[t] >= self.lg_done and f - self.lg_step.get(t, -1000) < self.MIN_LG: return False
        return True
    def hazard_ok(self, ins):
        if ins.kind in ("V", "D", "L"):
            regs = set(ins.rd) | set(ins.wr) if ins.kind == "V" else set(ins.wr)
            n = 0
            for prev in reversed(self.out):
                if n >= 9: break
                if prev.kind == "M" and (set(prev.wr) & regs): return False
                n += 1 if prev.kind != "SS" else 2
        if ins.kind == "V":
            n = 0
            for prev in reversed(self.out):
                if n >= 2: break
                if prev.kind == "T" and (set(prev.rd) & set(ins.wr)): return False
                n += 1
        if ins.kind == "V" and not getattr(self, "drain", False):
            f, g = self.cur
            nxt = []
            for d in (1, 2):
                gg = g + d; ff = f + gg // 4; gg %= 4
                if ff < self.nsteps: nxt.append(self.mfma(ff, gg))
            for m in nxt:
                if set(m.rd) & set(ins.wr): return False
        if ins.kind == "A":
            if self.out and self.out[-1].note == "m0": return False
        return True
    def epi_done(self, tag, f):
        _, l, u = tag
        self.epi_fin[(l, u)] = f
        if l == self.NL - 1: return
        n = 8 if u < 3 else 4
        tags = [("xo", l, u, i) for i in range(n)]
        val = None
        if u == 0: val = 4 * l + 2
        elif u == 1: val = 4 * l + 3
        elif u == 3: val = 4 * l + 4; tags = tags + [("xo", l, 2, i) for i in range(8)]
        if val is not None:
            self.F += [(f, ins, ("flag", val), False) for ins in self.flag_set(val, tags)]

    def schedule(self):
        self.issue_step = {}; self.vm_step = {}; self.lg_step = {}
        self.pending = []; self.epi_fin = {}; self.bias_done = {}
        self.bar_passed = -1
        self.F = []; self.pat_done = False; self.B = 0.0; self.Bhist = []
        self.m0_owner = None
        N = self.nsteps
        barat = {P: j for j, P in enumerate(self.bars)}
        need_at = {}
        for n, e in enumerate(self.entries): need_at.setdefault(e["jl"], []).append(("w", n))
        self.pro_issue()
        self.emit_wait(need_at.get(0, []), [])
        self.emit(Ins("s_barrier", "X")); self.bar_passed = 0
        self.pstamp()
        for f in range(self.LA):
            for r in self.tr_reads(f): self.emit(r); self.lg_step[r.lg] = -10
        if self.stamps: self.stamp()
        if self.SPAN: self.raw("s_memrealtime s[78:79]\ns_waitcnt lgkmcnt(0)\ns_mov_b32 s79, s78"); self.lg_done = len(self.lgq)
        self.epi_started = set()
        for f in range(N):
            st = self.steps[f]
            if f == 0:
                nv, nl = self.step_needs(0)
                self.emit_wait(nv, nl)
            if st["l"] > 0 and (st["l"], st["u"]) not in self.epi_started:
                self.epi_started.add((st["l"], st["u"]))
                assert (st["l"] - 1, st["u"]) in self.epi_fin, ("epilogue late", st["l"] - 1, st["u"], f, self.epi_fin)
            if self.PROL and f == 0: self.pstamp()
            if self.prof and not self.PROL and f >= self.PS and (f - self.PS) % self.PI == 0 and (f - self.PS) // self.PI <= 60:
                k = (f - self.PS) // self.PI
                if k > 0: self.emit(Ins(f"v_writelane_b32 v0, s86, {k}", "V"))
                self.emit(Ins(("s_memrealtime" if self.PRT else "s_memtime") + " s[86:87]", "S"))
                self.prof_k = k
            nL = 0; dynbar = False; defer_w = None
            for g in range(4):
                self.emit(self.mfma(f, g))
                self.cur = (f, g)
                kinds = []
                if g < 2 and f + self.LA < N:
                    r = self.tr_reads(f + self.LA)[g]
                    if g == 0:
                        pass
                    self.emit(r); self.lg_step[r.lg] = f; kinds.append("D")
                if g == 1 and f + 1 < N:
                    nv, nl = self.step_needs(f + 1)
                    if f in barat: nv = nv + need_at.get(barat[f], [])
                    for val, tags in self.pending:
                        if all(f - self.vm_step[t] >= self.T_ST for t in tags):
                            nv = nv + tags; dynbar = True
                    vready = bool(self.E) and self.E[0][1].kind == "V" and self.E[0][0] <= f
                    if self.WDEF and vready and not (f in barat or dynbar): defer_w = (nv, nl)
                    elif self.emit_wait(nv, nl): kinds.append("W")
                if defer_w is not None and g >= 2:
                    vmready = any(Q and Q[0][0] <= f and (Q[0][1].kind in ("A", "L", "T") or Q[0][1].note == "m0") for Q in (self.F, self.M1, self.M2, self.PF, self.M3, self.E2))
                    if g == 3 or not vmready:
                        if self.emit_wait(*defer_w): kinds.append("W")
                        defer_w = None
                if g == 2 and (f in barat or dynbar):
                    self.emit(Ins("s_barrier", "X")); kinds.append("X")
                    if f in barat: self.bar_passed = barat[f]
                    for val, tags in list(self.pending):
                        if all(self.vm_pos[t] < self.vm_done for t in tags):
                            self.pending.remove((val, tags))
                            seq = self.flag_set(val, tags)
                            self.F += [(f, ins, None, False) for ins in seq]
                            self.flag_step[val] = f
                self.B = max(0.0, self.B - 16 * (self.ETA if f > 215 else self.ETA0))
                progress = True
                allk = ("S", "SS", "V", "A", "L", "T", "D")
                order = [self.F, self.M1, self.M2, self.PF, self.M3, self.E2, self.E]
                while progress:
                    progress = False
                    cands = []
                    for qi, Q in enumerate(order):
                        if Q and (Q[0][1].kind in ("A", "L", "T") or Q[0][1].note == "m0") and Q[0][0] <= f:
                            ins = Q[0][1]
                            dl = ins.dl if ins.dl is not None else Q[0][0] + 10
                            cands.append((dl, qi, Q))
                    cands.sort(key=lambda c: (c[0], c[1]))
                    for dl, qi, Q in cands:
                        ins = Q[0][1]
                        th = self.TH_URG if dl <= f + self.URG else self.TH
                        if ins.note == "m0": th += 16
                        hard = getattr(ins, "hard", None)
                        if self.B > th and not (hard is not None and hard <= f): continue
                        if Q is self.PF and g < 2: continue
                        if self.try_emit_from(Q, f, kinds, allk, []):
                            if ins.kind in ("A", "L", "T"): self.B += ins.lines * self.CPL
                            progress = True; break
                    if progress: continue
                    for Q in order:
                        if Q and (Q[0][1].kind in ("A", "L", "T") or Q[0][1].note == "m0"): continue
                        if self.try_emit_from(Q, f, kinds, allk, []):
                            progress = True; break
                self.Bhist.append(self.B)
            if self.stamps and f + 1 < N and (self.steps[f + 1]["l"] != st["l"] or (self.steps[f + 1]["gi"] == 4 and st["gi"] == 3)):
                self.stamp()
        self.drain = True
        guard = 0
        assert not self.PF
        while self.M1 or self.M2 or self.E or self.M3 or self.F or self.E2:
            guard += 1
            assert guard < 100000
            done = False
            for Q in (self.F, self.E2, self.E, self.M2, self.M3, self.M1):
                if Q:
                    es, ins, tag, lastflag = Q[0]
                    if any(id(a) not in self.issue_step for a in ins.after): continue
                    if any(t not in self.lg_pos for t in ins.need_lg): continue
                    while not self.hazard_ok(ins): self.emit(Ins("s_nop 0", "S"))
                    self.emit_wait(ins.need_vm, ins.need_lg)
                    while not self.hazard_ok(ins): self.emit(Ins("s_nop 0", "S"))
                    self.emit(ins); Q.pop(0); self.issue_step[id(ins)] = N
                    if ins.vm is not None: self.vm_step[ins.vm] = N
                    if lastflag and isinstance(tag, tuple) and tag[0] == "epi": self.epi_done(tag, N)
                    done = True; break
            assert done
        if self.stamps: self.stamp()
        if self.prof:
            k = (self.prof_k + 1) if not self.PROL else 40
            self.raw(f"""v_writelane_b32 v0, s86, {k}
s_waitcnt vmcnt(0)
{"s_memrealtime" if self.PRT else "s_memtime"} s[86:87]
s_waitcnt lgkmcnt(0)
s_nop 4""")
            self.emit(Ins("v_writelane_b32 v0, s88, 0", "V"))
            if self.PROL:
                for kk in range(self.prol_k):
                    self.emit(Ins(f"v_writelane_b32 v0, s{[60, 62, 78, 80, 82, 100, 100, 100][kk]}, {kk + 1}", "V"))
            if k + 1 < 64: self.emit(Ins(f"v_writelane_b32 v0, s86, {k+1}", "V"))
            self.emit(Ins(f"v_writelane_b32 v0, s90, 63", "V"))
            self.raw(f"""s_lshl_b32 s3, s2, 2
s_add_u32 s3, s3, s{sWv}
s_lshl_b32 s3, s3, 8""")
            self.emit(Ins(f"v_lshrrev_b32 v2, 2, v{vL16}", "V"))
            self.raw("s_nop 4")
            self.emit(Ins(f"buffer_store_dword v0, v2, {srd(sWS_)}, s3 offen", "T"))
            if self.DBGT:
                self.raw(f"""s_load_dwordx2 s[4:5], s[0:1], 32
s_waitcnt lgkmcnt(0)
s_and_b32 s5, s5, 0xffff
s_mov_b32 s6, 64
s_mov_b32 s7, 0x20000""")
                self.emit(Ins("v_subrev_u32 v0, s88, v0", "V"))
                self.raw(f"s_cmp_eq_u32 s{sWv}, 0\ns_cbranch_scc0 Lnodbg")
                self.emit(Ins("buffer_atomic_add v0, v2, s[4:7], 0 offen\nLnodbg:", "T"))

    def step_needs(self, f):
        st = self.steps[f]
        nl = [("wf", f, 0), ("wf", f, 1)]
        nv = []
        for mt in range(4):
            a, b = self.xtags(st["l"], st["ks"], mt)
            for t in a:
                assert t in self.vm_pos, ("x load not issued before use", t, f)
            for t in b:
                assert t in self.lg_pos, ("stage read not issued before use", t, f)
            nv += a; nl += b
        return nv, nl

    def pstamp(self):
        if self.prof and self.PROL:
            k = self.prol_k; self.prol_k += 1
            r = [60, 62, 78, 80, 82, 100, 100, 100][k]
            self.emit(Ins(f"s_memtime s[{r}:{r+1}]", "S"))
    def pro_issue(self):
        def take(Q, pred):
            out = []
            while Q and pred(Q[0]): out.append(Q.pop(0))
            return out
        items = take(self.M1, lambda it: it[0] <= -50) + take(self.M3, lambda it: it[0] <= -50)
        seqs = []; cur = []
        for it in items:
            cur.append(it[1])
            if it[1].kind == "A": seqs.append(cur); cur = []
        wseq = [s for s in seqs if s[-1].vm[0] == "w"]; xseq = [s for s in seqs if s[-1].vm[0] == "st"]
        nW, nX = self.PRO_W, self.PRO_X
        assert 4 * nW >= 12
        rest_w = wseq[nW:]; rest_x = xseq[8 * nX:]
        self.M1[0:0] = [(-40, ins, ("bar", -1), False) for s in rest_w for ins in s]
        self.M3[0:0] = [(-40, ins, None, False) for s in rest_x for ins in s]
        def emit_seqs(L):
            for s in L:
                for k, ins in enumerate(s):
                    if ins.kind == "A" and self.out[-1].note == "m0": self.emit(Ins("s_nop 0", "S"))
                    self.emit(ins)
                    if ins.vm is not None: self.vm_step[ins.vm] = -100
        for tok in self.PORD:
            if tok.startswith("pf"):
                lim = int(tok[2:])
                while self.PF and self.PF[0][0] <= lim:
                    es, ins, tag, lf = self.PF.pop(0)
                    self.emit(ins); self.issue_step[id(ins)] = -100
                    if ins.vm is not None: self.vm_step[ins.vm] = -100
            elif tok[0] == "x": n = int(tok[1:]); assert n < nX; emit_seqs(xseq[8 * n:8 * n + 8])
            elif tok == "wA": emit_seqs(wseq[0:3])
            elif tok == "wB": emit_seqs(wseq[3:nW])
            elif tok == "p2": self.prologue2()
            elif tok == "fb":
                self.emit(Ins(f"buffer_load_dword v{vBase}, v{vPollOff}, {srd(sWS_)}, 0 offen sc1", "L", vm=("fb",)))
                self.vm_step[("fb",)] = -100
                self.bias_loads()
            elif tok == "st": self.pstamp()
            elif tok.startswith("wait"):
                n = int(tok[4:]); self.emit(Ins(f"s_waitcnt vmcnt({n})", "W")); self.vm_done = max(self.vm_done, len(self.vmq) - n)
            else: assert 0, tok
        self.pstamp()
        n = 0
        while self.M2 and n < 8:
            es, ins, tag, lf = self.M2[0]
            assert ins.kind == "D"
            self.emit_wait(ins.need_vm, ins.need_lg)
            self.emit(ins); self.M2.pop(0); n += 1
            if ins.lg is not None: self.lg_step[ins.lg] = -100
        self.pstamp()

    def pf_streams(self):
        PF = []
        def ld(pat, dst, base, soff, tag, pre=(), off=0):
            i = Ins(f"buffer_load_dword v{dst}, v{pat}, {srd(base)}, {soff} offen" + (f" offset:{off}" if off else ""), "L", rd=vr(pat), wr=vr(dst), vm=tag)
            i.lines = {"x": 32, "w": 16, "g": 32}[tag[1]]
            return list(pre) + [i]
        t = 54
        for k, (a, es) in enumerate(zip(self.PX_L, self.T_PX)):
            PF.append([es, 0, ld(vPFX, vPoll, sX0_, f"s{t}", ("pf", "x", a), [S(f"s_add_u32 s{t}, s{sRow}, {128 * a}")]), None])
        if self.CPF:
            for k, es in enumerate(self.T_CPF):
                i = Ins(f"buffer_load_dword v{vPoll if es < 200 else vPXE}, off, s[64:67], s{t}", "L", vm=("pf", "c", k)); i.lines = 1
                PF.append([es, 2, [S(f"s_add_u32 s{t}, s72, {16384 * k}"), i], None])
        for j, es in enumerate(self.T_PW0):
            PF.append([es, 1, ld(vPFW, vPoll, sW_, f"s{t}", ("pf", "w", 0, j), [S(f"s_mov_b32 s{t}, {4 * j * KSB}")]), None])
        lastw0 = PF[-1][2][-1]
        t0 = vT[0]
        pat = [V(f"v_lshlrev_b32 v{vPFG}, 3, v{vL16}", rd=vr(vL16), wr=vr(vPFG)),
               V(f"v_lshrrev_b32 v{t0}, 9, v{vL16}", rd=vr(vL16), wr=vr(t0)),
               V(f"v_lshlrev_b32 v{t0}, 30, v{t0}", rd=vr(t0), wr=vr(t0)),
               V(f"v_add_u32 v{vPFG}, v{vPFG}, v{t0}", rd=vr(t0) + vr(vPFG), wr=vr(vPFG))]
        pat[0].after = [lastw0]
        if self.T_WG < 190:
            self.pfg_pat = []
            g = ld(29, vPoll, sW_, "s91", ("pf", "g"))
        else:
            self.pfg_pat = pat
            g = ld(vPFG, vPoll, sW_, "s91", ("pf", "g"))
            g[-1].after = [pat[-1]]
        PF.append([self.T_WG, 0, g, None])
        if self.NL > 1:
            pass
            for l in range(1, self.NL):
                l0 = self.group_range(l - 1, 4)[1] + 1
                for j, dt in enumerate(self.T_PWL):
                    PF.append([l0 + dt, 1, ld(vPFX, vPXE, sW_, f"s{t}", ("pf", "w", l, j), [S(f"s_mov_b32 s{t}, {(0 if self.NOW else l) * LSTRIDE + j * KSB}")]), None])
        PF.sort(key=lambda x: (x[0], x[1]))
        return PF
    def pfw_pattern(self, dst, perm):
        t0, t1 = vT
        seq = [V(f"v_lshrrev_b32 v{t0}, 6, v{vL16}", rd=vr(vL16), wr=vr(t0)),
               V(f"v_mul_u32_u24 v{dst}, {(6 if perm else 1) * KSB}, v{t0}", rd=vr(t0), wr=vr(dst)),
               V(f"v_lshrrev_b32 v{t0}, 2, v{t0}", rd=vr(t0), wr=vr(t0)),
               V(f"v_min_u32 v{t0}, 1, v{t0}", rd=vr(t0), wr=vr(t0)),
               V(f"v_lshlrev_b32 v{t0}, 30, v{t0}", rd=vr(t0), wr=vr(t0)),
               V(f"v_and_b32 v{dst}, 0x3fffffff, v{dst}", rd=vr(dst), wr=vr(dst)),
               V(f"v_add_u32 v{dst}, v{dst}, v{t0}", rd=vr(t0) + vr(dst), wr=vr(dst)),
               V(f"v_lshrrev_b32 v{t0}, 4, v{vL16}", rd=vr(vL16), wr=vr(t0)),
               V(f"v_and_b32 v{t0}, 3, v{t0}", rd=vr(t0), wr=vr(t0)),
               V(f"v_lshlrev_b32 v{t1}, 7, v{t0}", rd=vr(t0), wr=vr(t1)),
               V(f"v_add_u32 v{t1}, s{sWq}, v{t1}", rd=vr(t1), wr=vr(t1)),
               V(f"v_cmp_eq_u32 vcc, 3, v{t0}", rd=vr(t0)),
               V(f"v_mov_b32 v{t0}, 0x600", wr=vr(t0)),
               V(f"v_cndmask_b32 v{t1}, v{t1}, v{t0}, vcc", rd=vr(t0) + vr(t1), wr=vr(t1)),
               V(f"v_add_u32 v{dst}, v{dst}, v{t1}", rd=vr(dst) + vr(t1), wr=vr(dst)),
               V(f"v_add_u32 v{dst}, s55, v{dst}", rd=vr(dst), wr=vr(dst))]
        return seq

    def stamp(self):
        k = self.nstamp; self.nstamp += 1
        if k < 8:
            self.emit(Ins(f"s_memtime s[{86 + 2*k}:{87 + 2*k}]", "S"))

    def check(self):
        out = self.out
        errs = 0
        for i, ins in enumerate(out):
            if ins.kind == "M":
                n = 0
                for prev in reversed(out[max(0, i - 4):i]):
                    if n >= 2: break
                    if prev.kind == "V" and set(prev.wr) & set(ins.rd):
                        print("HAZARD V->M", i, prev.text, "|", ins.text, file=sys.stderr); errs += 1
                    n += 1
            if ins.kind == "V":
                n = 0
                for prev in reversed(out[max(0, i - 10):i]):
                    if n >= 8: break
                    if prev.kind == "M" and set(prev.wr) & (set(ins.rd) | set(ins.wr)):
                        print("HAZARD M->V", i, prev.text, "|", ins.text, file=sys.stderr); errs += 1
                    n += 1
        return errs

    def text(self):
        NL = self.NL
        L = []
        L.append("""; Kernarg layout for this problem (48 bytes, ptrs only, base s[0:1]):
;   offset   0: d_in[0] x0  shape=(16384, 832) dtype=bfloat16 strides=(1664, 2) contiguous=True
;   offset   8: d_in[1] ws  shape=(3, 832, 832) dtype=bfloat16 strides=(1384448, 1664, 2) contiguous=True
;   offset  16: d_in[2] bs  shape=(3, 832) dtype=bfloat16 strides=(1664, 2) contiguous=True
;   offset  24: d_out     shape=(16384, 832) dtype=bfloat16 (2 bytes/elem)
;   offset  32: d_debug   256 bytes
;   offset  40: d_ws      268435456 bytes workspace
; cluster of 4 workgroups = 256 rows; each workgroup owns 208 output features; layers exchange x through d_ws.""")
        L.append("; @launch grid=(256,1,1) block=(256,1,1) lds=163840")
        L.append('.amdgcn_target "amdgcn-amd-amdhsa--gfx950"')
        L.append(".text")
        L.append(f".globl {KNAME}\n.p2align 8\n.type {KNAME},@function\n{KNAME}:")
        for ins in self.out: L.append("  " + ins.text)
        if self.stamps:
            L.append("  s_memtime s[84:85]\n  s_memrealtime s[78:79]\n  s_waitcnt lgkmcnt(0)")
            L.append(f"  s_lshl_b32 s3, s2, 7\n  v_mov_b32 v2, s3\n  v_cmp_eq_u32 vcc, 0, v{vL16}\n  s_cmp_eq_u32 s{sWv}, 0\n  s_cbranch_scc0 Lnost\n  s_and_saveexec_b64 s[4:5], vcc")
            regs = [80, 82, 78, 84] + [86 + 2 * k for k in range(min(self.nstamp, 8))]
            for i, s in enumerate(regs):
                L.append(f"  v_mov_b32 v6, s{s}\n  v_mov_b32 v7, s{s+1}\n  buffer_store_dwordx2 v[6:7], v2, {srd(sWS_)}, 0 offen offset:{8*i}\n  s_nop 1")
            L.append("Lnost:")
        if self.SPAN:
            L.append(f"""  s_waitcnt vmcnt(0)
  s_memrealtime s[86:87]
  s_load_dwordx2 s[4:5], s[0:1], 32
  s_waitcnt lgkmcnt(0)
  s_and_b32 s5, s5, 0xffff
  s_mov_b32 s6, 256
  s_mov_b32 s7, 0x20000
  s_not_b32 s3, s88
  s_not_b32 s87, s86
  v_mov_b32 v2, s3
  v_writelane_b32 v2, s86, 1
  v_writelane_b32 v2, s88, 2
  v_writelane_b32 v2, s87, 3
  v_writelane_b32 v2, s79, 4
  s_not_b32 s79, s79
  v_writelane_b32 v2, s79, 5
  v_lshrrev_b32 v3, 2, v{vL16}
  v_cmp_gt_u32 vcc, 24, v3
  v_mov_b32 v4, 0x7fffff00
  v_cndmask_b32 v3, v4, v3, vcc
  s_cmp_eq_u32 s{sWv}, 0
  s_cbranch_scc0 Lnospan
  buffer_atomic_umax v2, v3, s[4:7], 0 offen""")
            L.append("Lnospan:")
        L.append("  s_waitcnt vmcnt(0)")
        L.append("Lend:\n  s_endpgm")
        L += self.slow
        L.append("Lcode_end:")
        L.append('.section .rodata,"a"\n.p2align 6')
        L.append(f".amdhsa_kernel {KNAME}")
        L.append("  .amdhsa_next_free_vgpr 512\n  .amdhsa_next_free_sgpr 102\n  .amdhsa_accum_offset 256\n  .amdhsa_group_segment_fixed_size 0\n  .amdhsa_kernarg_size 48\n  .amdhsa_user_sgpr_count 2\n  .amdhsa_user_sgpr_kernarg_segment_ptr 1\n  .amdhsa_system_sgpr_workgroup_id_x 1\n.end_amdhsa_kernel")
        return "\n".join(L) + "\n"

    LA = 3
    WDEF = 0
    TSPLIT = 0
    DBGT = 0
    SPAN = 0
    XPACE = 0; XPN = 12; LATX2 = 12; T_U0B = 0
    PK = 0; XLEADG = [0, 0, 0, 0, 0]
    EARLYPF = 0
    PORD = ["pf-90", "x0", "wA", "wB", "x1", "st", "p2", "fb", "pf-50"]
    PRT = 0
    CPF = 1; T_CPF = [-95, 30, 240, 440, 640]
    XMODE = 0
    XB0 = XBASE
    ETA0 = 1.3
    RSL = 2
    ETA = 1.0; CPL = 9; TH = 120; TH_URG = 280; URG = 2; LATW = 16; LATX = 20; T_STG0 = 8; T_STGD = 15; PSP = 1.6; T_RL = [185, 228, 262, 214]
    PROL = 0; T_BW = 20; PRO_W = 6; PRO_X = 2; PX_L = [2, 4, 6, 8, 10, 12]; T_PX = [7, 30, 56, 82, 108, 134]; T_PW0 = [-60, 9, 32, 70, 90, 110, 126]; T_WG = 226; T_PWL = [-90, -70, 20, 60, 90, 110, 120, 130]; T_PAT = 200; AGE2 = 12; T_PWA = -100; T_PWB = 70; AGE = 16
    NOST = 0; NOLD = 0; NOW = 0
    LDP = 2; STP = 2; OUTP = 0
    IV = 12
    PS = 0; PI = 17
    T_U0 = -32; T_U1 = 50; T_U2 = 120; XLEAD = 26; SPIN = 0x8000; E2LEAD = 2; T_POLL = 10; T_ST = 8; MAXL = 2
    MIN_VM = 10; MIN_LG = 1

    def run(self):
        self.flag_step = {}
        self.plan()
        self.prologue()
        self.build_streams()
        self.schedule()
        errs = self.check()
        return errs

if __name__ == "__main__":
    ap = argparse.ArgumentParser()
    ap.add_argument("-o", default="k.s")
    ap.add_argument("--nl", type=int, default=3)
    ap.add_argument("--interval", type=int, default=12)
    ap.add_argument("--stamps", action="store_true")
    ap.add_argument("--prof", action="store_true")
    ap.add_argument("--set", action="append", default=[])
    a = ap.parse_args()
    for kv in a.set:
        k, v = kv.split("="); setattr(Gen, k, eval(v))
    g = Gen(NL=a.nl, interval=Gen.IV, stamps=a.stamps, prof=a.prof)
    errs = g.run()
    open(a.o, "w").write(g.text())
    from collections import Counter
    print("instrs", len(g.out), Counter(i.kind for i in g.out), "hazard errs", errs, "minlead(steps)", g.minlead, file=sys.stderr)
    print("xload steps", {k: v for k, v in g.vm_step.items() if k[0] in ("x", "fp", "fs") and (k[0] != "x" or k[3] == 3)}, file=sys.stderr)
    import statistics
    print("B mean", statistics.mean(g.Bhist), "max", max(g.Bhist), "frac>150", sum(b > 150 for b in g.Bhist) / len(g.Bhist), file=sys.stderr)
    leads = [g.bars[e["jl"]] - g.vm_step[("w", n)] for n, e in enumerate(g.entries) if g.vm_step[("w", n)] > -50]
    print("ring leads min/mean", min(leads), statistics.mean(leads), "hist", sorted(leads)[:20], file=sys.stderr)
    print("stage", {k: v for k, v in g.vm_step.items() if k[0] in ("st", "rl") and k[2] in (0, 7)}, file=sys.stderr)
    print("pf", {k: v for k, v in g.vm_step.items() if k[0] == "pf"}, file=sys.stderr)
    print("epi_fin", g.epi_fin, "bias", g.bias_done, "flags", g.flag_step, "nsteps", g.nsteps, file=sys.stderr)
```

```python
import sys, argparse

KNAME = "standalone__dcn_v2_cross__recsys_kernel"
D = 832; ROWB = 1664
LSTRIDE = D * ROWB
KSB = 32 * ROWB
RING = 54848
BIAS = 54848
XR = 57344
XRW = 26624
XBASE = 0x100000
FBASE = 0x40000
XLAYER = 64 * 4 * 106496
CH = 4128
XB = 4096

ACC0 = 48
def acc(j, mt): return ACC0 + 16 * j + 4 * mt
WF0 = 32; NB = 4
def wf(f): return WF0 + 4 * (f % NB)
vA = [1, 2]; vA2 = 3
vPW = 4; vPW2 = 5; vPE = 6; vPE2 = 7
vX = [8, 9]; vX2 = 10
vL16 = 11; vL8 = 12
vPX = 13; vOut = 30
vPXE = 14; vOutE = 31
vBias = 15
vFlagOff = 16; vFlagVal = 17; vPollOff = 18; vPoll = 19; vBase = 30
vPFX = 31; vPFW = 17; vPFG = 17
vXP = [20, 24]
vT = [28, 29]
vDummy = 0
sW_ = 8; sX0_ = 12; sOUT_ = 16; sWS_ = 20; sDBG_ = 24; sB_ = 28
sQ = 32; sC = 33; sWv = 34; sWq = 35; sW1032 = 36; sW8 = 37; sXq = 38; sW1024 = 39
sXb = 40; sRow = 41; sMask = 44; sXRw = 45
sOutMt = [46, 47, 48, 49]
sT = [50, 51, 52, 53, 54, 55]
sXs = [56, 57]
sXt = [77, 84]
sP = 58
sSpin = 59
sJ = [92, 93, 94, 95, 96, 97, 98, 99]
sStamp = 60
def srd(b): return f"s[{b}:{b+3}]"

class Ins:
    __slots__ = ("text", "kind", "rd", "wr", "vm", "lg", "need_vm", "need_lg", "earliest", "label", "note", "after", "minvm", "dl", "lines", "hard")
    def __init__(self, text, kind, rd=(), wr=(), vm=None, lg=None, need_vm=None, need_lg=None, earliest=None, note=None):
        self.text = text; self.kind = kind; self.rd = tuple(rd); self.wr = tuple(wr)
        self.vm = vm; self.lg = lg; self.need_vm = need_vm or []; self.need_lg = need_lg or []
        self.earliest = earliest; self.note = note; self.after = []; self.minvm = None; self.dl = None; self.lines = 8; self.hard = None
def vr(b, n=1): return [("v", b + i) for i in range(n)]
def ar(b, n=1): return [("a", b + i) for i in range(n)]

def S(t, **k): return Ins(t, "S", **k)
def V(t, rd=(), wr=(), **k): return Ins(t, "V", rd=rd, wr=wr, **k)

class Gen:
    def __init__(self, NL=3, interval=12, dbg=None, stamps=False, prof=False):
        self.prof = prof; self.prol_k = 0
        self.NL = NL; self.interval = interval; self.stamps = stamps
        self.out = []
        self.vmq = []; self.vm_done = 0; self.vm_pos = {}
        self.lgq = []; self.lg_done = 0; self.lg_pos = {}
        self.slow = []
        self.tcount = 0
        self.nstamp = 0

    def emit(self, ins):
        if ins.vm is not None:
            assert ins.vm not in self.vm_pos, ins.vm
            self.vm_pos[ins.vm] = len(self.vmq); self.vmq.append(ins.vm)
        if ins.lg is not None:
            assert ins.lg not in self.lg_pos, ins.lg
            self.lg_pos[ins.lg] = len(self.lgq); self.lgq.append(ins.lg)
        self.out.append(ins)
    def wait_for(self, need_vm, need_lg):
        nv = None; nl = None
        for t in need_vm:
            p = self.vm_pos[t]
            if p >= self.vm_done:
                n = len(self.vmq) - 1 - p
                nv = n if nv is None else min(nv, n)
        for t in need_lg:
            p = self.lg_pos[t]
            if p >= self.lg_done:
                n = len(self.lgq) - 1 - p
                nl = n if nl is None else min(nl, n)
        return nv, nl
    def emit_wait(self, need_vm, need_lg):
        nv, nl = self.wait_for(need_vm, need_lg)
        if nv is None and nl is None: return False
        parts = []
        if nv is not None:
            nv = min(nv, 63); parts.append(f"vmcnt({nv})"); self.vm_done = max(self.vm_done, len(self.vmq) - nv)
        if nl is not None:
            nl = min(nl, 15); parts.append(f"lgkmcnt({nl})"); self.lg_done = max(self.lg_done, len(self.lgq) - nl)
        self.emit(Ins("s_waitcnt " + " ".join(parts), "W"))
        return True
    def raw(self, text, kind="S", **k):
        for line in text.strip().split("\n"):
            self.emit(Ins(line.strip(), kind, **k))
    def xch(self, l):
        if self.XMODE == 2: return (sOUT_, -self.XB0) if l == 0 else (sWS_, 0)
        if self.XMODE == 1: return (sWS_, 0)
        return (sWS_, l * XLAYER)
    def pol(self, p):
        return ("", " sc0", " sc1", " sc0 sc1", " nt", " sc0 nt", " sc1 nt", " sc0 sc1 nt")[p]
    def stemp(self, stream=0):
        self.tcount += 1
        return sT[2 * stream + self.tcount % 2]

    def plan(self):
        NL = self.NL
        self.groups = []
        for l in range(NL):
            if l == 0:
                G = [[0, 1, 2], [3, 4, 5], [6, 7, 8, 9], [10, 11, 12], list(range(13, 26))]
            else:
                G = [[0, 6, 12], [18, 1, 7], [13, 19, 2, 8], [14, 20, 3],
                     [9, 15, 21, 4, 10, 16, 22, 5, 11, 17, 23, 24, 25]]
            SL = [[13, 14, 15], [0, 1, 2], [3, 4, 5, 6], [13, 14, 15], [7, 8, 9, 10, 11, 12, 0, 1, 2, 3, 4, 5, 6]]
            self.groups.append(list(zip(G, SL)))
        self.entries = []
        self.steps = []
        def seg_main(l, gi, u, lst):
            for ks, sl in lst:
                e = dict(kind="m", l=l, u=u, ks=[ks], size=CH, gi=gi, first=len(self.steps))
                self.entries.append(e)
                for sb in range(2):
                    for ee in range(2):
                        self.steps.append(dict(e=len(self.entries) - 1, j=4 * u + 2 * sb + ee, ks=ks, slot=sl,
                                               va=vA[sb], rel=8 * ee, rdoff=512, l=l, gi=gi, u=u))
                e["last"] = len(self.steps) - 1
        def seg_extra(l, gi, bt):
            e = dict(kind="x", l=l, u=3, ks=[k for k, _ in bt], size=XB, gi=gi, first=len(self.steps))
            self.entries.append(e)
            for i, (ks, sl) in enumerate(bt):
                self.steps.append(dict(e=len(self.entries) - 1, j=12, ks=ks, slot=sl,
                                       va=vA2, rel=1024 * i, rdoff=256, l=l, gi=gi, u=3))
            e["last"] = len(self.steps) - 1
        for l in range(NL):
            gl = [list(zip(G, SL)) for (G, SL) in self.groups[l]]
            a, b = gl[0], gl[1]
            if l == 0:
                for gi_, lst_ in ((0, a), (1, b)):
                    for it in lst_:
                        for u in range(3): seg_main(l, gi_, u, [it])
            else:
                seg_main(l, 0, 0, a); seg_main(l, 0, 1, a); seg_main(l, 1, 0, b); seg_main(l, 1, 1, b)
                seg_main(l, 0, 2, a); seg_main(l, 1, 2, b)
            ab = a + b
            seg_extra(l, 1, ab[0:4]); seg_extra(l, 1, ab[4:6])
            for gi in (2, 3, 4):
                lst = gl[gi]
                if gi == 4 and l == NL - 1 and self.TSPLIT:
                    seg_main(l, gi, 0, lst); seg_main(l, gi, 1, lst)
                    for bt in [lst[0:4], lst[4:8], lst[8:11], lst[11:13]]: seg_extra(l, gi, bt)
                    ns = self.TSPLIT
                    seg_main(l, gi, 2, lst[:13 - ns])
                    es_ = []
                    for ks, sl in lst[13 - ns:]:
                        e = dict(kind="m", l=l, u=2, ks=[ks], size=CH, gi=gi, first=len(self.steps))
                        self.entries.append(e); es_.append((len(self.entries) - 1, ks, sl))
                        for ee in range(2):
                            self.steps.append(dict(e=len(self.entries) - 1, j=8 + ee, ks=ks, slot=sl, va=vA[0], rel=8 * ee, rdoff=512, l=l, gi=gi, u=2))
                    self.tsplit_step = len(self.steps) - 1
                    for n_, ks, sl in es_:
                        for ee in range(2):
                            self.steps.append(dict(e=n_, j=10 + ee, ks=ks, slot=sl, va=vA[1], rel=8 * ee, rdoff=512, l=l, gi=gi, u=2))
                        self.entries[n_]["last"] = len(self.steps) - 1
                    continue
                for u in range(3): seg_main(l, gi, u, lst)
                if gi < 4: batches = [lst]
                elif l == 0: batches = [lst[0:4], lst[4:8], lst[8:12], lst[12:13]]
                else: batches = [lst[0:4], lst[4:8], lst[8:11], lst[11:13]]
                for bt in batches: seg_extra(l, gi, bt)
        self.nsteps = len(self.steps)
        seen = set()
        for st in self.steps:
            if st["j"] not in seen: seen.add(st["j"]); st["init"] = True
        iv = self.interval
        LA = self.LA
        self.bars = [-LA - 1] + list(range(iv - LA - 1, self.nsteps - LA - 1, iv))
        pos = 0
        live = []
        for n, e in enumerate(self.entries):
            if pos + e["size"] > RING: pos = 0
            e["base"] = pos; s0, s1 = pos, pos + e["size"]
            ov = [m for (m, a, b) in live if a < s1 and s0 < b]
            live = live + [(n, s0, s1)]
            lastneed = max([self.entries[m]["last"] for m in ov], default=None)
            if lastneed is None: e["jf"] = -1
            else:
                e["jf"] = next(j for j, P in enumerate(self.bars) if lastneed <= P + 1)
            e["jl"] = max(j for j, P in enumerate(self.bars) if P + LA + 1 <= e["first"] or j == 0)
            assert e["jf"] < e["jl"] or e["jf"] == -1, (n, e)
            pos = s1
        self.minlead = min((self.bars[e["jl"]] - self.bars[e["jf"]]) for e in self.entries if e["jf"] >= 0)

    def tr_reads(self, f):
        st = self.steps[f]; e = self.entries[st["e"]]
        r = wf(f)
        res = []
        for rd in range(2):
            off = e["base"] + st["rel"] + rd * st["rdoff"]
            res.append(Ins(f"ds_read_b64_tr_b16 v[{r+2*rd}:{r+2*rd+1}], v{st['va']} offset:{off}", "D",
                           rd=vr(st["va"]), wr=vr(r + 2 * rd, 2), lg=("wf", f, rd)))
        return res
    def mfma(self, f, mt):
        st = self.steps[f]
        c = acc(st["j"], mt); a = wf(f); b = 16 * st["slot"] + 4 * mt
        if st.get("init"):
            return Ins(f"v_mfma_f32_16x16x32_bf16 v[{c}:{c+3}], v[{a}:{a+3}], a[{b}:{b+3}], 0", "M",
                       rd=vr(a, 4) + ar(b, 4), wr=vr(c, 4))
        return Ins(f"v_mfma_f32_16x16x32_bf16 v[{c}:{c+3}], v[{a}:{a+3}], a[{b}:{b+3}], v[{c}:{c+3}]", "M",
                   rd=vr(a, 4) + ar(b, 4) + vr(c, 4), wr=vr(c, 4))
    def dma_entry(self, n):
        e = self.entries[n]; l = e["l"]
        t = self.stemp()
        if e["kind"] == "m":
            ks = e["ks"][0]
            const = (0 if self.NOW else l) * LSTRIDE + ks * KSB + 128 * e["u"]
            pat = vPW2 if (l > 0 and ks >= 24) else vPW
            seq = [S(f"s_add_u32 s{t}, s{sWq}, {const}"),
                   S(f"s_add_u32 m0, s{sW1032}, {e['base']}", note="m0"),
                   Ins(f"buffer_load_dwordx4 v{pat}, {srd(sW_)}, s{t} offen lds", "A", rd=vr(pat), vm=("w", n))]
        else:
            ks = e["ks"] + [e["ks"][-1]] * (4 - len(e["ks"]))
            lit = 0
            for i, k in enumerate(ks): lit |= (26 * (0 if self.NOW else l) + k) << (8 * i)
            pat = vPE2 if (l > 0 and ks[0] >= 24) else vPE
            seq = [S(f"s_lshr_b32 s{t}, 0x{lit:x}, s{sW8}"),
                   S(f"s_and_b32 s{t}, s{t}, 0xff"),
                   S(f"s_mul_i32 s{t}, s{t}, {KSB}"),
                   S(f"s_add_u32 s{t}, s{t}, s{sXq}"),
                   S(f"s_add_u32 m0, s{sW1024}, {e['base']}", note="m0"),
                   Ins(f"buffer_load_dwordx4 v{pat}, {srd(sW_)}, s{t} offen lds", "A", rd=vr(pat), vm=("w", n))]
        return seq
    def xload(self, l, ks, slot):
        t = sXs[(ks + l) % 2]
        xs, xo = self.xch(l - 1)
        seq = [S(f"s_add_u32 s{t}, s{sXb}, {(xo + 4096 * ks) & 0xffffffff}")]
        for mt in range(4):
            d = 16 * slot + 4 * mt
            if ks < 24:
                seq.append(Ins(f"buffer_load_dwordx4 a[{d}:{d+3}], v{vL16}, {srd(60 if self.NOLD else xs)}, s{t} offen offset:{1024*mt}{self.pol(self.LDP)}", "L",
                               rd=vr(vL16), wr=ar(d, 4), vm=("x", l, ks, mt, 0)))
            else:
                for h in range(2):
                    seq.append(Ins(f"buffer_load_dwordx2 a[{d+2*h}:{d+2*h+1}], v{vL8}, {srd(60 if self.NOLD else xs)}, s{t} offen offset:{2048*h+512*mt}{self.pol(self.LDP)}", "L",
                                   rd=vr(vL8), wr=ar(d + 2 * h, 2), vm=("x", l, ks, mt, h)))
        return seq
    def xtags(self, l, ks, mt):
        if l == 0: return [], [("xs", ks, mt)]
        if ks < 24: return [("x", l, ks, mt, 0)], []
        return [("x", l, ks, mt, 0), ("x", l, ks, mt, 1)], []
    def stage_dma(self, line, slot=None, tag="st"):
        if slot is None: slot = line % 3
        seq = []
        for j in range(8):
            imm = 1024 * (j & 1) + 128 * line
            if j % 2 == 0:
                seq.append(S(f"s_add_u32 m0, s{sXRw}, {8192 * slot + 1024 * j - 128 * line}", note="m0"))
            ins = Ins(f"buffer_load_dwordx4 v{vPX}, {srd(sX0_)}, s{sJ[j]} offen offset:{imm} lds", "A", rd=vr(vPX), vm=(tag, line, j))
            if j % 2 == 0: ins.note = "m0keep"
            seq.append(ins)
        return seq
    def stage_read(self, ks, slot):
        line, sb = ks >> 1, ks & 1
        seq = []
        for mt in range(4):
            d = 16 * slot + 4 * mt
            seq.append(Ins(f"ds_read_b128 a[{d}:{d+3}], v{vX[sb]} offset:{8192 * (line % 3) + 2048 * mt}", "D",
                           rd=vr(vX[sb]), wr=ar(d, 4), lg=("xs", ks, mt), need_vm=[("st", line, 2 * mt), ("st", line, 2 * mt + 1)]))
            seq[-1].minvm = self.AGE if line < 8 else self.AGE2
        return seq
    def reload_dma(self, u):
        seq = []
        if u == 0: seq.append(V(f"v_add_u32 v{vPX}, s{sWq}, v{vPX}", rd=vr(vPX), wr=vr(vPX)))
        if u < 3: return seq + self.stage_dma(u, (u + 1) % 3, "rl")
        for h in range(2):
            t = self.stemp(1)
            seq += [S(f"s_add_u32 s{t}, s{sRow}, s{sXq}"),
                    S(f"s_add_u32 s{t}, s{t}, {h * 32 * ROWB}"),
                    S(f"s_add_u32 m0, s{sXRw}, {24576 + 1024 * h}", note="m0"),
                    Ins(f"buffer_load_dwordx4 v{vPXE}, {srd(sX0_)}, s{t} offen lds", "A", rd=vr(vPXE), vm=("rl", 3, h))]
            seq[-1].lines = 32
        return seq
    def epi_unit(self, l, u):
        last = (l == self.NL - 1)
        seq = []
        items = [(sb, mt) for sb in range(2) for mt in range(4)] if u < 3 else [(0, mt) for mt in range(4)]
        def rd(i):
            sb, mt = items[i]; xp = vXP[i % 2]
            if u < 3:
                nv = [("rl", u, 2 * mt), ("rl", u, 2 * mt + 1)] if l == 0 else []
                return Ins(f"ds_read_b128 v[{xp}:{xp+3}], v{vX[sb]} offset:{8192 * ((u + 1) % 3) + 2048 * mt}", "D", rd=vr(vX[sb]), wr=vr(xp, 4),
                           lg=("xp", l, u, i), need_vm=nv)
            nv = [("rl", 3, mt >> 1)] if l == 0 else []
            return Ins(f"ds_read_b64 v[{xp}:{xp+1}], v{vX2} offset:{512 * mt}", "D", rd=vr(vX2), wr=vr(xp, 2), lg=("xp", l, u, i), need_vm=nv)
        seq2 = [rd(0), rd(1)]
        for b_ in range(2):
            if self.last_reader[b_] is not None: seq2[b_].after = [self.last_reader[b_]]
        for i, (sb, mt) in enumerate(items):
            xp = vXP[i % 2]
            ne = 2 if u < 3 else 1
            first = True; pend = None
            for e in range(ne):
                j = 4 * u + 2 * sb + e if u < 3 else 12
                c = acc(j, mt)
                for p in range(2):
                    x = xp + 2 * e + p; t = vT[p]
                    if self.PK & 1:
                        if p == 1: continue
                        t0, t1 = vT; x1 = x + 1
                        i0 = V(f"v_lshlrev_b32 v{t0}, 16, v{x}", rd=vr(x), wr=vr(t0))
                        if first: i0.need_lg = [("xp", l, u, i)]; first = False
                        seq += [i0, V(f"v_and_b32 v{t1}, s{sMask}, v{x}", rd=vr(x), wr=vr(t1)),
                                V(f"v_lshlrev_b32 v{x}, 16, v{x1}", rd=vr(x1), wr=vr(x)),
                                V(f"v_and_b32 v{x1}, s{sMask}, v{x1}", rd=vr(x1), wr=vr(x1)),
                                V(f"v_pk_mul_f32 v[{t0}:{t1}], v[{t0}:{t1}], v[{c}:{c+1}]", rd=vr(t0, 2) + vr(c, 2), wr=vr(t0, 2)),
                                V(f"v_pk_mul_f32 v[{x}:{x1}], v[{x}:{x1}], v[{c+2}:{c+3}]", rd=vr(x, 2) + vr(c + 2, 2), wr=vr(x, 2)),
                                V(f"v_cvt_pk_bf16_f32 v{x1}, v{x}, v{x1}", rd=vr(x, 2), wr=vr(x1)),
                                V(f"v_cvt_pk_bf16_f32 v{x}, v{t0}, v{t1}", rd=vr(t0, 2), wr=vr(x))]
                        continue
                    i0 = V(f"v_lshlrev_b32 v{t}, 16, v{x}", rd=vr(x), wr=vr(t))
                    if first: i0.need_lg = [("xp", l, u, i)]; first = False
                    seq += [i0,
                            V(f"v_and_b32 v{x}, s{sMask}, v{x}", rd=vr(x), wr=vr(x)),
                            V(f"v_mul_f32 v{t}, v{t}, v{c+2*p}", rd=vr(t) + vr(c + 2 * p), wr=vr(t)),
                            V(f"v_mul_f32 v{x}, v{x}, v{c+2*p+1}", rd=vr(x) + vr(c + 2 * p + 1), wr=vr(x)),
                            V(f"v_cvt_pk_bf16_f32 v{x}, v{t}, v{x}", rd=vr(t) + vr(x), wr=vr(x))]
            if pend is not None: seq.append(pend)
            lastv = seq[-1]
            if not last:
                t = sXt[i % 2]
                if u < 3:
                    b = 2 * u + sb
                    xs, xo = self.xch(l)
                    seq2.append(S(f"s_add_u32 s{t}, s42, {(xo + 4096 * b) & 0xffffffff}"))
                    st = Ins(f"buffer_store_dwordx4 v[{xp}:{xp+3}], v{vL16}, {srd(60 if self.NOST else xs)}, s{t} offen offset:{1024*mt}{self.pol(self.STP)}", "T",
                             rd=vr(xp, 4) + vr(vL16), vm=("xo", l, u, i))
                else:
                    xs, xo = self.xch(l)
                    seq2.append(S(f"s_add_u32 s{t}, s43, {xo & 0xffffffff}"))
                    st = Ins(f"buffer_store_dwordx2 v[{xp}:{xp+1}], v{vL8}, {srd(60 if self.NOST else xs)}, s{t} offen offset:{512*mt}{self.pol(self.STP)}", "T",
                             rd=vr(xp, 2) + vr(vL8), vm=("xo", l, u, i))
            else:
                if u < 3:
                    b = 2 * u + sb
                    st = Ins(f"buffer_store_dwordx4 v[{xp}:{xp+3}], v{vOut}, {srd(sOUT_)}, s{sOutMt[mt]} offen offset:{64*b}{self.pol(self.OUTP)}", "T",
                             rd=vr(xp, 4) + vr(vOut), vm=("xo", l, u, i))
                else:
                    t = sXt[i % 2]
                    seq2.append(S(f"s_add_u32 s{t}, s{sOutMt[mt]}, s76"))
                    st = Ins(f"buffer_store_dwordx2 v[{xp}:{xp+1}], v{vOutE}, {srd(sOUT_)}, s{t} offen{self.pol(self.OUTP)}", "T",
                             rd=vr(xp, 2) + vr(vOutE), vm=("xo", l, u, i))
            st.after = [lastv]; st.lines = 8 if u < 3 else 4; st.dl = -2000; st.hard = -2000
            self.last_reader[i % 2] = st
            seq2.append(st)
            if i + 2 < len(items): seq2.append(rd(i + 2))
        return seq, seq2
    def bias_unit(self, l, u):
        seq = []
        tiles = [4 * u + i for i in range(4)] if u < 3 else [12]
        def rd(i):
            xp = vXP[i % 2]
            return Ins(f"ds_read_b128 v[{xp}:{xp+3}], v{vBias} offset:{832 * l + 64 * tiles[i]}", "D", rd=vr(vBias), wr=vr(xp, 4), lg=("bi", l, tiles[i]))
        seq2 = [rd(0)] + ([rd(1)] if len(tiles) > 1 else [])
        for b_ in range(len(seq2)):
            if self.last_reader[b_] is not None: seq2[b_].after = [self.last_reader[b_]]
        for i, j in enumerate(tiles):
            xp = vXP[i % 2]
            first = True
            for mt in range(4):
                c = acc(j, mt)
                for r in range(0, 4, 2 if self.PK & 2 else 1):
                    if self.PK & 2: x = V(f"v_pk_add_f32 v[{c+r}:{c+r+1}], v[{c+r}:{c+r+1}], v[{xp+r}:{xp+r+1}]", rd=vr(c + r, 2) + vr(xp + r, 2), wr=vr(c + r, 2))
                    else: x = V(f"v_add_f32 v{c+r}, v{c+r}, v{xp+r}", rd=vr(c + r) + vr(xp + r), wr=vr(c + r))
                    if first: x.need_lg = [("bi", l, j)]; first = False
                    seq.append(x)
            self.last_reader[i % 2] = seq[-1]
            if i + 2 < len(tiles):
                r2 = rd(i + 2); r2.after = [seq[-1]]; seq2.append(r2)
        return seq, seq2
    def flag_set(self, val, need):
        v = V(f"v_add_u32 v{vFlagVal}, {val}, v{vBase}", rd=vr(vBase), wr=vr(vFlagVal), need_vm=list(need) + [("fb",)])
        v.minvm = self.T_ST
        st = Ins(f"buffer_store_dword v{vFlagVal}, v{vFlagOff}, {srd(sWS_)}, 0 offen sc1", "T", rd=vr(vFlagVal) + vr(vFlagOff), vm=("fs", val))
        st.lines = 1; st.dl = -3000; st.hard = -3000
        return [v, st]
    def flag_poll(self, val):
        k = val
        ld = Ins(f"buffer_load_dword v{vPoll}, v{vPollOff}, {srd(sWS_)}, 0 offen sc1", "L", rd=vr(vPollOff), wr=vr(vPoll), vm=("fp", val))
        chk = [V(f"v_sub_u32 v{vPoll}, v{vPoll}, v{vBase}", rd=vr(vPoll) + vr(vBase), wr=vr(vPoll), need_vm=[("fp", val), ("fb",)]),
               V(f"v_cmp_gt_u32 vcc, {val}, v{vPoll}", rd=vr(vPoll)),
               S("s_nop 0"),
               Ins(f"s_cbranch_vccnz Lslow{k}\nLback{k}:", "S")]
        self.slow.append(f"""Lslow{k}:
  s_mov_b32 s{sSpin}, 0x{self.SPIN:x}
Lspin{k}:
  buffer_load_dword v{vPoll}, v{vPollOff}, {srd(sWS_)}, 0 offen sc1
  s_waitcnt vmcnt(0)
  v_sub_u32 v{vPoll}, v{vPoll}, v{vBase}
  v_cmp_gt_u32 vcc, {val}, v{vPoll}
  s_sub_u32 s{sSpin}, s{sSpin}, 1
{"  s_add_u32 s90, s90, 0x%x" % (1 << (4 * (k - 1))) if self.prof else ""}
  s_cbranch_vccz Lback{k}
  s_cmp_lg_u32 s{sSpin}, 0
  s_cbranch_scc1 Lspin{k}
  s_branch Lback{k}""")
        return ld, chk
    def out_patterns(self):
        t0, t1 = vT
        return [V(f"v_lshrrev_b32 v{t0}, 4, v{vL16}", rd=vr(vL16), wr=vr(t0)),
                V(f"v_and_b32 v{t1}, 15, v{t0}", rd=vr(t0), wr=vr(t1)),
                V(f"v_mul_u32_u24 v{t1}, {ROWB}, v{t1}", rd=vr(t1), wr=vr(t1)),
                V(f"v_lshrrev_b32 v{t0}, 4, v{t0}", rd=vr(t0), wr=vr(t0)),
                V(f"v_lshlrev_b32 v{t0}, 3, v{t0}", rd=vr(t0), wr=vr(t0)),
                V(f"v_add_u32 v{vOutE}, v{t1}, v{t0}", rd=vr(t0) + vr(t1), wr=vr(vOutE)),
                V(f"v_add_u32 v{vOut}, v{vOutE}, v{t0}", rd=vr(t0) + vr(vOutE), wr=vr(vOut))]

    def prologue(self):
        R = self.raw
        VV = lambda t: self.emit(Ins(t, "V"))
        R("s_cmp_ge_u32 s2, 256\ns_cbranch_scc1 Lend")
        R("s_load_dwordx4 s[64:67], s[0:1], 0\ns_load_dwordx4 s[68:71], s[0:1], 16\ns_load_dwordx4 s[72:75], s[0:1], 32")
        if self.stamps:
            R("s_memrealtime s[80:81]\ns_memtime s[82:83]")
        if self.SPAN: R("s_memrealtime s[88:89]")
        if self.prof:
            R(("s_memrealtime" if self.PRT else "s_memtime") + " s[88:89]\ns_mov_b32 s90, 0")
        VV("v_lshrrev_b32 v31, 6, v0")
        VV("v_and_b32 v0, 63, v0")
        R(f"""s_and_b32 s{sC}, s2, 7
s_lshr_b32 s3, s2, 5""")
        VV(f"v_readfirstlane_b32 s{sWv}, v31")
        R(f"""s_lshl_b32 s55, s3, 2
s_lshl_b32 s3, s3, 3
s_add_u32 s{sC}, s{sC}, s3
s_lshr_b32 s{sQ}, s2, 3
s_and_b32 s{sQ}, s{sQ}, 3
s_mul_i32 s{sWq}, s{sQ}, 384
s_lshl_b32 s3, s{sC}, 2
s_add_u32 s3, s3, s{sWv}
s_mul_i32 s{sRow}, s3, {64 * ROWB}
s_add_u32 s55, s55, s{sWv}
s_mul_i32 s55, s55, {ROWB}
s_mul_i32 s{sW1032}, s{sWv}, 1032
s_lshl_b32 s{sW8}, s{sWv}, 3
s_mul_i32 s{sXRw}, s{sWv}, {XRW}
s_add_u32 s{sXRw}, s{sXRw}, {XR}
s_nop 0""")
        for j in range(8):
            R(f"s_add_u32 s{sJ[j]}, s{sRow}, {j * 8 * ROWB - 1024 * (j & 1)}")
        VV(f"v_lshlrev_b32 v{vL16}, 4, v0")
        VV("v_lshrrev_b32 v20, 3, v0")
        VV("v_and_b32 v21, 7, v0")
        VV("v_and_b32 v23, 6, v20")
        VV("v_lshlrev_b32 v22, 1, v20")
        VV("v_xor_b32 v23, v21, v23")
        VV("v_and_b32 v22, 4, v22")
        VV("v_lshlrev_b32 v23, 4, v23")
        VV(f"v_mul_u32_u24 v24, {ROWB}, v20")
        VV("v_xor_b32 v22, v21, v22")
        VV(f"v_add_u32 v{vPX}, v23, v24")
        VV("v_lshlrev_b32 v22, 4, v22")
        VV(f"v_add_u32 v23, s{sW8}, v20")
        VV(f"v_mul_u32_u24 v23, {ROWB}, v23")
        VV(f"v_add_u32 v{vPW}, v23, v22")
        if self.EARLYPF: self.pf_patterns()
        self.pstamp()
        R("s_waitcnt lgkmcnt(0)")
        self.pstamp()
        self.mk(sX0_, 64, 16384 * ROWB)
        self.mk(sW_, 66, 3 * LSTRIDE)
        if self.CPF:
            self.emit(Ins("s_getpc_b64 s[64:65]\nLpc:", "S"))
            R(f"s_and_b32 s65, s65, 0xffff\ns_mov_b32 s66, Lcode_end-Lpc\ns_mov_b32 s67, 0x20000\ns_lshr_b32 s72, s2, 3\ns_lshl_b32 s72, s72, 2\ns_add_u32 s72, s72, s{sWv}\ns_lshl_b32 s72, s72, 7")
    def prologue2(self):
        R = self.raw
        R(f"""s_lshl_b32 s{sXq}, s{sQ}, 5
s_add_u32 s{sXq}, s{sXq}, 1536
s_lshl_b32 s{sW1024}, s{sWv}, 10
s_lshl_b32 s3, s{sC}, 2
s_add_u32 s3, s3, s{sWv}
s_mul_i32 s{sXb}, s3, 106496
s_add_u32 s{sXb}, s{sXb}, {self.XB0}
s_mov_b32 s{sMask}, 0xffff0000
s_mul_i32 s42, s{sQ}, 24576
s_add_u32 s42, s42, s{sXb}
s_lshr_b32 s43, s{sQ}, 1
s_add_u32 s43, s43, 24
s_lshl_b32 s43, s43, 12
s_and_b32 s3, s{sQ}, 1
s_lshl_b32 s3, s3, 11
s_add_u32 s43, s43, s3
s_add_u32 s43, s43, s{sXb}
s_mul_i32 s76, s{sQ}, 352
s_sub_u32 s76, 1536, s76""")
        for mt in range(4):
            R(f"s_add_u32 s{sOutMt[mt]}, s{sRow}, {mt * 16 * ROWB}\ns_add_u32 s{sOutMt[mt]}, s{sOutMt[mt]}, s{sWq}")
        self.mk(sB_, 68, 3 * ROWB)
        self.mk(sOUT_, 70, 16384 * ROWB)
        self.mk(sWS_, 74, 0x10000000)
        if self.NOST or self.NOLD or self.NOW: self.mk(60, 74, 0)
        self.prologue_rest()
    def mk(self, b, lo, size):
        self.raw(f"s_mov_b32 s{b}, s{lo}\ns_and_b32 s{b+1}, s{lo+1}, 0xffff\ns_mov_b32 s{b+2}, {size}\ns_mov_b32 s{b+3}, 0x20000")
    def prologue_rest(self):
        R = self.raw
        VV = lambda t: self.emit(Ins(t, "V"))
        VV("v_lshrrev_b32 v23, 2, v20")
        VV("v_lshlrev_b32 v23, 4, v23")
        VV("v_and_b32 v24, 3, v20")
        VV("v_add_u32 v23, v23, v24")
        R(f"s_lshl_b32 s3, s{sWv}, 2")
        VV("v_add_u32 v23, s3, v23")
        VV(f"v_mul_u32_u24 v23, {ROWB}, v23")
        VV(f"v_add_u32 v{vPW2}, v23, v22")
        VV("v_lshrrev_b32 v20, 1, v0")
        VV("v_and_b32 v21, 1, v0")
        VV("v_lshlrev_b32 v21, 4, v21")
        VV(f"v_mul_u32_u24 v23, {ROWB}, v20")
        VV(f"v_add_u32 v{vPXE}, v23, v21")
        VV("v_and_b32 v23, 19, v20")
        VV("v_and_b32 v24, 4, v20")
        VV("v_lshlrev_b32 v24, 1, v24")
        VV("v_or_b32 v23, v23, v24")
        VV("v_and_b32 v24, 8, v20")
        VV("v_lshrrev_b32 v24, 1, v24")
        VV("v_or_b32 v23, v23, v24")
        VV(f"v_mul_u32_u24 v23, {ROWB}, v23")
        VV(f"v_add_u32 v{vPE}, v23, v21")
        VV("v_and_b32 v23, 7, v20")
        VV("v_and_b32 v24, 8, v20")
        VV("v_lshlrev_b32 v24, 1, v24")
        VV("v_or_b32 v23, v23, v24")
        VV("v_and_b32 v24, 16, v20")
        VV("v_lshrrev_b32 v24, 1, v24")
        VV("v_or_b32 v23, v23, v24")
        VV(f"v_mul_u32_u24 v23, {ROWB}, v23")
        VV(f"v_add_u32 v{vPE2}, v23, v21")
        VV("v_lshrrev_b32 v20, 4, v0")
        VV("v_and_b32 v21, 15, v0")
        VV("v_lshrrev_b32 v22, 2, v0")
        VV("v_and_b32 v22, 3, v22")
        VV("v_and_b32 v23, 3, v0")
        VV("v_mul_u32_u24 v24, 1032, v20")
        VV("v_lshlrev_b32 v25, 7, v22")
        VV("v_add_u32 v24, v24, v25")
        VV("v_lshlrev_b32 v25, 4, v23")
        VV("v_add_u32 v24, v24, v25")
        VV("v_lshrrev_b32 v25, 1, v22")
        VV("v_lshlrev_b32 v25, 6, v25")
        VV(f"v_add_u32 v{vA[0]}, v24, v25")
        VV("v_sub_u32 v25, 64, v25")
        VV(f"v_add_u32 v{vA[1]}, v24, v25")
        VV("v_lshrrev_b32 v24, 1, v20")
        VV("v_lshlrev_b32 v24, 9, v24")
        VV("v_and_b32 v25, 1, v20")
        VV("v_lshlrev_b32 v25, 7, v25")
        VV("v_add_u32 v24, v24, v25")
        VV("v_lshlrev_b32 v25, 5, v22")
        VV("v_add_u32 v24, v24, v25")
        VV("v_lshlrev_b32 v25, 3, v23")
        VV(f"v_add_u32 v{vA2}, v24, v25")
        VV("v_and_b32 v24, 6, v21")
        VV("v_xor_b32 v24, v20, v24")
        VV("v_lshlrev_b32 v24, 4, v24")
        VV("v_lshlrev_b32 v25, 7, v21")
        VV("v_add_u32 v24, v24, v25")
        VV(f"v_add_u32 v{vX[0]}, s{sXRw}, v24")
        VV(f"v_xor_b32 v{vX[1]}, 64, v{vX[0]}")
        VV("v_lshlrev_b32 v24, 5, v21")
        VV("v_lshlrev_b32 v25, 3, v20")
        VV("v_add_u32 v24, v24, v25")
        VV(f"v_add_u32 v24, s{sXRw}, v24")
        VV(f"v_add_u32 v{vX2}, 24576, v24")
        VV(f"v_lshlrev_b32 v{vL16}, 4, v0")
        VV(f"v_lshlrev_b32 v{vL8}, 3, v0")
        VV("v_lshlrev_b32 v24, 4, v20")
        VV(f"v_add_u32 v{vBias}, {BIAS}, v24")
        R(f"s_lshl_b32 s3, s{sC}, 2\ns_add_u32 s3, s3, s{sWv}\ns_lshl_b32 s3, s3, 9\ns_add_u32 s3, s3, {FBASE}")
        VV("v_and_b32 v24, 3, v0")
        VV("v_lshlrev_b32 v24, 7, v24")
        VV(f"v_add_u32 v{vPollOff}, s3, v24")
        VV(f"v_mov_b32 v{vFlagOff}, 0x7fffff00")
        VV(f"v_cmp_eq_u32 vcc, s{sQ}, v0")
        R("s_nop 1")
        VV(f"v_cndmask_b32 v{vFlagOff}, v{vFlagOff}, v{vPollOff}, vcc")
        if not self.EARLYPF: self.pf_patterns()
        self.bias_prologue()
        R(f"s_lshl_b32 s91, s2, 2\ns_add_u32 s91, s91, s{sWv}\ns_lshl_b32 s91, s91, 12")

    def pf_patterns(self):
        R = self.raw; VV = lambda t: self.emit(Ins(t, "V"))
        R(f"s_lshl_b32 s56, s{sQ}, 4")
        VV("v_and_b32 v26, 15, v0")
        VV("v_lshrrev_b32 v27, 4, v0")
        VV("v_add_u32 v26, s56, v26")
        VV("v_lshlrev_b32 v27, 7, v27")
        VV(f"v_mul_u32_u24 v26, {ROWB}, v26")
        VV(f"v_add_u32 v{vPFX}, v26, v27")
        if self.PXW == 2:
            VV("v_lshrrev_b32 v27, 5, v0")
            VV("v_lshlrev_b32 v27, 30, v27")
            VV(f"v_add_u32 v{vPFX}, v{vPFX}, v27")
        for i in self.pfw_pattern(vPFW, False): self.emit(i)
        if self.PX0W:
            VV(f"v_add_u32 v27, {64 - 16 * self.PX0W}, v0")
            VV("v_lshrrev_b32 v27, 6, v27")
            VV("v_lshlrev_b32 v27, 30, v27")
            VV(f"v_add_u32 v27, v{vPFX}, v27")
        if self.T_WG < 190 or self.T_WGS:
            VV("v_lshlrev_b32 v29, 7, v0")
            VV(f"v_lshrrev_b32 v28, {3 if self.T_WGS else 5}, v0")
            VV("v_min_u32 v28, 1, v28")
            VV("v_lshlrev_b32 v28, 30, v28")
            VV("v_add_u32 v29, v28, v29")
            R(f"s_lshl_b32 s91, s2, 2\ns_add_u32 s91, s91, s{sWv}\ns_lshl_b32 s91, s91, 12")
        if self.PX1:
            VV("v_lshrrev_b32 v28, 4, v0")
            VV("v_min_u32 v28, 1, v28")
            VV("v_lshlrev_b32 v28, 30, v28")
            VV(f"v_add_u32 v28, v{vPFX}, v28")
    def bias_prologue(self):
        R = self.raw; VV = lambda t: self.emit(Ins(t, "V"))
        R(f"s_lshl_b32 s3, s{sWv}, 6")
        VV("v_add_u32 v20, s3, v0")
        VV("v_min_u32 v20, 207, v20")
        VV("v_lshrrev_b32 v21, 4, v20")
        VV("v_and_b32 v22, 15, v20")
        VV("v_lshrrev_b32 v23, 1, v21")
        VV("v_lshlrev_b32 v23, 5, v23")
        VV("v_lshrrev_b32 v24, 2, v22")
        VV("v_lshlrev_b32 v24, 3, v24")
        VV("v_add_u32 v23, v23, v24")
        VV("v_and_b32 v24, 1, v21")
        VV("v_lshlrev_b32 v24, 2, v24")
        VV("v_add_u32 v23, v23, v24")
        VV("v_and_b32 v24, 3, v22")
        VV("v_add_u32 v23, v23, v24")
        R(f"s_mul_i32 s3, s{sQ}, 192")
        VV("v_add_u32 v23, s3, v23")
        R(f"s_lshl_b32 s3, s{sQ}, 4\ns_add_u32 s3, s3, 768")
        VV("v_add_u32 v24, s3, v22")
        VV("v_cmp_eq_u32 vcc, 12, v21")
        R("s_nop 1")
        VV("v_cndmask_b32 v23, v23, v24, vcc")
        VV("v_lshlrev_b32 v23, 1, v23")
        VV("v_lshlrev_b32 v22, 2, v20")
        VV(f"v_add_u32 v22, {BIAS}, v22")
    def bias_loads(self):
        for l in range(3):
            self.emit(Ins(f"buffer_load_ushort v{25+l}, v23, {srd(sB_)}, 0 offen offset:{l*ROWB}", "L", vm=("bl", l)))
            self.vm_step[("bl", l)] = -100
    def bias_write(self):
        a = [V(f"v_lshlrev_b32 v{25+l}, 16, v{25+l}", rd=vr(25 + l), wr=vr(25 + l)) for l in range(3)]
        a[0].need_vm = [("bl", 2)]
        a.append(V("v_add_f32 v25, 1.0, v25", rd=vr(25), wr=vr(25)))
        b = [Ins(f"ds_write_b32 v22, v{25+l} offset:{832*l}", "D", rd=vr(22) + vr(25 + l), lg=("bw", l)) for l in range(3)]
        b[0].after = [a[-1]]
        self.last_reader = [b[-1], b[-1]]
        return a, b

    COST = {"S": 4, "W": 4, "X": 4, "SS": 8, "V": 4, "D": 8, "L": 8, "A": 12, "T": 12}
    def fits(self, kinds):
        t = 4
        for i, k in enumerate(kinds):
            if k == "V": t = max(t, 8) + 4
            else: t += self.COST[k]
            if k == "L" and (i + 1 == len(kinds)): t += 4
            if k == "L" and i + 1 < len(kinds) and kinds[i + 1] != "V": return False
            if k in ("A", "T") and (i != 0 or len(kinds) > 1): return False
        return t <= 16

    def first_step(self, l, gi, u=0):
        for f, st in enumerate(self.steps):
            if st["l"] == l and st["gi"] == gi and st["u"] == u: return f
    def last_step(self, l, gi, u):
        r = None
        for f, st in enumerate(self.steps):
            if st["l"] == l and st["gi"] == gi and st["u"] == u: r = f
        return r
    def group_range(self, l, gi):
        fs = [f for f, st in enumerate(self.steps) if st["l"] == l and st["gi"] == gi]
        return fs[0], fs[-1]

    def build_streams(self):
        NL = self.NL
        self.last_reader = [None, None]
        M1 = []
        M2 = []
        E = []
        E2 = []
        M3 = []
        for n, e in enumerate(self.entries):
            es = -100 if e["jf"] < 0 else self.bars[e["jf"]]
            sq = self.dma_entry(n)
            for i_ in sq: i_.dl = min(self.bars[e["jl"]] - self.LATW, max(es, 0) + self.RSL)
            for i_ in sq: i_.hard = self.bars[e["jl"]] - 14
            sq[-1].lines = 8 if e["kind"] == "m" else 32
            M1.append([es, 0, sq, ("bar", e["jf"])])
        G = self.groups[0]
        slot_of = {}
        for gi, (ks_l, sl_l) in enumerate(G):
            for ks, sl in zip(ks_l, sl_l): slot_of[ks] = (gi, sl)
        def first_use(l, ks):
            for f, st in enumerate(self.steps):
                if st["l"] == l and st["ks"] == ks: return f
        self.first_use = first_use
        def slot_free(l, ks, sl):
            f0 = first_use(l, ks)
            r = -100
            for f in range(f0):
                if self.steps[f]["slot"] == sl: r = f
            return r
        self.stage_reads = {}
        stage_free = {}
        DM = []
        rd_earliest = {}
        for ks in range(26):
            gi, sl = slot_of[ks]
            rd_earliest[ks] = slot_free(0, ks, sl) + 1 if slot_free(0, ks, sl) >= 0 else -100
        cur = -100
        for ks in range(26):
            cur = max(cur, rd_earliest[ks]); rd_earliest[ks] = cur
        self.rd_earliest = rd_earliest
        self.slot_of0 = slot_of
        for line in range(13):
            seq = self.stage_dma(line)
            if line >= 3: seq[0].need_lg = [("xs", 2 * (line - 3) + 1, 3)]
            if line < self.PRO_X: es = -100
            else:
                es = self.T_STG0 + self.T_STGD * (line - self.PRO_X)
                k = 0
                for i_ in seq:
                    i_.earliest = int(es + self.PSP * k); i_.dl = i_.earliest + 8
                    if self.FCAP: i_.dl = first_use(0, min(2 * line, 25)) - self.STDL
                    if i_.kind == "A": k += 1
            M3.append([es, 1, seq, None])
        for u in (0, 3, 1, 2):
            seq = self.reload_dma(u)
            if u < 3: seq[0 if u else 1].need_lg = [("xs", 2 * (10 + u) + 1, 3)]
            es = self.T_RL[u]; k = 0
            for i_ in seq:
                i_.earliest = int(es + self.PSP * k); i_.dl = i_.earliest + 8
                if i_.kind == "A": k += 1
            M3.append([es, 1, seq, None])
        for ks in range(26):
            gi, sl = slot_of[ks]
            M2.append([rd_earliest[ks], 0, self.stage_read(ks, sl), None])
        for l in range(1, NL):
            base = 4 * (l - 1)
            def cls(ks):
                if ks >= 24: return 4
                return [1, 2, 3, 3, 4, 4][ks % 6]
            polled = set()
            lst = []
            for gi, (ks_l, sl_l) in enumerate(self.groups[l]):
                for ks, sl in zip(ks_l, sl_l):
                    lst.append((gi, ks, sl))
            gb0, gb1 = self.group_range(l - 1, 4)
            l0 = gb1 + 1
            exp = {1: l0 + self.T_U0, 2: l0 + self.T_U0B, 3: l0 + self.T_U1, 4: l0 + self.T_U2}
            items = []
            for gi, ks, sl in lst:
                es = max(slot_free(l, ks, sl) + 1, exp[cls(ks)], first_use(l, ks) - (self.XLEADG[gi] or self.XLEAD))
                items.append([es, cls(ks), first_use(l, ks), ks, sl])
            items.sort(key=lambda it: (it[0], it[2]))
            npaced = 0
            for es, c, gi, ks, sl in items:
                seq = []
                if c not in polled:
                    polled.add(c)
                    ld, chk = self.flag_poll(base + c)
                    ld.lines = 4; ld.dl = es - self.T_POLL
                    M2.append([es - self.T_POLL, 2, [ld], None])
                    seq += chk
                xl = self.xload(l, ks, sl)
                for i_ in xl:
                    i_.dl = first_use(l, ks) - self.LATX
                    if i_.kind == "L": i_.lines = 8 if ks < 24 else 4
                    if i_.kind == "L" and self.XPACE and npaced < self.XPN:
                        i_.earliest = int(l0 + self.T_U0 + self.XPACE * npaced); i_.dl = max(i_.earliest + 1, first_use(l, ks) - self.LATX2); npaced += 1
                seq += xl
                M2.append([es, 3, seq, None])
        if NL > 1:
            E.append([self.T_PAT, 0, self.pfw_pattern(vPFX, True), ("pat",)])
        a, b = self.bias_write()
        E.append([self.T_BW, 0, a, None]); E2.append([self.T_BW, 0, b, ("bw",)])
        for l in range(NL):
            g3 = 2
            for u in range(4):
                lastf = self.last_step(l, g3, u)
                a, b = self.bias_unit(l, u)
                E.append([lastf + 2, 1, a, ("bias", l, u)]); E2.append([lastf + 2 - self.E2LEAD, 1, b, None])
            if l == NL - 1:
                E.append([self.group_range(l, 4)[0] + 8, 0, self.out_patterns(), ("outpat",)])
            for u in ([0, 1, 3, 2] if (l == NL - 1 and self.TSPLIT) else range(4)):
                lastf = self.last_step(l, 4, u)
                a, b = self.epi_unit(l, u)
                if l == NL - 1 and u == 2 and self.TSPLIT:
                    for i_ in a[len(a) // 2:]: i_.earliest = lastf + 2
                    lastf = self.tsplit_step
                E.append([lastf + 2, 0, a, None]); E2.append([lastf + 2 - self.E2LEAD, 0, b, ("epi", l, u)])
        if self.ITLB:
            for k in range(2, 21):
                es = max(0, int((4096 * k - 4096 - self.ITLB) / 77))
                if es < self.steps[-1]["e"] * 0 + len(self.steps) - 20:
                    E2.append([es, 5, [Ins(f"s_buffer_load_dword s100, s[64:67], {4096 * k}", "S", lg=None, note="smem")], None])
        PFs = self.pf_streams()
        E.append([self.T_PW0[-1] + 2, 0, self.pfg_pat, None])
        M1.sort(key=lambda x: (x[0], x[1])); M2.sort(key=lambda x: (x[0], x[1])); E.sort(key=lambda x: (x[0], x[1]))
        flat = lambda Q: [(max(es, ins.earliest) if ins.earliest is not None else es, ins, tag, idx == len(seq) - 1) for es, _, seq, tag in Q for idx, ins in enumerate(seq)]
        M3.sort(key=lambda x: (x[0], x[1]))
        E2.sort(key=lambda x: (x[0], x[1]))
        self.PF = flat(PFs)
        self.M1, self.M2, self.E, self.M3, self.E2 = flat(M1), flat(M2), flat(E), flat(M3), flat(E2)

    def try_emit_from(self, Q, f, gap_kinds, allow, post_w):
        if not Q: return False
        es, ins, tag, lastflag = Q[0]
        if es > f: return False
        if isinstance(tag, tuple) and tag[0] == "bar" and tag[1] >= 0 and tag[1] > self.bar_passed: return False
        if ins.kind not in allow: return False
        if ins.note == 'm0' and self.m0_owner is not None: return False
        for a in ins.after:
            if id(a) not in self.issue_step: return False
        for t in ins.need_vm:
            if t not in self.vm_pos: return False
        for t in ins.need_lg:
            if t not in self.lg_pos: return False
        nv, nl = self.wait_for(ins.need_vm, ins.need_lg)
        needw = nv is not None or nl is not None
        kinds = gap_kinds + (["W"] if needw else []) + [ins.kind] + post_w
        if not self.fits(kinds):
            if needw and self.fits(gap_kinds + ["W"] + post_w) and self.wait_ok(ins, f):
                self.emit_wait(ins.need_vm, ins.need_lg); gap_kinds.append("W"); return True
            return False
        if needw and not self.wait_ok(ins, f): return False
        if not self.hazard_ok(ins): return False
        if needw:
            self.emit_wait(ins.need_vm, ins.need_lg); gap_kinds.append("W")
        self.emit(ins); gap_kinds.append(ins.kind)
        if ins.note == 'm0': self.m0_owner = id(Q)
        if ins.kind == 'A' and ins.note != "m0keep": self.m0_owner = None
        self.issue_step[id(ins)] = f
        if ins.vm is not None: self.vm_step[ins.vm] = f
        if ins.kind in ("A", "L", "T") and self.FCAP: self.fifo_push(ins, f)
        if ins.lg is not None: self.lg_step[ins.lg] = f
        Q.pop(0)
        if isinstance(tag, tuple) and tag[0] == "flag": self.flag_step[tag[1]] = f
        if isinstance(tag, tuple) and tag[0] == "pat":
            assert ("pf", "x", self.PX_L[-1]) in self.vm_pos, "prefetch pattern overwrites vPX before reload issued"
            self.pat_done = lastflag
        if ins.vm is not None and ins.vm[0] == "pf" and ins.vm[1] == "w" and ins.vm[2] > 0: assert self.pat_done and ("rl", 3, 1) in self.vm_pos
        if isinstance(tag, tuple) and tag[0] == "outpat":
            assert not any(i.kind == "L" and i.vm[0] == "fp" for _, i, _, _ in self.M2) and not any("v_cmp_gt_u32 vcc" in i.text for _, i, _, _ in self.M2) and not self.F
        if ins.vm is not None and ins.vm[0] == "xo" and ins.vm[2] == 0 and ins.vm[3] == 3 and ins.vm[1] < self.NL - 1:
            l_ = ins.vm[1]; val = 4 * l_ + 1
            self.F += [(f, i_, ("flag", val), False) for i_ in self.flag_set(val, [("xo", l_, 0, i) for i in range(4)])]
        if lastflag and isinstance(tag, tuple) and tag[0] == "epi":
            self.epi_done(tag, f)
        if lastflag and isinstance(tag, tuple) and tag[0] == "bias":
            self.bias_done[(tag[1], tag[2])] = f
        return True
    def fifo_lat(self, ins, f):
        t = ins.vm
        if t is None: return f + self.LD
        if t[0] == "pf":
            if t[1] in ("x", "g"): return f + self.LH
            if t[1] == "w" and t[2] == 0:
                gd = [self.fdone.get(("pf", "g", k)) for k in range(len(self.T_WGS or []))]
                if gd and all(x is not None and x <= f for x in gd): return f + self.LM
                return f + self.LH
            return f + self.LM
        if t[0] == "st":
            cov = [a for k_, a in enumerate(self.PX_L) if a <= t[1] <= a + (1 if a in self.PX1 else self.PX0W if (k_ == 0 and self.PX0W) else self.PXW) - 1 and ("pf", "x", a) in self.fdone]
            if not cov: return f + self.LH
            return max(f, min(self.fdone[("pf", "x", a)] for a in cov)) + self.LD
        if t[0] == "w" and self.entries[t[1]]["l"] == 0:
            j = self.entries[t[1]]["ks"][-1] // 4
            d = self.fdone.get(("pf", "w", 0, j))
            if d is None: return f + self.LH
            return max(f, d) + self.LD
        if t[0] in ("fb", "bl"): return f + self.LH
        return f + self.LD
    def fifo_push(self, ins, f):
        d = max(self.fifo_lat(ins, f), self.fifo[-1][1] if self.fifo else -1000)
        self.fifo.append((ins.lines, d))
        if ins.vm is not None: self.fdone[ins.vm] = d
    def fifo_ok(self, ins, f):
        occ = sum(n for n, d in self.fifo if d > f)
        return occ + ins.lines <= self.FCAP
    def wait_ok(self, ins, f):
        if self.FCAP and f < self.FEND:
            for t in ins.need_vm:
                if t[0] == "st" and self.vm_pos[t] >= self.vm_done and f < self.fdone.get(t, -1000): return False
        for t in ins.need_vm:
            if self.FCAP and f < self.FEND and t[0] == "st": continue
            if self.vm_pos[t] >= self.vm_done and f - self.vm_step.get(t, -1000) < (ins.minvm or self.MIN_VM): return False
        for t in ins.need_lg:
            if self.lg_pos[t] >= self.lg_done and f - self.lg_step.get(t, -1000) < self.MIN_LG: return False
        return True
    def hazard_ok(self, ins):
        if ins.kind in ("V", "D", "L"):
            regs = set(ins.rd) | set(ins.wr) if ins.kind == "V" else set(ins.wr)
            n = 0
            for prev in reversed(self.out):
                if n >= 9: break
                if prev.kind == "M" and (set(prev.wr) & regs): return False
                n += 1 if prev.kind != "SS" else 2
        if ins.kind == "V":
            n = 0
            for prev in reversed(self.out):
                if n >= 2: break
                if prev.kind == "T" and (set(prev.rd) & set(ins.wr)): return False
                n += 1
        if ins.kind == "V" and not getattr(self, "drain", False):
            f, g = self.cur
            nxt = []
            for d in (1, 2):
                gg = g + d; ff = f + gg // 4; gg %= 4
                if ff < self.nsteps: nxt.append(self.mfma(ff, gg))
            for m in nxt:
                if set(m.rd) & set(ins.wr): return False
        if ins.kind == "A":
            if self.out and self.out[-1].note == "m0": return False
        return True
    def epi_done(self, tag, f):
        _, l, u = tag
        self.epi_fin[(l, u)] = f
        if l == self.NL - 1: return
        n = 8 if u < 3 else 4
        tags = [("xo", l, u, i) for i in range(n)]
        val = None
        if u == 0: val = 4 * l + 2
        elif u == 1: val = 4 * l + 3
        elif u == 3: val = 4 * l + 4; tags = tags + [("xo", l, 2, i) for i in range(8)]
        if val is not None:
            self.F += [(f, ins, ("flag", val), False) for ins in self.flag_set(val, tags)]

    def schedule(self):
        self.issue_step = {}; self.vm_step = {}; self.lg_step = {}
        self.pending = []; self.epi_fin = {}; self.bias_done = {}
        self.bar_passed = -1
        self.F = []; self.pat_done = False; self.B = 0.0; self.Bhist = []
        self.fifo = []; self.fdone = {}
        self.m0_owner = None
        N = self.nsteps
        barat = {P: j for j, P in enumerate(self.bars)}
        need_at = {}
        for n, e in enumerate(self.entries): need_at.setdefault(e["jl"], []).append(("w", n))
        self.pro_issue()
        self.emit_wait(need_at.get(0, []), [])
        self.emit(Ins("s_barrier", "X")); self.bar_passed = 0
        self.pstamp()
        for f in range(self.LA):
            for r in self.tr_reads(f): self.emit(r); self.lg_step[r.lg] = -10
        if self.stamps: self.stamp()
        if self.SPAN: self.raw("s_memrealtime s[78:79]\ns_waitcnt lgkmcnt(0)\ns_mov_b32 s79, s78"); self.lg_done = len(self.lgq)
        self.epi_started = set()
        for f in range(N):
            st = self.steps[f]
            if f == 0:
                nv, nl = self.step_needs(0)
                self.emit_wait(nv, nl)
            if st["l"] > 0 and (st["l"], st["u"]) not in self.epi_started:
                self.epi_started.add((st["l"], st["u"]))
                assert (st["l"] - 1, st["u"]) in self.epi_fin, ("epilogue late", st["l"] - 1, st["u"], f, self.epi_fin)
            if self.PROL and f == 0: self.pstamp()
            if self.prof and not self.PROL and f >= self.PS and (f - self.PS) % self.PI == 0 and (f - self.PS) // self.PI <= 60:
                k = (f - self.PS) // self.PI
                if k > 0: self.emit(Ins(f"v_writelane_b32 v0, s86, {k}", "V"))
                self.emit(Ins(("s_memrealtime" if self.PRT else "s_memtime") + " s[86:87]", "S"))
                self.prof_k = k
            nL = 0; dynbar = False; defer_w = None
            for g in range(4):
                self.emit(self.mfma(f, g))
                self.cur = (f, g)
                kinds = []
                if g < 2 and f + self.LA < N:
                    r = self.tr_reads(f + self.LA)[g]
                    if g == 0:
                        pass
                    self.emit(r); self.lg_step[r.lg] = f; kinds.append("D")
                if g == 1 and f + 1 < N:
                    nv, nl = self.step_needs(f + 1)
                    if f in barat: nv = nv + need_at.get(barat[f], [])
                    for val, tags in self.pending:
                        if all(f - self.vm_step[t] >= self.T_ST for t in tags):
                            nv = nv + tags; dynbar = True
                    vready = bool(self.E) and self.E[0][1].kind == "V" and self.E[0][0] <= f
                    if self.WDEF and f >= self.WDEF0 and vready and not (f in barat or dynbar): defer_w = (nv, nl)
                    elif self.emit_wait(nv, nl): kinds.append("W")
                if defer_w is not None and g >= 2:
                    vmready = any(Q and Q[0][0] <= f and (Q[0][1].kind in ("A", "L", "T") or Q[0][1].note == "m0") for Q in (self.F, self.M1, self.M2, self.PF, self.M3, self.E2))
                    if g == 3 or not vmready:
                        if self.emit_wait(*defer_w): kinds.append("W")
                        defer_w = None
                if g == 2 and (f in barat or dynbar):
                    self.emit(Ins("s_barrier", "X")); kinds.append("X")
                    if f in barat: self.bar_passed = barat[f]
                    for val, tags in list(self.pending):
                        if all(self.vm_pos[t] < self.vm_done for t in tags):
                            self.pending.remove((val, tags))
                            seq = self.flag_set(val, tags)
                            self.F += [(f, ins, None, False) for ins in seq]
                            self.flag_step[val] = f
                self.B = max(0.0, self.B - 16 * (self.ETA if f > 215 else self.ETA0))
                progress = True
                allk = ("S", "SS", "V", "A", "L", "T", "D")
                order = [self.F, self.M1, self.M2, self.PF, self.M3, self.E2, self.E]
                while progress:
                    progress = False
                    cands = []
                    for qi, Q in enumerate(order):
                        if Q and (Q[0][1].kind in ("A", "L", "T") or Q[0][1].note == "m0") and Q[0][0] <= f:
                            ins = Q[0][1]
                            dl = ins.dl if ins.dl is not None else Q[0][0] + 10
                            cands.append((dl, qi, Q))
                    cands.sort(key=lambda c: (c[0], c[1]))
                    for dl, qi, Q in cands:
                        ins = Q[0][1]
                        th = self.TH_URG if dl <= f + self.URG else self.TH
                        if ins.note == "m0": th += 16
                        hard = getattr(ins, "hard", None)
                        if self.FCAP and f < self.FEND:
                            vi = ins
                            if vi.kind not in ("A", "L", "T"):
                                vi = next(i_[1] for i_ in Q if i_[1].kind in ("A", "L", "T"))
                            own = self.m0_owner == id(Q)
                            if not own and Q is self.M3 and vi.vm is not None and vi.vm[0] == "st":
                                if self.fifo_lat(vi, f) > f + self.LD: continue
                                nx = next((i_ for i_ in self.PF[:3] if i_[1].kind == "L"), None)
                                nx = next((i_ for i_ in self.PF[:12] if i_[1].kind == "L" and i_[1].vm[1] == "x"), None)
                                if nx is not None and nx[0] <= f and self.vm_pos.get(("st", vi.vm[1], 0)) is None: continue
                            if Q is self.PF and vi.vm is not None and vi.vm[1] == "x":
                                hd = next((i_[1] for i_ in self.M3[:4] if i_[1].kind == "A"), None)
                                if hd is not None and hd.vm[0] == "st" and ("st", hd.vm[1], 0) in self.vm_pos: continue
                            need = vi.lines * (2 if vi.note == "m0keep" else 1)
                            if Q is self.PF and self.PFREE and vi.vm[1] != "x" or (Q is self.PF and vi.vm[1] == "x" and vi.vm[2] in self.PX1): need = -1000
                            if not own and sum(n for n, d in self.fifo if d > f) + need > self.FCAP and not (hard is not None and hard <= f): continue
                            if not own and need > 0 and self.B > self.FTH and not (hard is not None and hard <= f): continue
                        elif self.B > th and not (hard is not None and hard <= f): continue
                        if Q is self.PF and g < 2: continue
                        if self.try_emit_from(Q, f, kinds, allk, []):
                            if ins.kind in ("A", "L", "T"): self.B += ins.lines * (2.5 if (self.FCAP and f < self.FEND and ins.vm is not None and ins.vm[0] == "pf") else self.CPL)
                            progress = True; break
                    if progress: continue
                    for Q in order:
                        if Q and (Q[0][1].kind in ("A", "L", "T") or Q[0][1].note == "m0"): continue
                        if self.try_emit_from(Q, f, kinds, allk, []):
                            progress = True; break
                self.Bhist.append(self.B)
            if self.stamps and f + 1 < N and (self.steps[f + 1]["l"] != st["l"] or (self.steps[f + 1]["gi"] == 4 and st["gi"] == 3)):
                self.stamp()
        self.drain = True
        guard = 0
        assert not self.PF
        while self.M1 or self.M2 or self.E or self.M3 or self.F or self.E2:
            guard += 1
            assert guard < 100000
            done = False
            for Q in (self.F, self.E2, self.E, self.M2, self.M3, self.M1):
                if Q:
                    es, ins, tag, lastflag = Q[0]
                    if any(id(a) not in self.issue_step for a in ins.after): continue
                    if any(t not in self.lg_pos for t in ins.need_lg): continue
                    while not self.hazard_ok(ins): self.emit(Ins("s_nop 0", "S"))
                    self.emit_wait(ins.need_vm, ins.need_lg)
                    while not self.hazard_ok(ins): self.emit(Ins("s_nop 0", "S"))
                    self.emit(ins); Q.pop(0); self.issue_step[id(ins)] = N
                    if ins.vm is not None: self.vm_step[ins.vm] = N
                    if lastflag and isinstance(tag, tuple) and tag[0] == "epi": self.epi_done(tag, N)
                    done = True; break
            assert done
        if self.stamps: self.stamp()
        if self.prof:
            k = (self.prof_k + 1) if not self.PROL else 40
            self.raw(f"""v_writelane_b32 v0, s86, {k}
s_waitcnt vmcnt(0)
{"s_memrealtime" if self.PRT else "s_memtime"} s[86:87]
s_waitcnt lgkmcnt(0)
s_nop 4""")
            self.emit(Ins("v_writelane_b32 v0, s88, 0", "V"))
            if self.PROL:
                for kk in range(self.prol_k):
                    self.emit(Ins(f"v_writelane_b32 v0, s{[60, 62, 78, 80, 82, 100, 100, 100][kk]}, {kk + 1}", "V"))
            if k + 1 < 64: self.emit(Ins(f"v_writelane_b32 v0, s86, {k+1}", "V"))
            self.emit(Ins(f"v_writelane_b32 v0, s90, 63", "V"))
            self.raw(f"""s_lshl_b32 s3, s2, 2
s_add_u32 s3, s3, s{sWv}
s_lshl_b32 s3, s3, 8""")
            self.emit(Ins(f"v_lshrrev_b32 v2, 2, v{vL16}", "V"))
            self.raw("s_nop 4")
            self.emit(Ins(f"buffer_store_dword v0, v2, {srd(sWS_)}, s3 offen", "T"))
            if self.DBGT:
                self.raw(f"""s_load_dwordx2 s[4:5], s[0:1], 32
s_waitcnt lgkmcnt(0)
s_and_b32 s5, s5, 0xffff
s_mov_b32 s6, 64
s_mov_b32 s7, 0x20000""")
                self.emit(Ins("v_subrev_u32 v0, s88, v0", "V"))
                self.raw(f"s_cmp_eq_u32 s{sWv}, 0\ns_cbranch_scc0 Lnodbg")
                self.emit(Ins("buffer_atomic_add v0, v2, s[4:7], 0 offen\nLnodbg:", "T"))

    def step_needs(self, f):
        st = self.steps[f]
        nl = [("wf", f, 0), ("wf", f, 1)]
        nv = []
        for mt in range(4):
            a, b = self.xtags(st["l"], st["ks"], mt)
            for t in a:
                assert t in self.vm_pos, ("x load not issued before use", t, f)
            for t in b:
                assert t in self.lg_pos, ("stage read not issued before use", t, f)
            nv += a; nl += b
        return nv, nl

    def pstamp(self):
        if self.prof and self.PROL:
            k = self.prol_k; self.prol_k += 1
            r = [60, 62, 78, 80, 82, 100, 100, 100][k]
            self.emit(Ins(f"s_memtime s[{r}:{r+1}]", "S"))
    def pro_issue(self):
        def take(Q, pred):
            out = []
            while Q and pred(Q[0]): out.append(Q.pop(0))
            return out
        items = take(self.M1, lambda it: it[0] <= -50) + take(self.M3, lambda it: it[0] <= -50)
        seqs = []; cur = []
        for it in items:
            cur.append(it[1])
            if it[1].kind == "A": seqs.append(cur); cur = []
        wseq = [s for s in seqs if s[-1].vm[0] == "w"]; xseq = [s for s in seqs if s[-1].vm[0] == "st"]
        nW, nX = self.PRO_W, self.PRO_X
        assert 4 * nW >= 12
        rest_w = wseq[nW:]; rest_x = xseq[8 * nX:]
        self.M1[0:0] = [(-40, ins, ("bar", -1), False) for s in rest_w for ins in s]
        self.M3[0:0] = [(-40, ins, None, False) for s in rest_x for ins in s]
        def emit_seqs(L):
            for s in L:
                for k, ins in enumerate(s):
                    if ins.kind == "A" and self.out[-1].note == "m0": self.emit(Ins("s_nop 0", "S"))
                    self.emit(ins)
                    if ins.vm is not None: self.vm_step[ins.vm] = -100
                    if ins.vm is not None: self.fifo_push(ins, self.PRO_T)
        for tok in self.PORD:
            if tok.startswith("pf"):
                lim = int(tok[2:])
                while self.PF and self.PF[0][0] <= lim:
                    es, ins, tag, lf = self.PF.pop(0)
                    self.emit(ins); self.issue_step[id(ins)] = -100
                    if ins.vm is not None: self.vm_step[ins.vm] = -100
                    if ins.vm is not None: self.fifo_push(ins, self.PRO_T)
            elif tok[0] == "x": n = int(tok[1:]); assert n < nX; emit_seqs(xseq[8 * n:8 * n + 8])
            elif tok == "wA": emit_seqs(wseq[0:3])
            elif tok == "wB": emit_seqs(wseq[3:nW])
            elif tok == "p2": self.prologue2()
            elif tok == "fb":
                self.emit(Ins(f"buffer_load_dword v{vBase}, v{vPollOff}, {srd(sWS_)}, 0 offen sc1", "L", vm=("fb",)))
                self.vm_step[("fb",)] = -100
                self.bias_loads()
            elif tok == "st": self.pstamp()
            elif tok.startswith("wait"):
                n = int(tok[4:]); self.emit(Ins(f"s_waitcnt vmcnt({n})", "W")); self.vm_done = max(self.vm_done, len(self.vmq) - n)
            else: assert 0, tok
        self.pstamp()
        n = 0
        while self.M2 and n < 8:
            es, ins, tag, lf = self.M2[0]
            assert ins.kind == "D"
            self.emit_wait(ins.need_vm, ins.need_lg)
            self.emit(ins); self.M2.pop(0); n += 1
            if ins.lg is not None: self.lg_step[ins.lg] = -100
        self.pstamp()

    def pf_streams(self):
        PF = []
        def ld(pat, dst, base, soff, tag, pre=(), off=0):
            i = Ins(f"buffer_load_dword v{dst}, v{pat}, {srd(base)}, {soff} offen" + (f" offset:{off}" if off else ""), "L", rd=vr(pat), wr=vr(dst), vm=tag)
            i.lines = {"x": 16 * self.PXW, "w": 16, "g": 32}[tag[1]]
            return list(pre) + [i]
        t = 54
        for k, (a, es) in enumerate(zip(self.PX_L, self.T_PX)):
            PF.append([es, 0, ld(27 if (k == 0 and self.PX0W) else vPFX, vPoll, sX0_, f"s{t}", ("pf", "x", a), [S(f"s_add_u32 s{t}, s{sRow}, {128 * a}")]), None])
            if k == 0 and self.PX0W: PF[-1][2][-1].lines = 16 * self.PX0W; assert es <= -90
            if a in self.PX1:
                PF[-1] = [es, 0, ld(28, vPoll, sX0_, f"s{t}", ("pf", "x", a), [S(f"s_add_u32 s{t}, s{sRow}, {128 * a}")]), None]
                PF[-1][2][-1].lines = 16; assert es < self.T_PAT - 5
        if self.CPF:
            for k, es in enumerate(self.T_CPF):
                i = Ins(f"buffer_load_dword v{vPoll if es < 200 else vPXE}, off, s[64:67], s{t}", "L", vm=("pf", "c", k)); i.lines = 1
                PF.append([es, 2, [S(f"s_add_u32 s{t}, s72, {self.CPS * k}"), i], None])
            if self.T_CPG is not None:
                i = Ins(f"buffer_load_dword v{vPoll}, off, s[64:67], s{t}", "L", vm=("pf", "cg", 0)); i.lines = 1
                PF.append([self.T_CPG, 3, [S(f"s_lshl_b32 s{t}, s2, 2"), S(f"s_add_u32 s{t}, s{t}, s{sWv}"), S(f"s_lshl_b32 s{t}, s{t}, 7"), i], None])
        for j, es in enumerate(self.T_PW0):
            PF.append([es, 1, ld(vPFW, vPoll, sW_, f"s{t}", ("pf", "w", 0, j), [S(f"s_mov_b32 s{t}, {4 * j * KSB}")]), None])
        lastw0 = PF[-1][2][-1]
        t0 = vT[0]
        pat = [V(f"v_lshlrev_b32 v{vPFG}, 3, v{vL16}", rd=vr(vL16), wr=vr(vPFG)),
               V(f"v_lshrrev_b32 v{t0}, 9, v{vL16}", rd=vr(vL16), wr=vr(t0)),
               V(f"v_lshlrev_b32 v{t0}, 30, v{t0}", rd=vr(t0), wr=vr(t0)),
               V(f"v_add_u32 v{vPFG}, v{vPFG}, v{t0}", rd=vr(t0) + vr(vPFG), wr=vr(vPFG))]
        pat[0].after = [lastw0]
        if self.T_WGS:
            self.pfg_pat = []
            for k, es in enumerate(self.T_WGS):
                gi_ = ld(29, vPoll, sW_, f"s{t}", ("pf", "g", k), [S(f"s_add_u32 s{t}, s91, {1024 * k}")])
                gi_[-1].lines = 8
                PF.append([es, 1, gi_, None])
            g = None
        elif self.T_WG < 190:
            self.pfg_pat = []
            g = ld(29, vPoll, sW_, "s91", ("pf", "g"))
        else:
            self.pfg_pat = pat
            g = ld(vPFG, vPoll, sW_, "s91", ("pf", "g"))
            g[-1].after = [pat[-1]]
        if g is not None: PF.append([self.T_WG, 0, g, None])
        if self.NL > 1:
            pass
            for l in range(1, self.NL):
                l0 = self.group_range(l - 1, 4)[1] + 1
                for j, dt in enumerate(self.T_PWL):
                    PF.append([l0 + dt, 1, ld(vPFX, vPXE, sW_, f"s{t}", ("pf", "w", l, j), [S(f"s_mov_b32 s{t}, {(0 if self.NOW else l) * LSTRIDE + j * KSB}")]), None])
        PF.sort(key=lambda x: (x[0], x[1]))
        return PF
    def pfw_pattern(self, dst, perm):
        t0, t1 = vT
        seq = [V(f"v_lshrrev_b32 v{t0}, 6, v{vL16}", rd=vr(vL16), wr=vr(t0)),
               V(f"v_mul_u32_u24 v{dst}, {(6 if perm else 1) * KSB}, v{t0}", rd=vr(t0), wr=vr(dst)),
               V(f"v_lshrrev_b32 v{t0}, 2, v{t0}", rd=vr(t0), wr=vr(t0)),
               V(f"v_min_u32 v{t0}, 1, v{t0}", rd=vr(t0), wr=vr(t0)),
               V(f"v_lshlrev_b32 v{t0}, 30, v{t0}", rd=vr(t0), wr=vr(t0)),
               V(f"v_and_b32 v{dst}, 0x3fffffff, v{dst}", rd=vr(dst), wr=vr(dst)),
               V(f"v_add_u32 v{dst}, v{dst}, v{t0}", rd=vr(t0) + vr(dst), wr=vr(dst)),
               V(f"v_lshrrev_b32 v{t0}, 4, v{vL16}", rd=vr(vL16), wr=vr(t0)),
               V(f"v_and_b32 v{t0}, 3, v{t0}", rd=vr(t0), wr=vr(t0)),
               V(f"v_lshlrev_b32 v{t1}, 7, v{t0}", rd=vr(t0), wr=vr(t1)),
               V(f"v_add_u32 v{t1}, s{sWq}, v{t1}", rd=vr(t1), wr=vr(t1)),
               V(f"v_cmp_eq_u32 vcc, 3, v{t0}", rd=vr(t0)),
               V(f"v_mov_b32 v{t0}, 0x600", wr=vr(t0)),
               V(f"v_cndmask_b32 v{t1}, v{t1}, v{t0}, vcc", rd=vr(t0) + vr(t1), wr=vr(t1)),
               V(f"v_add_u32 v{dst}, v{dst}, v{t1}", rd=vr(dst) + vr(t1), wr=vr(dst)),
               V(f"v_add_u32 v{dst}, s55, v{dst}", rd=vr(dst), wr=vr(dst))]
        return seq

    def stamp(self):
        k = self.nstamp; self.nstamp += 1
        if k < 8:
            self.emit(Ins(f"s_memtime s[{86 + 2*k}:{87 + 2*k}]", "S"))

    def check(self):
        out = self.out
        errs = 0
        for i, ins in enumerate(out):
            if ins.kind == "M":
                n = 0
                for prev in reversed(out[max(0, i - 4):i]):
                    if n >= 2: break
                    if prev.kind == "V" and set(prev.wr) & set(ins.rd):
                        print("HAZARD V->M", i, prev.text, "|", ins.text, file=sys.stderr); errs += 1
                    n += 1
            if ins.kind == "V":
                n = 0
                for prev in reversed(out[max(0, i - 10):i]):
                    if n >= 8: break
                    if prev.kind == "M" and set(prev.wr) & (set(ins.rd) | set(ins.wr)):
                        print("HAZARD M->V", i, prev.text, "|", ins.text, file=sys.stderr); errs += 1
                    n += 1
        return errs

    def text(self):
        NL = self.NL
        L = []
        L.append("""; Kernarg layout for this problem (48 bytes, ptrs only, base s[0:1]):
;   offset   0: d_in[0] x0  shape=(16384, 832) dtype=bfloat16 strides=(1664, 2) contiguous=True
;   offset   8: d_in[1] ws  shape=(3, 832, 832) dtype=bfloat16 strides=(1384448, 1664, 2) contiguous=True
;   offset  16: d_in[2] bs  shape=(3, 832) dtype=bfloat16 strides=(1664, 2) contiguous=True
;   offset  24: d_out     shape=(16384, 832) dtype=bfloat16 (2 bytes/elem)
;   offset  32: d_debug   256 bytes
;   offset  40: d_ws      268435456 bytes workspace
; cluster of 4 workgroups = 256 rows; each workgroup owns 208 output features; layers exchange x through d_ws.""")
        L.append("; @launch grid=(256,1,1) block=(256,1,1) lds=163840")
        L.append('.amdgcn_target "amdgcn-amd-amdhsa--gfx950"')
        L.append(".text")
        L.append(f".globl {KNAME}\n.p2align 8\n.type {KNAME},@function\n{KNAME}:")
        for ins in self.out: L.append("  " + ins.text)
        if self.stamps:
            L.append("  s_memtime s[84:85]\n  s_memrealtime s[78:79]\n  s_waitcnt lgkmcnt(0)")
            L.append(f"  s_lshl_b32 s3, s2, 7\n  v_mov_b32 v2, s3\n  v_cmp_eq_u32 vcc, 0, v{vL16}\n  s_cmp_eq_u32 s{sWv}, 0\n  s_cbranch_scc0 Lnost\n  s_and_saveexec_b64 s[4:5], vcc")
            regs = [80, 82, 78, 84] + [86 + 2 * k for k in range(min(self.nstamp, 8))]
            for i, s in enumerate(regs):
                L.append(f"  v_mov_b32 v6, s{s}\n  v_mov_b32 v7, s{s+1}\n  buffer_store_dwordx2 v[6:7], v2, {srd(sWS_)}, 0 offen offset:{8*i}\n  s_nop 1")
            L.append("Lnost:")
        if self.SPAN:
            L.append(f"""  s_waitcnt vmcnt(0)
  s_memrealtime s[86:87]
  s_load_dwordx2 s[4:5], s[0:1], 32
  s_waitcnt lgkmcnt(0)
  s_and_b32 s5, s5, 0xffff
  s_mov_b32 s6, 256
  s_mov_b32 s7, 0x20000
  s_not_b32 s3, s88
  s_not_b32 s87, s86
  v_mov_b32 v2, s3
  v_writelane_b32 v2, s86, 1
  v_writelane_b32 v2, s88, 2
  v_writelane_b32 v2, s87, 3
  v_writelane_b32 v2, s79, 4
  s_not_b32 s79, s79
  v_writelane_b32 v2, s79, 5
  v_lshrrev_b32 v3, 2, v{vL16}
  v_cmp_gt_u32 vcc, 24, v3
  v_mov_b32 v4, 0x7fffff00
  v_cndmask_b32 v3, v4, v3, vcc
  s_cmp_eq_u32 s{sWv}, 0
  s_cbranch_scc0 Lnospan
  buffer_atomic_umax v2, v3, s[4:7], 0 offen""")
            L.append("Lnospan:")
        L.append("  s_waitcnt vmcnt(0)")
        L.append("Lend:\n  s_endpgm")
        L += self.slow
        L.append("Lcode_end:")
        L.append('.section .rodata,"a"\n.p2align 6')
        L.append(f".amdhsa_kernel {KNAME}")
        L.append("  .amdhsa_next_free_vgpr 512\n  .amdhsa_next_free_sgpr 102\n  .amdhsa_accum_offset 256\n  .amdhsa_group_segment_fixed_size 0\n  .amdhsa_kernarg_size 48\n  .amdhsa_user_sgpr_count 2\n  .amdhsa_user_sgpr_kernarg_segment_ptr 1\n  .amdhsa_system_sgpr_workgroup_id_x 1\n.end_amdhsa_kernel")
        return "\n".join(L) + "\n"

    LA = 3
    WDEF = 1
    FCAP = 0; FEND = 200; FTH = 150; LH = 28; LM = 12; LD = 5; PRO_T = -30; PXW = 2; STDL = 14; WDEF0 = 0; PX0W = 0; PX1 = (); PFREE = 0
    ITLB = 0
    CPS = 8192; T_CPG = -94; T_WGS = [-59, -58, 8, 31]
    TSPLIT = 9
    DBGT = 0
    SPAN = 0
    XPACE = 2; XPN = 12; LATX2 = 30; T_U0B = 0
    PK = 0; XLEADG = [36, 0, 30, 36, 50]
    EARLYPF = 0
    PORD = ["pf-90", "x0", "wA", "wB", "x1", "st", "p2", "fb", "pf-50"]
    PRT = 0
    CPF = 1; T_CPF = [-95, 30, 128, 230, 330, 420, 530, 635, 740, 850]
    XMODE = 0
    XB0 = XBASE
    ETA0 = 1.3
    RSL = 2
    ETA = 1.0; CPL = 9; TH = 120; TH_URG = 280; URG = 2; LATW = 16; LATX = 20; T_STG0 = 8; T_STGD = 15; PSP = 1.6; T_RL = [185, 228, 262, 214]
    PROL = 0; T_BW = 20; PRO_W = 6; PRO_X = 2; PX_L = [2, 4, 6, 8, 10, 12]; T_PX = [7, 30, 56, 82, 108, 134]; T_PW0 = [-60, 9, 32, 70, 90, 110, 126]; T_WG = 226; T_PWL = [-90, -70, 20, 60, 90, 110, 120, 130]; T_PAT = 200; AGE2 = 12; T_PWA = -100; T_PWB = 70; AGE = 16
    NOST = 0; NOLD = 0; NOW = 0
    LDP = 2; STP = 2; OUTP = 4
    IV = 12
    PS = 0; PI = 17
    T_U0 = -36; T_U1 = 50; T_U2 = 120; XLEAD = 26; SPIN = 0x8000; E2LEAD = 2; T_POLL = 16; T_ST = 18; MAXL = 2
    MIN_VM = 10; MIN_LG = 1

    def run(self):
        self.flag_step = {}
        self.plan()
        self.prologue()
        self.build_streams()
        self.schedule()
        errs = self.check()
        return errs

if __name__ == "__main__":
    ap = argparse.ArgumentParser()
    ap.add_argument("-o", default="k.s")
    ap.add_argument("--nl", type=int, default=3)
    ap.add_argument("--interval", type=int, default=12)
    ap.add_argument("--stamps", action="store_true")
    ap.add_argument("--prof", action="store_true")
    ap.add_argument("--set", action="append", default=[])
    a = ap.parse_args()
    for kv in a.set:
        k, v = kv.split("="); setattr(Gen, k, eval(v))
    g = Gen(NL=a.nl, interval=Gen.IV, stamps=a.stamps, prof=a.prof)
    errs = g.run()
    open(a.o, "w").write(g.text())
    from collections import Counter
    print("instrs", len(g.out), Counter(i.kind for i in g.out), "hazard errs", errs, "minlead(steps)", g.minlead, file=sys.stderr)
    print("xload steps", {k: v for k, v in g.vm_step.items() if k[0] in ("x", "fp", "fs") and (k[0] != "x" or k[3] == 3)}, file=sys.stderr)
    import statistics
    print("B mean", statistics.mean(g.Bhist), "max", max(g.Bhist), "frac>150", sum(b > 150 for b in g.Bhist) / len(g.Bhist), file=sys.stderr)
    leads = [g.bars[e["jl"]] - g.vm_step[("w", n)] for n, e in enumerate(g.entries) if g.vm_step[("w", n)] > -50]
    print("ring leads min/mean", min(leads), statistics.mean(leads), "hist", sorted(leads)[:20], file=sys.stderr)
    print("stage", {k: v for k, v in g.vm_step.items() if k[0] in ("st", "rl") and k[2] in (0, 7)}, file=sys.stderr)
    print("pf", {k: v for k, v in g.vm_step.items() if k[0] == "pf"}, file=sys.stderr)
    print("epi_fin", g.epi_fin, "bias", g.bias_done, "flags", g.flag_step, "nsteps", g.nsteps, file=sys.stderr)
```

```python
import sys, argparse

KNAME = "standalone__dcn_v2_cross__recsys_kernel"
D = 832; ROWB = 1664
LSTRIDE = D * ROWB
KSB = 32 * ROWB
RING = 54848
BIAS = 54848
XR = 57344
XRW = 26624
XBASE = 0x100000
FBASE = 0x40000
XLAYER = 64 * 4 * 106496
CH = 4128
XB = 4096

ACC0 = 48
def acc(j, mt): return ACC0 + 16 * j + 4 * mt
WF0 = 32; NB = 4
def wf(f): return WF0 + 4 * (f % NB)
vA = [1, 2]; vA2 = 3
vPW = 4; vPW2 = 5; vPE = 6; vPE2 = 7
vX = [8, 9]; vX2 = 10
vL16 = 11; vL8 = 12
vPX = 13; vOut = 30
vPXE = 14; vOutE = 31
vBias = 15
vFlagOff = 16; vFlagVal = 17; vPollOff = 18; vPoll = 19; vBase = 30
vPFX = 31; vPFW = 17; vPFG = 17
vXP = [20, 24]
vT = [28, 29]
vDummy = 0
sW_ = 8; sX0_ = 12; sOUT_ = 16; sWS_ = 20; sDBG_ = 24; sB_ = 28
sQ = 32; sC = 33; sWv = 34; sWq = 35; sW1032 = 36; sW8 = 37; sXq = 38; sW1024 = 39
sXb = 40; sRow = 41; sMask = 44; sXRw = 45
sOutMt = [46, 47, 48, 49]
sT = [50, 51, 52, 53, 54, 55]
sXs = [56, 57]
sXt = [77, 84]
sP = 58
sSpin = 59
sJ = [92, 93, 94, 95, 96, 97, 98, 99]
sStamp = 60
def srd(b): return f"s[{b}:{b+3}]"

class Ins:
    __slots__ = ("text", "kind", "rd", "wr", "vm", "lg", "need_vm", "need_lg", "earliest", "label", "note", "after", "minvm", "dl", "lines", "hard")
    def __init__(self, text, kind, rd=(), wr=(), vm=None, lg=None, need_vm=None, need_lg=None, earliest=None, note=None):
        self.text = text; self.kind = kind; self.rd = tuple(rd); self.wr = tuple(wr)
        self.vm = vm; self.lg = lg; self.need_vm = need_vm or []; self.need_lg = need_lg or []
        self.earliest = earliest; self.note = note; self.after = []; self.minvm = None; self.dl = None; self.lines = 8; self.hard = None
def vr(b, n=1): return [("v", b + i) for i in range(n)]
def ar(b, n=1): return [("a", b + i) for i in range(n)]

def S(t, **k): return Ins(t, "S", **k)
def V(t, rd=(), wr=(), **k): return Ins(t, "V", rd=rd, wr=wr, **k)

class Gen:
    def __init__(self, NL=3, interval=12, dbg=None, stamps=False, prof=False):
        self.prof = prof; self.prol_k = 0
        self.NL = NL; self.interval = interval; self.stamps = stamps
        self.out = []
        self.vmq = []; self.vm_done = 0; self.vm_pos = {}
        self.lgq = []; self.lg_done = 0; self.lg_pos = {}
        self.slow = []
        self.tcount = 0
        self.nstamp = 0

    def emit(self, ins):
        if ins.vm is not None:
            assert ins.vm not in self.vm_pos, ins.vm
            self.vm_pos[ins.vm] = len(self.vmq); self.vmq.append(ins.vm)
        if ins.lg is not None:
            assert ins.lg not in self.lg_pos, ins.lg
            self.lg_pos[ins.lg] = len(self.lgq); self.lgq.append(ins.lg)
        self.out.append(ins)
    def wait_for(self, need_vm, need_lg):
        nv = None; nl = None
        for t in need_vm:
            p = self.vm_pos[t]
            if p >= self.vm_done:
                n = len(self.vmq) - 1 - p
                nv = n if nv is None else min(nv, n)
        for t in need_lg:
            p = self.lg_pos[t]
            if p >= self.lg_done:
                n = len(self.lgq) - 1 - p
                nl = n if nl is None else min(nl, n)
        return nv, nl
    def emit_wait(self, need_vm, need_lg):
        nv, nl = self.wait_for(need_vm, need_lg)
        if nv is None and nl is None: return False
        parts = []
        if nv is not None:
            nv = min(nv, 63); parts.append(f"vmcnt({nv})"); self.vm_done = max(self.vm_done, len(self.vmq) - nv)
        if nl is not None:
            nl = min(nl, 15); parts.append(f"lgkmcnt({nl})"); self.lg_done = max(self.lg_done, len(self.lgq) - nl)
        self.emit(Ins("s_waitcnt " + " ".join(parts), "W"))
        return True
    def raw(self, text, kind="S", **k):
        for line in text.strip().split("\n"):
            self.emit(Ins(line.strip(), kind, **k))
    def xch(self, l):
        if self.XMODE == 2: return (sOUT_, -self.XB0) if l == 0 else (sWS_, 0)
        if self.XMODE == 1: return (sWS_, 0)
        return (sWS_, l * XLAYER)
    def pol(self, p):
        return ("", " sc0", " sc1", " sc0 sc1", " nt", " sc0 nt", " sc1 nt", " sc0 sc1 nt")[p]
    def stemp(self, stream=0):
        self.tcount += 1
        return sT[2 * stream + self.tcount % 2]

    def plan(self):
        NL = self.NL
        self.groups = []
        for l in range(NL):
            if l == 0:
                G = [[0, 1, 2], [3, 4, 5], [6, 7, 8, 9], [10, 11, 12], list(range(13, 26))]
            else:
                G = [[0, 6, 12], [18, 1, 7], [13, 19, 2, 8], [14, 20, 3],
                     [9, 15, 21, 4, 10, 16, 22, 5, 11, 17, 23, 24, 25]]
            SL = [[13, 14, 15], [0, 1, 2], [3, 4, 5, 6], [13, 14, 15], [7, 8, 9, 10, 11, 12, 0, 1, 2, 3, 4, 5, 6]]
            self.groups.append(list(zip(G, SL)))
        self.entries = []
        self.steps = []
        def seg_main(l, gi, u, lst):
            for ks, sl in lst:
                e = dict(kind="m", l=l, u=u, ks=[ks], size=CH, gi=gi, first=len(self.steps))
                self.entries.append(e)
                for sb in range(2):
                    for ee in range(2):
                        self.steps.append(dict(e=len(self.entries) - 1, j=4 * u + 2 * sb + ee, ks=ks, slot=sl,
                                               va=vA[sb], rel=8 * ee, rdoff=512, l=l, gi=gi, u=u))
                e["last"] = len(self.steps) - 1
        def seg_extra(l, gi, bt):
            e = dict(kind="x", l=l, u=3, ks=[k for k, _ in bt], size=XB, gi=gi, first=len(self.steps))
            self.entries.append(e)
            for i, (ks, sl) in enumerate(bt):
                self.steps.append(dict(e=len(self.entries) - 1, j=12, ks=ks, slot=sl,
                                       va=vA2, rel=1024 * i, rdoff=256, l=l, gi=gi, u=3))
            e["last"] = len(self.steps) - 1
        for l in range(NL):
            gl = [list(zip(G, SL)) for (G, SL) in self.groups[l]]
            a, b = gl[0], gl[1]
            if l == 0:
                for gi_, lst_ in ((0, a), (1, b)):
                    for it in lst_:
                        for u in range(3): seg_main(l, gi_, u, [it])
            else:
                seg_main(l, 0, 0, a); seg_main(l, 0, 1, a); seg_main(l, 1, 0, b); seg_main(l, 1, 1, b)
                seg_main(l, 0, 2, a); seg_main(l, 1, 2, b)
            ab = a + b
            seg_extra(l, 1, ab[0:4]); seg_extra(l, 1, ab[4:6])
            for gi in (2, 3, 4):
                lst = gl[gi]
                if gi == 4 and l == NL - 1 and self.TSPLIT:
                    seg_main(l, gi, 0, lst); seg_main(l, gi, 1, lst)
                    for bt in [lst[0:4], lst[4:8], lst[8:11], lst[11:13]]: seg_extra(l, gi, bt)
                    ns = self.TSPLIT
                    seg_main(l, gi, 2, lst[:13 - ns])
                    es_ = []
                    for ks, sl in lst[13 - ns:]:
                        e = dict(kind="m", l=l, u=2, ks=[ks], size=CH, gi=gi, first=len(self.steps))
                        self.entries.append(e); es_.append((len(self.entries) - 1, ks, sl))
                        for ee in range(2):
                            self.steps.append(dict(e=len(self.entries) - 1, j=8 + ee, ks=ks, slot=sl, va=vA[0], rel=8 * ee, rdoff=512, l=l, gi=gi, u=2))
                    self.tsplit_step = len(self.steps) - 1
                    for n_, ks, sl in es_:
                        for ee in range(2):
                            self.steps.append(dict(e=n_, j=10 + ee, ks=ks, slot=sl, va=vA[1], rel=8 * ee, rdoff=512, l=l, gi=gi, u=2))
                        self.entries[n_]["last"] = len(self.steps) - 1
                    continue
                for u in range(3): seg_main(l, gi, u, lst)
                if gi < 4: batches = [lst]
                elif l == 0: batches = [lst[0:4], lst[4:8], lst[8:12], lst[12:13]]
                else: batches = [lst[0:4], lst[4:8], lst[8:11], lst[11:13]]
                for bt in batches: seg_extra(l, gi, bt)
        self.nsteps = len(self.steps)
        seen = set()
        for st in self.steps:
            if st["j"] not in seen: seen.add(st["j"]); st["init"] = True
        iv = self.interval
        LA = self.LA
        self.bars = [-LA - 1]
        b_ = min(iv, self.IV0) - LA - 1
        while b_ < self.nsteps - LA - 1:
            self.bars.append(b_)
            b_ += self.IVE if b_ >= self.nsteps - self.IVT else (self.IV0 if b_ < self.IVS else iv)
        pos = 0
        live = []
        for n, e in enumerate(self.entries):
            if pos + e["size"] > RING: pos = 0
            e["base"] = pos; s0, s1 = pos, pos + e["size"]
            ov = [m for (m, a, b) in live if a < s1 and s0 < b]
            live = live + [(n, s0, s1)]
            lastneed = max([self.entries[m]["last"] for m in ov], default=None)
            if lastneed is None: e["jf"] = -1
            else:
                e["jf"] = next(j for j, P in enumerate(self.bars) if lastneed <= P + 1)
            e["jl"] = max(j for j, P in enumerate(self.bars) if P + LA + 1 <= e["first"] or j == 0)
            assert e["jf"] < e["jl"] or e["jf"] == -1, (n, e)
            pos = s1
        self.minlead = min((self.bars[e["jl"]] - self.bars[e["jf"]]) for e in self.entries if e["jf"] >= 0)

    def tr_reads(self, f):
        st = self.steps[f]; e = self.entries[st["e"]]
        r = wf(f)
        res = []
        for rd in range(2):
            off = e["base"] + st["rel"] + rd * st["rdoff"]
            res.append(Ins(f"ds_read_b64_tr_b16 v[{r+2*rd}:{r+2*rd+1}], v{st['va']} offset:{off}", "D",
                           rd=vr(st["va"]), wr=vr(r + 2 * rd, 2), lg=("wf", f, rd)))
        return res
    def mfma(self, f, mt):
        st = self.steps[f]
        c = acc(st["j"], mt); a = wf(f); b = 16 * st["slot"] + 4 * mt
        if st.get("init"):
            return Ins(f"v_mfma_f32_16x16x32_bf16 v[{c}:{c+3}], v[{a}:{a+3}], a[{b}:{b+3}], 0", "M",
                       rd=vr(a, 4) + ar(b, 4), wr=vr(c, 4))
        return Ins(f"v_mfma_f32_16x16x32_bf16 v[{c}:{c+3}], v[{a}:{a+3}], a[{b}:{b+3}], v[{c}:{c+3}]", "M",
                   rd=vr(a, 4) + ar(b, 4) + vr(c, 4), wr=vr(c, 4))
    def dma_entry(self, n):
        e = self.entries[n]; l = e["l"]
        t = self.stemp()
        if e["kind"] == "m":
            ks = e["ks"][0]
            const = (0 if self.NOW else l) * LSTRIDE + ks * KSB + 128 * e["u"]
            pat = vPW2 if (l > 0 and ks >= 24) else vPW
            seq = [S(f"s_add_u32 s{t}, s{sWq}, {const}"),
                   S(f"s_add_u32 m0, s{sW1032}, {e['base']}", note="m0"),
                   Ins(f"buffer_load_dwordx4 v{pat}, {srd(sW_)}, s{t} offen lds", "A", rd=vr(pat), vm=("w", n))]
        else:
            ks = e["ks"] + [e["ks"][-1]] * (4 - len(e["ks"]))
            lit = 0
            for i, k in enumerate(ks): lit |= (26 * (0 if self.NOW else l) + k) << (8 * i)
            pat = vPE2 if (l > 0 and ks[0] >= 24) else vPE
            seq = [S(f"s_lshr_b32 s{t}, 0x{lit:x}, s{sW8}"),
                   S(f"s_and_b32 s{t}, s{t}, 0xff"),
                   S(f"s_mul_i32 s{t}, s{t}, {KSB}"),
                   S(f"s_add_u32 s{t}, s{t}, s{sXq}"),
                   S(f"s_add_u32 m0, s{sW1024}, {e['base']}", note="m0"),
                   Ins(f"buffer_load_dwordx4 v{pat}, {srd(sW_)}, s{t} offen lds", "A", rd=vr(pat), vm=("w", n))]
        return seq
    def xload(self, l, ks, slot):
        t = sXs[(ks + l) % 2]
        xs, xo = self.xch(l - 1)
        seq = [S(f"s_add_u32 s{t}, s{sXb}, {(xo + 4096 * ks) & 0xffffffff}")]
        for mt in range(4):
            d = 16 * slot + 4 * mt
            if ks < 24:
                seq.append(Ins(f"buffer_load_dwordx4 a[{d}:{d+3}], v{vL16}, {srd(60 if self.NOLD else xs)}, s{t} offen offset:{1024*mt}{self.pol(self.LDP)}", "L",
                               rd=vr(vL16), wr=ar(d, 4), vm=("x", l, ks, mt, 0)))
            else:
                for h in range(2):
                    seq.append(Ins(f"buffer_load_dwordx2 a[{d+2*h}:{d+2*h+1}], v{vL8}, {srd(60 if self.NOLD else xs)}, s{t} offen offset:{2048*h+512*mt}{self.pol(self.LDP)}", "L",
                                   rd=vr(vL8), wr=ar(d + 2 * h, 2), vm=("x", l, ks, mt, h)))
        return seq
    def xtags(self, l, ks, mt):
        if l == 0: return [], [("xs", ks, mt)]
        if ks < 24: return [("x", l, ks, mt, 0)], []
        return [("x", l, ks, mt, 0), ("x", l, ks, mt, 1)], []
    def stage_dma(self, line, slot=None, tag="st"):
        if slot is None: slot = line % 3
        seq = []
        for j in range(8):
            imm = 1024 * (j & 1) + 128 * line
            if j % 2 == 0:
                seq.append(S(f"s_add_u32 m0, s{sXRw}, {8192 * slot + 1024 * j - 128 * line}", note="m0"))
            ins = Ins(f"buffer_load_dwordx4 v{vPX}, {srd(sX0_)}, s{sJ[j]} offen offset:{imm} lds", "A", rd=vr(vPX), vm=(tag, line, j))
            if j % 2 == 0: ins.note = "m0keep"
            seq.append(ins)
        return seq
    def stage_read(self, ks, slot):
        line, sb = ks >> 1, ks & 1
        seq = []
        for mt in range(4):
            d = 16 * slot + 4 * mt
            seq.append(Ins(f"ds_read_b128 a[{d}:{d+3}], v{vX[sb]} offset:{8192 * (line % 3) + 2048 * mt}", "D",
                           rd=vr(vX[sb]), wr=ar(d, 4), lg=("xs", ks, mt), need_vm=[("st", line, 2 * mt), ("st", line, 2 * mt + 1)]))
            seq[-1].minvm = self.AGE1 if line == 1 else self.AGE if line < 8 else self.AGE2
        return seq
    def reload_dma(self, u):
        seq = []
        if u == 0: seq.append(V(f"v_add_u32 v{vPX}, s{sWq}, v{vPX}", rd=vr(vPX), wr=vr(vPX)))
        if u < 3: return seq + self.stage_dma(u, (u + 1) % 3, "rl")
        for h in range(2):
            t = self.stemp(1)
            seq += [S(f"s_add_u32 s{t}, s{sRow}, s{sXq}"),
                    S(f"s_add_u32 s{t}, s{t}, {h * 32 * ROWB}"),
                    S(f"s_add_u32 m0, s{sXRw}, {24576 + 1024 * h}", note="m0"),
                    Ins(f"buffer_load_dwordx4 v{vPXE}, {srd(sX0_)}, s{t} offen lds", "A", rd=vr(vPXE), vm=("rl", 3, h))]
            seq[-1].lines = 32
        return seq
    def epi_unit(self, l, u):
        last = (l == self.NL - 1)
        seq = []
        items = [(sb, mt) for sb in range(2) for mt in range(4)] if u < 3 else [(0, mt) for mt in range(4)]
        def rd(i):
            sb, mt = items[i]; xp = vXP[i % 2]
            if u < 3:
                nv = [("rl", u, 2 * mt), ("rl", u, 2 * mt + 1)] if l == 0 else []
                return Ins(f"ds_read_b128 v[{xp}:{xp+3}], v{vX[sb]} offset:{8192 * ((u + 1) % 3) + 2048 * mt}", "D", rd=vr(vX[sb]), wr=vr(xp, 4),
                           lg=("xp", l, u, i), need_vm=nv)
            nv = [("rl", 3, mt >> 1)] if l == 0 else []
            return Ins(f"ds_read_b64 v[{xp}:{xp+1}], v{vX2} offset:{512 * mt}", "D", rd=vr(vX2), wr=vr(xp, 2), lg=("xp", l, u, i), need_vm=nv)
        seq2 = [rd(0), rd(1)]
        for b_ in range(2):
            if self.last_reader[b_] is not None: seq2[b_].after = [self.last_reader[b_]]
        for i, (sb, mt) in enumerate(items):
            xp = vXP[i % 2]
            ne = 2 if u < 3 else 1
            first = True; pend = None
            for e in range(ne):
                j = 4 * u + 2 * sb + e if u < 3 else 12
                c = acc(j, mt)
                for p in range(2):
                    x = xp + 2 * e + p; t = vT[p]
                    if self.PK & 1:
                        if p == 1: continue
                        t0, t1 = vT; x1 = x + 1
                        i0 = V(f"v_lshlrev_b32 v{t0}, 16, v{x}", rd=vr(x), wr=vr(t0))
                        if first: i0.need_lg = [("xp", l, u, i)]; first = False
                        seq += [i0, V(f"v_and_b32 v{t1}, s{sMask}, v{x}", rd=vr(x), wr=vr(t1)),
                                V(f"v_lshlrev_b32 v{x}, 16, v{x1}", rd=vr(x1), wr=vr(x)),
                                V(f"v_and_b32 v{x1}, s{sMask}, v{x1}", rd=vr(x1), wr=vr(x1)),
                                V(f"v_pk_mul_f32 v[{t0}:{t1}], v[{t0}:{t1}], v[{c}:{c+1}]", rd=vr(t0, 2) + vr(c, 2), wr=vr(t0, 2)),
                                V(f"v_pk_mul_f32 v[{x}:{x1}], v[{x}:{x1}], v[{c+2}:{c+3}]", rd=vr(x, 2) + vr(c + 2, 2), wr=vr(x, 2)),
                                V(f"v_cvt_pk_bf16_f32 v{x1}, v{x}, v{x1}", rd=vr(x, 2), wr=vr(x1)),
                                V(f"v_cvt_pk_bf16_f32 v{x}, v{t0}, v{t1}", rd=vr(t0, 2), wr=vr(x))]
                        continue
                    i0 = V(f"v_lshlrev_b32 v{t}, 16, v{x}", rd=vr(x), wr=vr(t))
                    if first: i0.need_lg = [("xp", l, u, i)]; first = False
                    seq += [i0,
                            V(f"v_and_b32 v{x}, s{sMask}, v{x}", rd=vr(x), wr=vr(x)),
                            V(f"v_mul_f32 v{t}, v{t}, v{c+2*p}", rd=vr(t) + vr(c + 2 * p), wr=vr(t)),
                            V(f"v_mul_f32 v{x}, v{x}, v{c+2*p+1}", rd=vr(x) + vr(c + 2 * p + 1), wr=vr(x)),
                            V(f"v_cvt_pk_bf16_f32 v{x}, v{t}, v{x}", rd=vr(t) + vr(x), wr=vr(x))]
            if pend is not None: seq.append(pend)
            lastv = seq[-1]
            if not last:
                t = sXt[i % 2]
                if u < 3:
                    b = 2 * u + sb
                    xs, xo = self.xch(l)
                    seq2.append(S(f"s_add_u32 s{t}, s42, {(xo + 4096 * b) & 0xffffffff}"))
                    st = Ins(f"buffer_store_dwordx4 v[{xp}:{xp+3}], v{vL16}, {srd(60 if self.NOST else xs)}, s{t} offen offset:{1024*mt}{self.pol(self.STP)}", "T",
                             rd=vr(xp, 4) + vr(vL16), vm=("xo", l, u, i))
                else:
                    xs, xo = self.xch(l)
                    seq2.append(S(f"s_add_u32 s{t}, s43, {xo & 0xffffffff}"))
                    st = Ins(f"buffer_store_dwordx2 v[{xp}:{xp+1}], v{vL8}, {srd(60 if self.NOST else xs)}, s{t} offen offset:{512*mt}{self.pol(self.STP)}", "T",
                             rd=vr(xp, 2) + vr(vL8), vm=("xo", l, u, i))
            else:
                if u < 3:
                    b = 2 * u + sb
                    st = Ins(f"buffer_store_dwordx4 v[{xp}:{xp+3}], v{vOut}, {srd(sOUT_)}, s{sOutMt[mt]} offen offset:{64*b}{self.pol(self.OUTP)}", "T",
                             rd=vr(xp, 4) + vr(vOut), vm=("xo", l, u, i))
                else:
                    t = sXt[i % 2]
                    seq2.append(S(f"s_add_u32 s{t}, s{sOutMt[mt]}, s76"))
                    st = Ins(f"buffer_store_dwordx2 v[{xp}:{xp+1}], v{vOutE}, {srd(sOUT_)}, s{t} offen{self.pol(self.OUTP)}", "T",
                             rd=vr(xp, 2) + vr(vOutE), vm=("xo", l, u, i))
            st.after = [lastv]; st.lines = 8 if u < 3 else 4; st.dl = -2000; st.hard = -2000
            self.last_reader[i % 2] = st
            seq2.append(st)
            if i + 2 < len(items): seq2.append(rd(i + 2))
        return seq, seq2
    def bias_unit(self, l, u):
        seq = []
        tiles = [4 * u + i for i in range(4)] if u < 3 else [12]
        def rd(i):
            xp = vXP[i % 2]
            return Ins(f"ds_read_b128 v[{xp}:{xp+3}], v{vBias} offset:{832 * l + 64 * tiles[i]}", "D", rd=vr(vBias), wr=vr(xp, 4), lg=("bi", l, tiles[i]))
        seq2 = [rd(0)] + ([rd(1)] if len(tiles) > 1 else [])
        for b_ in range(len(seq2)):
            if self.last_reader[b_] is not None: seq2[b_].after = [self.last_reader[b_]]
        for i, j in enumerate(tiles):
            xp = vXP[i % 2]
            first = True
            for mt in range(4):
                c = acc(j, mt)
                for r in range(0, 4, 2 if self.PK & 2 else 1):
                    if self.PK & 2: x = V(f"v_pk_add_f32 v[{c+r}:{c+r+1}], v[{c+r}:{c+r+1}], v[{xp+r}:{xp+r+1}]", rd=vr(c + r, 2) + vr(xp + r, 2), wr=vr(c + r, 2))
                    else: x = V(f"v_add_f32 v{c+r}, v{c+r}, v{xp+r}", rd=vr(c + r) + vr(xp + r), wr=vr(c + r))
                    if first: x.need_lg = [("bi", l, j)]; first = False
                    seq.append(x)
            self.last_reader[i % 2] = seq[-1]
            if i + 2 < len(tiles):
                r2 = rd(i + 2); r2.after = [seq[-1]]; seq2.append(r2)
        return seq, seq2
    def flag_set(self, val, need):
        v = V(f"v_add_u32 v{vFlagVal}, {val}, v{vBase}", rd=vr(vBase), wr=vr(vFlagVal), need_vm=list(need) + [("fb",)])
        v.minvm = self.T_ST
        st = Ins(f"buffer_store_dword v{vFlagVal}, v{vFlagOff}, {srd(sWS_)}, 0 offen sc1", "T", rd=vr(vFlagVal) + vr(vFlagOff), vm=("fs", val))
        st.lines = 1; st.dl = -3000; st.hard = -3000
        return [v, st]
    def flag_poll(self, val):
        k = val
        ld = Ins(f"buffer_load_dword v{vPoll}, v{vPollOff}, {srd(sWS_)}, 0 offen sc1", "L", rd=vr(vPollOff), wr=vr(vPoll), vm=("fp", val))
        chk = [V(f"v_sub_u32 v{vPoll}, v{vPoll}, v{vBase}", rd=vr(vPoll) + vr(vBase), wr=vr(vPoll), need_vm=[("fp", val), ("fb",)]),
               V(f"v_cmp_gt_u32 vcc, {val}, v{vPoll}", rd=vr(vPoll)),
               S("s_nop 0"),
               Ins(f"s_cbranch_vccnz Lslow{k}\nLback{k}:", "S")]
        self.slow.append(f"""Lslow{k}:
  s_mov_b32 s{sSpin}, 0x{self.SPIN:x}
Lspin{k}:
  buffer_load_dword v{vPoll}, v{vPollOff}, {srd(sWS_)}, 0 offen sc1
  s_waitcnt vmcnt(0)
  v_sub_u32 v{vPoll}, v{vPoll}, v{vBase}
  v_cmp_gt_u32 vcc, {val}, v{vPoll}
  s_sub_u32 s{sSpin}, s{sSpin}, 1
{"  s_add_u32 s90, s90, 0x%x" % (1 << (4 * (k - 1))) if self.prof else ""}
  s_cbranch_vccz Lback{k}
  s_cmp_lg_u32 s{sSpin}, 0
  s_cbranch_scc1 Lspin{k}
  s_branch Lback{k}""")
        return ld, chk
    def out_patterns(self):
        t0, t1 = vT
        return [V(f"v_lshrrev_b32 v{t0}, 4, v{vL16}", rd=vr(vL16), wr=vr(t0)),
                V(f"v_and_b32 v{t1}, 15, v{t0}", rd=vr(t0), wr=vr(t1)),
                V(f"v_mul_u32_u24 v{t1}, {ROWB}, v{t1}", rd=vr(t1), wr=vr(t1)),
                V(f"v_lshrrev_b32 v{t0}, 4, v{t0}", rd=vr(t0), wr=vr(t0)),
                V(f"v_lshlrev_b32 v{t0}, 3, v{t0}", rd=vr(t0), wr=vr(t0)),
                V(f"v_add_u32 v{vOutE}, v{t1}, v{t0}", rd=vr(t0) + vr(t1), wr=vr(vOutE)),
                V(f"v_add_u32 v{vOut}, v{vOutE}, v{t0}", rd=vr(t0) + vr(vOutE), wr=vr(vOut))]

    def prologue(self):
        R = self.raw
        VV = lambda t: self.emit(Ins(t, "V"))
        R("s_cmp_ge_u32 s2, 256\ns_cbranch_scc1 Lend")
        R("s_load_dwordx4 s[64:67], s[0:1], 0\ns_load_dwordx4 s[68:71], s[0:1], 16\ns_load_dwordx4 s[72:75], s[0:1], 32")
        if self.stamps:
            R("s_memrealtime s[80:81]\ns_memtime s[82:83]")
        if self.SPAN: R("s_memrealtime s[88:89]")
        if self.prof:
            R(("s_memrealtime" if self.PRT else "s_memtime") + " s[88:89]\ns_mov_b32 s90, 0")
        VV("v_lshrrev_b32 v31, 6, v0")
        VV("v_and_b32 v0, 63, v0")
        R(f"""s_and_b32 s{sC}, s2, 7
s_lshr_b32 s3, s2, 5""")
        VV(f"v_readfirstlane_b32 s{sWv}, v31")
        R(f"""s_lshl_b32 s55, s3, 2
s_lshl_b32 s3, s3, 3
s_add_u32 s{sC}, s{sC}, s3
s_lshr_b32 s{sQ}, s2, 3
s_and_b32 s{sQ}, s{sQ}, 3
s_mul_i32 s{sWq}, s{sQ}, 384
s_lshl_b32 s3, s{sC}, 2
s_add_u32 s3, s3, s{sWv}
s_mul_i32 s{sRow}, s3, {64 * ROWB}
s_add_u32 s55, s55, s{sWv}
s_mul_i32 s55, s55, {ROWB}
s_mul_i32 s{sW1032}, s{sWv}, 1032
s_lshl_b32 s{sW8}, s{sWv}, 3
s_mul_i32 s{sXRw}, s{sWv}, {XRW}
s_add_u32 s{sXRw}, s{sXRw}, {XR}
s_nop 0""")
        for j in range(8):
            R(f"s_add_u32 s{sJ[j]}, s{sRow}, {j * 8 * ROWB - 1024 * (j & 1)}")
        VV(f"v_lshlrev_b32 v{vL16}, 4, v0")
        VV("v_lshrrev_b32 v20, 3, v0")
        VV("v_and_b32 v21, 7, v0")
        VV("v_and_b32 v23, 6, v20")
        VV("v_lshlrev_b32 v22, 1, v20")
        VV("v_xor_b32 v23, v21, v23")
        VV("v_and_b32 v22, 4, v22")
        VV("v_lshlrev_b32 v23, 4, v23")
        VV(f"v_mul_u32_u24 v24, {ROWB}, v20")
        VV("v_xor_b32 v22, v21, v22")
        VV(f"v_add_u32 v{vPX}, v23, v24")
        VV("v_lshlrev_b32 v22, 4, v22")
        VV(f"v_add_u32 v23, s{sW8}, v20")
        VV(f"v_mul_u32_u24 v23, {ROWB}, v23")
        VV(f"v_add_u32 v{vPW}, v23, v22")
        if self.EARLYPF: self.pf_patterns()
        self.pstamp()
        R("s_waitcnt lgkmcnt(0)")
        self.pstamp()
        self.mk(sX0_, 64, 16384 * ROWB)
        self.mk(sW_, 66, 3 * LSTRIDE)
        if self.CPF:
            self.emit(Ins("s_getpc_b64 s[64:65]\nLpc:", "S"))
            R(f"s_and_b32 s65, s65, 0xffff\ns_mov_b32 s66, Lcode_end-Lpc\ns_mov_b32 s67, 0x20000\ns_lshr_b32 s72, s2, 3\ns_lshl_b32 s72, s72, 2\ns_add_u32 s72, s72, s{sWv}\ns_lshl_b32 s72, s72, 7")
    def prologue2(self):
        R = self.raw
        R(f"""s_lshl_b32 s{sXq}, s{sQ}, 5
s_add_u32 s{sXq}, s{sXq}, 1536
s_lshl_b32 s{sW1024}, s{sWv}, 10
s_lshl_b32 s3, s{sC}, 2
s_add_u32 s3, s3, s{sWv}
s_mul_i32 s{sXb}, s3, 106496
s_add_u32 s{sXb}, s{sXb}, {self.XB0}
s_mov_b32 s{sMask}, 0xffff0000
s_mul_i32 s42, s{sQ}, 24576
s_add_u32 s42, s42, s{sXb}
s_lshr_b32 s43, s{sQ}, 1
s_add_u32 s43, s43, 24
s_lshl_b32 s43, s43, 12
s_and_b32 s3, s{sQ}, 1
s_lshl_b32 s3, s3, 11
s_add_u32 s43, s43, s3
s_add_u32 s43, s43, s{sXb}
s_mul_i32 s76, s{sQ}, 352
s_sub_u32 s76, 1536, s76""")
        for mt in range(4):
            R(f"s_add_u32 s{sOutMt[mt]}, s{sRow}, {mt * 16 * ROWB}\ns_add_u32 s{sOutMt[mt]}, s{sOutMt[mt]}, s{sWq}")
        self.mk(sB_, 68, 3 * ROWB)
        self.mk(sOUT_, 70, 16384 * ROWB)
        self.mk(sWS_, 74, 0x10000000)
        if self.NOST or self.NOLD or self.NOW: self.mk(60, 74, 0)
        self.prologue_rest()
    def mk(self, b, lo, size):
        self.raw(f"s_mov_b32 s{b}, s{lo}\ns_and_b32 s{b+1}, s{lo+1}, 0xffff\ns_mov_b32 s{b+2}, {size}\ns_mov_b32 s{b+3}, 0x20000")
    def prologue_rest(self):
        R = self.raw
        VV = lambda t: self.emit(Ins(t, "V"))
        VV("v_lshrrev_b32 v23, 2, v20")
        VV("v_lshlrev_b32 v23, 4, v23")
        VV("v_and_b32 v24, 3, v20")
        VV("v_add_u32 v23, v23, v24")
        R(f"s_lshl_b32 s3, s{sWv}, 2")
        VV("v_add_u32 v23, s3, v23")
        VV(f"v_mul_u32_u24 v23, {ROWB}, v23")
        VV(f"v_add_u32 v{vPW2}, v23, v22")
        VV("v_lshrrev_b32 v20, 1, v0")
        VV("v_and_b32 v21, 1, v0")
        VV("v_lshlrev_b32 v21, 4, v21")
        VV(f"v_mul_u32_u24 v23, {ROWB}, v20")
        VV(f"v_add_u32 v{vPXE}, v23, v21")
        VV("v_and_b32 v23, 19, v20")
        VV("v_and_b32 v24, 4, v20")
        VV("v_lshlrev_b32 v24, 1, v24")
        VV("v_or_b32 v23, v23, v24")
        VV("v_and_b32 v24, 8, v20")
        VV("v_lshrrev_b32 v24, 1, v24")
        VV("v_or_b32 v23, v23, v24")
        VV(f"v_mul_u32_u24 v23, {ROWB}, v23")
        VV(f"v_add_u32 v{vPE}, v23, v21")
        VV("v_and_b32 v23, 7, v20")
        VV("v_and_b32 v24, 8, v20")
        VV("v_lshlrev_b32 v24, 1, v24")
        VV("v_or_b32 v23, v23, v24")
        VV("v_and_b32 v24, 16, v20")
        VV("v_lshrrev_b32 v24, 1, v24")
        VV("v_or_b32 v23, v23, v24")
        VV(f"v_mul_u32_u24 v23, {ROWB}, v23")
        VV(f"v_add_u32 v{vPE2}, v23, v21")
        VV("v_lshrrev_b32 v20, 4, v0")
        VV("v_and_b32 v21, 15, v0")
        VV("v_lshrrev_b32 v22, 2, v0")
        VV("v_and_b32 v22, 3, v22")
        VV("v_and_b32 v23, 3, v0")
        VV("v_mul_u32_u24 v24, 1032, v20")
        VV("v_lshlrev_b32 v25, 7, v22")
        VV("v_add_u32 v24, v24, v25")
        VV("v_lshlrev_b32 v25, 4, v23")
        VV("v_add_u32 v24, v24, v25")
        VV("v_lshrrev_b32 v25, 1, v22")
        VV("v_lshlrev_b32 v25, 6, v25")
        VV(f"v_add_u32 v{vA[0]}, v24, v25")
        VV("v_sub_u32 v25, 64, v25")
        VV(f"v_add_u32 v{vA[1]}, v24, v25")
        VV("v_lshrrev_b32 v24, 1, v20")
        VV("v_lshlrev_b32 v24, 9, v24")
        VV("v_and_b32 v25, 1, v20")
        VV("v_lshlrev_b32 v25, 7, v25")
        VV("v_add_u32 v24, v24, v25")
        VV("v_lshlrev_b32 v25, 5, v22")
        VV("v_add_u32 v24, v24, v25")
        VV("v_lshlrev_b32 v25, 3, v23")
        VV(f"v_add_u32 v{vA2}, v24, v25")
        VV("v_and_b32 v24, 6, v21")
        VV("v_xor_b32 v24, v20, v24")
        VV("v_lshlrev_b32 v24, 4, v24")
        VV("v_lshlrev_b32 v25, 7, v21")
        VV("v_add_u32 v24, v24, v25")
        VV(f"v_add_u32 v{vX[0]}, s{sXRw}, v24")
        VV(f"v_xor_b32 v{vX[1]}, 64, v{vX[0]}")
        VV("v_lshlrev_b32 v24, 5, v21")
        VV("v_lshlrev_b32 v25, 3, v20")
        VV("v_add_u32 v24, v24, v25")
        VV(f"v_add_u32 v24, s{sXRw}, v24")
        VV(f"v_add_u32 v{vX2}, 24576, v24")
        VV(f"v_lshlrev_b32 v{vL16}, 4, v0")
        VV(f"v_lshlrev_b32 v{vL8}, 3, v0")
        VV("v_lshlrev_b32 v24, 4, v20")
        VV(f"v_add_u32 v{vBias}, {BIAS}, v24")
        R(f"s_lshl_b32 s3, s{sC}, 2\ns_add_u32 s3, s3, s{sWv}\ns_lshl_b32 s3, s3, 9\ns_add_u32 s3, s3, {FBASE}")
        VV("v_and_b32 v24, 3, v0")
        VV("v_lshlrev_b32 v24, 7, v24")
        VV(f"v_add_u32 v{vPollOff}, s3, v24")
        VV(f"v_mov_b32 v{vFlagOff}, 0x7fffff00")
        VV(f"v_cmp_eq_u32 vcc, s{sQ}, v0")
        R("s_nop 1")
        VV(f"v_cndmask_b32 v{vFlagOff}, v{vFlagOff}, v{vPollOff}, vcc")
        if not self.EARLYPF: self.pf_patterns()
        self.bias_prologue()
        R(f"s_lshl_b32 s91, s2, 2\ns_add_u32 s91, s91, s{sWv}\ns_lshl_b32 s91, s91, 12")

    def pf_patterns(self):
        R = self.raw; VV = lambda t: self.emit(Ins(t, "V"))
        R(f"s_lshl_b32 s56, s{sQ}, 4")
        VV("v_and_b32 v26, 15, v0")
        VV("v_lshrrev_b32 v27, 4, v0")
        VV("v_add_u32 v26, s56, v26")
        VV("v_lshlrev_b32 v27, 7, v27")
        VV(f"v_mul_u32_u24 v26, {ROWB}, v26")
        VV(f"v_add_u32 v{vPFX}, v26, v27")
        if self.PXW == 2:
            VV("v_lshrrev_b32 v27, 5, v0")
            VV("v_lshlrev_b32 v27, 30, v27")
            VV(f"v_add_u32 v{vPFX}, v{vPFX}, v27")
        for i in self.pfw_pattern(vPFW, False): self.emit(i)
        if self.PX0W:
            VV(f"v_add_u32 v27, {64 - 16 * self.PX0W}, v0")
            VV("v_lshrrev_b32 v27, 6, v27")
            VV("v_lshlrev_b32 v27, 30, v27")
            VV(f"v_add_u32 v27, v{vPFX}, v27")
        if self.T_WG < 190 or self.T_WGS:
            VV("v_lshlrev_b32 v29, 7, v0")
            VV(f"v_lshrrev_b32 v28, {3 if self.T_WGS else 5}, v0")
            VV("v_min_u32 v28, 1, v28")
            VV("v_lshlrev_b32 v28, 30, v28")
            VV("v_add_u32 v29, v28, v29")
            R(f"s_lshl_b32 s91, s2, 2\ns_add_u32 s91, s91, s{sWv}\ns_lshl_b32 s91, s91, 12")
        if self.PX1:
            VV("v_lshrrev_b32 v28, 4, v0")
            VV("v_min_u32 v28, 1, v28")
            VV("v_lshlrev_b32 v28, 30, v28")
            VV(f"v_add_u32 v28, v{vPFX}, v28")
    def bias_prologue(self):
        R = self.raw; VV = lambda t: self.emit(Ins(t, "V"))
        R(f"s_lshl_b32 s3, s{sWv}, 6")
        VV("v_add_u32 v20, s3, v0")
        VV("v_min_u32 v20, 207, v20")
        VV("v_lshrrev_b32 v21, 4, v20")
        VV("v_and_b32 v22, 15, v20")
        VV("v_lshrrev_b32 v23, 1, v21")
        VV("v_lshlrev_b32 v23, 5, v23")
        VV("v_lshrrev_b32 v24, 2, v22")
        VV("v_lshlrev_b32 v24, 3, v24")
        VV("v_add_u32 v23, v23, v24")
        VV("v_and_b32 v24, 1, v21")
        VV("v_lshlrev_b32 v24, 2, v24")
        VV("v_add_u32 v23, v23, v24")
        VV("v_and_b32 v24, 3, v22")
        VV("v_add_u32 v23, v23, v24")
        R(f"s_mul_i32 s3, s{sQ}, 192")
        VV("v_add_u32 v23, s3, v23")
        R(f"s_lshl_b32 s3, s{sQ}, 4\ns_add_u32 s3, s3, 768")
        VV("v_add_u32 v24, s3, v22")
        VV("v_cmp_eq_u32 vcc, 12, v21")
        R("s_nop 1")
        VV("v_cndmask_b32 v23, v23, v24, vcc")
        VV("v_lshlrev_b32 v23, 1, v23")
        VV("v_lshlrev_b32 v22, 2, v20")
        VV(f"v_add_u32 v22, {BIAS}, v22")
    def bias_loads(self):
        for l in range(3):
            self.emit(Ins(f"buffer_load_ushort v{25+l}, v23, {srd(sB_)}, 0 offen offset:{l*ROWB}", "L", vm=("bl", l)))
            self.vm_step[("bl", l)] = -100
    def bias_write(self):
        a = [V(f"v_lshlrev_b32 v{25+l}, 16, v{25+l}", rd=vr(25 + l), wr=vr(25 + l)) for l in range(3)]
        a[0].need_vm = [("bl", 2)]
        a.append(V("v_add_f32 v25, 1.0, v25", rd=vr(25), wr=vr(25)))
        b = [Ins(f"ds_write_b32 v22, v{25+l} offset:{832*l}", "D", rd=vr(22) + vr(25 + l), lg=("bw", l)) for l in range(3)]
        b[0].after = [a[-1]]
        self.last_reader = [b[-1], b[-1]]
        return a, b

    COST = {"S": 4, "W": 4, "X": 4, "SS": 8, "V": 4, "D": 8, "L": 8, "A": 12, "T": 12}
    def fits(self, kinds):
        t = 4
        for i, k in enumerate(kinds):
            if k == "V": t = max(t, 8) + 4
            else: t += self.COST[k]
            if k == "L" and (i + 1 == len(kinds)): t += 4
            if k == "L" and i + 1 < len(kinds) and kinds[i + 1] != "V": return False
            if k in ("A", "T") and (i != 0 or len(kinds) > 1): return False
        return t <= 16

    def first_step(self, l, gi, u=0):
        for f, st in enumerate(self.steps):
            if st["l"] == l and st["gi"] == gi and st["u"] == u: return f
    def last_step(self, l, gi, u):
        r = None
        for f, st in enumerate(self.steps):
            if st["l"] == l and st["gi"] == gi and st["u"] == u: r = f
        return r
    def group_range(self, l, gi):
        fs = [f for f, st in enumerate(self.steps) if st["l"] == l and st["gi"] == gi]
        return fs[0], fs[-1]

    def build_streams(self):
        NL = self.NL
        self.last_reader = [None, None]
        M1 = []
        M2 = []
        E = []
        E2 = []
        M3 = []
        for n, e in enumerate(self.entries):
            es = -100 if e["jf"] < 0 else self.bars[e["jf"]]
            sq = self.dma_entry(n)
            for i_ in sq: i_.dl = min(self.bars[e["jl"]] - self.LATW, max(es, 0) + self.RSL)
            for i_ in sq: i_.hard = self.bars[e["jl"]] - 14
            sq[-1].lines = 8 if e["kind"] == "m" else 32
            M1.append([es, 0, sq, ("bar", e["jf"])])
        G = self.groups[0]
        slot_of = {}
        for gi, (ks_l, sl_l) in enumerate(G):
            for ks, sl in zip(ks_l, sl_l): slot_of[ks] = (gi, sl)
        def first_use(l, ks):
            for f, st in enumerate(self.steps):
                if st["l"] == l and st["ks"] == ks: return f
        self.first_use = first_use
        def slot_free(l, ks, sl):
            f0 = first_use(l, ks)
            r = -100
            for f in range(f0):
                if self.steps[f]["slot"] == sl: r = f
            return r
        self.stage_reads = {}
        stage_free = {}
        DM = []
        rd_earliest = {}
        for ks in range(26):
            gi, sl = slot_of[ks]
            rd_earliest[ks] = slot_free(0, ks, sl) + 1 if slot_free(0, ks, sl) >= 0 else -100
        cur = -100
        for ks in range(26):
            cur = max(cur, rd_earliest[ks]); rd_earliest[ks] = cur
        self.rd_earliest = rd_earliest
        self.slot_of0 = slot_of
        for line in range(13):
            seq = self.stage_dma(line)
            if line >= 3: seq[0].need_lg = [("xs", 2 * (line - 3) + 1, 3)]
            if line < self.PRO_X: es = -100
            else:
                es = self.T_STG0 + self.T_STGD * (line - self.PRO_X)
                k = 0
                for i_ in seq:
                    i_.earliest = int(es + self.PSP * k); i_.dl = i_.earliest + 8
                    if self.FCAP: i_.dl = first_use(0, min(2 * line, 25)) - self.STDL
                    if i_.kind == "A": k += 1
            M3.append([es, 1, seq, None])
        for u in (0, 3, 1, 2):
            seq = self.reload_dma(u)
            if u < 3: seq[0 if u else 1].need_lg = [("xs", 2 * (10 + u) + 1, 3)]
            es = self.T_RL[u]; k = 0
            for i_ in seq:
                i_.earliest = int(es + self.PSP * k); i_.dl = i_.earliest + 8
                if i_.kind == "A": k += 1
            M3.append([es, 1, seq, None])
        for ks in range(26):
            gi, sl = slot_of[ks]
            M2.append([rd_earliest[ks], 0, self.stage_read(ks, sl), None])
        for l in range(1, NL):
            base = 4 * (l - 1)
            def cls(ks):
                if ks >= 24: return 4
                return [1, 2, 3, 3, 4, 4][ks % 6]
            polled = set()
            lst = []
            for gi, (ks_l, sl_l) in enumerate(self.groups[l]):
                for ks, sl in zip(ks_l, sl_l):
                    lst.append((gi, ks, sl))
            gb0, gb1 = self.group_range(l - 1, 4)
            l0 = gb1 + 1
            exp = {1: l0 + self.T_U0, 2: l0 + self.T_U0B, 3: l0 + self.T_U1, 4: l0 + self.T_U2}
            items = []
            for gi, ks, sl in lst:
                es = max(slot_free(l, ks, sl) + 1, exp[cls(ks)], first_use(l, ks) - (self.XLEADG[gi] or self.XLEAD))
                items.append([es, cls(ks), first_use(l, ks), ks, sl])
            items.sort(key=lambda it: (it[0], it[2]))
            npaced = 0
            for es, c, gi, ks, sl in items:
                seq = []
                if c not in polled:
                    polled.add(c)
                    ld, chk = self.flag_poll(base + c)
                    ld.lines = 4; ld.dl = es - self.T_POLL
                    M2.append([es - self.T_POLL, 2, [ld], None])
                    seq += chk
                xl = self.xload(l, ks, sl)
                for i_ in xl:
                    i_.dl = first_use(l, ks) - self.LATX
                    if i_.kind == "L": i_.lines = 8 if ks < 24 else 4
                    if i_.kind == "L" and self.XPACE and npaced < self.XPN:
                        i_.earliest = int(l0 + self.T_U0 + self.XPACE * npaced); i_.dl = max(i_.earliest + 1, first_use(l, ks) - self.LATX2); npaced += 1
                seq += xl
                M2.append([es, 3, seq, None])
        if NL > 1:
            E.append([self.T_PAT, 0, self.pfw_pattern(vPFX, True), ("pat",)])
        a, b = self.bias_write()
        E.append([self.T_BW, 0, a, None]); E2.append([self.T_BW, 0, b, ("bw",)])
        for l in range(NL):
            g3 = 2
            for u in range(4):
                lastf = self.last_step(l, g3, u)
                a, b = self.bias_unit(l, u)
                E.append([lastf + 2, 1, a, ("bias", l, u)]); E2.append([lastf + 2 - self.E2LEAD, 1, b, None])
            if l == NL - 1:
                E.append([self.group_range(l, 4)[0] + 8, 0, self.out_patterns(), ("outpat",)])
            for u in ([0, 1, 3, 2] if (l == NL - 1 and self.TSPLIT) else range(4)):
                lastf = self.last_step(l, 4, u)
                a, b = self.epi_unit(l, u)
                if l == NL - 1 and u == 2 and self.TSPLIT:
                    for i_ in a[len(a) // 2:]: i_.earliest = lastf + 2
                    lastf = self.tsplit_step
                E.append([lastf + 2, 0, a, None]); E2.append([lastf + 2 - self.E2LEAD, 0, b, ("epi", l, u)])
        if self.ITLB:
            for k in range(2, 21):
                es = max(0, int((4096 * k - 4096 - self.ITLB) / 77))
                if es < self.steps[-1]["e"] * 0 + len(self.steps) - 20:
                    E2.append([es, 5, [Ins(f"s_buffer_load_dword s100, s[64:67], {4096 * k}", "S", lg=None, note="smem")], None])
        PFs = self.pf_streams()
        E.append([self.T_PW0[-1] + 2, 0, self.pfg_pat, None])
        M1.sort(key=lambda x: (x[0], x[1])); M2.sort(key=lambda x: (x[0], x[1])); E.sort(key=lambda x: (x[0], x[1]))
        flat = lambda Q: [(max(es, ins.earliest) if ins.earliest is not None else es, ins, tag, idx == len(seq) - 1) for es, _, seq, tag in Q for idx, ins in enumerate(seq)]
        M3.sort(key=lambda x: (x[0], x[1]))
        E2.sort(key=lambda x: (x[0], x[1]))
        self.PF = flat(PFs)
        self.M1, self.M2, self.E, self.M3, self.E2 = flat(M1), flat(M2), flat(E), flat(M3), flat(E2)

    def try_emit_from(self, Q, f, gap_kinds, allow, post_w):
        if not Q: return False
        es, ins, tag, lastflag = Q[0]
        if es > f: return False
        if isinstance(tag, tuple) and tag[0] == "bar" and tag[1] >= 0 and tag[1] > self.bar_passed: return False
        if ins.kind not in allow: return False
        if ins.note == 'm0' and self.m0_owner is not None: return False
        for a in ins.after:
            if id(a) not in self.issue_step: return False
        for t in ins.need_vm:
            if t not in self.vm_pos: return False
        for t in ins.need_lg:
            if t not in self.lg_pos: return False
        nv, nl = self.wait_for(ins.need_vm, ins.need_lg)
        needw = nv is not None or nl is not None
        kinds = gap_kinds + (["W"] if needw else []) + [ins.kind] + post_w
        if not self.fits(kinds):
            if needw and self.fits(gap_kinds + ["W"] + post_w) and self.wait_ok(ins, f):
                self.emit_wait(ins.need_vm, ins.need_lg); gap_kinds.append("W"); return True
            return False
        if needw and not self.wait_ok(ins, f): return False
        if not self.hazard_ok(ins): return False
        if needw:
            self.emit_wait(ins.need_vm, ins.need_lg); gap_kinds.append("W")
        self.emit(ins); gap_kinds.append(ins.kind)
        if ins.note == 'm0': self.m0_owner = id(Q)
        if ins.kind == 'A' and ins.note != "m0keep": self.m0_owner = None
        self.issue_step[id(ins)] = f
        if ins.vm is not None: self.vm_step[ins.vm] = f
        if ins.kind in ("A", "L", "T") and self.FCAP: self.fifo_push(ins, f)
        if ins.lg is not None: self.lg_step[ins.lg] = f
        Q.pop(0)
        if isinstance(tag, tuple) and tag[0] == "flag": self.flag_step[tag[1]] = f
        if isinstance(tag, tuple) and tag[0] == "pat":
            assert ("pf", "x", self.PX_L[-1]) in self.vm_pos, "prefetch pattern overwrites vPX before reload issued"
            self.pat_done = lastflag
        if ins.vm is not None and ins.vm[0] == "pf" and ins.vm[1] == "w" and ins.vm[2] > 0: assert self.pat_done and ("rl", 3, 1) in self.vm_pos
        if isinstance(tag, tuple) and tag[0] == "outpat":
            assert not any(i.kind == "L" and i.vm[0] == "fp" for _, i, _, _ in self.M2) and not any("v_cmp_gt_u32 vcc" in i.text for _, i, _, _ in self.M2) and not self.F
        if ins.vm is not None and ins.vm[0] == "xo" and ins.vm[2] == 0 and ins.vm[3] == 3 and ins.vm[1] < self.NL - 1:
            l_ = ins.vm[1]; val = 4 * l_ + 1
            self.F += [(f, i_, ("flag", val), False) for i_ in self.flag_set(val, [("xo", l_, 0, i) for i in range(4)])]
        if lastflag and isinstance(tag, tuple) and tag[0] == "epi":
            self.epi_done(tag, f)
        if lastflag and isinstance(tag, tuple) and tag[0] == "bias":
            self.bias_done[(tag[1], tag[2])] = f
        return True
    def fifo_lat(self, ins, f):
        t = ins.vm
        if t is None: return f + self.LD
        if t[0] == "pf":
            if t[1] in ("x", "g"): return f + self.LH
            if t[1] == "w" and t[2] == 0:
                gd = [self.fdone.get(("pf", "g", k)) for k in range(len(self.T_WGS or []))]
                if gd and all(x is not None and x <= f for x in gd): return f + self.LM
                return f + self.LH
            return f + self.LM
        if t[0] == "st":
            cov = [a for k_, a in enumerate(self.PX_L) if a <= t[1] <= a + (1 if a in self.PX1 else self.PX0W if (k_ == 0 and self.PX0W) else self.PXW) - 1 and ("pf", "x", a) in self.fdone]
            if not cov: return f + self.LH
            return max(f, min(self.fdone[("pf", "x", a)] for a in cov)) + self.LD
        if t[0] == "w" and self.entries[t[1]]["l"] == 0:
            j = self.entries[t[1]]["ks"][-1] // 4
            d = self.fdone.get(("pf", "w", 0, j))
            if d is None: return f + self.LH
            return max(f, d) + self.LD
        if t[0] in ("fb", "bl"): return f + self.LH
        return f + self.LD
    def fifo_push(self, ins, f):
        d = max(self.fifo_lat(ins, f), self.fifo[-1][1] if self.fifo else -1000)
        self.fifo.append((ins.lines, d))
        if ins.vm is not None: self.fdone[ins.vm] = d
    def fifo_ok(self, ins, f):
        occ = sum(n for n, d in self.fifo if d > f)
        return occ + ins.lines <= self.FCAP
    def wait_ok(self, ins, f):
        if self.FCAP and f < self.FEND:
            for t in ins.need_vm:
                if t[0] == "st" and self.vm_pos[t] >= self.vm_done and f < self.fdone.get(t, -1000): return False
        for t in ins.need_vm:
            if self.FCAP and f < self.FEND and t[0] == "st": continue
            if self.vm_pos[t] >= self.vm_done and f - self.vm_step.get(t, -1000) < (ins.minvm or self.MIN_VM): return False
        for t in ins.need_lg:
            if self.lg_pos[t] >= self.lg_done and f - self.lg_step.get(t, -1000) < self.MIN_LG: return False
        return True
    def hazard_ok(self, ins):
        if ins.kind in ("V", "D", "L"):
            regs = set(ins.rd) | set(ins.wr) if ins.kind == "V" else set(ins.wr)
            n = 0
            for prev in reversed(self.out):
                if n >= 9: break
                if prev.kind == "M" and (set(prev.wr) & regs): return False
                n += 1 if prev.kind != "SS" else 2
        if ins.kind == "V":
            n = 0
            for prev in reversed(self.out):
                if n >= 2: break
                if prev.kind == "T" and (set(prev.rd) & set(ins.wr)): return False
                n += 1
        if ins.kind == "V" and not getattr(self, "drain", False):
            f, g = self.cur
            nxt = []
            for d in (1, 2):
                gg = g + d; ff = f + gg // 4; gg %= 4
                if ff < self.nsteps: nxt.append(self.mfma(ff, gg))
            for m in nxt:
                if set(m.rd) & set(ins.wr): return False
        if ins.kind == "A":
            if self.out and self.out[-1].note == "m0": return False
        return True
    def epi_done(self, tag, f):
        _, l, u = tag
        self.epi_fin[(l, u)] = f
        if l == self.NL - 1: return
        n = 8 if u < 3 else 4
        tags = [("xo", l, u, i) for i in range(n)]
        val = None
        if u == 0: val = 4 * l + 2
        elif u == 1: val = 4 * l + 3
        elif u == 3: val = 4 * l + 4; tags = tags + [("xo", l, 2, i) for i in range(8)]
        if val is not None:
            self.F += [(f, ins, ("flag", val), False) for ins in self.flag_set(val, tags)]

    def schedule(self):
        self.issue_step = {}; self.vm_step = {}; self.lg_step = {}
        self.pending = []; self.epi_fin = {}; self.bias_done = {}
        self.bar_passed = -1
        self.F = []; self.pat_done = False; self.B = 0.0; self.Bhist = []
        self.fifo = []; self.fdone = {}
        self.m0_owner = None
        N = self.nsteps
        barat = {P: j for j, P in enumerate(self.bars)}
        need_at = {}
        for n, e in enumerate(self.entries): need_at.setdefault(e["jl"], []).append(("w", n))
        self.pro_issue()
        self.emit_wait(need_at.get(0, []), [])
        self.emit(Ins("s_barrier", "X")); self.bar_passed = 0
        self.pstamp()
        for f in range(self.LA):
            for r in self.tr_reads(f): self.emit(r); self.lg_step[r.lg] = -10
        if self.stamps: self.stamp()
        if self.SPAN: self.raw("s_memrealtime s[78:79]\ns_waitcnt lgkmcnt(0)\ns_mov_b32 s79, s78"); self.lg_done = len(self.lgq)
        self.epi_started = set()
        for f in range(N):
            st = self.steps[f]
            if f == 0:
                nv, nl = self.step_needs(0)
                self.emit_wait(nv, nl)
            if st["l"] > 0 and (st["l"], st["u"]) not in self.epi_started:
                self.epi_started.add((st["l"], st["u"]))
                assert (st["l"] - 1, st["u"]) in self.epi_fin, ("epilogue late", st["l"] - 1, st["u"], f, self.epi_fin)
            if self.PROL and f == 0: self.pstamp()
            if self.prof and not self.PROL and f >= self.PS and (f - self.PS) % self.PI == 0 and (f - self.PS) // self.PI <= 60:
                k = (f - self.PS) // self.PI
                if k > 0: self.emit(Ins(f"v_writelane_b32 v0, s86, {k}", "V"))
                self.emit(Ins(("s_memrealtime" if self.PRT else "s_memtime") + " s[86:87]", "S"))
                self.prof_k = k
            nL = 0; dynbar = False; defer_w = None
            for g in range(4):
                self.emit(self.mfma(f, g))
                self.cur = (f, g)
                kinds = []
                if g < 2 and f + self.LA < N:
                    r = self.tr_reads(f + self.LA)[g]
                    if g == 0:
                        pass
                    self.emit(r); self.lg_step[r.lg] = f; kinds.append("D")
                if g == 1 and f + 1 < N:
                    nv, nl = self.step_needs(f + 1)
                    if f in barat: nv = nv + need_at.get(barat[f], [])
                    for val, tags in self.pending:
                        if all(f - self.vm_step[t] >= self.T_ST for t in tags):
                            nv = nv + tags; dynbar = True
                    vready = bool(self.E) and self.E[0][1].kind == "V" and self.E[0][0] <= f
                    if self.WDEF and f >= self.WDEF0 and vready and not (f in barat or dynbar): defer_w = (nv, nl)
                    elif self.emit_wait(nv, nl): kinds.append("W")
                if defer_w is not None and g >= 2:
                    vmready = any(Q and Q[0][0] <= f and (Q[0][1].kind in ("A", "L", "T") or Q[0][1].note == "m0") for Q in (self.F, self.M1, self.M2, self.PF, self.M3, self.E2))
                    if g == 3 or not vmready:
                        if self.emit_wait(*defer_w): kinds.append("W")
                        defer_w = None
                if g == 2 and (f in barat or dynbar):
                    self.emit(Ins("s_barrier", "X")); kinds.append("X")
                    if f in barat: self.bar_passed = barat[f]
                    for val, tags in list(self.pending):
                        if all(self.vm_pos[t] < self.vm_done for t in tags):
                            self.pending.remove((val, tags))
                            seq = self.flag_set(val, tags)
                            self.F += [(f, ins, None, False) for ins in seq]
                            self.flag_step[val] = f
                self.B = max(0.0, self.B - 16 * (self.ETA if f > 215 else self.ETA0))
                progress = True
                allk = ("S", "SS", "V", "A", "L", "T", "D")
                order = [self.F, self.M1, self.M2, self.PF, self.M3, self.E2, self.E]
                while progress:
                    progress = False
                    cands = []
                    for qi, Q in enumerate(order):
                        if Q and (Q[0][1].kind in ("A", "L", "T") or Q[0][1].note == "m0") and Q[0][0] <= f:
                            ins = Q[0][1]
                            dl = ins.dl if ins.dl is not None else Q[0][0] + 10
                            cands.append((dl, qi, Q))
                    cands.sort(key=lambda c: (c[0], c[1]))
                    for dl, qi, Q in cands:
                        ins = Q[0][1]
                        th = self.TH_URG if dl <= f + self.URG else self.TH
                        if ins.note == "m0": th += 16
                        hard = getattr(ins, "hard", None)
                        if self.FCAP and f < self.FEND:
                            vi = ins
                            if vi.kind not in ("A", "L", "T"):
                                vi = next(i_[1] for i_ in Q if i_[1].kind in ("A", "L", "T"))
                            own = self.m0_owner == id(Q)
                            if not own and Q is self.M3 and vi.vm is not None and vi.vm[0] == "st":
                                if self.fifo_lat(vi, f) > f + self.LD: continue
                                nx = next((i_ for i_ in self.PF[:3] if i_[1].kind == "L"), None)
                                nx = next((i_ for i_ in self.PF[:12] if i_[1].kind == "L" and i_[1].vm[1] == "x"), None)
                                if nx is not None and nx[0] <= f and self.vm_pos.get(("st", vi.vm[1], 0)) is None: continue
                            if Q is self.PF and vi.vm is not None and vi.vm[1] == "x":
                                hd = next((i_[1] for i_ in self.M3[:4] if i_[1].kind == "A"), None)
                                if hd is not None and hd.vm[0] == "st" and ("st", hd.vm[1], 0) in self.vm_pos: continue
                            need = vi.lines * (2 if vi.note == "m0keep" else 1)
                            if Q is self.PF and self.PFREE and vi.vm[1] != "x" or (Q is self.PF and vi.vm[1] == "x" and vi.vm[2] in self.PX1): need = -1000
                            if not own and sum(n for n, d in self.fifo if d > f) + need > self.FCAP and not (hard is not None and hard <= f): continue
                            if not own and need > 0 and self.B > self.FTH and not (hard is not None and hard <= f): continue
                        elif self.B > th and not (hard is not None and hard <= f): continue
                        if Q is self.PF and g < 2: continue
                        if self.try_emit_from(Q, f, kinds, allk, []):
                            if ins.kind in ("A", "L", "T"): self.B += ins.lines * (2.5 if (self.FCAP and f < self.FEND and ins.vm is not None and ins.vm[0] == "pf") else self.CPL)
                            progress = True; break
                    if progress: continue
                    for Q in order:
                        if Q and (Q[0][1].kind in ("A", "L", "T") or Q[0][1].note == "m0"): continue
                        if self.try_emit_from(Q, f, kinds, allk, []):
                            progress = True; break
                self.Bhist.append(self.B)
            if self.stamps and f + 1 < N and (self.steps[f + 1]["l"] != st["l"] or (self.steps[f + 1]["gi"] == 4 and st["gi"] == 3)):
                self.stamp()
        self.drain = True
        guard = 0
        assert not self.PF
        while self.M1 or self.M2 or self.E or self.M3 or self.F or self.E2:
            guard += 1
            assert guard < 100000
            done = False
            for Q in (self.F, self.E2, self.E, self.M2, self.M3, self.M1):
                if Q:
                    es, ins, tag, lastflag = Q[0]
                    if any(id(a) not in self.issue_step for a in ins.after): continue
                    if any(t not in self.lg_pos for t in ins.need_lg): continue
                    while not self.hazard_ok(ins): self.emit(Ins("s_nop 0", "S"))
                    self.emit_wait(ins.need_vm, ins.need_lg)
                    while not self.hazard_ok(ins): self.emit(Ins("s_nop 0", "S"))
                    self.emit(ins); Q.pop(0); self.issue_step[id(ins)] = N
                    if ins.vm is not None: self.vm_step[ins.vm] = N
                    if lastflag and isinstance(tag, tuple) and tag[0] == "epi": self.epi_done(tag, N)
                    done = True; break
            assert done
        if self.stamps: self.stamp()
        if self.prof:
            k = (self.prof_k + 1) if not self.PROL else 40
            self.raw(f"""v_writelane_b32 v0, s86, {k}
s_waitcnt vmcnt(0)
{"s_memrealtime" if self.PRT else "s_memtime"} s[86:87]
s_waitcnt lgkmcnt(0)
s_nop 4""")
            self.emit(Ins("v_writelane_b32 v0, s88, 0", "V"))
            if self.PROL:
                for kk in range(self.prol_k):
                    self.emit(Ins(f"v_writelane_b32 v0, s{[60, 62, 78, 80, 82, 100, 100, 100][kk]}, {kk + 1}", "V"))
            if k + 1 < 64: self.emit(Ins(f"v_writelane_b32 v0, s86, {k+1}", "V"))
            self.emit(Ins(f"v_writelane_b32 v0, s90, 63", "V"))
            self.raw(f"""s_lshl_b32 s3, s2, 2
s_add_u32 s3, s3, s{sWv}
s_lshl_b32 s3, s3, 8""")
            self.emit(Ins(f"v_lshrrev_b32 v2, 2, v{vL16}", "V"))
            self.raw("s_nop 4")
            self.emit(Ins(f"buffer_store_dword v0, v2, {srd(sWS_)}, s3 offen", "T"))
            if self.DBGT:
                self.raw(f"""s_load_dwordx2 s[4:5], s[0:1], 32
s_waitcnt lgkmcnt(0)
s_and_b32 s5, s5, 0xffff
s_mov_b32 s6, 64
s_mov_b32 s7, 0x20000""")
                self.emit(Ins("v_subrev_u32 v0, s88, v0", "V"))
                self.raw(f"s_cmp_eq_u32 s{sWv}, 0\ns_cbranch_scc0 Lnodbg")
                self.emit(Ins("buffer_atomic_add v0, v2, s[4:7], 0 offen\nLnodbg:", "T"))

    def step_needs(self, f):
        st = self.steps[f]
        nl = [("wf", f, 0), ("wf", f, 1)]
        nv = []
        for mt in range(4):
            a, b = self.xtags(st["l"], st["ks"], mt)
            for t in a:
                assert t in self.vm_pos, ("x load not issued before use", t, f)
            for t in b:
                assert t in self.lg_pos, ("stage read not issued before use", t, f)
            nv += a; nl += b
        return nv, nl

    def pstamp(self):
        if self.prof and self.PROL:
            k = self.prol_k; self.prol_k += 1
            r = [60, 62, 78, 80, 82, 100, 100, 100][k]
            self.emit(Ins(f"s_memtime s[{r}:{r+1}]", "S"))
    def pro_issue(self):
        def take(Q, pred):
            out = []
            while Q and pred(Q[0]): out.append(Q.pop(0))
            return out
        items = take(self.M1, lambda it: it[0] <= -50) + take(self.M3, lambda it: it[0] <= -50)
        seqs = []; cur = []
        for it in items:
            cur.append(it[1])
            if it[1].kind == "A": seqs.append(cur); cur = []
        wseq = [s for s in seqs if s[-1].vm[0] == "w"]; xseq = [s for s in seqs if s[-1].vm[0] == "st"]
        nW, nX = self.PRO_W, self.PRO_X
        assert 4 * nW >= 12
        rest_w = wseq[nW:]; rest_x = xseq[8 * nX:]
        self.M1[0:0] = [(-40, ins, ("bar", -1), False) for s in rest_w for ins in s]
        self.M3[0:0] = [(-40, ins, None, False) for s in rest_x for ins in s]
        def emit_seqs(L):
            for s in L:
                for k, ins in enumerate(s):
                    if ins.kind == "A" and self.out[-1].note == "m0": self.emit(Ins("s_nop 0", "S"))
                    self.emit(ins)
                    if ins.vm is not None: self.vm_step[ins.vm] = -100
                    if ins.vm is not None: self.fifo_push(ins, self.PRO_T)
        for tok in self.PORD:
            if tok.startswith("pf"):
                lim = int(tok[2:])
                while self.PF and self.PF[0][0] <= lim:
                    es, ins, tag, lf = self.PF.pop(0)
                    self.emit(ins); self.issue_step[id(ins)] = -100
                    if ins.vm is not None: self.vm_step[ins.vm] = -100
                    if ins.vm is not None: self.fifo_push(ins, self.PRO_T)
            elif tok[0] == "x": n = int(tok[1:]); assert n < nX; emit_seqs(xseq[8 * n:8 * n + 8])
            elif tok == "wA": emit_seqs(wseq[0:3])
            elif tok == "wB": emit_seqs(wseq[3:nW])
            elif tok == "p2": self.prologue2()
            elif tok == "fb":
                self.emit(Ins(f"buffer_load_dword v{vBase}, v{vPollOff}, {srd(sWS_)}, 0 offen sc1", "L", vm=("fb",)))
                self.vm_step[("fb",)] = -100
                self.bias_loads()
            elif tok == "st": self.pstamp()
            elif tok.startswith("wait"):
                n = int(tok[4:]); self.emit(Ins(f"s_waitcnt vmcnt({n})", "W")); self.vm_done = max(self.vm_done, len(self.vmq) - n)
            else: assert 0, tok
        self.pstamp()
        n = 0
        while self.M2 and n < 8:
            es, ins, tag, lf = self.M2[0]
            assert ins.kind == "D"
            self.emit_wait(ins.need_vm, ins.need_lg)
            self.emit(ins); self.M2.pop(0); n += 1
            if ins.lg is not None: self.lg_step[ins.lg] = -100
        self.pstamp()

    def pf_streams(self):
        PF = []
        def ld(pat, dst, base, soff, tag, pre=(), off=0):
            i = Ins(f"buffer_load_dword v{dst}, v{pat}, {srd(base)}, {soff} offen" + (f" offset:{off}" if off else ""), "L", rd=vr(pat), wr=vr(dst), vm=tag)
            i.lines = {"x": 16 * self.PXW, "w": 16, "g": 32}[tag[1]]
            return list(pre) + [i]
        t = 54
        for k, (a, es) in enumerate(zip(self.PX_L, self.T_PX)):
            PF.append([es, 0, ld(27 if (k == 0 and self.PX0W) else vPFX, vPoll, sX0_, f"s{t}", ("pf", "x", a), [S(f"s_add_u32 s{t}, s{sRow}, {128 * a}")]), None])
            if k == 0 and self.PX0W: PF[-1][2][-1].lines = 16 * self.PX0W; assert es <= -90
            if a in self.PX1:
                PF[-1] = [es, 0, ld(28, vPoll, sX0_, f"s{t}", ("pf", "x", a), [S(f"s_add_u32 s{t}, s{sRow}, {128 * a}")]), None]
                PF[-1][2][-1].lines = 16; assert es < self.T_PAT - 5
        if self.CPF:
            for k, es in enumerate(self.T_CPF):
                i = Ins(f"buffer_load_dword v{vPoll if es < 200 else vPXE}, off, s[64:67], s{t}", "L", vm=("pf", "c", k)); i.lines = 1
                PF.append([es, 2, [S(f"s_add_u32 s{t}, s72, {self.CPS * k}"), i], None])
            if self.T_CPG is not None:
                i = Ins(f"buffer_load_dword v{vPoll}, off, s[64:67], s{t}", "L", vm=("pf", "cg", 0)); i.lines = 1
                PF.append([self.T_CPG, 3, [S(f"s_lshl_b32 s{t}, s2, 2"), S(f"s_add_u32 s{t}, s{t}, s{sWv}"), S(f"s_lshl_b32 s{t}, s{t}, 7"), i], None])
        for j, es in enumerate(self.T_PW0):
            PF.append([es, 1, ld(vPFW, vPoll, sW_, f"s{t}", ("pf", "w", 0, j), [S(f"s_mov_b32 s{t}, {4 * j * KSB}")]), None])
        lastw0 = PF[-1][2][-1]
        t0 = vT[0]
        pat = [V(f"v_lshlrev_b32 v{vPFG}, 3, v{vL16}", rd=vr(vL16), wr=vr(vPFG)),
               V(f"v_lshrrev_b32 v{t0}, 9, v{vL16}", rd=vr(vL16), wr=vr(t0)),
               V(f"v_lshlrev_b32 v{t0}, 30, v{t0}", rd=vr(t0), wr=vr(t0)),
               V(f"v_add_u32 v{vPFG}, v{vPFG}, v{t0}", rd=vr(t0) + vr(vPFG), wr=vr(vPFG))]
        pat[0].after = [lastw0]
        if self.T_WGS:
            self.pfg_pat = []
            for k, es in enumerate(self.T_WGS):
                gi_ = ld(29, vPoll, sW_, f"s{t}", ("pf", "g", k), [S(f"s_add_u32 s{t}, s91, {1024 * k}")])
                gi_[-1].lines = 8
                PF.append([es, 1, gi_, None])
            g = None
        elif self.T_WG < 190:
            self.pfg_pat = []
            g = ld(29, vPoll, sW_, "s91", ("pf", "g"))
        else:
            self.pfg_pat = pat
            g = ld(vPFG, vPoll, sW_, "s91", ("pf", "g"))
            g[-1].after = [pat[-1]]
        if g is not None: PF.append([self.T_WG, 0, g, None])
        if self.NL > 1:
            pass
            for l in range(1, self.NL):
                l0 = self.group_range(l - 1, 4)[1] + 1
                for j, dt in enumerate(self.T_PWL):
                    PF.append([l0 + dt, 1, ld(vPFX, vPXE, sW_, f"s{t}", ("pf", "w", l, j), [S(f"s_mov_b32 s{t}, {(0 if self.NOW else l) * LSTRIDE + j * KSB}")]), None])
        if self.FB_T is not None:
            i = Ins(f"buffer_load_dword v{vBase}, v{vPollOff}, {srd(sWS_)}, 0 offen sc1", "L", vm=("fb",)); i.lines = 4
            seq = [i]
            for l in range(3):
                b = Ins(f"buffer_load_ushort v{25+l}, v23, {srd(sB_)}, 0 offen offset:{l*ROWB}", "L", vm=("bl", l)); b.lines = 4; seq.append(b)
            PF.append([self.FB_T, 2, seq, None])
        PF.sort(key=lambda x: (x[0], x[1]))
        return PF
    def pfw_pattern(self, dst, perm):
        t0, t1 = vT
        seq = [V(f"v_lshrrev_b32 v{t0}, 6, v{vL16}", rd=vr(vL16), wr=vr(t0)),
               V(f"v_mul_u32_u24 v{dst}, {(6 if perm else 1) * KSB}, v{t0}", rd=vr(t0), wr=vr(dst)),
               V(f"v_lshrrev_b32 v{t0}, 2, v{t0}", rd=vr(t0), wr=vr(t0)),
               V(f"v_min_u32 v{t0}, 1, v{t0}", rd=vr(t0), wr=vr(t0)),
               V(f"v_lshlrev_b32 v{t0}, 30, v{t0}", rd=vr(t0), wr=vr(t0)),
               V(f"v_and_b32 v{dst}, 0x3fffffff, v{dst}", rd=vr(dst), wr=vr(dst)),
               V(f"v_add_u32 v{dst}, v{dst}, v{t0}", rd=vr(t0) + vr(dst), wr=vr(dst)),
               V(f"v_lshrrev_b32 v{t0}, 4, v{vL16}", rd=vr(vL16), wr=vr(t0)),
               V(f"v_and_b32 v{t0}, 3, v{t0}", rd=vr(t0), wr=vr(t0)),
               V(f"v_lshlrev_b32 v{t1}, 7, v{t0}", rd=vr(t0), wr=vr(t1)),
               V(f"v_add_u32 v{t1}, s{sWq}, v{t1}", rd=vr(t1), wr=vr(t1)),
               V(f"v_cmp_eq_u32 vcc, 3, v{t0}", rd=vr(t0)),
               V(f"v_mov_b32 v{t0}, 0x600", wr=vr(t0)),
               V(f"v_cndmask_b32 v{t1}, v{t1}, v{t0}, vcc", rd=vr(t0) + vr(t1), wr=vr(t1)),
               V(f"v_add_u32 v{dst}, v{dst}, v{t1}", rd=vr(dst) + vr(t1), wr=vr(dst)),
               V(f"v_add_u32 v{dst}, s55, v{dst}", rd=vr(dst), wr=vr(dst))]
        return seq

    def stamp(self):
        k = self.nstamp; self.nstamp += 1
        if k < 8:
            self.emit(Ins(f"s_memtime s[{86 + 2*k}:{87 + 2*k}]", "S"))

    def check(self):
        out = self.out
        errs = 0
        for i, ins in enumerate(out):
            if ins.kind == "M":
                n = 0
                for prev in reversed(out[max(0, i - 4):i]):
                    if n >= 2: break
                    if prev.kind == "V" and set(prev.wr) & set(ins.rd):
                        print("HAZARD V->M", i, prev.text, "|", ins.text, file=sys.stderr); errs += 1
                    n += 1
            if ins.kind == "V":
                n = 0
                for prev in reversed(out[max(0, i - 10):i]):
                    if n >= 8: break
                    if prev.kind == "M" and set(prev.wr) & (set(ins.rd) | set(ins.wr)):
                        print("HAZARD M->V", i, prev.text, "|", ins.text, file=sys.stderr); errs += 1
                    n += 1
        return errs

    def text(self):
        NL = self.NL
        L = []
        L.append("""; Kernarg layout for this problem (48 bytes, ptrs only, base s[0:1]):
;   offset   0: d_in[0] x0  shape=(16384, 832) dtype=bfloat16 strides=(1664, 2) contiguous=True
;   offset   8: d_in[1] ws  shape=(3, 832, 832) dtype=bfloat16 strides=(1384448, 1664, 2) contiguous=True
;   offset  16: d_in[2] bs  shape=(3, 832) dtype=bfloat16 strides=(1664, 2) contiguous=True
;   offset  24: d_out     shape=(16384, 832) dtype=bfloat16 (2 bytes/elem)
;   offset  32: d_debug   256 bytes
;   offset  40: d_ws      268435456 bytes workspace
; cluster of 4 workgroups = 256 rows; each workgroup owns 208 output features; layers exchange x through d_ws.""")
        L.append("; @launch grid=(256,1,1) block=(256,1,1) lds=163840")
        L.append('.amdgcn_target "amdgcn-amd-amdhsa--gfx950"')
        L.append(".text")
        L.append(f".globl {KNAME}\n.p2align 8\n.type {KNAME},@function\n{KNAME}:")
        for ins in self.out: L.append("  " + ins.text)
        if self.stamps:
            L.append("  s_memtime s[84:85]\n  s_memrealtime s[78:79]\n  s_waitcnt lgkmcnt(0)")
            L.append(f"  s_lshl_b32 s3, s2, 7\n  v_mov_b32 v2, s3\n  v_cmp_eq_u32 vcc, 0, v{vL16}\n  s_cmp_eq_u32 s{sWv}, 0\n  s_cbranch_scc0 Lnost\n  s_and_saveexec_b64 s[4:5], vcc")
            regs = [80, 82, 78, 84] + [86 + 2 * k for k in range(min(self.nstamp, 8))]
            for i, s in enumerate(regs):
                L.append(f"  v_mov_b32 v6, s{s}\n  v_mov_b32 v7, s{s+1}\n  buffer_store_dwordx2 v[6:7], v2, {srd(sWS_)}, 0 offen offset:{8*i}\n  s_nop 1")
            L.append("Lnost:")
        if self.SPAN:
            L.append(f"""  s_waitcnt vmcnt(0)
  s_memrealtime s[86:87]
  s_load_dwordx2 s[4:5], s[0:1], 32
  s_waitcnt lgkmcnt(0)
  s_and_b32 s5, s5, 0xffff
  s_mov_b32 s6, 256
  s_mov_b32 s7, 0x20000
  s_not_b32 s3, s88
  s_not_b32 s87, s86
  v_mov_b32 v2, s3
  v_writelane_b32 v2, s86, 1
  v_writelane_b32 v2, s88, 2
  v_writelane_b32 v2, s87, 3
  v_writelane_b32 v2, s79, 4
  s_not_b32 s79, s79
  v_writelane_b32 v2, s79, 5
  v_lshrrev_b32 v3, 2, v{vL16}
  v_cmp_gt_u32 vcc, 24, v3
  v_mov_b32 v4, 0x7fffff00
  v_cndmask_b32 v3, v4, v3, vcc
  s_cmp_eq_u32 s{sWv}, 0
  s_cbranch_scc0 Lnospan
  buffer_atomic_umax v2, v3, s[4:7], 0 offen""")
            L.append("Lnospan:")
        L.append("  s_waitcnt vmcnt(0)")
        L.append("Lend:\n  s_endpgm")
        L += self.slow
        L.append("Lcode_end:")
        L.append('.section .rodata,"a"\n.p2align 6')
        L.append(f".amdhsa_kernel {KNAME}")
        L.append("  .amdhsa_next_free_vgpr 512\n  .amdhsa_next_free_sgpr 102\n  .amdhsa_accum_offset 256\n  .amdhsa_group_segment_fixed_size 0\n  .amdhsa_kernarg_size 48\n  .amdhsa_user_sgpr_count 2\n  .amdhsa_user_sgpr_kernarg_segment_ptr 1\n  .amdhsa_system_sgpr_workgroup_id_x 1\n.end_amdhsa_kernel")
        return "\n".join(L) + "\n"

    LA = 3
    WDEF = 1
    FCAP = 0; FEND = 200; FTH = 150; LH = 28; LM = 12; LD = 5; PRO_T = -30; PXW = 2; STDL = 14; WDEF0 = 0; IVE = 12; IVT = 80; IV0 = 12; IVS = 0; FB_T = None; AGE1 = 16; PX0W = 0; PX1 = (); PFREE = 0
    ITLB = 0
    CPS = 8192; T_CPG = -94; T_WGS = [-59, -58, 8, 31]
    TSPLIT = 9
    DBGT = 0
    SPAN = 0
    XPACE = 2; XPN = 12; LATX2 = 30; T_U0B = 0
    PK = 0; XLEADG = [36, 0, 30, 36, 50]
    EARLYPF = 1
    PORD = ["pf-90", "x0", "wA", "p2", "wB", "x1", "fb", "pf-50"]
    PRT = 0
    CPF = 1; T_CPF = [-95, 30, 128, 230, 330, 420, 530, 635, 740, 850]
    XMODE = 0
    XB0 = XBASE
    ETA0 = 1.3
    RSL = 2
    ETA = 1.0; CPL = 9; TH = 120; TH_URG = 280; URG = 2; LATW = 16; LATX = 20; T_STG0 = 8; T_STGD = 15; PSP = 1.6; T_RL = [185, 228, 262, 214]
    PROL = 0; T_BW = 20; PRO_W = 6; PRO_X = 2; PX_L = [2, 4, 6, 8, 10, 12]; T_PX = [7, 30, 56, 82, 108, 134]; T_PW0 = [-96, 9, 32, 70, 90, 110, 126]; T_WG = 226; T_PWL = [-90, -70, 20, 60, 90, 110, 120, 130]; T_PAT = 200; AGE2 = 12; T_PWA = -100; T_PWB = 70; AGE = 16
    NOST = 0; NOLD = 0; NOW = 0
    LDP = 2; STP = 2; OUTP = 4
    IV = 12
    PS = 0; PI = 17
    T_U0 = -36; T_U1 = 50; T_U2 = 120; XLEAD = 26; SPIN = 0x8000; E2LEAD = 2; T_POLL = 16; T_ST = 18; MAXL = 2
    MIN_VM = 10; MIN_LG = 1

    def run(self):
        self.flag_step = {}
        self.plan()
        self.prologue()
        self.build_streams()
        self.schedule()
        errs = self.check()
        return errs

if __name__ == "__main__":
    ap = argparse.ArgumentParser()
    ap.add_argument("-o", default="k.s")
    ap.add_argument("--nl", type=int, default=3)
    ap.add_argument("--interval", type=int, default=12)
    ap.add_argument("--stamps", action="store_true")
    ap.add_argument("--prof", action="store_true")
    ap.add_argument("--set", action="append", default=[])
    a = ap.parse_args()
    for kv in a.set:
        k, v = kv.split("="); setattr(Gen, k, eval(v))
    g = Gen(NL=a.nl, interval=Gen.IV, stamps=a.stamps, prof=a.prof)
    errs = g.run()
    open(a.o, "w").write(g.text())
    from collections import Counter
    print("instrs", len(g.out), Counter(i.kind for i in g.out), "hazard errs", errs, "minlead(steps)", g.minlead, file=sys.stderr)
    print("xload steps", {k: v for k, v in g.vm_step.items() if k[0] in ("x", "fp", "fs") and (k[0] != "x" or k[3] == 3)}, file=sys.stderr)
    import statistics
    print("B mean", statistics.mean(g.Bhist), "max", max(g.Bhist), "frac>150", sum(b > 150 for b in g.Bhist) / len(g.Bhist), file=sys.stderr)
    leads = [g.bars[e["jl"]] - g.vm_step[("w", n)] for n, e in enumerate(g.entries) if g.vm_step[("w", n)] > -50]
    print("ring leads min/mean", min(leads), statistics.mean(leads), "hist", sorted(leads)[:20], file=sys.stderr)
    print("stage", {k: v for k, v in g.vm_step.items() if k[0] in ("st", "rl") and k[2] in (0, 7)}, file=sys.stderr)
    print("pf", {k: v for k, v in g.vm_step.items() if k[0] == "pf"}, file=sys.stderr)
    print("epi_fin", g.epi_fin, "bias", g.bias_done, "flags", g.flag_step, "nsteps", g.nsteps, file=sys.stderr)
```

```python
import sys, argparse

KNAME = "standalone__dcn_v2_cross__recsys_kernel"
D = 832; ROWB = 1664
LSTRIDE = D * ROWB
KSB = 32 * ROWB
RING = 54848
BIAS = 54848
XR = 57344
XRW = 26624
XBASE = 0x100000
FBASE = 0x40000
XLAYER = 64 * 4 * 106496
CH = 4128
XB = 4096

ACC0 = 48
def acc(j, mt): return ACC0 + 16 * j + 4 * mt
WF0 = 32; NB = 4
def wf(f): return WF0 + 4 * (f % NB)
vA = [1, 2]; vA2 = 3
vPW = 4; vPW2 = 5; vPE = 6; vPE2 = 7
vX = [8, 9]; vX2 = 10
vL16 = 11; vL8 = 12
vPX = 13; vOut = 30
vPXE = 14; vOutE = 31
vBias = 15
vFlagOff = 16; vFlagVal = 17; vPollOff = 18; vPoll = 19; vBase = 30
vPFX = 31; vPFW = 17; vPFG = 17
vXP = [20, 24]
vT = [28, 29]
vDummy = 0
sW_ = 8; sX0_ = 12; sOUT_ = 16; sWS_ = 20; sDBG_ = 24; sB_ = 28
sQ = 32; sC = 33; sWv = 34; sWq = 35; sW1032 = 36; sW8 = 37; sXq = 38; sW1024 = 39
sXb = 40; sRow = 41; sMask = 44; sXRw = 45
sOutMt = [46, 47, 48, 49]
sT = [50, 51, 52, 53, 54, 55]
sXs = [56, 57]
sXt = [77, 84]
sP = 58
sSpin = 59
sJ = [92, 93, 94, 95, 96, 97, 98, 99]
sStamp = 60
def srd(b): return f"s[{b}:{b+3}]"

class Ins:
    __slots__ = ("text", "kind", "rd", "wr", "vm", "lg", "need_vm", "need_lg", "earliest", "label", "note", "after", "minvm", "dl", "lines", "hard")
    def __init__(self, text, kind, rd=(), wr=(), vm=None, lg=None, need_vm=None, need_lg=None, earliest=None, note=None):
        self.text = text; self.kind = kind; self.rd = tuple(rd); self.wr = tuple(wr)
        self.vm = vm; self.lg = lg; self.need_vm = need_vm or []; self.need_lg = need_lg or []
        self.earliest = earliest; self.note = note; self.after = []; self.minvm = None; self.dl = None; self.lines = 8; self.hard = None
def vr(b, n=1): return [("v", b + i) for i in range(n)]
def ar(b, n=1): return [("a", b + i) for i in range(n)]

def S(t, **k): return Ins(t, "S", **k)
def V(t, rd=(), wr=(), **k): return Ins(t, "V", rd=rd, wr=wr, **k)

class Gen:
    def __init__(self, NL=3, interval=12, dbg=None, stamps=False, prof=False):
        self.prof = prof; self.prol_k = 0
        self.NL = NL; self.interval = interval; self.stamps = stamps
        self.out = []
        self.vmq = []; self.vm_done = 0; self.vm_pos = {}
        self.lgq = []; self.lg_done = 0; self.lg_pos = {}
        self.slow = []
        self.tcount = 0
        self.nstamp = 0

    def emit(self, ins):
        if ins.vm is not None:
            assert ins.vm not in self.vm_pos, ins.vm
            self.vm_pos[ins.vm] = len(self.vmq); self.vmq.append(ins.vm)
        if ins.lg is not None:
            assert ins.lg not in self.lg_pos, ins.lg
            self.lg_pos[ins.lg] = len(self.lgq); self.lgq.append(ins.lg)
        self.out.append(ins)
    def wait_for(self, need_vm, need_lg):
        nv = None; nl = None
        for t in need_vm:
            p = self.vm_pos[t]
            if p >= self.vm_done:
                n = len(self.vmq) - 1 - p
                nv = n if nv is None else min(nv, n)
        for t in need_lg:
            p = self.lg_pos[t]
            if p >= self.lg_done:
                n = len(self.lgq) - 1 - p
                nl = n if nl is None else min(nl, n)
        return nv, nl
    def emit_wait(self, need_vm, need_lg):
        nv, nl = self.wait_for(need_vm, need_lg)
        if nv is None and nl is None: return False
        parts = []
        if nv is not None:
            nv = min(nv, 63); parts.append(f"vmcnt({nv})"); self.vm_done = max(self.vm_done, len(self.vmq) - nv)
        if nl is not None:
            nl = min(nl, 15); parts.append(f"lgkmcnt({nl})"); self.lg_done = max(self.lg_done, len(self.lgq) - nl)
        self.emit(Ins("s_waitcnt " + " ".join(parts), "W"))
        return True
    def raw(self, text, kind="S", **k):
        for line in text.strip().split("\n"):
            self.emit(Ins(line.strip(), kind, **k))
    def xch(self, l):
        if self.XMODE == 2: return (sOUT_, -self.XB0) if l == 0 else (sWS_, 0)
        if self.XMODE == 1: return (sWS_, 0)
        return (sWS_, l * XLAYER)
    def pol(self, p):
        return ("", " sc0", " sc1", " sc0 sc1", " nt", " sc0 nt", " sc1 nt", " sc0 sc1 nt")[p]
    def stemp(self, stream=0):
        self.tcount += 1
        return sT[2 * stream + self.tcount % 2]

    def plan(self):
        NL = self.NL
        self.groups = []
        for l in range(NL):
            if l == 0:
                G = [[0, 1, 2], [3, 4, 5], [6, 7, 8, 9], [10, 11, 12], list(range(13, 26))]
            else:
                G = [[0, 6, 12], [18, 1, 7], [13, 19, 2, 8], [14, 20, 3],
                     [9, 15, 21, 4, 10, 16, 22, 5, 11, 17, 23, 24, 25]]
            SL = [[13, 14, 15], [0, 1, 2], [3, 4, 5, 6], [13, 14, 15], [7, 8, 9, 10, 11, 12, 0, 1, 2, 3, 4, 5, 6]]
            self.groups.append(list(zip(G, SL)))
        self.entries = []
        self.steps = []
        def seg_main(l, gi, u, lst):
            for ks, sl in lst:
                e = dict(kind="m", l=l, u=u, ks=[ks], size=CH, gi=gi, first=len(self.steps))
                self.entries.append(e)
                for sb in range(2):
                    for ee in range(2):
                        self.steps.append(dict(e=len(self.entries) - 1, j=4 * u + 2 * sb + ee, ks=ks, slot=sl,
                                               va=vA[sb], rel=8 * ee, rdoff=512, l=l, gi=gi, u=u))
                e["last"] = len(self.steps) - 1
        def seg_extra(l, gi, bt):
            e = dict(kind="x", l=l, u=3, ks=[k for k, _ in bt], size=XB, gi=gi, first=len(self.steps))
            self.entries.append(e)
            for i, (ks, sl) in enumerate(bt):
                self.steps.append(dict(e=len(self.entries) - 1, j=12, ks=ks, slot=sl,
                                       va=vA2, rel=1024 * i, rdoff=256, l=l, gi=gi, u=3))
            e["last"] = len(self.steps) - 1
        for l in range(NL):
            gl = [list(zip(G, SL)) for (G, SL) in self.groups[l]]
            a, b = gl[0], gl[1]
            if l == 0:
                for gi_, lst_ in ((0, a), (1, b)):
                    for it in lst_:
                        for u in range(3): seg_main(l, gi_, u, [it])
            else:
                seg_main(l, 0, 0, a); seg_main(l, 0, 1, a); seg_main(l, 1, 0, b); seg_main(l, 1, 1, b)
                seg_main(l, 0, 2, a); seg_main(l, 1, 2, b)
            ab = a + b
            seg_extra(l, 1, ab[0:4]); seg_extra(l, 1, ab[4:6])
            for gi in (2, 3, 4):
                lst = gl[gi]
                if gi == 4 and l == NL - 1 and self.TSPLIT:
                    seg_main(l, gi, 0, lst); seg_main(l, gi, 1, lst)
                    for bt in [lst[0:4], lst[4:8], lst[8:11], lst[11:13]]: seg_extra(l, gi, bt)
                    ns = self.TSPLIT
                    seg_main(l, gi, 2, lst[:13 - ns])
                    es_ = []
                    for ks, sl in lst[13 - ns:]:
                        e = dict(kind="m", l=l, u=2, ks=[ks], size=CH, gi=gi, first=len(self.steps))
                        self.entries.append(e); es_.append((len(self.entries) - 1, ks, sl))
                        for ee in range(2):
                            self.steps.append(dict(e=len(self.entries) - 1, j=8 + ee, ks=ks, slot=sl, va=vA[0], rel=8 * ee, rdoff=512, l=l, gi=gi, u=2))
                    self.tsplit_step = len(self.steps) - 1
                    for n_, ks, sl in es_:
                        for ee in range(2):
                            self.steps.append(dict(e=n_, j=10 + ee, ks=ks, slot=sl, va=vA[1], rel=8 * ee, rdoff=512, l=l, gi=gi, u=2))
                        self.entries[n_]["last"] = len(self.steps) - 1
                    continue
                for u in range(3): seg_main(l, gi, u, lst)
                if gi < 4: batches = [lst]
                elif l == 0: batches = [lst[0:4], lst[4:8], lst[8:12], lst[12:13]]
                else: batches = [lst[0:4], lst[4:8], lst[8:11], lst[11:13]]
                for bt in batches: seg_extra(l, gi, bt)
        self.nsteps = len(self.steps)
        seen = set()
        for st in self.steps:
            if st["j"] not in seen: seen.add(st["j"]); st["init"] = True
        iv = self.interval
        LA = self.LA
        self.bars = [-LA - 1]
        b_ = min(iv, self.IV0) - LA - 1
        while b_ < self.nsteps - LA - 1:
            self.bars.append(b_)
            b_ += self.IVE if b_ >= self.nsteps - self.IVT else (self.IV0 if b_ < self.IVS else iv)
        pos = 0
        live = []
        for n, e in enumerate(self.entries):
            if pos + e["size"] > RING: pos = 0
            e["base"] = pos; s0, s1 = pos, pos + e["size"]
            ov = [m for (m, a, b) in live if a < s1 and s0 < b]
            live = live + [(n, s0, s1)]
            lastneed = max([self.entries[m]["last"] for m in ov], default=None)
            if lastneed is None: e["jf"] = -1
            else:
                e["jf"] = next(j for j, P in enumerate(self.bars) if lastneed <= P + 1)
            e["jl"] = max(j for j, P in enumerate(self.bars) if P + LA + 1 <= e["first"] or j == 0)
            assert e["jf"] < e["jl"] or e["jf"] == -1, (n, e)
            pos = s1
        self.minlead = min((self.bars[e["jl"]] - self.bars[e["jf"]]) for e in self.entries if e["jf"] >= 0)

    def tr_reads(self, f):
        st = self.steps[f]; e = self.entries[st["e"]]
        r = wf(f)
        res = []
        for rd in range(2):
            off = e["base"] + st["rel"] + rd * st["rdoff"]
            res.append(Ins(f"ds_read_b64_tr_b16 v[{r+2*rd}:{r+2*rd+1}], v{st['va']} offset:{off}", "D",
                           rd=vr(st["va"]), wr=vr(r + 2 * rd, 2), lg=("wf", f, rd)))
        return res
    def mfma(self, f, mt):
        st = self.steps[f]
        c = acc(st["j"], mt); a = wf(f); b = 16 * st["slot"] + 4 * mt
        if st.get("init"):
            return Ins(f"v_mfma_f32_16x16x32_bf16 v[{c}:{c+3}], v[{a}:{a+3}], a[{b}:{b+3}], 0", "M",
                       rd=vr(a, 4) + ar(b, 4), wr=vr(c, 4))
        return Ins(f"v_mfma_f32_16x16x32_bf16 v[{c}:{c+3}], v[{a}:{a+3}], a[{b}:{b+3}], v[{c}:{c+3}]", "M",
                   rd=vr(a, 4) + ar(b, 4) + vr(c, 4), wr=vr(c, 4))
    def dma_entry(self, n):
        e = self.entries[n]; l = e["l"]
        t = self.stemp()
        if e["kind"] == "m":
            ks = e["ks"][0]
            const = (0 if self.NOW else l) * LSTRIDE + ks * KSB + 128 * e["u"]
            pat = vPW2 if (l > 0 and ks >= 24) else vPW
            seq = [S(f"s_add_u32 s{t}, s{sWq}, {const}"),
                   S(f"s_add_u32 m0, s{sW1032}, {e['base']}", note="m0"),
                   Ins(f"buffer_load_dwordx4 v{pat}, {srd(sW_)}, s{t} offen lds", "A", rd=vr(pat), vm=("w", n))]
        else:
            ks = e["ks"] + [e["ks"][-1]] * (4 - len(e["ks"]))
            lit = 0
            for i, k in enumerate(ks): lit |= (26 * (0 if self.NOW else l) + k) << (8 * i)
            pat = vPE2 if (l > 0 and ks[0] >= 24) else vPE
            seq = [S(f"s_lshr_b32 s{t}, 0x{lit:x}, s{sW8}"),
                   S(f"s_and_b32 s{t}, s{t}, 0xff"),
                   S(f"s_mul_i32 s{t}, s{t}, {KSB}"),
                   S(f"s_add_u32 s{t}, s{t}, s{sXq}"),
                   S(f"s_add_u32 m0, s{sW1024}, {e['base']}", note="m0"),
                   Ins(f"buffer_load_dwordx4 v{pat}, {srd(sW_)}, s{t} offen lds", "A", rd=vr(pat), vm=("w", n))]
        return seq
    def xload(self, l, ks, slot):
        t = sXs[(ks + l) % 2]
        xs, xo = self.xch(l - 1)
        seq = [S(f"s_add_u32 s{t}, s{sXb}, {(xo + 4096 * ks) & 0xffffffff}")]
        for mt in range(4):
            d = 16 * slot + 4 * mt
            if ks < 24:
                seq.append(Ins(f"buffer_load_dwordx4 a[{d}:{d+3}], v{vL16}, {srd(60 if self.NOLD else xs)}, s{t} offen offset:{1024*mt}{self.pol(self.LDP)}", "L",
                               rd=vr(vL16), wr=ar(d, 4), vm=("x", l, ks, mt, 0)))
            else:
                for h in range(2):
                    seq.append(Ins(f"buffer_load_dwordx2 a[{d+2*h}:{d+2*h+1}], v{vL8}, {srd(60 if self.NOLD else xs)}, s{t} offen offset:{2048*h+512*mt}{self.pol(self.LDP)}", "L",
                                   rd=vr(vL8), wr=ar(d + 2 * h, 2), vm=("x", l, ks, mt, h)))
        return seq
    def xtags(self, l, ks, mt):
        if l == 0: return [], [("xs", ks, mt)]
        if ks < 24: return [("x", l, ks, mt, 0)], []
        return [("x", l, ks, mt, 0), ("x", l, ks, mt, 1)], []
    def stage_dma(self, line, slot=None, tag="st"):
        if slot is None: slot = line % 3
        seq = []
        for j in range(8):
            imm = 1024 * (j & 1) + 128 * line
            if j % 2 == 0:
                seq.append(S(f"s_add_u32 m0, s{sXRw}, {8192 * slot + 1024 * j - 128 * line}", note="m0"))
            ins = Ins(f"buffer_load_dwordx4 v{vPX}, {srd(sX0_)}, s{sJ[j]} offen offset:{imm} lds", "A", rd=vr(vPX), vm=(tag, line, j))
            if j % 2 == 0: ins.note = "m0keep"
            seq.append(ins)
        return seq
    def stage_read(self, ks, slot):
        line, sb = ks >> 1, ks & 1
        seq = []
        for mt in range(4):
            d = 16 * slot + 4 * mt
            seq.append(Ins(f"ds_read_b128 a[{d}:{d+3}], v{vX[sb]} offset:{8192 * (line % 3) + 2048 * mt}", "D",
                           rd=vr(vX[sb]), wr=ar(d, 4), lg=("xs", ks, mt), need_vm=[("st", line, 2 * mt), ("st", line, 2 * mt + 1)]))
            seq[-1].minvm = self.AGE1 if line == 1 else self.AGE if line < 8 else self.AGE2
        return seq
    def reload_dma(self, u):
        seq = []
        if u == 0: seq.append(V(f"v_add_u32 v{vPX}, s{sWq}, v{vPX}", rd=vr(vPX), wr=vr(vPX)))
        if u < 3: return seq + self.stage_dma(u, (u + 1) % 3, "rl")
        for h in range(2):
            t = self.stemp(1)
            seq += [S(f"s_add_u32 s{t}, s{sRow}, s{sXq}"),
                    S(f"s_add_u32 s{t}, s{t}, {h * 32 * ROWB}"),
                    S(f"s_add_u32 m0, s{sXRw}, {24576 + 1024 * h}", note="m0"),
                    Ins(f"buffer_load_dwordx4 v{vPXE}, {srd(sX0_)}, s{t} offen lds", "A", rd=vr(vPXE), vm=("rl", 3, h))]
            seq[-1].lines = 32
        return seq
    def epi_unit(self, l, u):
        last = (l == self.NL - 1)
        seq = []
        items = [(sb, mt) for sb in range(2) for mt in range(4)] if u < 3 else [(0, mt) for mt in range(4)]
        def rd(i):
            sb, mt = items[i]; xp = vXP[i % 2]
            if u < 3:
                nv = [("rl", u, 2 * mt), ("rl", u, 2 * mt + 1)] if l == 0 else []
                return Ins(f"ds_read_b128 v[{xp}:{xp+3}], v{vX[sb]} offset:{8192 * ((u + 1) % 3) + 2048 * mt}", "D", rd=vr(vX[sb]), wr=vr(xp, 4),
                           lg=("xp", l, u, i), need_vm=nv)
            nv = [("rl", 3, mt >> 1)] if l == 0 else []
            return Ins(f"ds_read_b64 v[{xp}:{xp+1}], v{vX2} offset:{512 * mt}", "D", rd=vr(vX2), wr=vr(xp, 2), lg=("xp", l, u, i), need_vm=nv)
        seq2 = [rd(0), rd(1)]
        for b_ in range(2):
            if self.last_reader[b_] is not None: seq2[b_].after = [self.last_reader[b_]]
        for i, (sb, mt) in enumerate(items):
            xp = vXP[i % 2]
            ne = 2 if u < 3 else 1
            first = True; pend = None
            for e in range(ne):
                j = 4 * u + 2 * sb + e if u < 3 else 12
                c = acc(j, mt)
                for p in range(2):
                    x = xp + 2 * e + p; t = vT[p]
                    if self.PK & 1:
                        if p == 1: continue
                        t0, t1 = vT; x1 = x + 1
                        i0 = V(f"v_lshlrev_b32 v{t0}, 16, v{x}", rd=vr(x), wr=vr(t0))
                        if first: i0.need_lg = [("xp", l, u, i)]; first = False
                        seq += [i0, V(f"v_and_b32 v{t1}, s{sMask}, v{x}", rd=vr(x), wr=vr(t1)),
                                V(f"v_lshlrev_b32 v{x}, 16, v{x1}", rd=vr(x1), wr=vr(x)),
                                V(f"v_and_b32 v{x1}, s{sMask}, v{x1}", rd=vr(x1), wr=vr(x1)),
                                V(f"v_pk_mul_f32 v[{t0}:{t1}], v[{t0}:{t1}], v[{c}:{c+1}]", rd=vr(t0, 2) + vr(c, 2), wr=vr(t0, 2)),
                                V(f"v_pk_mul_f32 v[{x}:{x1}], v[{x}:{x1}], v[{c+2}:{c+3}]", rd=vr(x, 2) + vr(c + 2, 2), wr=vr(x, 2)),
                                V(f"v_cvt_pk_bf16_f32 v{x1}, v{x}, v{x1}", rd=vr(x, 2), wr=vr(x1)),
                                V(f"v_cvt_pk_bf16_f32 v{x}, v{t0}, v{t1}", rd=vr(t0, 2), wr=vr(x))]
                        continue
                    i0 = V(f"v_lshlrev_b32 v{t}, 16, v{x}", rd=vr(x), wr=vr(t))
                    if first: i0.need_lg = [("xp", l, u, i)]; first = False
                    seq += [i0,
                            V(f"v_and_b32 v{x}, s{sMask}, v{x}", rd=vr(x), wr=vr(x)),
                            V(f"v_mul_f32 v{t}, v{t}, v{c+2*p}", rd=vr(t) + vr(c + 2 * p), wr=vr(t)),
                            V(f"v_mul_f32 v{x}, v{x}, v{c+2*p+1}", rd=vr(x) + vr(c + 2 * p + 1), wr=vr(x)),
                            V(f"v_cvt_pk_bf16_f32 v{x}, v{t}, v{x}", rd=vr(t) + vr(x), wr=vr(x))]
            if pend is not None: seq.append(pend)
            lastv = seq[-1]
            if not last:
                t = sXt[i % 2]
                if u < 3:
                    b = 2 * u + sb
                    xs, xo = self.xch(l)
                    seq2.append(S(f"s_add_u32 s{t}, s42, {(xo + 4096 * b) & 0xffffffff}"))
                    st = Ins(f"buffer_store_dwordx4 v[{xp}:{xp+3}], v{vL16}, {srd(60 if self.NOST else xs)}, s{t} offen offset:{1024*mt}{self.pol(self.STP)}", "T",
                             rd=vr(xp, 4) + vr(vL16), vm=("xo", l, u, i))
                else:
                    xs, xo = self.xch(l)
                    seq2.append(S(f"s_add_u32 s{t}, s43, {xo & 0xffffffff}"))
                    st = Ins(f"buffer_store_dwordx2 v[{xp}:{xp+1}], v{vL8}, {srd(60 if self.NOST else xs)}, s{t} offen offset:{512*mt}{self.pol(self.STP)}", "T",
                             rd=vr(xp, 2) + vr(vL8), vm=("xo", l, u, i))
            else:
                if u < 3:
                    b = 2 * u + sb
                    st = Ins(f"buffer_store_dwordx4 v[{xp}:{xp+3}], v{vOut}, {srd(sOUT_)}, s{sOutMt[mt]} offen offset:{64*b}{self.pol(self.OUTP)}", "T",
                             rd=vr(xp, 4) + vr(vOut), vm=("xo", l, u, i))
                else:
                    t = sXt[i % 2]
                    seq2.append(S(f"s_add_u32 s{t}, s{sOutMt[mt]}, s76"))
                    st = Ins(f"buffer_store_dwordx2 v[{xp}:{xp+1}], v{vOutE}, {srd(sOUT_)}, s{t} offen{self.pol(self.OUTP)}", "T",
                             rd=vr(xp, 2) + vr(vOutE), vm=("xo", l, u, i))
            st.after = [lastv]; st.lines = 8 if u < 3 else 4; st.dl = -2000; st.hard = -2000
            self.last_reader[i % 2] = st
            seq2.append(st)
            if i + 2 < len(items): seq2.append(rd(i + 2))
        return seq, seq2
    def bias_unit(self, l, u):
        seq = []
        tiles = [4 * u + i for i in range(4)] if u < 3 else [12]
        def rd(i):
            xp = vXP[i % 2]
            return Ins(f"ds_read_b128 v[{xp}:{xp+3}], v{vBias} offset:{832 * l + 64 * tiles[i]}", "D", rd=vr(vBias), wr=vr(xp, 4), lg=("bi", l, tiles[i]))
        seq2 = [rd(0)] + ([rd(1)] if len(tiles) > 1 else [])
        for b_ in range(len(seq2)):
            if self.last_reader[b_] is not None: seq2[b_].after = [self.last_reader[b_]]
        for i, j in enumerate(tiles):
            xp = vXP[i % 2]
            first = True
            for mt in range(4):
                c = acc(j, mt)
                for r in range(0, 4, 2 if self.PK & 2 else 1):
                    if self.PK & 2: x = V(f"v_pk_add_f32 v[{c+r}:{c+r+1}], v[{c+r}:{c+r+1}], v[{xp+r}:{xp+r+1}]", rd=vr(c + r, 2) + vr(xp + r, 2), wr=vr(c + r, 2))
                    else: x = V(f"v_add_f32 v{c+r}, v{c+r}, v{xp+r}", rd=vr(c + r) + vr(xp + r), wr=vr(c + r))
                    if first: x.need_lg = [("bi", l, j)]; first = False
                    seq.append(x)
            self.last_reader[i % 2] = seq[-1]
            if i + 2 < len(tiles):
                r2 = rd(i + 2); r2.after = [seq[-1]]; seq2.append(r2)
        return seq, seq2
    def flag_set(self, val, need):
        v = V(f"v_add_u32 v{vFlagVal}, {val}, v{vBase}", rd=vr(vBase), wr=vr(vFlagVal), need_vm=list(need) + [("fb",)])
        v.minvm = self.T_ST
        st = Ins(f"buffer_store_dword v{vFlagVal}, v{vFlagOff}, {srd(sWS_)}, 0 offen sc1", "T", rd=vr(vFlagVal) + vr(vFlagOff), vm=("fs", val))
        st.lines = 1; st.dl = -3000; st.hard = -3000
        return [v, st]
    def flag_poll(self, val):
        k = val
        ld = Ins(f"buffer_load_dword v{vPoll}, v{vPollOff}, {srd(sWS_)}, 0 offen sc1", "L", rd=vr(vPollOff), wr=vr(vPoll), vm=("fp", val))
        chk = [V(f"v_sub_u32 v{vPoll}, v{vPoll}, v{vBase}", rd=vr(vPoll) + vr(vBase), wr=vr(vPoll), need_vm=[("fp", val), ("fb",)]),
               V(f"v_cmp_gt_u32 vcc, {val}, v{vPoll}", rd=vr(vPoll)),
               S("s_nop 0"),
               Ins(f"s_cbranch_vccnz Lslow{k}\nLback{k}:", "S")]
        self.slow.append(f"""Lslow{k}:
  s_mov_b32 s{sSpin}, 0x{self.SPIN:x}
Lspin{k}:
  buffer_load_dword v{vPoll}, v{vPollOff}, {srd(sWS_)}, 0 offen sc1
  s_waitcnt vmcnt(0)
  v_sub_u32 v{vPoll}, v{vPoll}, v{vBase}
  v_cmp_gt_u32 vcc, {val}, v{vPoll}
  s_sub_u32 s{sSpin}, s{sSpin}, 1
{"  s_add_u32 s90, s90, 0x%x" % (1 << (4 * (k - 1))) if self.prof else ""}
  s_cbranch_vccz Lback{k}
  s_cmp_lg_u32 s{sSpin}, 0
  s_cbranch_scc1 Lspin{k}
  s_branch Lback{k}""")
        return ld, chk
    def out_patterns(self):
        t0, t1 = vT
        return [V(f"v_lshrrev_b32 v{t0}, 4, v{vL16}", rd=vr(vL16), wr=vr(t0)),
                V(f"v_and_b32 v{t1}, 15, v{t0}", rd=vr(t0), wr=vr(t1)),
                V(f"v_mul_u32_u24 v{t1}, {ROWB}, v{t1}", rd=vr(t1), wr=vr(t1)),
                V(f"v_lshrrev_b32 v{t0}, 4, v{t0}", rd=vr(t0), wr=vr(t0)),
                V(f"v_lshlrev_b32 v{t0}, 3, v{t0}", rd=vr(t0), wr=vr(t0)),
                V(f"v_add_u32 v{vOutE}, v{t1}, v{t0}", rd=vr(t0) + vr(t1), wr=vr(vOutE)),
                V(f"v_add_u32 v{vOut}, v{vOutE}, v{t0}", rd=vr(t0) + vr(vOutE), wr=vr(vOut))]

    def prologue(self):
        R = self.raw
        VV = lambda t: self.emit(Ins(t, "V"))
        R("s_cmp_ge_u32 s2, 256\ns_cbranch_scc1 Lend")
        R("s_load_dwordx4 s[64:67], s[0:1], 0\ns_load_dwordx4 s[68:71], s[0:1], 16\ns_load_dwordx4 s[72:75], s[0:1], 32")
        if self.stamps:
            R("s_memrealtime s[80:81]\ns_memtime s[82:83]")
        if self.SPAN: R("s_memrealtime s[88:89]")
        if self.prof:
            R(("s_memrealtime" if self.PRT else "s_memtime") + " s[88:89]\ns_mov_b32 s90, 0")
        VV("v_lshrrev_b32 v31, 6, v0")
        VV("v_and_b32 v0, 63, v0")
        R(f"""s_and_b32 s{sC}, s2, 7
s_lshr_b32 s3, s2, 5""")
        VV(f"v_readfirstlane_b32 s{sWv}, v31")
        R(f"""s_lshl_b32 s55, s3, 2
s_lshl_b32 s3, s3, 3
s_add_u32 s{sC}, s{sC}, s3
s_lshr_b32 s{sQ}, s2, 3
s_and_b32 s{sQ}, s{sQ}, 3
s_mul_i32 s{sWq}, s{sQ}, 384
s_lshl_b32 s3, s{sC}, 2
s_add_u32 s3, s3, s{sWv}
s_mul_i32 s{sRow}, s3, {64 * ROWB}
s_add_u32 s55, s55, s{sWv}
s_mul_i32 s55, s55, {ROWB}
s_mul_i32 s{sW1032}, s{sWv}, 1032
s_lshl_b32 s{sW8}, s{sWv}, 3
s_mul_i32 s{sXRw}, s{sWv}, {XRW}
s_add_u32 s{sXRw}, s{sXRw}, {XR}
s_nop 0""")
        for j in range(8):
            R(f"s_add_u32 s{sJ[j]}, s{sRow}, {j * 8 * ROWB - 1024 * (j & 1)}")
        VV(f"v_lshlrev_b32 v{vL16}, 4, v0")
        VV("v_lshrrev_b32 v20, 3, v0")
        VV("v_and_b32 v21, 7, v0")
        VV("v_and_b32 v23, 6, v20")
        VV("v_lshlrev_b32 v22, 1, v20")
        VV("v_xor_b32 v23, v21, v23")
        VV("v_and_b32 v22, 4, v22")
        VV("v_lshlrev_b32 v23, 4, v23")
        VV(f"v_mul_u32_u24 v24, {ROWB}, v20")
        VV("v_xor_b32 v22, v21, v22")
        VV(f"v_add_u32 v{vPX}, v23, v24")
        VV("v_lshlrev_b32 v22, 4, v22")
        VV(f"v_add_u32 v23, s{sW8}, v20")
        VV(f"v_mul_u32_u24 v23, {ROWB}, v23")
        VV(f"v_add_u32 v{vPW}, v23, v22")
        if self.EARLYPF: self.pf_patterns()
        self.pstamp()
        R("s_waitcnt lgkmcnt(0)")
        self.pstamp()
        self.mk(sX0_, 64, 16384 * ROWB)
        self.mk(sW_, 66, 3 * LSTRIDE)
        if self.CPF:
            self.emit(Ins("s_getpc_b64 s[64:65]\nLpc:", "S"))
            R(f"s_and_b32 s65, s65, 0xffff\ns_mov_b32 s66, Lcode_end-Lpc\ns_mov_b32 s67, 0x20000\ns_lshr_b32 s72, s2, 3\ns_lshl_b32 s72, s72, 2\ns_add_u32 s72, s72, s{sWv}\ns_lshl_b32 s72, s72, 7")
    def prologue2(self):
        R = self.raw
        R(f"""s_lshl_b32 s{sXq}, s{sQ}, 5
s_add_u32 s{sXq}, s{sXq}, 1536
s_lshl_b32 s{sW1024}, s{sWv}, 10
s_lshl_b32 s3, s{sC}, 2
s_add_u32 s3, s3, s{sWv}
s_mul_i32 s{sXb}, s3, 106496
s_add_u32 s{sXb}, s{sXb}, {self.XB0}
s_mov_b32 s{sMask}, 0xffff0000
s_mul_i32 s42, s{sQ}, 24576
s_add_u32 s42, s42, s{sXb}
s_lshr_b32 s43, s{sQ}, 1
s_add_u32 s43, s43, 24
s_lshl_b32 s43, s43, 12
s_and_b32 s3, s{sQ}, 1
s_lshl_b32 s3, s3, 11
s_add_u32 s43, s43, s3
s_add_u32 s43, s43, s{sXb}
s_mul_i32 s76, s{sQ}, 352
s_sub_u32 s76, 1536, s76""")
        for mt in range(4):
            R(f"s_add_u32 s{sOutMt[mt]}, s{sRow}, {mt * 16 * ROWB}\ns_add_u32 s{sOutMt[mt]}, s{sOutMt[mt]}, s{sWq}")
        self.mk(sB_, 68, 3 * ROWB)
        self.mk(sOUT_, 70, 16384 * ROWB)
        self.mk(sWS_, 74, 0x10000000)
        if self.NOST or self.NOLD or self.NOW: self.mk(60, 74, 0)
        self.prologue_rest()
    def mk(self, b, lo, size):
        self.raw(f"s_mov_b32 s{b}, s{lo}\ns_and_b32 s{b+1}, s{lo+1}, 0xffff\ns_mov_b32 s{b+2}, {size}\ns_mov_b32 s{b+3}, 0x20000")
    def prologue_rest(self):
        R = self.raw
        VV = lambda t: self.emit(Ins(t, "V"))
        VV("v_lshrrev_b32 v23, 2, v20")
        VV("v_lshlrev_b32 v23, 4, v23")
        VV("v_and_b32 v24, 3, v20")
        VV("v_add_u32 v23, v23, v24")
        R(f"s_lshl_b32 s3, s{sWv}, 2")
        VV("v_add_u32 v23, s3, v23")
        VV(f"v_mul_u32_u24 v23, {ROWB}, v23")
        VV(f"v_add_u32 v{vPW2}, v23, v22")
        VV("v_lshrrev_b32 v20, 1, v0")
        VV("v_and_b32 v21, 1, v0")
        VV("v_lshlrev_b32 v21, 4, v21")
        VV(f"v_mul_u32_u24 v23, {ROWB}, v20")
        VV(f"v_add_u32 v{vPXE}, v23, v21")
        VV("v_and_b32 v23, 19, v20")
        VV("v_and_b32 v24, 4, v20")
        VV("v_lshlrev_b32 v24, 1, v24")
        VV("v_or_b32 v23, v23, v24")
        VV("v_and_b32 v24, 8, v20")
        VV("v_lshrrev_b32 v24, 1, v24")
        VV("v_or_b32 v23, v23, v24")
        VV(f"v_mul_u32_u24 v23, {ROWB}, v23")
        VV(f"v_add_u32 v{vPE}, v23, v21")
        VV("v_and_b32 v23, 7, v20")
        VV("v_and_b32 v24, 8, v20")
        VV("v_lshlrev_b32 v24, 1, v24")
        VV("v_or_b32 v23, v23, v24")
        VV("v_and_b32 v24, 16, v20")
        VV("v_lshrrev_b32 v24, 1, v24")
        VV("v_or_b32 v23, v23, v24")
        VV(f"v_mul_u32_u24 v23, {ROWB}, v23")
        VV(f"v_add_u32 v{vPE2}, v23, v21")
        VV("v_lshrrev_b32 v20, 4, v0")
        VV("v_and_b32 v21, 15, v0")
        VV("v_lshrrev_b32 v22, 2, v0")
        VV("v_and_b32 v22, 3, v22")
        VV("v_and_b32 v23, 3, v0")
        VV("v_mul_u32_u24 v24, 1032, v20")
        VV("v_lshlrev_b32 v25, 7, v22")
        VV("v_add_u32 v24, v24, v25")
        VV("v_lshlrev_b32 v25, 4, v23")
        VV("v_add_u32 v24, v24, v25")
        VV("v_lshrrev_b32 v25, 1, v22")
        VV("v_lshlrev_b32 v25, 6, v25")
        VV(f"v_add_u32 v{vA[0]}, v24, v25")
        VV("v_sub_u32 v25, 64, v25")
        VV(f"v_add_u32 v{vA[1]}, v24, v25")
        VV("v_lshrrev_b32 v24, 1, v20")
        VV("v_lshlrev_b32 v24, 9, v24")
        VV("v_and_b32 v25, 1, v20")
        VV("v_lshlrev_b32 v25, 7, v25")
        VV("v_add_u32 v24, v24, v25")
        VV("v_lshlrev_b32 v25, 5, v22")
        VV("v_add_u32 v24, v24, v25")
        VV("v_lshlrev_b32 v25, 3, v23")
        VV(f"v_add_u32 v{vA2}, v24, v25")
        VV("v_and_b32 v24, 6, v21")
        VV("v_xor_b32 v24, v20, v24")
        VV("v_lshlrev_b32 v24, 4, v24")
        VV("v_lshlrev_b32 v25, 7, v21")
        VV("v_add_u32 v24, v24, v25")
        VV(f"v_add_u32 v{vX[0]}, s{sXRw}, v24")
        VV(f"v_xor_b32 v{vX[1]}, 64, v{vX[0]}")
        VV("v_lshlrev_b32 v24, 5, v21")
        VV("v_lshlrev_b32 v25, 3, v20")
        VV("v_add_u32 v24, v24, v25")
        VV(f"v_add_u32 v24, s{sXRw}, v24")
        VV(f"v_add_u32 v{vX2}, 24576, v24")
        VV(f"v_lshlrev_b32 v{vL16}, 4, v0")
        VV(f"v_lshlrev_b32 v{vL8}, 3, v0")
        VV("v_lshlrev_b32 v24, 4, v20")
        VV(f"v_add_u32 v{vBias}, {BIAS}, v24")
        R(f"s_lshl_b32 s3, s{sC}, 2\ns_add_u32 s3, s3, s{sWv}\ns_lshl_b32 s3, s3, 9\ns_add_u32 s3, s3, {FBASE}")
        VV("v_and_b32 v24, 3, v0")
        VV("v_lshlrev_b32 v24, 7, v24")
        VV(f"v_add_u32 v{vPollOff}, s3, v24")
        VV(f"v_mov_b32 v{vFlagOff}, 0x7fffff00")
        VV(f"v_cmp_eq_u32 vcc, s{sQ}, v0")
        R("s_nop 1")
        VV(f"v_cndmask_b32 v{vFlagOff}, v{vFlagOff}, v{vPollOff}, vcc")
        if not self.EARLYPF: self.pf_patterns()
        self.bias_prologue()
        R(f"s_lshl_b32 s91, s2, 2\ns_add_u32 s91, s91, s{sWv}\ns_lshl_b32 s91, s91, 12")

    def pf_patterns(self):
        R = self.raw; VV = lambda t: self.emit(Ins(t, "V"))
        R(f"s_lshl_b32 s56, s{sQ}, 4")
        VV("v_and_b32 v26, 15, v0")
        VV("v_lshrrev_b32 v27, 4, v0")
        VV("v_add_u32 v26, s56, v26")
        VV("v_lshlrev_b32 v27, 7, v27")
        VV(f"v_mul_u32_u24 v26, {ROWB}, v26")
        VV(f"v_add_u32 v{vPFX}, v26, v27")
        if self.PXW == 2:
            VV("v_lshrrev_b32 v27, 5, v0")
            VV("v_lshlrev_b32 v27, 30, v27")
            VV(f"v_add_u32 v{vPFX}, v{vPFX}, v27")
        for i in self.pfw_pattern(vPFW, False): self.emit(i)
        if self.PX0W:
            VV(f"v_add_u32 v27, {64 - 16 * self.PX0W}, v0")
            VV("v_lshrrev_b32 v27, 6, v27")
            VV("v_lshlrev_b32 v27, 30, v27")
            VV(f"v_add_u32 v27, v{vPFX}, v27")
        if self.T_WG < 190 or self.T_WGS:
            VV("v_lshlrev_b32 v29, 7, v0")
            VV(f"v_lshrrev_b32 v28, {3 if self.T_WGS else 5}, v0")
            VV("v_min_u32 v28, 1, v28")
            VV("v_lshlrev_b32 v28, 30, v28")
            VV("v_add_u32 v29, v28, v29")
            R(f"s_lshl_b32 s91, s2, 2\ns_add_u32 s91, s91, s{sWv}\ns_lshl_b32 s91, s91, 12")
        if self.PX1:
            VV("v_lshrrev_b32 v28, 4, v0")
            VV("v_min_u32 v28, 1, v28")
            VV("v_lshlrev_b32 v28, 30, v28")
            VV(f"v_add_u32 v28, v{vPFX}, v28")
    def bias_prologue(self):
        R = self.raw; VV = lambda t: self.emit(Ins(t, "V"))
        R(f"s_lshl_b32 s3, s{sWv}, 6")
        VV("v_add_u32 v20, s3, v0")
        VV("v_min_u32 v20, 207, v20")
        VV("v_lshrrev_b32 v21, 4, v20")
        VV("v_and_b32 v22, 15, v20")
        VV("v_lshrrev_b32 v23, 1, v21")
        VV("v_lshlrev_b32 v23, 5, v23")
        VV("v_lshrrev_b32 v24, 2, v22")
        VV("v_lshlrev_b32 v24, 3, v24")
        VV("v_add_u32 v23, v23, v24")
        VV("v_and_b32 v24, 1, v21")
        VV("v_lshlrev_b32 v24, 2, v24")
        VV("v_add_u32 v23, v23, v24")
        VV("v_and_b32 v24, 3, v22")
        VV("v_add_u32 v23, v23, v24")
        R(f"s_mul_i32 s3, s{sQ}, 192")
        VV("v_add_u32 v23, s3, v23")
        R(f"s_lshl_b32 s3, s{sQ}, 4\ns_add_u32 s3, s3, 768")
        VV("v_add_u32 v24, s3, v22")
        VV("v_cmp_eq_u32 vcc, 12, v21")
        R("s_nop 1")
        VV("v_cndmask_b32 v23, v23, v24, vcc")
        VV("v_lshlrev_b32 v23, 1, v23")
        VV("v_lshlrev_b32 v22, 2, v20")
        VV(f"v_add_u32 v22, {BIAS}, v22")
    def bias_loads(self):
        for l in range(3):
            self.emit(Ins(f"buffer_load_ushort v{25+l}, v23, {srd(sB_)}, 0 offen offset:{l*ROWB}", "L", vm=("bl", l)))
            self.vm_step[("bl", l)] = -100
    def bias_write(self):
        a = [V(f"v_lshlrev_b32 v{25+l}, 16, v{25+l}", rd=vr(25 + l), wr=vr(25 + l)) for l in range(3)]
        a[0].need_vm = [("bl", 2)]
        a.append(V("v_add_f32 v25, 1.0, v25", rd=vr(25), wr=vr(25)))
        b = [Ins(f"ds_write_b32 v22, v{25+l} offset:{832*l}", "D", rd=vr(22) + vr(25 + l), lg=("bw", l)) for l in range(3)]
        b[0].after = [a[-1]]
        self.last_reader = [b[-1], b[-1]]
        return a, b

    COST = {"S": 4, "W": 4, "X": 4, "SS": 8, "V": 4, "D": 8, "L": 8, "A": 12, "T": 12}
    def fits(self, kinds):
        t = 4
        for i, k in enumerate(kinds):
            if k == "V": t = max(t, 8) + 4
            else: t += self.COST[k]
            if k == "L" and (i + 1 == len(kinds)): t += 4
            if k == "L" and i + 1 < len(kinds) and kinds[i + 1] != "V": return False
            if k in ("A", "T") and (i != 0 or len(kinds) > 1): return False
        return t <= 16

    def first_step(self, l, gi, u=0):
        for f, st in enumerate(self.steps):
            if st["l"] == l and st["gi"] == gi and st["u"] == u: return f
    def last_step(self, l, gi, u):
        r = None
        for f, st in enumerate(self.steps):
            if st["l"] == l and st["gi"] == gi and st["u"] == u: r = f
        return r
    def group_range(self, l, gi):
        fs = [f for f, st in enumerate(self.steps) if st["l"] == l and st["gi"] == gi]
        return fs[0], fs[-1]

    def build_streams(self):
        NL = self.NL
        self.last_reader = [None, None]
        M1 = []
        M2 = []
        E = []
        E2 = []
        M3 = []
        for n, e in enumerate(self.entries):
            es = -100 if e["jf"] < 0 else self.bars[e["jf"]]
            sq = self.dma_entry(n)
            for i_ in sq: i_.dl = min(self.bars[e["jl"]] - self.LATW, max(es, 0) + self.RSL)
            for i_ in sq: i_.hard = self.bars[e["jl"]] - 14
            sq[-1].lines = 8 if e["kind"] == "m" else 32
            M1.append([es, 0, sq, ("bar", e["jf"])])
        G = self.groups[0]
        slot_of = {}
        for gi, (ks_l, sl_l) in enumerate(G):
            for ks, sl in zip(ks_l, sl_l): slot_of[ks] = (gi, sl)
        def first_use(l, ks):
            for f, st in enumerate(self.steps):
                if st["l"] == l and st["ks"] == ks: return f
        self.first_use = first_use
        def slot_free(l, ks, sl):
            f0 = first_use(l, ks)
            r = -100
            for f in range(f0):
                if self.steps[f]["slot"] == sl: r = f
            return r
        self.stage_reads = {}
        stage_free = {}
        DM = []
        rd_earliest = {}
        for ks in range(26):
            gi, sl = slot_of[ks]
            rd_earliest[ks] = slot_free(0, ks, sl) + 1 if slot_free(0, ks, sl) >= 0 else -100
        cur = -100
        for ks in range(26):
            cur = max(cur, rd_earliest[ks]); rd_earliest[ks] = cur
        self.rd_earliest = rd_earliest
        self.slot_of0 = slot_of
        for line in range(13):
            seq = self.stage_dma(line)
            if line >= 3: seq[0].need_lg = [("xs", 2 * (line - 3) + 1, 3)]
            if line < self.PRO_X: es = -100
            else:
                es = self.T_STG0 + self.T_STGD * (line - self.PRO_X)
                k = 0
                for i_ in seq:
                    i_.earliest = int(es + self.PSP * k); i_.dl = i_.earliest + 8
                    if self.FCAP: i_.dl = first_use(0, min(2 * line, 25)) - self.STDL
                    if i_.kind == "A": k += 1
            M3.append([es, 1, seq, None])
        for u in (0, 3, 1, 2):
            seq = self.reload_dma(u)
            if u < 3: seq[0 if u else 1].need_lg = [("xs", 2 * (10 + u) + 1, 3)]
            es = self.T_RL[u]; k = 0
            for i_ in seq:
                i_.earliest = int(es + self.PSP * k); i_.dl = i_.earliest + 8
                if i_.kind == "A": k += 1
            M3.append([es, 1, seq, None])
        for ks in range(26):
            gi, sl = slot_of[ks]
            M2.append([rd_earliest[ks], 0, self.stage_read(ks, sl), None])
        for l in range(1, NL):
            base = 4 * (l - 1)
            def cls(ks):
                if ks >= 24: return 4
                return [1, 2, 3, 3, 4, 4][ks % 6]
            polled = set()
            lst = []
            for gi, (ks_l, sl_l) in enumerate(self.groups[l]):
                for ks, sl in zip(ks_l, sl_l):
                    lst.append((gi, ks, sl))
            gb0, gb1 = self.group_range(l - 1, 4)
            l0 = gb1 + 1
            exp = {1: l0 + self.T_U0, 2: l0 + self.T_U0B, 3: l0 + self.T_U1, 4: l0 + self.T_U2}
            items = []
            for gi, ks, sl in lst:
                es = max(slot_free(l, ks, sl) + 1, exp[cls(ks)], first_use(l, ks) - (self.XLEADG[gi] or self.XLEAD))
                items.append([es, cls(ks), first_use(l, ks), ks, sl])
            items.sort(key=lambda it: (it[0], it[2]))
            npaced = 0
            for es, c, gi, ks, sl in items:
                seq = []
                if c not in polled:
                    polled.add(c)
                    ld, chk = self.flag_poll(base + c)
                    ld.lines = 4; ld.dl = es - self.T_POLL
                    if self.PHARD: ld.hard = es - self.T_POLL
                    M2.append([es - self.T_POLL, 2, [ld], None])
                    seq += chk
                xl = self.xload(l, ks, sl)
                for i_ in xl:
                    i_.dl = first_use(l, ks) - self.LATX
                    if i_.kind == "L": i_.lines = 8 if ks < 24 else 4
                    if i_.kind == "L" and self.XPACE and npaced < self.XPN:
                        i_.earliest = int(l0 + self.T_U0 + self.XPACE * npaced); i_.dl = max(i_.earliest + 1, first_use(l, ks) - self.LATX2); npaced += 1
                seq += xl
                M2.append([es, 3, seq, None])
        if NL > 1 and self.T_PWL:
            E.append([self.T_PAT, 0, self.pfw_pattern(vPFX, True), ("pat",)])
        a, b = self.bias_write()
        E.append([self.T_BW, 0, a, None]); E2.append([self.T_BW, 0, b, ("bw",)])
        for l in range(NL):
            g3 = 2
            for u in range(4):
                lastf = self.last_step(l, g3, u)
                a, b = self.bias_unit(l, u)
                E.append([lastf + 2, 1, a, ("bias", l, u)]); E2.append([lastf + 2 - self.E2LEAD, 1, b, None])
            if l == NL - 1:
                E.append([self.group_range(l, 4)[0] + 8, 0, self.out_patterns(), ("outpat",)])
            for u in ([0, 1, 3, 2] if (l == NL - 1 and self.TSPLIT) else range(4)):
                lastf = self.last_step(l, 4, u)
                a, b = self.epi_unit(l, u)
                if l == NL - 1 and u == 2 and self.TSPLIT:
                    for i_ in a[len(a) // 2:]: i_.earliest = lastf + 2
                    lastf = self.tsplit_step
                E.append([lastf + 2, 0, a, None]); E2.append([lastf + 2 - self.E2LEAD, 0, b, ("epi", l, u)])
        if self.ITLB:
            for k in range(2, 21):
                es = max(0, int((4096 * k - 4096 - self.ITLB) / 77))
                if es < self.steps[-1]["e"] * 0 + len(self.steps) - 20:
                    E2.append([es, 5, [Ins(f"s_buffer_load_dword s100, s[64:67], {4096 * k}", "S", lg=None, note="smem")], None])
        PFs = self.pf_streams()
        E.append([self.T_PW0[-1] + 2, 0, self.pfg_pat, None])
        M1.sort(key=lambda x: (x[0], x[1])); M2.sort(key=lambda x: (x[0], x[1])); E.sort(key=lambda x: (x[0], x[1]))
        flat = lambda Q: [(max(es, ins.earliest) if ins.earliest is not None else es, ins, tag, idx == len(seq) - 1) for es, _, seq, tag in Q for idx, ins in enumerate(seq)]
        M3.sort(key=lambda x: (x[0], x[1]))
        E2.sort(key=lambda x: (x[0], x[1]))
        self.PF = flat(PFs)
        self.M1, self.M2, self.E, self.M3, self.E2 = flat(M1), flat(M2), flat(E), flat(M3), flat(E2)

    def try_emit_from(self, Q, f, gap_kinds, allow, post_w):
        if not Q: return False
        es, ins, tag, lastflag = Q[0]
        if es > f: return False
        if isinstance(tag, tuple) and tag[0] == "bar" and tag[1] >= 0 and tag[1] > self.bar_passed: return False
        if ins.kind not in allow: return False
        if ins.note == 'm0' and self.m0_owner is not None: return False
        for a in ins.after:
            if id(a) not in self.issue_step: return False
        for t in ins.need_vm:
            if t not in self.vm_pos: return False
        for t in ins.need_lg:
            if t not in self.lg_pos: return False
        nv, nl = self.wait_for(ins.need_vm, ins.need_lg)
        needw = nv is not None or nl is not None
        kinds = gap_kinds + (["W"] if needw else []) + [ins.kind] + post_w
        if not self.fits(kinds):
            if needw and self.fits(gap_kinds + ["W"] + post_w) and self.wait_ok(ins, f):
                self.emit_wait(ins.need_vm, ins.need_lg); gap_kinds.append("W"); return True
            return False
        if needw and not self.wait_ok(ins, f): return False
        if not self.hazard_ok(ins): return False
        if needw:
            self.emit_wait(ins.need_vm, ins.need_lg); gap_kinds.append("W")
        self.emit(ins); gap_kinds.append(ins.kind)
        if ins.note == 'm0': self.m0_owner = id(Q)
        if ins.kind == 'A' and ins.note != "m0keep": self.m0_owner = None
        self.issue_step[id(ins)] = f
        if ins.vm is not None: self.vm_step[ins.vm] = f
        if ins.kind in ("A", "L", "T") and self.FCAP: self.fifo_push(ins, f)
        if ins.lg is not None: self.lg_step[ins.lg] = f
        Q.pop(0)
        if isinstance(tag, tuple) and tag[0] == "flag": self.flag_step[tag[1]] = f
        if isinstance(tag, tuple) and tag[0] == "pat":
            assert ("pf", "x", self.PX_L[-1]) in self.vm_pos, "prefetch pattern overwrites vPX before reload issued"
            self.pat_done = lastflag
        if ins.vm is not None and ins.vm[0] == "pf" and ins.vm[1] == "w" and ins.vm[2] > 0: assert self.pat_done and ("rl", 3, 1) in self.vm_pos
        if isinstance(tag, tuple) and tag[0] == "outpat":
            assert not any(i.kind == "L" and i.vm[0] == "fp" for _, i, _, _ in self.M2) and not any("v_cmp_gt_u32 vcc" in i.text for _, i, _, _ in self.M2) and not self.F
        if ins.vm is not None and ins.vm[0] == "xo" and ins.vm[2] == 0 and ins.vm[3] == 3 and ins.vm[1] < self.NL - 1:
            l_ = ins.vm[1]; val = 4 * l_ + 1
            self.F += [(f, i_, ("flag", val), False) for i_ in self.flag_set(val, [("xo", l_, 0, i) for i in range(4)])]
        if lastflag and isinstance(tag, tuple) and tag[0] == "epi":
            self.epi_done(tag, f)
        if lastflag and isinstance(tag, tuple) and tag[0] == "bias":
            self.bias_done[(tag[1], tag[2])] = f
        return True
    def fifo_lat(self, ins, f):
        t = ins.vm
        if t is None: return f + self.LD
        if t[0] == "pf":
            if t[1] in ("x", "g"): return f + self.LH
            if t[1] == "w" and t[2] == 0:
                gd = [self.fdone.get(("pf", "g", k)) for k in range(len(self.T_WGS or []))]
                if gd and all(x is not None and x <= f for x in gd): return f + self.LM
                return f + self.LH
            return f + self.LM
        if t[0] == "st":
            cov = [a for k_, a in enumerate(self.PX_L) if a <= t[1] <= a + (1 if a in self.PX1 else self.PX0W if (k_ == 0 and self.PX0W) else self.PXW) - 1 and ("pf", "x", a) in self.fdone]
            if not cov: return f + self.LH
            return max(f, min(self.fdone[("pf", "x", a)] for a in cov)) + self.LD
        if t[0] == "w" and self.entries[t[1]]["l"] == 0:
            j = self.entries[t[1]]["ks"][-1] // 4
            d = self.fdone.get(("pf", "w", 0, j))
            if d is None: return f + self.LH
            return max(f, d) + self.LD
        if t[0] in ("fb", "bl"): return f + self.LH
        return f + self.LD
    def fifo_push(self, ins, f):
        d = max(self.fifo_lat(ins, f), self.fifo[-1][1] if self.fifo else -1000)
        self.fifo.append((ins.lines, d))
        if ins.vm is not None: self.fdone[ins.vm] = d
    def fifo_ok(self, ins, f):
        occ = sum(n for n, d in self.fifo if d > f)
        return occ + ins.lines <= self.FCAP
    def wait_ok(self, ins, f):
        if self.FCAP and f < self.FEND:
            for t in ins.need_vm:
                if t[0] == "st" and self.vm_pos[t] >= self.vm_done and f < self.fdone.get(t, -1000): return False
        for t in ins.need_vm:
            if self.FCAP and f < self.FEND and t[0] == "st": continue
            if self.vm_pos[t] >= self.vm_done and f - self.vm_step.get(t, -1000) < (ins.minvm or self.MIN_VM): return False
        for t in ins.need_lg:
            if self.lg_pos[t] >= self.lg_done and f - self.lg_step.get(t, -1000) < self.MIN_LG: return False
        return True
    def hazard_ok(self, ins):
        if ins.kind in ("V", "D", "L"):
            regs = set(ins.rd) | set(ins.wr) if ins.kind == "V" else set(ins.wr)
            n = 0
            for prev in reversed(self.out):
                if n >= 9: break
                if prev.kind == "M" and (set(prev.wr) & regs): return False
                n += 1 if prev.kind != "SS" else 2
        if ins.kind == "V":
            n = 0
            for prev in reversed(self.out):
                if n >= 2: break
                if prev.kind == "T" and (set(prev.rd) & set(ins.wr)): return False
                n += 1
        if ins.kind == "V" and not getattr(self, "drain", False):
            f, g = self.cur
            nxt = []
            for d in (1, 2):
                gg = g + d; ff = f + gg // 4; gg %= 4
                if ff < self.nsteps: nxt.append(self.mfma(ff, gg))
            for m in nxt:
                if set(m.rd) & set(ins.wr): return False
        if ins.kind == "A":
            if self.out and self.out[-1].note == "m0": return False
        return True
    def epi_done(self, tag, f):
        _, l, u = tag
        self.epi_fin[(l, u)] = f
        if l == self.NL - 1: return
        n = 8 if u < 3 else 4
        tags = [("xo", l, u, i) for i in range(n)]
        val = None
        if u == 0: val = 4 * l + 2
        elif u == 1: val = 4 * l + 3
        elif u == 3: val = 4 * l + 4; tags = tags + [("xo", l, 2, i) for i in range(8)]
        if val is not None:
            self.F += [(f, ins, ("flag", val), False) for ins in self.flag_set(val, tags)]

    def schedule(self):
        self.issue_step = {}; self.vm_step = {}; self.lg_step = {}
        self.pending = []; self.epi_fin = {}; self.bias_done = {}
        self.bar_passed = -1
        self.F = []; self.pat_done = False; self.B = 0.0; self.Bhist = []
        self.fifo = []; self.fdone = {}
        self.m0_owner = None
        N = self.nsteps
        barat = {P: j for j, P in enumerate(self.bars)}
        need_at = {}
        for n, e in enumerate(self.entries): need_at.setdefault(e["jl"], []).append(("w", n))
        self.pro_issue()
        self.emit_wait(need_at.get(0, []), [])
        self.emit(Ins("s_barrier", "X")); self.bar_passed = 0
        self.pstamp()
        for f in range(self.LA):
            for r in self.tr_reads(f): self.emit(r); self.lg_step[r.lg] = -10
        if self.stamps: self.stamp()
        if self.SPAN: self.raw("s_memrealtime s[78:79]\ns_waitcnt lgkmcnt(0)\ns_mov_b32 s79, s78"); self.lg_done = len(self.lgq)
        self.epi_started = set()
        for f in range(N):
            st = self.steps[f]
            if f == 0:
                nv, nl = self.step_needs(0)
                self.emit_wait(nv, nl)
            if st["l"] > 0 and (st["l"], st["u"]) not in self.epi_started:
                self.epi_started.add((st["l"], st["u"]))
                assert (st["l"] - 1, st["u"]) in self.epi_fin, ("epilogue late", st["l"] - 1, st["u"], f, self.epi_fin)
            if self.PROL and f == 0: self.pstamp()
            if self.prof and not self.PROL and f >= self.PS and (f - self.PS) % self.PI == 0 and (f - self.PS) // self.PI <= 60:
                k = (f - self.PS) // self.PI
                if k > 0: self.emit(Ins(f"v_writelane_b32 v0, s86, {k}", "V"))
                self.emit(Ins(("s_memrealtime" if self.PRT else "s_memtime") + " s[86:87]", "S"))
                self.prof_k = k
            nL = 0; dynbar = False; defer_w = None
            for g in range(4):
                self.emit(self.mfma(f, g))
                self.cur = (f, g)
                kinds = []
                if g < 2 and f + self.LA < N:
                    r = self.tr_reads(f + self.LA)[g]
                    if g == 0:
                        pass
                    self.emit(r); self.lg_step[r.lg] = f; kinds.append("D")
                if g == 1 and f + 1 < N:
                    nv, nl = self.step_needs(f + 1)
                    if f in barat: nv = nv + need_at.get(barat[f], [])
                    for val, tags in self.pending:
                        if all(f - self.vm_step[t] >= self.T_ST for t in tags):
                            nv = nv + tags; dynbar = True
                    vready = bool(self.E) and self.E[0][1].kind == "V" and self.E[0][0] <= f
                    if self.WDEF and f >= self.WDEF0 and vready and not (f in barat or dynbar): defer_w = (nv, nl)
                    elif self.emit_wait(nv, nl): kinds.append("W")
                if defer_w is not None and g >= 2:
                    vmready = any(Q and Q[0][0] <= f and (Q[0][1].kind in ("A", "L", "T") or Q[0][1].note == "m0") for Q in (self.F, self.M1, self.M2, self.PF, self.M3, self.E2))
                    if g == 3 or not vmready:
                        if self.emit_wait(*defer_w): kinds.append("W")
                        defer_w = None
                if g == 2 and (f in barat or dynbar):
                    self.emit(Ins("s_barrier", "X")); kinds.append("X")
                    if f in barat: self.bar_passed = barat[f]
                    for val, tags in list(self.pending):
                        if all(self.vm_pos[t] < self.vm_done for t in tags):
                            self.pending.remove((val, tags))
                            seq = self.flag_set(val, tags)
                            self.F += [(f, ins, None, False) for ins in seq]
                            self.flag_step[val] = f
                self.B = max(0.0, self.B - 16 * (self.ETA if f > 215 else self.ETA0))
                progress = True
                allk = ("S", "SS", "V", "A", "L", "T", "D")
                order = [self.F, self.M1, self.M2, self.PF, self.M3, self.E2, self.E]
                while progress:
                    progress = False
                    cands = []
                    for qi, Q in enumerate(order):
                        if Q and (Q[0][1].kind in ("A", "L", "T") or Q[0][1].note == "m0") and Q[0][0] <= f:
                            ins = Q[0][1]
                            dl = ins.dl if ins.dl is not None else Q[0][0] + 10
                            cands.append((dl, qi, Q))
                    cands.sort(key=lambda c: (c[0], c[1]))
                    for dl, qi, Q in cands:
                        ins = Q[0][1]
                        th = self.TH_URG if dl <= f + self.URG else self.TH
                        if ins.note == "m0": th += 16
                        hard = getattr(ins, "hard", None)
                        if self.FCAP and f < self.FEND:
                            vi = ins
                            if vi.kind not in ("A", "L", "T"):
                                vi = next(i_[1] for i_ in Q if i_[1].kind in ("A", "L", "T"))
                            own = self.m0_owner == id(Q)
                            if not own and Q is self.M3 and vi.vm is not None and vi.vm[0] == "st":
                                if self.fifo_lat(vi, f) > f + self.LD: continue
                                nx = next((i_ for i_ in self.PF[:3] if i_[1].kind == "L"), None)
                                nx = next((i_ for i_ in self.PF[:12] if i_[1].kind == "L" and i_[1].vm[1] == "x"), None)
                                if nx is not None and nx[0] <= f and self.vm_pos.get(("st", vi.vm[1], 0)) is None: continue
                            if Q is self.PF and vi.vm is not None and vi.vm[1] == "x":
                                hd = next((i_[1] for i_ in self.M3[:4] if i_[1].kind == "A"), None)
                                if hd is not None and hd.vm[0] == "st" and ("st", hd.vm[1], 0) in self.vm_pos: continue
                            need = vi.lines * (2 if vi.note == "m0keep" else 1)
                            if Q is self.PF and self.PFREE and vi.vm[1] != "x" or (Q is self.PF and vi.vm[1] == "x" and vi.vm[2] in self.PX1): need = -1000
                            if not own and sum(n for n, d in self.fifo if d > f) + need > self.FCAP and not (hard is not None and hard <= f): continue
                            if not own and need > 0 and self.B > self.FTH and not (hard is not None and hard <= f): continue
                        elif self.B > th and not (hard is not None and hard <= f): continue
                        if Q is self.PF and g < 2: continue
                        if self.try_emit_from(Q, f, kinds, allk, []):
                            if ins.kind in ("A", "L", "T"): self.B += ins.lines * (2.5 if (self.FCAP and f < self.FEND and ins.vm is not None and ins.vm[0] == "pf") else self.CPL)
                            progress = True; break
                    if progress: continue
                    for Q in order:
                        if Q and (Q[0][1].kind in ("A", "L", "T") or Q[0][1].note == "m0"): continue
                        if self.try_emit_from(Q, f, kinds, allk, []):
                            progress = True; break
                self.Bhist.append(self.B)
            if self.stamps and f + 1 < N and (self.steps[f + 1]["l"] != st["l"] or (self.steps[f + 1]["gi"] == 4 and st["gi"] == 3)):
                self.stamp()
        self.drain = True
        guard = 0
        assert not self.PF
        while self.M1 or self.M2 or self.E or self.M3 or self.F or self.E2:
            guard += 1
            assert guard < 100000
            done = False
            for Q in (self.F, self.E2, self.E, self.M2, self.M3, self.M1):
                if Q:
                    es, ins, tag, lastflag = Q[0]
                    if any(id(a) not in self.issue_step for a in ins.after): continue
                    if any(t not in self.lg_pos for t in ins.need_lg): continue
                    while not self.hazard_ok(ins): self.emit(Ins("s_nop 0", "S"))
                    self.emit_wait(ins.need_vm, ins.need_lg)
                    while not self.hazard_ok(ins): self.emit(Ins("s_nop 0", "S"))
                    self.emit(ins); Q.pop(0); self.issue_step[id(ins)] = N
                    if ins.vm is not None: self.vm_step[ins.vm] = N
                    if lastflag and isinstance(tag, tuple) and tag[0] == "epi": self.epi_done(tag, N)
                    done = True; break
            assert done
        if self.stamps: self.stamp()
        if self.prof:
            k = (self.prof_k + 1) if not self.PROL else 40
            self.raw(f"""v_writelane_b32 v0, s86, {k}
s_waitcnt vmcnt(0)
{"s_memrealtime" if self.PRT else "s_memtime"} s[86:87]
s_waitcnt lgkmcnt(0)
s_nop 4""")
            self.emit(Ins("v_writelane_b32 v0, s88, 0", "V"))
            if self.PROL:
                for kk in range(self.prol_k):
                    self.emit(Ins(f"v_writelane_b32 v0, s{[60, 62, 78, 80, 82, 100, 100, 100][kk]}, {kk + 1}", "V"))
            if k + 1 < 64: self.emit(Ins(f"v_writelane_b32 v0, s86, {k+1}", "V"))
            self.emit(Ins(f"v_writelane_b32 v0, s90, 63", "V"))
            self.raw(f"""s_lshl_b32 s3, s2, 2
s_add_u32 s3, s3, s{sWv}
s_lshl_b32 s3, s3, 8""")
            self.emit(Ins(f"v_lshrrev_b32 v2, 2, v{vL16}", "V"))
            self.raw("s_nop 4")
            self.emit(Ins(f"buffer_store_dword v0, v2, {srd(sWS_)}, s3 offen", "T"))
            if self.DBGT:
                self.raw(f"""s_load_dwordx2 s[4:5], s[0:1], 32
s_waitcnt lgkmcnt(0)
s_and_b32 s5, s5, 0xffff
s_mov_b32 s6, 64
s_mov_b32 s7, 0x20000""")
                self.emit(Ins("v_subrev_u32 v0, s88, v0", "V"))
                self.raw(f"s_cmp_eq_u32 s{sWv}, 0\ns_cbranch_scc0 Lnodbg")
                self.emit(Ins("buffer_atomic_add v0, v2, s[4:7], 0 offen\nLnodbg:", "T"))

    def step_needs(self, f):
        st = self.steps[f]
        nl = [("wf", f, 0), ("wf", f, 1)]
        nv = []
        for mt in range(4):
            a, b = self.xtags(st["l"], st["ks"], mt)
            for t in a:
                assert t in self.vm_pos, ("x load not issued before use", t, f)
            for t in b:
                assert t in self.lg_pos, ("stage read not issued before use", t, f)
            nv += a; nl += b
        return nv, nl

    def pstamp(self):
        if self.prof and self.PROL:
            k = self.prol_k; self.prol_k += 1
            r = [60, 62, 78, 80, 82, 100, 100, 100][k]
            self.emit(Ins(f"s_memtime s[{r}:{r+1}]", "S"))
    def pro_issue(self):
        def take(Q, pred):
            out = []
            while Q and pred(Q[0]): out.append(Q.pop(0))
            return out
        items = take(self.M1, lambda it: it[0] <= -50) + take(self.M3, lambda it: it[0] <= -50)
        seqs = []; cur = []
        for it in items:
            cur.append(it[1])
            if it[1].kind == "A": seqs.append(cur); cur = []
        wseq = [s for s in seqs if s[-1].vm[0] == "w"]; xseq = [s for s in seqs if s[-1].vm[0] == "st"]
        nW, nX = self.PRO_W, self.PRO_X
        assert 4 * nW >= 12
        rest_w = wseq[nW:]; rest_x = xseq[8 * nX:]
        self.M1[0:0] = [(-40, ins, ("bar", -1), False) for s in rest_w for ins in s]
        self.M3[0:0] = [(-40, ins, None, False) for s in rest_x for ins in s]
        def emit_seqs(L):
            for s in L:
                for k, ins in enumerate(s):
                    if ins.kind == "A" and self.out[-1].note == "m0": self.emit(Ins("s_nop 0", "S"))
                    self.emit(ins)
                    if ins.vm is not None: self.vm_step[ins.vm] = -100
                    if ins.vm is not None: self.fifo_push(ins, self.PRO_T)
        for tok in self.PORD:
            if tok.startswith("pf"):
                lim = int(tok[2:])
                while self.PF and self.PF[0][0] <= lim:
                    es, ins, tag, lf = self.PF.pop(0)
                    self.emit(ins); self.issue_step[id(ins)] = -100
                    if ins.vm is not None: self.vm_step[ins.vm] = -100
                    if ins.vm is not None: self.fifo_push(ins, self.PRO_T)
            elif tok[0] == "x": n = int(tok[1:]); assert n < nX; emit_seqs(xseq[8 * n:8 * n + 8])
            elif tok == "wA": emit_seqs(wseq[0:3])
            elif tok == "wB": emit_seqs(wseq[3:nW])
            elif tok == "p2": self.prologue2()
            elif tok == "fb":
                self.emit(Ins(f"buffer_load_dword v{vBase}, v{vPollOff}, {srd(sWS_)}, 0 offen sc1", "L", vm=("fb",)))
                self.vm_step[("fb",)] = -100
                self.bias_loads()
            elif tok == "st": self.pstamp()
            elif tok.startswith("wait"):
                n = int(tok[4:]); self.emit(Ins(f"s_waitcnt vmcnt({n})", "W")); self.vm_done = max(self.vm_done, len(self.vmq) - n)
            else: assert 0, tok
        self.pstamp()
        n = 0
        while self.M2 and n < 8:
            es, ins, tag, lf = self.M2[0]
            assert ins.kind == "D"
            self.emit_wait(ins.need_vm, ins.need_lg)
            self.emit(ins); self.M2.pop(0); n += 1
            if ins.lg is not None: self.lg_step[ins.lg] = -100
        self.pstamp()

    def pf_streams(self):
        PF = []
        def ld(pat, dst, base, soff, tag, pre=(), off=0):
            i = Ins(f"buffer_load_dword v{dst}, v{pat}, {srd(base)}, {soff} offen" + (f" offset:{off}" if off else ""), "L", rd=vr(pat), wr=vr(dst), vm=tag)
            i.lines = {"x": 16 * self.PXW, "w": 16, "g": 32}[tag[1]]
            return list(pre) + [i]
        t = 54
        for k, (a, es) in enumerate(zip(self.PX_L, self.T_PX)):
            PF.append([es, 0, ld(27 if (k == 0 and self.PX0W) else vPFX, vPoll, sX0_, f"s{t}", ("pf", "x", a), [S(f"s_add_u32 s{t}, s{sRow}, {128 * a}")]), None])
            if k == 0 and self.PX0W: PF[-1][2][-1].lines = 16 * self.PX0W; assert es <= -90
            if a in self.PX1:
                PF[-1] = [es, 0, ld(28, vPoll, sX0_, f"s{t}", ("pf", "x", a), [S(f"s_add_u32 s{t}, s{sRow}, {128 * a}")]), None]
                PF[-1][2][-1].lines = 16; assert es < self.T_PAT - 5
        if self.CPF:
            for k, es in enumerate(self.T_CPF):
                i = Ins(f"buffer_load_dword v{vPoll if es < 200 else vPXE}, off, s[64:67], s{t}", "L", vm=("pf", "c", k)); i.lines = 1
                PF.append([es, 2, [S(f"s_add_u32 s{t}, s72, {self.CPS * k}"), i], None])
            if self.T_CPG is not None:
                i = Ins(f"buffer_load_dword v{vPoll}, off, s[64:67], s{t}", "L", vm=("pf", "cg", 0)); i.lines = 1
                PF.append([self.T_CPG, 3, [S(f"s_lshl_b32 s{t}, s2, 2"), S(f"s_add_u32 s{t}, s{t}, s{sWv}"), S(f"s_lshl_b32 s{t}, s{t}, 7"), i], None])
        for j, es in enumerate(self.T_PW0):
            PF.append([es, 1, ld(vPFW, vPoll, sW_, f"s{t}", ("pf", "w", 0, j), [S(f"s_mov_b32 s{t}, {4 * j * KSB}")]), None])
        lastw0 = PF[-1][2][-1]
        t0 = vT[0]
        pat = [V(f"v_lshlrev_b32 v{vPFG}, 3, v{vL16}", rd=vr(vL16), wr=vr(vPFG)),
               V(f"v_lshrrev_b32 v{t0}, 9, v{vL16}", rd=vr(vL16), wr=vr(t0)),
               V(f"v_lshlrev_b32 v{t0}, 30, v{t0}", rd=vr(t0), wr=vr(t0)),
               V(f"v_add_u32 v{vPFG}, v{vPFG}, v{t0}", rd=vr(t0) + vr(vPFG), wr=vr(vPFG))]
        pat[0].after = [lastw0]
        if self.T_WGS:
            self.pfg_pat = []
            for k, es in enumerate(self.T_WGS):
                gi_ = ld(29, vPoll, sW_, f"s{t}", ("pf", "g", k), [S(f"s_add_u32 s{t}, s91, {1024 * k}")])
                gi_[-1].lines = 8
                PF.append([es, 1, gi_, None])
            g = None
        elif self.T_WG < 190:
            self.pfg_pat = []
            g = ld(29, vPoll, sW_, "s91", ("pf", "g"))
        else:
            self.pfg_pat = pat
            g = ld(vPFG, vPoll, sW_, "s91", ("pf", "g"))
            g[-1].after = [pat[-1]]
        if g is not None: PF.append([self.T_WG, 0, g, None])
        if self.NL > 1:
            pass
            for l in range(1, self.NL):
                l0 = self.group_range(l - 1, 4)[1] + 1
                for j, dt in enumerate(self.T_PWL):
                    PF.append([l0 + dt, 1, ld(vPFX, vPXE, sW_, f"s{t}", ("pf", "w", l, j), [S(f"s_mov_b32 s{t}, {(0 if self.NOW else l) * LSTRIDE + j * KSB}")]), None])
        if self.FB_T is not None:
            i = Ins(f"buffer_load_dword v{vBase}, v{vPollOff}, {srd(sWS_)}, 0 offen sc1", "L", vm=("fb",)); i.lines = 4
            seq = [i]
            for l in range(3):
                b = Ins(f"buffer_load_ushort v{25+l}, v23, {srd(sB_)}, 0 offen offset:{l*ROWB}", "L", vm=("bl", l)); b.lines = 4; seq.append(b)
            PF.append([self.FB_T, 2, seq, None])
        PF.sort(key=lambda x: (x[0], x[1]))
        return PF
    def pfw_pattern(self, dst, perm):
        t0, t1 = vT
        seq = [V(f"v_lshrrev_b32 v{t0}, 6, v{vL16}", rd=vr(vL16), wr=vr(t0)),
               V(f"v_mul_u32_u24 v{dst}, {(6 if perm else 1) * KSB}, v{t0}", rd=vr(t0), wr=vr(dst)),
               V(f"v_lshrrev_b32 v{t0}, 2, v{t0}", rd=vr(t0), wr=vr(t0)),
               V(f"v_min_u32 v{t0}, 1, v{t0}", rd=vr(t0), wr=vr(t0)),
               V(f"v_lshlrev_b32 v{t0}, 30, v{t0}", rd=vr(t0), wr=vr(t0)),
               V(f"v_and_b32 v{dst}, 0x3fffffff, v{dst}", rd=vr(dst), wr=vr(dst)),
               V(f"v_add_u32 v{dst}, v{dst}, v{t0}", rd=vr(t0) + vr(dst), wr=vr(dst)),
               V(f"v_lshrrev_b32 v{t0}, 4, v{vL16}", rd=vr(vL16), wr=vr(t0)),
               V(f"v_and_b32 v{t0}, 3, v{t0}", rd=vr(t0), wr=vr(t0)),
               V(f"v_lshlrev_b32 v{t1}, 7, v{t0}", rd=vr(t0), wr=vr(t1)),
               V(f"v_add_u32 v{t1}, s{sWq}, v{t1}", rd=vr(t1), wr=vr(t1)),
               V(f"v_cmp_eq_u32 vcc, 3, v{t0}", rd=vr(t0)),
               V(f"v_mov_b32 v{t0}, 0x600", wr=vr(t0)),
               V(f"v_cndmask_b32 v{t1}, v{t1}, v{t0}, vcc", rd=vr(t0) + vr(t1), wr=vr(t1)),
               V(f"v_add_u32 v{dst}, v{dst}, v{t1}", rd=vr(dst) + vr(t1), wr=vr(dst)),
               V(f"v_add_u32 v{dst}, s55, v{dst}", rd=vr(dst), wr=vr(dst))]
        return seq

    def stamp(self):
        k = self.nstamp; self.nstamp += 1
        if k < 8:
            self.emit(Ins(f"s_memtime s[{86 + 2*k}:{87 + 2*k}]", "S"))

    def check(self):
        out = self.out
        errs = 0
        for i, ins in enumerate(out):
            if ins.kind == "M":
                n = 0
                for prev in reversed(out[max(0, i - 4):i]):
                    if n >= 2: break
                    if prev.kind == "V" and set(prev.wr) & set(ins.rd):
                        print("HAZARD V->M", i, prev.text, "|", ins.text, file=sys.stderr); errs += 1
                    n += 1
            if ins.kind == "V":
                n = 0
                for prev in reversed(out[max(0, i - 10):i]):
                    if n >= 8: break
                    if prev.kind == "M" and set(prev.wr) & (set(ins.rd) | set(ins.wr)):
                        print("HAZARD M->V", i, prev.text, "|", ins.text, file=sys.stderr); errs += 1
                    n += 1
        return errs

    def text(self):
        NL = self.NL
        L = []
        L.append("""; Kernarg layout for this problem (48 bytes, ptrs only, base s[0:1]):
;   offset   0: d_in[0] x0  shape=(16384, 832) dtype=bfloat16 strides=(1664, 2) contiguous=True
;   offset   8: d_in[1] ws  shape=(3, 832, 832) dtype=bfloat16 strides=(1384448, 1664, 2) contiguous=True
;   offset  16: d_in[2] bs  shape=(3, 832) dtype=bfloat16 strides=(1664, 2) contiguous=True
;   offset  24: d_out     shape=(16384, 832) dtype=bfloat16 (2 bytes/elem)
;   offset  32: d_debug   256 bytes
;   offset  40: d_ws      268435456 bytes workspace
; cluster of 4 workgroups = 256 rows; each workgroup owns 208 output features; layers exchange x through d_ws.""")
        L.append("; @launch grid=(256,1,1) block=(256,1,1) lds=163840")
        L.append('.amdgcn_target "amdgcn-amd-amdhsa--gfx950"')
        L.append(".text")
        L.append(f".globl {KNAME}\n.p2align 8\n.type {KNAME},@function\n{KNAME}:")
        for ins in self.out: L.append("  " + ins.text)
        if self.stamps:
            L.append("  s_memtime s[84:85]\n  s_memrealtime s[78:79]\n  s_waitcnt lgkmcnt(0)")
            L.append(f"  s_lshl_b32 s3, s2, 7\n  v_mov_b32 v2, s3\n  v_cmp_eq_u32 vcc, 0, v{vL16}\n  s_cmp_eq_u32 s{sWv}, 0\n  s_cbranch_scc0 Lnost\n  s_and_saveexec_b64 s[4:5], vcc")
            regs = [80, 82, 78, 84] + [86 + 2 * k for k in range(min(self.nstamp, 8))]
            for i, s in enumerate(regs):
                L.append(f"  v_mov_b32 v6, s{s}\n  v_mov_b32 v7, s{s+1}\n  buffer_store_dwordx2 v[6:7], v2, {srd(sWS_)}, 0 offen offset:{8*i}\n  s_nop 1")
            L.append("Lnost:")
        if self.SPAN:
            L.append(f"""  s_waitcnt vmcnt(0)
  s_memrealtime s[86:87]
  s_load_dwordx2 s[4:5], s[0:1], 32
  s_waitcnt lgkmcnt(0)
  s_and_b32 s5, s5, 0xffff
  s_mov_b32 s6, 256
  s_mov_b32 s7, 0x20000
  s_not_b32 s3, s88
  s_not_b32 s87, s86
  v_mov_b32 v2, s3
  v_writelane_b32 v2, s86, 1
  v_writelane_b32 v2, s88, 2
  v_writelane_b32 v2, s87, 3
  v_writelane_b32 v2, s79, 4
  s_not_b32 s79, s79
  v_writelane_b32 v2, s79, 5
  v_lshrrev_b32 v3, 2, v{vL16}
  v_cmp_gt_u32 vcc, 24, v3
  v_mov_b32 v4, 0x7fffff00
  v_cndmask_b32 v3, v4, v3, vcc
  s_cmp_eq_u32 s{sWv}, 0
  s_cbranch_scc0 Lnospan
  buffer_atomic_umax v2, v3, s[4:7], 0 offen""")
            L.append("Lnospan:")
        if self.ENDW: L.append("  s_waitcnt vmcnt(0)")
        L.append("Lend:\n  s_endpgm")
        L += self.slow
        L.append("Lcode_end:")
        L.append('.section .rodata,"a"\n.p2align 6')
        L.append(f".amdhsa_kernel {KNAME}")
        L.append("  .amdhsa_next_free_vgpr 512\n  .amdhsa_next_free_sgpr 102\n  .amdhsa_accum_offset 256\n  .amdhsa_group_segment_fixed_size 0\n  .amdhsa_kernarg_size 48\n  .amdhsa_user_sgpr_count 2\n  .amdhsa_user_sgpr_kernarg_segment_ptr 1\n  .amdhsa_system_sgpr_workgroup_id_x 1\n.end_amdhsa_kernel")
        return "\n".join(L) + "\n"

    LA = 3
    WDEF = 1
    FCAP = 0; FEND = 200; FTH = 150; LH = 28; LM = 12; LD = 5; PRO_T = -30; PXW = 2; STDL = 14; WDEF0 = 0; ENDW = 1; PHARD = 0; IVE = 12; IVT = 80; IV0 = 12; IVS = 0; FB_T = None; AGE1 = 16; PX0W = 0; PX1 = (); PFREE = 0
    ITLB = 0
    CPS = 8192; T_CPG = -94; T_WGS = [-59, -58, -57, -56]
    TSPLIT = 9
    DBGT = 0
    SPAN = 0
    XPACE = 2; XPN = 12; LATX2 = 30; T_U0B = 0
    PK = 0; XLEADG = [36, 0, 30, 36, 50]
    EARLYPF = 1
    PORD = ["pf-90", "x0", "wA", "p2", "wB", "x1", "fb", "pf-50"]
    PRT = 0
    CPF = 1; T_CPF = [-95, 30, 128, 230, 330, 420, 530, 635, 740, 850]
    XMODE = 0
    XB0 = XBASE
    ETA0 = 1.3
    RSL = 2
    ETA = 1.0; CPL = 9; TH = 120; TH_URG = 280; URG = 2; LATW = 16; LATX = 20; T_STG0 = 12; T_STGD = 15; PSP = 1.6; T_RL = [185, 228, 262, 214]
    PROL = 0; T_BW = 20; PRO_W = 6; PRO_X = 2; PX_L = [2, 4, 6, 8, 10, 12]; T_PX = [7, 30, 56, 82, 108, 134]; T_PW0 = [-96, 9]; T_WG = 226; T_PWL = []; T_PAT = 200; AGE2 = 12; T_PWA = -100; T_PWB = 70; AGE = 16
    NOST = 0; NOLD = 0; NOW = 0
    LDP = 2; STP = 2; OUTP = 4
    IV = 12
    PS = 0; PI = 17
    T_U0 = -36; T_U1 = 50; T_U2 = 120; XLEAD = 26; SPIN = 0x8000; E2LEAD = 2; T_POLL = 16; T_ST = 18; MAXL = 2
    MIN_VM = 10; MIN_LG = 1

    def run(self):
        self.flag_step = {}
        self.plan()
        self.prologue()
        self.build_streams()
        self.schedule()
        errs = self.check()
        return errs

if __name__ == "__main__":
    ap = argparse.ArgumentParser()
    ap.add_argument("-o", default="k.s")
    ap.add_argument("--nl", type=int, default=3)
    ap.add_argument("--interval", type=int, default=12)
    ap.add_argument("--stamps", action="store_true")
    ap.add_argument("--prof", action="store_true")
    ap.add_argument("--set", action="append", default=[])
    a = ap.parse_args()
    for kv in a.set:
        k, v = kv.split("="); setattr(Gen, k, eval(v))
    g = Gen(NL=a.nl, interval=Gen.IV, stamps=a.stamps, prof=a.prof)
    errs = g.run()
    open(a.o, "w").write(g.text())
    from collections import Counter
    print("instrs", len(g.out), Counter(i.kind for i in g.out), "hazard errs", errs, "minlead(steps)", g.minlead, file=sys.stderr)
    print("xload steps", {k: v for k, v in g.vm_step.items() if k[0] in ("x", "fp", "fs") and (k[0] != "x" or k[3] == 3)}, file=sys.stderr)
    import statistics
    print("B mean", statistics.mean(g.Bhist), "max", max(g.Bhist), "frac>150", sum(b > 150 for b in g.Bhist) / len(g.Bhist), file=sys.stderr)
    leads = [g.bars[e["jl"]] - g.vm_step[("w", n)] for n, e in enumerate(g.entries) if g.vm_step[("w", n)] > -50]
    print("ring leads min/mean", min(leads), statistics.mean(leads), "hist", sorted(leads)[:20], file=sys.stderr)
    print("stage", {k: v for k, v in g.vm_step.items() if k[0] in ("st", "rl") and k[2] in (0, 7)}, file=sys.stderr)
    print("pf", {k: v for k, v in g.vm_step.items() if k[0] == "pf"}, file=sys.stderr)
    print("epi_fin", g.epi_fin, "bias", g.bias_done, "flags", g.flag_step, "nsteps", g.nsteps, file=sys.stderr)
```

```python
import sys, argparse

KNAME = "standalone__dcn_v2_cross__recsys_kernel"
D = 832; ROWB = 1664
LSTRIDE = D * ROWB
KSB = 32 * ROWB
RING = 54848
BIAS = 54848
XR = 57344
XRW = 26624
XBASE = 0x100000
FBASE = 0x40000
XLAYER = 64 * 4 * 106496
CH = 4128
XB = 4096

ACC0 = 48
def acc(j, mt): return ACC0 + 16 * j + 4 * mt
WF0 = 32; NB = 4
def wf(f): return WF0 + 4 * (f % NB)
vA = [1, 2]; vA2 = 3
vPW = 4; vPW2 = 5; vPE = 6; vPE2 = 7
vX = [8, 9]; vX2 = 10
vL16 = 11; vL8 = 12
vPX = 13; vOut = 30
vPXE = 14; vOutE = 31
vBias = 15
vFlagOff = 16; vFlagVal = 17; vPollOff = 18; vPoll = 19; vBase = 30
vPFX = 31; vPFW = 17; vPFG = 17
vXP = [20, 24]
vT = [28, 29]
vDummy = 0
sW_ = 8; sX0_ = 12; sOUT_ = 16; sWS_ = 20; sDBG_ = 24; sB_ = 28
sQ = 32; sC = 33; sWv = 34; sWq = 35; sW1032 = 36; sW8 = 37; sXq = 38; sW1024 = 39
sXb = 40; sRow = 41; sMask = 44; sXRw = 45
sOutMt = [46, 47, 48, 49]
sT = [50, 51, 52, 53, 54, 55]
sXs = [56, 57]
sXt = [77, 84]
sP = 58
sSpin = 59
sJ = [92, 93, 94, 95, 96, 97, 98, 99]
sStamp = 60
def srd(b): return f"s[{b}:{b+3}]"

class Ins:
    __slots__ = ("text", "kind", "rd", "wr", "vm", "lg", "need_vm", "need_lg", "earliest", "label", "note", "after", "minvm", "dl", "lines", "hard")
    def __init__(self, text, kind, rd=(), wr=(), vm=None, lg=None, need_vm=None, need_lg=None, earliest=None, note=None):
        self.text = text; self.kind = kind; self.rd = tuple(rd); self.wr = tuple(wr)
        self.vm = vm; self.lg = lg; self.need_vm = need_vm or []; self.need_lg = need_lg or []
        self.earliest = earliest; self.note = note; self.after = []; self.minvm = None; self.dl = None; self.lines = 8; self.hard = None
def vr(b, n=1): return [("v", b + i) for i in range(n)]
def ar(b, n=1): return [("a", b + i) for i in range(n)]

def S(t, **k): return Ins(t, "S", **k)
def V(t, rd=(), wr=(), **k): return Ins(t, "V", rd=rd, wr=wr, **k)

class Gen:
    def __init__(self, NL=3, interval=12, dbg=None, stamps=False, prof=False):
        self.prof = prof; self.prol_k = 0
        self.NL = NL; self.interval = interval; self.stamps = stamps
        self.out = []
        self.vmq = []; self.vm_done = 0; self.vm_pos = {}
        self.lgq = []; self.lg_done = 0; self.lg_pos = {}
        self.slow = []
        self.tcount = 0
        self.nstamp = 0

    def emit(self, ins):
        if ins.vm is not None:
            assert ins.vm not in self.vm_pos, ins.vm
            self.vm_pos[ins.vm] = len(self.vmq); self.vmq.append(ins.vm)
        if ins.lg is not None:
            assert ins.lg not in self.lg_pos, ins.lg
            self.lg_pos[ins.lg] = len(self.lgq); self.lgq.append(ins.lg)
        self.out.append(ins)
    def wait_for(self, need_vm, need_lg):
        nv = None; nl = None
        for t in need_vm:
            p = self.vm_pos[t]
            if p >= self.vm_done:
                n = len(self.vmq) - 1 - p
                nv = n if nv is None else min(nv, n)
        for t in need_lg:
            p = self.lg_pos[t]
            if p >= self.lg_done:
                n = len(self.lgq) - 1 - p
                nl = n if nl is None else min(nl, n)
        return nv, nl
    def emit_wait(self, need_vm, need_lg):
        nv, nl = self.wait_for(need_vm, need_lg)
        if nv is None and nl is None: return False
        parts = []
        if nv is not None:
            nv = min(nv, 63); parts.append(f"vmcnt({nv})"); self.vm_done = max(self.vm_done, len(self.vmq) - nv)
        if nl is not None:
            nl = min(nl, 15); parts.append(f"lgkmcnt({nl})"); self.lg_done = max(self.lg_done, len(self.lgq) - nl)
        self.emit(Ins("s_waitcnt " + " ".join(parts), "W"))
        return True
    def raw(self, text, kind="S", **k):
        for line in text.strip().split("\n"):
            self.emit(Ins(line.strip(), kind, **k))
    def xch(self, l):
        if self.XMODE == 2: return (sOUT_, -self.XB0) if l == 0 else (sWS_, 0)
        if self.XMODE == 1: return (sWS_, 0)
        return (sWS_, l * XLAYER)
    def pol(self, p):
        return ("", " sc0", " sc1", " sc0 sc1", " nt", " sc0 nt", " sc1 nt", " sc0 sc1 nt")[p]
    def stemp(self, stream=0):
        self.tcount += 1
        return sT[2 * stream + self.tcount % 2]

    def plan(self):
        NL = self.NL
        self.groups = []
        for l in range(NL):
            if l == 0:
                G = [[0, 1, 2], [3, 4, 5], [6, 7, 8, 9], [10, 11, 12], list(range(13, 26))]
            else:
                G = [[0, 6, 12], [18, 1, 7], [13, 19, 2, 8], [14, 20, 3],
                     [9, 15, 21, 4, 10, 16, 22, 5, 11, 17, 23, 24, 25]]
            SL = [[13, 14, 15], [0, 1, 2], [3, 4, 5, 6], [13, 14, 15], [7, 8, 9, 10, 11, 12, 0, 1, 2, 3, 4, 5, 6]]
            if l > 0 and self.G2S: SL[1] = list(self.G2S)
            self.groups.append(list(zip(G, SL)))
        self.entries = []
        self.steps = []
        def seg_main(l, gi, u, lst):
            for ks, sl in lst:
                e = dict(kind="m", l=l, u=u, ks=[ks], size=CH, gi=gi, first=len(self.steps))
                self.entries.append(e)
                for sb in range(2):
                    for ee in range(2):
                        self.steps.append(dict(e=len(self.entries) - 1, j=4 * u + 2 * sb + ee, ks=ks, slot=sl,
                                               va=vA[sb], rel=8 * ee, rdoff=512, l=l, gi=gi, u=u))
                e["last"] = len(self.steps) - 1
        def seg_extra(l, gi, bt):
            e = dict(kind="x", l=l, u=3, ks=[k for k, _ in bt], size=XB, gi=gi, first=len(self.steps))
            self.entries.append(e)
            for i, (ks, sl) in enumerate(bt):
                self.steps.append(dict(e=len(self.entries) - 1, j=12, ks=ks, slot=sl,
                                       va=vA2, rel=1024 * i, rdoff=256, l=l, gi=gi, u=3))
            e["last"] = len(self.steps) - 1
        for l in range(NL):
            gl = [list(zip(G, SL)) for (G, SL) in self.groups[l]]
            a, b = gl[0], gl[1]
            if l == 0:
                for gi_, lst_ in ((0, a), (1, b)):
                    for it in lst_:
                        for u in range(3): seg_main(l, gi_, u, [it])
            else:
                seg_main(l, 0, 0, a); seg_main(l, 0, 1, a); seg_main(l, 1, 0, b); seg_main(l, 1, 1, b)
                seg_main(l, 0, 2, a); seg_main(l, 1, 2, b)
            ab = a + b
            seg_extra(l, 1, ab[0:4]); seg_extra(l, 1, ab[4:6])
            for gi in (2, 3, 4):
                lst = gl[gi]
                if gi == 4 and l == NL - 1 and self.TSPLIT:
                    seg_main(l, gi, 0, lst); seg_main(l, gi, 1, lst)
                    for bt in [lst[0:4], lst[4:8], lst[8:11], lst[11:13]]: seg_extra(l, gi, bt)
                    ns = self.TSPLIT
                    seg_main(l, gi, 2, lst[:13 - ns])
                    es_ = []
                    for ks, sl in lst[13 - ns:]:
                        e = dict(kind="m", l=l, u=2, ks=[ks], size=CH, gi=gi, first=len(self.steps))
                        self.entries.append(e); es_.append((len(self.entries) - 1, ks, sl))
                        for ee in range(2):
                            self.steps.append(dict(e=len(self.entries) - 1, j=8 + ee, ks=ks, slot=sl, va=vA[0], rel=8 * ee, rdoff=512, l=l, gi=gi, u=2))
                    self.tsplit_step = len(self.steps) - 1
                    for n_, ks, sl in es_:
                        for ee in range(2):
                            self.steps.append(dict(e=n_, j=10 + ee, ks=ks, slot=sl, va=vA[1], rel=8 * ee, rdoff=512, l=l, gi=gi, u=2))
                        self.entries[n_]["last"] = len(self.steps) - 1
                    continue
                for u in range(3): seg_main(l, gi, u, lst)
                if gi < 4: batches = [lst]
                elif l == 0: batches = [lst[0:4], lst[4:8], lst[8:12], lst[12:13]]
                else: batches = [lst[0:4], lst[4:8], lst[8:11], lst[11:13]]
                for bt in batches: seg_extra(l, gi, bt)
        self.nsteps = len(self.steps)
        seen = set()
        for st in self.steps:
            if st["j"] not in seen: seen.add(st["j"]); st["init"] = True
        iv = self.interval
        LA = self.LA
        self.bars = [-LA - 1]
        b_ = min(iv, self.IV0) - LA - 1
        while b_ < self.nsteps - LA - 1:
            self.bars.append(b_)
            b_ += self.IVE if b_ >= self.nsteps - self.IVT else (self.IV0 if b_ < self.IVS else iv)
        pos = 0
        live = []
        for n, e in enumerate(self.entries):
            if pos + e["size"] > RING: pos = 0
            e["base"] = pos; s0, s1 = pos, pos + e["size"]
            ov = [m for (m, a, b) in live if a < s1 and s0 < b]
            live = live + [(n, s0, s1)]
            lastneed = max([self.entries[m]["last"] for m in ov], default=None)
            if lastneed is None: e["jf"] = -1
            else:
                e["jf"] = next(j for j, P in enumerate(self.bars) if lastneed <= P + 1)
            e["jl"] = max(j for j, P in enumerate(self.bars) if P + LA + 1 <= e["first"] or j == 0)
            assert e["jf"] < e["jl"] or e["jf"] == -1, (n, e)
            pos = s1
        self.minlead = min((self.bars[e["jl"]] - self.bars[e["jf"]]) for e in self.entries if e["jf"] >= 0)

    def tr_reads(self, f):
        st = self.steps[f]; e = self.entries[st["e"]]
        r = wf(f)
        res = []
        for rd in range(2):
            off = e["base"] + st["rel"] + rd * st["rdoff"]
            res.append(Ins(f"ds_read_b64_tr_b16 v[{r+2*rd}:{r+2*rd+1}], v{st['va']} offset:{off}", "D",
                           rd=vr(st["va"]), wr=vr(r + 2 * rd, 2), lg=("wf", f, rd)))
        return res
    def mfma(self, f, mt):
        st = self.steps[f]
        c = acc(st["j"], mt); a = wf(f); b = 16 * st["slot"] + 4 * mt
        if st.get("init"):
            return Ins(f"v_mfma_f32_16x16x32_bf16 v[{c}:{c+3}], v[{a}:{a+3}], a[{b}:{b+3}], 0", "M",
                       rd=vr(a, 4) + ar(b, 4), wr=vr(c, 4))
        return Ins(f"v_mfma_f32_16x16x32_bf16 v[{c}:{c+3}], v[{a}:{a+3}], a[{b}:{b+3}], v[{c}:{c+3}]", "M",
                   rd=vr(a, 4) + ar(b, 4) + vr(c, 4), wr=vr(c, 4))
    def dma_entry(self, n):
        e = self.entries[n]; l = e["l"]
        t = self.stemp()
        if e["kind"] == "m":
            ks = e["ks"][0]
            const = (0 if self.NOW else l) * LSTRIDE + ks * KSB + 128 * e["u"]
            pat = vPW2 if (l > 0 and ks >= 24) else vPW
            seq = [S(f"s_add_u32 s{t}, s{sWq}, {const}"),
                   S(f"s_add_u32 m0, s{sW1032}, {e['base']}", note="m0"),
                   Ins(f"buffer_load_dwordx4 v{pat}, {srd(sW_)}, s{t} offen lds", "A", rd=vr(pat), vm=("w", n))]
        else:
            ks = e["ks"] + [e["ks"][-1]] * (4 - len(e["ks"]))
            lit = 0
            for i, k in enumerate(ks): lit |= (26 * (0 if self.NOW else l) + k) << (8 * i)
            pat = vPE2 if (l > 0 and ks[0] >= 24) else vPE
            seq = [S(f"s_lshr_b32 s{t}, 0x{lit:x}, s{sW8}"),
                   S(f"s_and_b32 s{t}, s{t}, 0xff"),
                   S(f"s_mul_i32 s{t}, s{t}, {KSB}"),
                   S(f"s_add_u32 s{t}, s{t}, s{sXq}"),
                   S(f"s_add_u32 m0, s{sW1024}, {e['base']}", note="m0"),
                   Ins(f"buffer_load_dwordx4 v{pat}, {srd(sW_)}, s{t} offen lds", "A", rd=vr(pat), vm=("w", n))]
        return seq
    def xload(self, l, ks, slot):
        t = sXs[(ks + l) % 2]
        xs, xo = self.xch(l - 1)
        seq = [S(f"s_add_u32 s{t}, s{sXb}, {(xo + 4096 * ks) & 0xffffffff}")]
        for mt in range(4):
            d = 16 * slot + 4 * mt
            if ks < 24:
                seq.append(Ins(f"buffer_load_dwordx4 a[{d}:{d+3}], v{vL16}, {srd(60 if self.NOLD else xs)}, s{t} offen offset:{1024*mt}{self.pol(self.LDP)}", "L",
                               rd=vr(vL16), wr=ar(d, 4), vm=("x", l, ks, mt, 0)))
            else:
                for h in range(2):
                    seq.append(Ins(f"buffer_load_dwordx2 a[{d+2*h}:{d+2*h+1}], v{vL8}, {srd(60 if self.NOLD else xs)}, s{t} offen offset:{2048*h+512*mt}{self.pol(self.LDP)}", "L",
                                   rd=vr(vL8), wr=ar(d + 2 * h, 2), vm=("x", l, ks, mt, h)))
        return seq
    def xtags(self, l, ks, mt):
        if l == 0: return [], [("xs", ks, mt)]
        if ks < 24: return [("x", l, ks, mt, 0)], []
        return [("x", l, ks, mt, 0), ("x", l, ks, mt, 1)], []
    def stage_dma(self, line, slot=None, tag="st"):
        if slot is None: slot = line % 3
        seq = []
        for j in range(8):
            imm = 1024 * (j & 1) + 128 * line
            if j % 2 == 0:
                seq.append(S(f"s_add_u32 m0, s{sXRw}, {8192 * slot + 1024 * j - 128 * line}", note="m0"))
            ins = Ins(f"buffer_load_dwordx4 v{vPX}, {srd(sX0_)}, s{sJ[j]} offen offset:{imm} lds", "A", rd=vr(vPX), vm=(tag, line, j))
            if j % 2 == 0: ins.note = "m0keep"
            seq.append(ins)
        return seq
    def stage_read(self, ks, slot):
        line, sb = ks >> 1, ks & 1
        seq = []
        for mt in range(4):
            d = 16 * slot + 4 * mt
            seq.append(Ins(f"ds_read_b128 a[{d}:{d+3}], v{vX[sb]} offset:{8192 * (line % 3) + 2048 * mt}", "D",
                           rd=vr(vX[sb]), wr=ar(d, 4), lg=("xs", ks, mt), need_vm=[("st", line, 2 * mt), ("st", line, 2 * mt + 1)]))
            seq[-1].minvm = self.AGE1 if line == 1 else self.AGE if line < 8 else self.AGE2
        return seq
    def reload_dma(self, u):
        seq = []
        if u == 0: seq.append(V(f"v_add_u32 v{vPX}, s{sWq}, v{vPX}", rd=vr(vPX), wr=vr(vPX)))
        if u < 3: return seq + self.stage_dma(u, (u + 1) % 3, "rl")
        for h in range(2):
            t = self.stemp(1)
            seq += [S(f"s_add_u32 s{t}, s{sRow}, s{sXq}"),
                    S(f"s_add_u32 s{t}, s{t}, {h * 32 * ROWB}"),
                    S(f"s_add_u32 m0, s{sXRw}, {24576 + 1024 * h}", note="m0"),
                    Ins(f"buffer_load_dwordx4 v{vPXE}, {srd(sX0_)}, s{t} offen lds", "A", rd=vr(vPXE), vm=("rl", 3, h))]
            seq[-1].lines = 32
        return seq
    def epi_unit(self, l, u):
        last = (l == self.NL - 1)
        seq = []
        items = [(sb, mt) for sb in range(2) for mt in range(4)] if u < 3 else [(0, mt) for mt in range(4)]
        def rd(i):
            sb, mt = items[i]; xp = vXP[i % 2]
            if u < 3:
                nv = [("rl", u, 2 * mt), ("rl", u, 2 * mt + 1)] if l == 0 else []
                return Ins(f"ds_read_b128 v[{xp}:{xp+3}], v{vX[sb]} offset:{8192 * ((u + 1) % 3) + 2048 * mt}", "D", rd=vr(vX[sb]), wr=vr(xp, 4),
                           lg=("xp", l, u, i), need_vm=nv)
            nv = [("rl", 3, mt >> 1)] if l == 0 else []
            return Ins(f"ds_read_b64 v[{xp}:{xp+1}], v{vX2} offset:{512 * mt}", "D", rd=vr(vX2), wr=vr(xp, 2), lg=("xp", l, u, i), need_vm=nv)
        seq2 = [rd(0), rd(1)]
        for b_ in range(2):
            if self.last_reader[b_] is not None: seq2[b_].after = [self.last_reader[b_]]
        for i, (sb, mt) in enumerate(items):
            xp = vXP[i % 2]
            ne = 2 if u < 3 else 1
            first = True; pend = None
            for e in range(ne):
                j = 4 * u + 2 * sb + e if u < 3 else 12
                c = acc(j, mt)
                for p in range(2):
                    x = xp + 2 * e + p; t = vT[p]
                    if self.PK & 1:
                        if p == 1: continue
                        t0, t1 = vT; x1 = x + 1
                        i0 = V(f"v_lshlrev_b32 v{t0}, 16, v{x}", rd=vr(x), wr=vr(t0))
                        if first: i0.need_lg = [("xp", l, u, i)]; first = False
                        seq += [i0, V(f"v_and_b32 v{t1}, s{sMask}, v{x}", rd=vr(x), wr=vr(t1)),
                                V(f"v_lshlrev_b32 v{x}, 16, v{x1}", rd=vr(x1), wr=vr(x)),
                                V(f"v_and_b32 v{x1}, s{sMask}, v{x1}", rd=vr(x1), wr=vr(x1)),
                                V(f"v_pk_mul_f32 v[{t0}:{t1}], v[{t0}:{t1}], v[{c}:{c+1}]", rd=vr(t0, 2) + vr(c, 2), wr=vr(t0, 2)),
                                V(f"v_pk_mul_f32 v[{x}:{x1}], v[{x}:{x1}], v[{c+2}:{c+3}]", rd=vr(x, 2) + vr(c + 2, 2), wr=vr(x, 2)),
                                V(f"v_cvt_pk_bf16_f32 v{x1}, v{x}, v{x1}", rd=vr(x, 2), wr=vr(x1)),
                                V(f"v_cvt_pk_bf16_f32 v{x}, v{t0}, v{t1}", rd=vr(t0, 2), wr=vr(x))]
                        continue
                    i0 = V(f"v_lshlrev_b32 v{t}, 16, v{x}", rd=vr(x), wr=vr(t))
                    if first: i0.need_lg = [("xp", l, u, i)]; first = False
                    seq += [i0,
                            V(f"v_and_b32 v{x}, s{sMask}, v{x}", rd=vr(x), wr=vr(x)),
                            V(f"v_mul_f32 v{t}, v{t}, v{c+2*p}", rd=vr(t) + vr(c + 2 * p), wr=vr(t)),
                            V(f"v_mul_f32 v{x}, v{x}, v{c+2*p+1}", rd=vr(x) + vr(c + 2 * p + 1), wr=vr(x)),
                            V(f"v_cvt_pk_bf16_f32 v{x}, v{t}, v{x}", rd=vr(t) + vr(x), wr=vr(x))]
            if pend is not None: seq.append(pend)
            lastv = seq[-1]
            if not last:
                t = sXt[i % 2]
                if u < 3:
                    b = 2 * u + sb
                    xs, xo = self.xch(l)
                    seq2.append(S(f"s_add_u32 s{t}, s42, {(xo + 4096 * b) & 0xffffffff}"))
                    st = Ins(f"buffer_store_dwordx4 v[{xp}:{xp+3}], v{vL16}, {srd(60 if self.NOST else xs)}, s{t} offen offset:{1024*mt}{self.pol(self.STP)}", "T",
                             rd=vr(xp, 4) + vr(vL16), vm=("xo", l, u, i))
                else:
                    xs, xo = self.xch(l)
                    seq2.append(S(f"s_add_u32 s{t}, s43, {xo & 0xffffffff}"))
                    st = Ins(f"buffer_store_dwordx2 v[{xp}:{xp+1}], v{vL8}, {srd(60 if self.NOST else xs)}, s{t} offen offset:{512*mt}{self.pol(self.STP)}", "T",
                             rd=vr(xp, 2) + vr(vL8), vm=("xo", l, u, i))
            else:
                if u < 3:
                    b = 2 * u + sb
                    st = Ins(f"buffer_store_dwordx4 v[{xp}:{xp+3}], v{vOut}, {srd(sOUT_)}, s{sOutMt[mt]} offen offset:{64*b}{self.pol(self.OUTP)}", "T",
                             rd=vr(xp, 4) + vr(vOut), vm=("xo", l, u, i))
                else:
                    t = sXt[i % 2]
                    seq2.append(S(f"s_add_u32 s{t}, s{sOutMt[mt]}, s76"))
                    st = Ins(f"buffer_store_dwordx2 v[{xp}:{xp+1}], v{vOutE}, {srd(sOUT_)}, s{t} offen{self.pol(self.OUTP)}", "T",
                             rd=vr(xp, 2) + vr(vOutE), vm=("xo", l, u, i))
            st.after = [lastv]; st.lines = 8 if u < 3 else 4; st.dl = -2000; st.hard = -2000
            self.last_reader[i % 2] = st
            seq2.append(st)
            if i + 2 < len(items): seq2.append(rd(i + 2))
        return seq, seq2
    def bias_unit(self, l, u):
        seq = []
        tiles = [4 * u + i for i in range(4)] if u < 3 else [12]
        def rd(i):
            xp = vXP[i % 2]
            return Ins(f"ds_read_b128 v[{xp}:{xp+3}], v{vBias} offset:{832 * l + 64 * tiles[i]}", "D", rd=vr(vBias), wr=vr(xp, 4), lg=("bi", l, tiles[i]))
        seq2 = [rd(0)] + ([rd(1)] if len(tiles) > 1 else [])
        for b_ in range(len(seq2)):
            if self.last_reader[b_] is not None: seq2[b_].after = [self.last_reader[b_]]
        for i, j in enumerate(tiles):
            xp = vXP[i % 2]
            first = True
            for mt in range(4):
                c = acc(j, mt)
                for r in range(0, 4, 2 if self.PK & 2 else 1):
                    if self.PK & 2: x = V(f"v_pk_add_f32 v[{c+r}:{c+r+1}], v[{c+r}:{c+r+1}], v[{xp+r}:{xp+r+1}]", rd=vr(c + r, 2) + vr(xp + r, 2), wr=vr(c + r, 2))
                    else: x = V(f"v_add_f32 v{c+r}, v{c+r}, v{xp+r}", rd=vr(c + r) + vr(xp + r), wr=vr(c + r))
                    if first: x.need_lg = [("bi", l, j)]; first = False
                    seq.append(x)
            self.last_reader[i % 2] = seq[-1]
            if i + 2 < len(tiles):
                r2 = rd(i + 2); r2.after = [seq[-1]]; seq2.append(r2)
        return seq, seq2
    def flag_set(self, val, need):
        v = V(f"v_add_u32 v{vFlagVal}, {val}, v{vBase}", rd=vr(vBase), wr=vr(vFlagVal), need_vm=list(need) + [("fb",)])
        v.minvm = self.T_ST
        st = Ins(f"buffer_store_dword v{vFlagVal}, v{vFlagOff}, {srd(sWS_)}, 0 offen sc1", "T", rd=vr(vFlagVal) + vr(vFlagOff), vm=("fs", val))
        st.lines = 1; st.dl = -3000; st.hard = -3000
        return [v, st]
    def flag_poll(self, val):
        k = val
        ld = Ins(f"buffer_load_dword v{vPoll}, v{vPollOff}, {srd(sWS_)}, 0 offen sc1", "L", rd=vr(vPollOff), wr=vr(vPoll), vm=("fp", val))
        chk = [V(f"v_sub_u32 v{vPoll}, v{vPoll}, v{vBase}", rd=vr(vPoll) + vr(vBase), wr=vr(vPoll), need_vm=[("fp", val), ("fb",)]),
               V(f"v_cmp_gt_u32 vcc, {val}, v{vPoll}", rd=vr(vPoll)),
               S("s_nop 0"),
               Ins(f"s_cbranch_vccnz Lslow{k}\nLback{k}:", "S")]
        self.slow.append(f"""Lslow{k}:
  s_mov_b32 s{sSpin}, 0x{self.SPIN:x}
Lspin{k}:
  buffer_load_dword v{vPoll}, v{vPollOff}, {srd(sWS_)}, 0 offen sc1
  s_waitcnt vmcnt(0)
  v_sub_u32 v{vPoll}, v{vPoll}, v{vBase}
  v_cmp_gt_u32 vcc, {val}, v{vPoll}
  s_sub_u32 s{sSpin}, s{sSpin}, 1
{"  s_add_u32 s90, s90, 0x%x" % (1 << (4 * (k - 1))) if self.prof else ""}
  s_cbranch_vccz Lback{k}
  s_cmp_lg_u32 s{sSpin}, 0
  s_cbranch_scc1 Lspin{k}
  s_branch Lback{k}""")
        return ld, chk
    def out_patterns(self):
        t0, t1 = vT
        return [V(f"v_lshrrev_b32 v{t0}, 4, v{vL16}", rd=vr(vL16), wr=vr(t0)),
                V(f"v_and_b32 v{t1}, 15, v{t0}", rd=vr(t0), wr=vr(t1)),
                V(f"v_mul_u32_u24 v{t1}, {ROWB}, v{t1}", rd=vr(t1), wr=vr(t1)),
                V(f"v_lshrrev_b32 v{t0}, 4, v{t0}", rd=vr(t0), wr=vr(t0)),
                V(f"v_lshlrev_b32 v{t0}, 3, v{t0}", rd=vr(t0), wr=vr(t0)),
                V(f"v_add_u32 v{vOutE}, v{t1}, v{t0}", rd=vr(t0) + vr(t1), wr=vr(vOutE)),
                V(f"v_add_u32 v{vOut}, v{vOutE}, v{t0}", rd=vr(t0) + vr(vOutE), wr=vr(vOut))]

    def prologue(self):
        R = self.raw
        VV = lambda t: self.emit(Ins(t, "V"))
        R("s_cmp_ge_u32 s2, 256\ns_cbranch_scc1 Lend")
        R("s_load_dwordx4 s[64:67], s[0:1], 0\ns_load_dwordx4 s[68:71], s[0:1], 16\ns_load_dwordx4 s[72:75], s[0:1], 32")
        if self.stamps:
            R("s_memrealtime s[80:81]\ns_memtime s[82:83]")
        if self.SPAN: R("s_memrealtime s[88:89]")
        if self.prof:
            R(("s_memrealtime" if self.PRT else "s_memtime") + " s[88:89]\ns_mov_b32 s90, 0")
        VV("v_lshrrev_b32 v31, 6, v0")
        VV("v_and_b32 v0, 63, v0")
        R(f"""s_and_b32 s{sC}, s2, 7
s_lshr_b32 s3, s2, 5""")
        VV(f"v_readfirstlane_b32 s{sWv}, v31")
        R(f"""s_lshl_b32 s55, s3, 2
s_lshl_b32 s3, s3, 3
s_add_u32 s{sC}, s{sC}, s3
s_lshr_b32 s{sQ}, s2, 3
s_and_b32 s{sQ}, s{sQ}, 3
s_mul_i32 s{sWq}, s{sQ}, 384
s_lshl_b32 s3, s{sC}, 2
s_add_u32 s3, s3, s{sWv}
s_mul_i32 s{sRow}, s3, {64 * ROWB}
s_add_u32 s55, s55, s{sWv}
s_mul_i32 s55, s55, {ROWB}
s_mul_i32 s{sW1032}, s{sWv}, 1032
s_lshl_b32 s{sW8}, s{sWv}, 3
s_mul_i32 s{sXRw}, s{sWv}, {XRW}
s_add_u32 s{sXRw}, s{sXRw}, {XR}
s_nop 0""")
        for j in range(8):
            R(f"s_add_u32 s{sJ[j]}, s{sRow}, {j * 8 * ROWB - 1024 * (j & 1)}")
        VV(f"v_lshlrev_b32 v{vL16}, 4, v0")
        VV("v_lshrrev_b32 v20, 3, v0")
        VV("v_and_b32 v21, 7, v0")
        VV("v_and_b32 v23, 6, v20")
        VV("v_lshlrev_b32 v22, 1, v20")
        VV("v_xor_b32 v23, v21, v23")
        VV("v_and_b32 v22, 4, v22")
        VV("v_lshlrev_b32 v23, 4, v23")
        VV(f"v_mul_u32_u24 v24, {ROWB}, v20")
        VV("v_xor_b32 v22, v21, v22")
        VV(f"v_add_u32 v{vPX}, v23, v24")
        VV("v_lshlrev_b32 v22, 4, v22")
        VV(f"v_add_u32 v23, s{sW8}, v20")
        VV(f"v_mul_u32_u24 v23, {ROWB}, v23")
        VV(f"v_add_u32 v{vPW}, v23, v22")
        if self.EARLYPF: self.pf_patterns()
        self.pstamp()
        R("s_waitcnt lgkmcnt(0)")
        self.pstamp()
        self.mk(sX0_, 64, 16384 * ROWB)
        self.mk(sW_, 66, 3 * LSTRIDE)
        if self.CPF:
            self.emit(Ins("s_getpc_b64 s[64:65]\nLpc:", "S"))
            R(f"s_and_b32 s65, s65, 0xffff\ns_mov_b32 s66, Lcode_end-Lpc\ns_mov_b32 s67, 0x20000\ns_lshr_b32 s72, s2, 3\ns_lshl_b32 s72, s72, 2\ns_add_u32 s72, s72, s{sWv}\ns_lshl_b32 s72, s72, 7")
    def prologue2(self):
        R = self.raw
        R(f"""s_lshl_b32 s{sXq}, s{sQ}, 5
s_add_u32 s{sXq}, s{sXq}, 1536
s_lshl_b32 s{sW1024}, s{sWv}, 10
s_lshl_b32 s3, s{sC}, 2
s_add_u32 s3, s3, s{sWv}
s_mul_i32 s{sXb}, s3, 106496
s_add_u32 s{sXb}, s{sXb}, {self.XB0}
s_mov_b32 s{sMask}, 0xffff0000
s_mul_i32 s42, s{sQ}, 24576
s_add_u32 s42, s42, s{sXb}
s_lshr_b32 s43, s{sQ}, 1
s_add_u32 s43, s43, 24
s_lshl_b32 s43, s43, 12
s_and_b32 s3, s{sQ}, 1
s_lshl_b32 s3, s3, 11
s_add_u32 s43, s43, s3
s_add_u32 s43, s43, s{sXb}
s_mul_i32 s76, s{sQ}, 352
s_sub_u32 s76, 1536, s76""")
        for mt in range(4):
            R(f"s_add_u32 s{sOutMt[mt]}, s{sRow}, {mt * 16 * ROWB}\ns_add_u32 s{sOutMt[mt]}, s{sOutMt[mt]}, s{sWq}")
        self.mk(sB_, 68, 3 * ROWB)
        self.mk(sOUT_, 70, 16384 * ROWB)
        self.mk(sWS_, 74, 0x10000000)
        if self.NOST or self.NOLD or self.NOW: self.mk(60, 74, 0)
        self.prologue_rest()
    def mk(self, b, lo, size):
        self.raw(f"s_mov_b32 s{b}, s{lo}\ns_and_b32 s{b+1}, s{lo+1}, 0xffff\ns_mov_b32 s{b+2}, {size}\ns_mov_b32 s{b+3}, 0x20000")
    def prologue_rest(self):
        R = self.raw
        VV = lambda t: self.emit(Ins(t, "V"))
        VV("v_lshrrev_b32 v23, 2, v20")
        VV("v_lshlrev_b32 v23, 4, v23")
        VV("v_and_b32 v24, 3, v20")
        VV("v_add_u32 v23, v23, v24")
        R(f"s_lshl_b32 s3, s{sWv}, 2")
        VV("v_add_u32 v23, s3, v23")
        VV(f"v_mul_u32_u24 v23, {ROWB}, v23")
        VV(f"v_add_u32 v{vPW2}, v23, v22")
        VV("v_lshrrev_b32 v20, 1, v0")
        VV("v_and_b32 v21, 1, v0")
        VV("v_lshlrev_b32 v21, 4, v21")
        VV(f"v_mul_u32_u24 v23, {ROWB}, v20")
        VV(f"v_add_u32 v{vPXE}, v23, v21")
        VV("v_and_b32 v23, 19, v20")
        VV("v_and_b32 v24, 4, v20")
        VV("v_lshlrev_b32 v24, 1, v24")
        VV("v_or_b32 v23, v23, v24")
        VV("v_and_b32 v24, 8, v20")
        VV("v_lshrrev_b32 v24, 1, v24")
        VV("v_or_b32 v23, v23, v24")
        VV(f"v_mul_u32_u24 v23, {ROWB}, v23")
        VV(f"v_add_u32 v{vPE}, v23, v21")
        VV("v_and_b32 v23, 7, v20")
        VV("v_and_b32 v24, 8, v20")
        VV("v_lshlrev_b32 v24, 1, v24")
        VV("v_or_b32 v23, v23, v24")
        VV("v_and_b32 v24, 16, v20")
        VV("v_lshrrev_b32 v24, 1, v24")
        VV("v_or_b32 v23, v23, v24")
        VV(f"v_mul_u32_u24 v23, {ROWB}, v23")
        VV(f"v_add_u32 v{vPE2}, v23, v21")
        VV("v_lshrrev_b32 v20, 4, v0")
        VV("v_and_b32 v21, 15, v0")
        VV("v_lshrrev_b32 v22, 2, v0")
        VV("v_and_b32 v22, 3, v22")
        VV("v_and_b32 v23, 3, v0")
        VV("v_mul_u32_u24 v24, 1032, v20")
        VV("v_lshlrev_b32 v25, 7, v22")
        VV("v_add_u32 v24, v24, v25")
        VV("v_lshlrev_b32 v25, 4, v23")
        VV("v_add_u32 v24, v24, v25")
        VV("v_lshrrev_b32 v25, 1, v22")
        VV("v_lshlrev_b32 v25, 6, v25")
        VV(f"v_add_u32 v{vA[0]}, v24, v25")
        VV("v_sub_u32 v25, 64, v25")
        VV(f"v_add_u32 v{vA[1]}, v24, v25")
        VV("v_lshrrev_b32 v24, 1, v20")
        VV("v_lshlrev_b32 v24, 9, v24")
        VV("v_and_b32 v25, 1, v20")
        VV("v_lshlrev_b32 v25, 7, v25")
        VV("v_add_u32 v24, v24, v25")
        VV("v_lshlrev_b32 v25, 5, v22")
        VV("v_add_u32 v24, v24, v25")
        VV("v_lshlrev_b32 v25, 3, v23")
        VV(f"v_add_u32 v{vA2}, v24, v25")
        VV("v_and_b32 v24, 6, v21")
        VV("v_xor_b32 v24, v20, v24")
        VV("v_lshlrev_b32 v24, 4, v24")
        VV("v_lshlrev_b32 v25, 7, v21")
        VV("v_add_u32 v24, v24, v25")
        VV(f"v_add_u32 v{vX[0]}, s{sXRw}, v24")
        VV(f"v_xor_b32 v{vX[1]}, 64, v{vX[0]}")
        VV("v_lshlrev_b32 v24, 5, v21")
        VV("v_lshlrev_b32 v25, 3, v20")
        VV("v_add_u32 v24, v24, v25")
        VV(f"v_add_u32 v24, s{sXRw}, v24")
        VV(f"v_add_u32 v{vX2}, 24576, v24")
        VV(f"v_lshlrev_b32 v{vL16}, 4, v0")
        VV(f"v_lshlrev_b32 v{vL8}, 3, v0")
        VV("v_lshlrev_b32 v24, 4, v20")
        VV(f"v_add_u32 v{vBias}, {BIAS}, v24")
        R(f"s_lshl_b32 s3, s{sC}, 2\ns_add_u32 s3, s3, s{sWv}\ns_lshl_b32 s3, s3, 9\ns_add_u32 s3, s3, {FBASE}")
        VV("v_and_b32 v24, 3, v0")
        VV("v_lshlrev_b32 v24, 7, v24")
        VV(f"v_add_u32 v{vPollOff}, s3, v24")
        VV(f"v_mov_b32 v{vFlagOff}, 0x7fffff00")
        VV(f"v_cmp_eq_u32 vcc, s{sQ}, v0")
        R("s_nop 1")
        VV(f"v_cndmask_b32 v{vFlagOff}, v{vFlagOff}, v{vPollOff}, vcc")
        if not self.EARLYPF: self.pf_patterns()
        self.bias_prologue()
        R(f"s_lshl_b32 s91, s2, 2\ns_add_u32 s91, s91, s{sWv}\ns_lshl_b32 s91, s91, 12")

    def pf_patterns(self):
        R = self.raw; VV = lambda t: self.emit(Ins(t, "V"))
        R(f"s_lshl_b32 s56, s{sQ}, 4")
        VV("v_and_b32 v26, 15, v0")
        VV("v_lshrrev_b32 v27, 4, v0")
        VV("v_add_u32 v26, s56, v26")
        VV("v_lshlrev_b32 v27, 7, v27")
        VV(f"v_mul_u32_u24 v26, {ROWB}, v26")
        VV(f"v_add_u32 v{vPFX}, v26, v27")
        if self.PXW == 2:
            VV("v_lshrrev_b32 v27, 5, v0")
            VV("v_lshlrev_b32 v27, 30, v27")
            VV(f"v_add_u32 v{vPFX}, v{vPFX}, v27")
        for i in self.pfw_pattern(vPFW, False): self.emit(i)
        if self.PX0W:
            VV(f"v_add_u32 v27, {64 - 16 * self.PX0W}, v0")
            VV("v_lshrrev_b32 v27, 6, v27")
            VV("v_lshlrev_b32 v27, 30, v27")
            VV(f"v_add_u32 v27, v{vPFX}, v27")
        if self.T_WG < 190 or self.T_WGS:
            VV("v_lshlrev_b32 v29, 7, v0")
            VV(f"v_lshrrev_b32 v28, {3 if self.T_WGS else 5}, v0")
            VV("v_min_u32 v28, 1, v28")
            VV("v_lshlrev_b32 v28, 30, v28")
            VV("v_add_u32 v29, v28, v29")
            R(f"s_lshl_b32 s91, s2, 2\ns_add_u32 s91, s91, s{sWv}\ns_lshl_b32 s91, s91, 12")
        if self.PX1:
            VV("v_lshrrev_b32 v28, 4, v0")
            VV("v_min_u32 v28, 1, v28")
            VV("v_lshlrev_b32 v28, 30, v28")
            VV(f"v_add_u32 v28, v{vPFX}, v28")
    def bias_prologue(self):
        R = self.raw; VV = lambda t: self.emit(Ins(t, "V"))
        R(f"s_lshl_b32 s3, s{sWv}, 6")
        VV("v_add_u32 v20, s3, v0")
        VV("v_min_u32 v20, 207, v20")
        VV("v_lshrrev_b32 v21, 4, v20")
        VV("v_and_b32 v22, 15, v20")
        VV("v_lshrrev_b32 v23, 1, v21")
        VV("v_lshlrev_b32 v23, 5, v23")
        VV("v_lshrrev_b32 v24, 2, v22")
        VV("v_lshlrev_b32 v24, 3, v24")
        VV("v_add_u32 v23, v23, v24")
        VV("v_and_b32 v24, 1, v21")
        VV("v_lshlrev_b32 v24, 2, v24")
        VV("v_add_u32 v23, v23, v24")
        VV("v_and_b32 v24, 3, v22")
        VV("v_add_u32 v23, v23, v24")
        R(f"s_mul_i32 s3, s{sQ}, 192")
        VV("v_add_u32 v23, s3, v23")
        R(f"s_lshl_b32 s3, s{sQ}, 4\ns_add_u32 s3, s3, 768")
        VV("v_add_u32 v24, s3, v22")
        VV("v_cmp_eq_u32 vcc, 12, v21")
        R("s_nop 1")
        VV("v_cndmask_b32 v23, v23, v24, vcc")
        VV("v_lshlrev_b32 v23, 1, v23")
        VV("v_lshlrev_b32 v22, 2, v20")
        VV(f"v_add_u32 v22, {BIAS}, v22")
    def bias_loads(self):
        for l in range(3):
            self.emit(Ins(f"buffer_load_ushort v{25+l}, v23, {srd(sB_)}, 0 offen offset:{l*ROWB}", "L", vm=("bl", l)))
            self.vm_step[("bl", l)] = -100
    def bias_write(self):
        a = [V(f"v_lshlrev_b32 v{25+l}, 16, v{25+l}", rd=vr(25 + l), wr=vr(25 + l)) for l in range(3)]
        a[0].need_vm = [("bl", 2)]
        a.append(V("v_add_f32 v25, 1.0, v25", rd=vr(25), wr=vr(25)))
        b = [Ins(f"ds_write_b32 v22, v{25+l} offset:{832*l}", "D", rd=vr(22) + vr(25 + l), lg=("bw", l)) for l in range(3)]
        b[0].after = [a[-1]]
        self.last_reader = [b[-1], b[-1]]
        return a, b

    COST = {"S": 4, "W": 4, "X": 4, "SS": 8, "V": 4, "D": 8, "L": 8, "A": 12, "T": 12}
    def fits(self, kinds):
        t = 4
        for i, k in enumerate(kinds):
            if k == "V": t = max(t, 8) + 4
            else: t += self.COST[k]
            if k == "L" and (i + 1 == len(kinds)): t += 4
            if k == "L" and i + 1 < len(kinds) and kinds[i + 1] != "V": return False
            if k in ("A", "T") and (i != 0 or len(kinds) > 1): return False
        return t <= 16

    def first_step(self, l, gi, u=0):
        for f, st in enumerate(self.steps):
            if st["l"] == l and st["gi"] == gi and st["u"] == u: return f
    def last_step(self, l, gi, u):
        r = None
        for f, st in enumerate(self.steps):
            if st["l"] == l and st["gi"] == gi and st["u"] == u: r = f
        return r
    def group_range(self, l, gi):
        fs = [f for f, st in enumerate(self.steps) if st["l"] == l and st["gi"] == gi]
        return fs[0], fs[-1]

    def build_streams(self):
        NL = self.NL
        self.last_reader = [None, None]
        M1 = []
        M2 = []
        E = []
        E2 = []
        M3 = []
        for n, e in enumerate(self.entries):
            es = -100 if e["jf"] < 0 else self.bars[e["jf"]]
            sq = self.dma_entry(n)
            for i_ in sq: i_.dl = min(self.bars[e["jl"]] - self.LATW, max(es, 0) + self.RSL)
            for i_ in sq: i_.hard = self.bars[e["jl"]] - 14
            sq[-1].lines = 8 if e["kind"] == "m" else 32
            M1.append([es, 0, sq, ("bar", e["jf"])])
        G = self.groups[0]
        slot_of = {}
        for gi, (ks_l, sl_l) in enumerate(G):
            for ks, sl in zip(ks_l, sl_l): slot_of[ks] = (gi, sl)
        def first_use(l, ks):
            for f, st in enumerate(self.steps):
                if st["l"] == l and st["ks"] == ks: return f
        self.first_use = first_use
        def slot_free(l, ks, sl):
            f0 = first_use(l, ks)
            r = -100
            for f in range(f0):
                if self.steps[f]["slot"] == sl: r = f
            return r
        self.stage_reads = {}
        stage_free = {}
        DM = []
        rd_earliest = {}
        for ks in range(26):
            gi, sl = slot_of[ks]
            rd_earliest[ks] = slot_free(0, ks, sl) + 1 if slot_free(0, ks, sl) >= 0 else -100
        cur = -100
        for ks in range(26):
            cur = max(cur, rd_earliest[ks]); rd_earliest[ks] = cur
        self.rd_earliest = rd_earliest
        self.slot_of0 = slot_of
        for line in range(13):
            seq = self.stage_dma(line)
            if line >= 3: seq[0].need_lg = [("xs", 2 * (line - 3) + 1, 3)]
            if line < self.PRO_X: es = -100
            else:
                es = self.T_STG0 + self.T_STGD * (line - self.PRO_X)
                k = 0
                for i_ in seq:
                    i_.earliest = int(es + self.PSP * k); i_.dl = i_.earliest + 8
                    if self.FCAP: i_.dl = first_use(0, min(2 * line, 25)) - self.STDL
                    if i_.kind == "A": k += 1
            M3.append([es, 1, seq, None])
        for u in (0, 3, 1, 2):
            seq = self.reload_dma(u)
            if u < 3: seq[0 if u else 1].need_lg = [("xs", 2 * (10 + u) + 1, 3)]
            es = self.T_RL[u]; k = 0
            for i_ in seq:
                i_.earliest = int(es + self.PSP * k); i_.dl = i_.earliest + 8
                if i_.kind == "A": k += 1
            M3.append([es, 1, seq, None])
        for ks in range(26):
            gi, sl = slot_of[ks]
            M2.append([rd_earliest[ks], 0, self.stage_read(ks, sl), None])
        for l in range(1, NL):
            base = 4 * (l - 1)
            def cls(ks):
                if ks >= 24: return 4
                return [1, 2, 3, 3, 4, 4][ks % 6]
            polled = set()
            lst = []
            for gi, (ks_l, sl_l) in enumerate(self.groups[l]):
                for ks, sl in zip(ks_l, sl_l):
                    lst.append((gi, ks, sl))
            gb0, gb1 = self.group_range(l - 1, 4)
            l0 = gb1 + 1
            exp = {1: l0 + self.T_U0, 2: l0 + self.T_U0B, 3: l0 + self.T_U1, 4: l0 + self.T_U2}
            items = []
            for gi, ks, sl in lst:
                es = max(slot_free(l, ks, sl) + 1, exp[cls(ks)], first_use(l, ks) - (self.XLEADG[gi] or self.XLEAD))
                items.append([es, cls(ks), first_use(l, ks), ks, sl])
            items.sort(key=lambda it: (it[0], it[2]))
            npaced = 0
            for es, c, gi, ks, sl in items:
                seq = []
                if c not in polled:
                    polled.add(c)
                    ld, chk = self.flag_poll(base + c)
                    ld.lines = 4; ld.dl = es - self.T_POLL
                    if self.PHARD: ld.hard = es - self.T_POLL
                    M2.append([es - self.T_POLL, 2, [ld], None])
                    seq += chk
                xl = self.xload(l, ks, sl)
                for i_ in xl:
                    i_.dl = first_use(l, ks) - (self.LATXB if ks in (18, 1, 7) else self.LATX)
                    if i_.kind == "L": i_.lines = 8 if ks < 24 else 4
                    if i_.kind == "L" and self.XPACE and npaced < self.XPN:
                        i_.earliest = int(l0 + self.T_U0 + self.XPACE * npaced); i_.dl = max(i_.earliest + 1, first_use(l, ks) - self.LATX2); npaced += 1
                seq += xl
                M2.append([es, 3, seq, None])
        if NL > 1 and self.T_PWL:
            E.append([self.T_PAT, 0, self.pfw_pattern(vPFX, True), ("pat",)])
        a, b = self.bias_write()
        E.append([self.T_BW, 0, a, None]); E2.append([self.T_BW, 0, b, ("bw",)])
        for l in range(NL):
            g3 = 2
            for u in range(4):
                lastf = self.last_step(l, g3, u)
                a, b = self.bias_unit(l, u)
                E.append([lastf + 2, 1, a, ("bias", l, u)]); E2.append([lastf + 2 - self.E2LEAD, 1, b, None])
            if l == NL - 1:
                E.append([self.group_range(l, 4)[0] + 8, 0, self.out_patterns(), ("outpat",)])
            for u in ([0, 1, 3, 2] if (l == NL - 1 and self.TSPLIT) else range(4)):
                lastf = self.last_step(l, 4, u)
                a, b = self.epi_unit(l, u)
                if l == NL - 1 and u == 2 and self.TSPLIT:
                    for i_ in a[len(a) // 2:]: i_.earliest = lastf + 2
                    lastf = self.tsplit_step
                E.append([lastf + 2, 0, a, None]); E2.append([lastf + 2 - self.E2LEAD, 0, b, ("epi", l, u)])
        if self.ITLB:
            for k in range(2, 21):
                es = max(0, int((4096 * k - 4096 - self.ITLB) / 77))
                if es < self.steps[-1]["e"] * 0 + len(self.steps) - 20:
                    E2.append([es, 5, [Ins(f"s_buffer_load_dword s100, s[64:67], {4096 * k}", "S", lg=None, note="smem")], None])
        PFs = self.pf_streams()
        E.append([self.T_PW0[-1] + 2, 0, self.pfg_pat, None])
        M1.sort(key=lambda x: (x[0], x[1])); M2.sort(key=lambda x: (x[0], x[1])); E.sort(key=lambda x: (x[0], x[1]))
        flat = lambda Q: [(max(es, ins.earliest) if ins.earliest is not None else es, ins, tag, idx == len(seq) - 1) for es, _, seq, tag in Q for idx, ins in enumerate(seq)]
        M3.sort(key=lambda x: (x[0], x[1]))
        E2.sort(key=lambda x: (x[0], x[1]))
        self.PF = flat(PFs)
        self.M1, self.M2, self.E, self.M3, self.E2 = flat(M1), flat(M2), flat(E), flat(M3), flat(E2)

    def try_emit_from(self, Q, f, gap_kinds, allow, post_w):
        if not Q: return False
        es, ins, tag, lastflag = Q[0]
        if es > f: return False
        if isinstance(tag, tuple) and tag[0] == "bar" and tag[1] >= 0 and tag[1] > self.bar_passed: return False
        if ins.kind not in allow: return False
        if ins.note == 'm0' and self.m0_owner is not None: return False
        for a in ins.after:
            if id(a) not in self.issue_step: return False
        for t in ins.need_vm:
            if t not in self.vm_pos: return False
        for t in ins.need_lg:
            if t not in self.lg_pos: return False
        nv, nl = self.wait_for(ins.need_vm, ins.need_lg)
        needw = nv is not None or nl is not None
        kinds = gap_kinds + (["W"] if needw else []) + [ins.kind] + post_w
        if not self.fits(kinds):
            if needw and self.fits(gap_kinds + ["W"] + post_w) and self.wait_ok(ins, f):
                self.emit_wait(ins.need_vm, ins.need_lg); gap_kinds.append("W"); return True
            return False
        if needw and not self.wait_ok(ins, f): return False
        if not self.hazard_ok(ins): return False
        if needw:
            self.emit_wait(ins.need_vm, ins.need_lg); gap_kinds.append("W")
        self.emit(ins); gap_kinds.append(ins.kind)
        if ins.note == 'm0': self.m0_owner = id(Q)
        if ins.kind == 'A' and ins.note != "m0keep": self.m0_owner = None
        self.issue_step[id(ins)] = f
        if ins.vm is not None: self.vm_step[ins.vm] = f
        if ins.kind in ("A", "L", "T") and self.FCAP: self.fifo_push(ins, f)
        if ins.lg is not None: self.lg_step[ins.lg] = f
        Q.pop(0)
        if isinstance(tag, tuple) and tag[0] == "flag": self.flag_step[tag[1]] = f
        if isinstance(tag, tuple) and tag[0] == "pat":
            assert ("pf", "x", self.PX_L[-1]) in self.vm_pos, "prefetch pattern overwrites vPX before reload issued"
            self.pat_done = lastflag
        if ins.vm is not None and ins.vm[0] == "pf" and ins.vm[1] == "w" and ins.vm[2] > 0: assert self.pat_done and ("rl", 3, 1) in self.vm_pos
        if isinstance(tag, tuple) and tag[0] == "outpat":
            assert not any(i.kind == "L" and i.vm[0] == "fp" for _, i, _, _ in self.M2) and not any("v_cmp_gt_u32 vcc" in i.text for _, i, _, _ in self.M2) and not self.F
        if ins.vm is not None and ins.vm[0] == "xo" and ins.vm[2] == 0 and ins.vm[3] == 3 and ins.vm[1] < self.NL - 1:
            l_ = ins.vm[1]; val = 4 * l_ + 1
            self.F += [(f, i_, ("flag", val), False) for i_ in self.flag_set(val, [("xo", l_, 0, i) for i in range(4)])]
        if lastflag and isinstance(tag, tuple) and tag[0] == "epi":
            self.epi_done(tag, f)
        if lastflag and isinstance(tag, tuple) and tag[0] == "bias":
            self.bias_done[(tag[1], tag[2])] = f
        return True
    def fifo_lat(self, ins, f):
        t = ins.vm
        if t is None: return f + self.LD
        if t[0] == "pf":
            if t[1] in ("x", "g"): return f + self.LH
            if t[1] == "w" and t[2] == 0:
                gd = [self.fdone.get(("pf", "g", k)) for k in range(len(self.T_WGS or []))]
                if gd and all(x is not None and x <= f for x in gd): return f + self.LM
                return f + self.LH
            return f + self.LM
        if t[0] == "st":
            cov = [a for k_, a in enumerate(self.PX_L) if a <= t[1] <= a + (1 if a in self.PX1 else self.PX0W if (k_ == 0 and self.PX0W) else self.PXW) - 1 and ("pf", "x", a) in self.fdone]
            if not cov: return f + self.LH
            return max(f, min(self.fdone[("pf", "x", a)] for a in cov)) + self.LD
        if t[0] == "w" and self.entries[t[1]]["l"] == 0:
            j = self.entries[t[1]]["ks"][-1] // 4
            d = self.fdone.get(("pf", "w", 0, j))
            if d is None: return f + self.LH
            return max(f, d) + self.LD
        if t[0] in ("fb", "bl"): return f + self.LH
        return f + self.LD
    def fifo_push(self, ins, f):
        d = max(self.fifo_lat(ins, f), self.fifo[-1][1] if self.fifo else -1000)
        self.fifo.append((ins.lines, d))
        if ins.vm is not None: self.fdone[ins.vm] = d
    def fifo_ok(self, ins, f):
        occ = sum(n for n, d in self.fifo if d > f)
        return occ + ins.lines <= self.FCAP
    def wait_ok(self, ins, f):
        if self.FCAP and f < self.FEND:
            for t in ins.need_vm:
                if t[0] == "st" and self.vm_pos[t] >= self.vm_done and f < self.fdone.get(t, -1000): return False
        for t in ins.need_vm:
            if self.FCAP and f < self.FEND and t[0] == "st": continue
            if self.vm_pos[t] >= self.vm_done and f - self.vm_step.get(t, -1000) < (ins.minvm or self.MIN_VM): return False
        for t in ins.need_lg:
            if self.lg_pos[t] >= self.lg_done and f - self.lg_step.get(t, -1000) < self.MIN_LG: return False
        return True
    def hazard_ok(self, ins):
        if ins.kind in ("V", "D", "L"):
            regs = set(ins.rd) | set(ins.wr) if ins.kind == "V" else set(ins.wr)
            n = 0
            for prev in reversed(self.out):
                if n >= 9: break
                if prev.kind == "M" and (set(prev.wr) & regs): return False
                n += 1 if prev.kind != "SS" else 2
        if ins.kind == "V":
            n = 0
            for prev in reversed(self.out):
                if n >= 2: break
                if prev.kind == "T" and (set(prev.rd) & set(ins.wr)): return False
                n += 1
        if ins.kind == "V" and not getattr(self, "drain", False):
            f, g = self.cur
            nxt = []
            for d in (1, 2):
                gg = g + d; ff = f + gg // 4; gg %= 4
                if ff < self.nsteps: nxt.append(self.mfma(ff, gg))
            for m in nxt:
                if set(m.rd) & set(ins.wr): return False
        if ins.kind == "A":
            if self.out and self.out[-1].note == "m0": return False
        return True
    def epi_done(self, tag, f):
        _, l, u = tag
        self.epi_fin[(l, u)] = f
        if l == self.NL - 1: return
        n = 8 if u < 3 else 4
        tags = [("xo", l, u, i) for i in range(n)]
        val = None
        if u == 0: val = 4 * l + 2
        elif u == 1: val = 4 * l + 3
        elif u == 3: val = 4 * l + 4; tags = tags + [("xo", l, 2, i) for i in range(8)]
        if val is not None:
            self.F += [(f, ins, ("flag", val), False) for ins in self.flag_set(val, tags)]

    def schedule(self):
        self.issue_step = {}; self.vm_step = {}; self.lg_step = {}
        self.pending = []; self.epi_fin = {}; self.bias_done = {}
        self.bar_passed = -1
        self.F = []; self.pat_done = False; self.B = 0.0; self.Bhist = []
        self.fifo = []; self.fdone = {}
        self.m0_owner = None
        N = self.nsteps
        barat = {P: j for j, P in enumerate(self.bars)}
        need_at = {}
        for n, e in enumerate(self.entries): need_at.setdefault(e["jl"], []).append(("w", n))
        self.pro_issue()
        self.emit_wait(need_at.get(0, []), [])
        self.emit(Ins("s_barrier", "X")); self.bar_passed = 0
        self.pstamp()
        for f in range(self.LA):
            for r in self.tr_reads(f): self.emit(r); self.lg_step[r.lg] = -10
        if self.stamps: self.stamp()
        if self.SPAN: self.raw("s_memrealtime s[78:79]\ns_waitcnt lgkmcnt(0)\ns_mov_b32 s79, s78"); self.lg_done = len(self.lgq)
        self.epi_started = set()
        for f in range(N):
            st = self.steps[f]
            if f == 0:
                nv, nl = self.step_needs(0)
                self.emit_wait(nv, nl)
            if st["l"] > 0 and (st["l"], st["u"]) not in self.epi_started:
                self.epi_started.add((st["l"], st["u"]))
                assert (st["l"] - 1, st["u"]) in self.epi_fin, ("epilogue late", st["l"] - 1, st["u"], f, self.epi_fin)
            if self.PROL and f == 0: self.pstamp()
            if self.prof and not self.PROL and f >= self.PS and (f - self.PS) % self.PI == 0 and (f - self.PS) // self.PI <= 60:
                k = (f - self.PS) // self.PI
                if k > 0: self.emit(Ins(f"v_writelane_b32 v0, s86, {k}", "V"))
                self.emit(Ins(("s_memrealtime" if self.PRT else "s_memtime") + " s[86:87]", "S"))
                self.prof_k = k
            nL = 0; dynbar = False; defer_w = None
            for g in range(4):
                self.emit(self.mfma(f, g))
                self.cur = (f, g)
                kinds = []
                if g < 2 and f + self.LA < N:
                    r = self.tr_reads(f + self.LA)[g]
                    if g == 0:
                        pass
                    self.emit(r); self.lg_step[r.lg] = f; kinds.append("D")
                if g == 1 and f + 1 < N:
                    nv, nl = self.step_needs(f + 1)
                    if f in barat: nv = nv + need_at.get(barat[f], [])
                    for val, tags in self.pending:
                        if all(f - self.vm_step[t] >= self.T_ST for t in tags):
                            nv = nv + tags; dynbar = True
                    vready = bool(self.E) and self.E[0][1].kind == "V" and self.E[0][0] <= f
                    if self.WDEF and f >= self.WDEF0 and vready and not (f in barat or dynbar): defer_w = (nv, nl)
                    elif self.emit_wait(nv, nl): kinds.append("W")
                if defer_w is not None and g >= 2:
                    vmready = any(Q and Q[0][0] <= f and (Q[0][1].kind in ("A", "L", "T") or Q[0][1].note == "m0") for Q in (self.F, self.M1, self.M2, self.PF, self.M3, self.E2))
                    if g == 3 or not vmready:
                        if self.emit_wait(*defer_w): kinds.append("W")
                        defer_w = None
                if g == 2 and (f in barat or dynbar):
                    self.emit(Ins("s_barrier", "X")); kinds.append("X")
                    if f in barat: self.bar_passed = barat[f]
                    for val, tags in list(self.pending):
                        if all(self.vm_pos[t] < self.vm_done for t in tags):
                            self.pending.remove((val, tags))
                            seq = self.flag_set(val, tags)
                            self.F += [(f, ins, None, False) for ins in seq]
                            self.flag_step[val] = f
                self.B = max(0.0, self.B - 16 * (self.ETA if f > 215 else self.ETA0))
                progress = True
                allk = ("S", "SS", "V", "A", "L", "T", "D")
                order = [self.F, self.M1, self.M2, self.PF, self.M3, self.E2, self.E]
                while progress:
                    progress = False
                    cands = []
                    for qi, Q in enumerate(order):
                        if Q and (Q[0][1].kind in ("A", "L", "T") or Q[0][1].note == "m0") and Q[0][0] <= f:
                            ins = Q[0][1]
                            dl = ins.dl if ins.dl is not None else Q[0][0] + 10
                            cands.append((dl, qi, Q))
                    cands.sort(key=lambda c: (c[0], c[1]))
                    for dl, qi, Q in cands:
                        ins = Q[0][1]
                        th = self.TH_URG if dl <= f + self.URG else self.TH
                        if ins.note == "m0": th += 16
                        hard = getattr(ins, "hard", None)
                        if self.BLK and ins.kind == "T" and ins.vm is not None and ins.vm[0] == "xo" and any(338 * l_ + self.BLK0 <= f < 338 * l_ + self.BLK0 + self.BLK for l_ in range(1, self.NL)): continue
                        if self.FCAP and f < self.FEND:
                            vi = ins
                            if vi.kind not in ("A", "L", "T"):
                                vi = next(i_[1] for i_ in Q if i_[1].kind in ("A", "L", "T"))
                            own = self.m0_owner == id(Q)
                            if not own and Q is self.M3 and vi.vm is not None and vi.vm[0] == "st":
                                if self.fifo_lat(vi, f) > f + self.LD: continue
                                nx = next((i_ for i_ in self.PF[:3] if i_[1].kind == "L"), None)
                                nx = next((i_ for i_ in self.PF[:12] if i_[1].kind == "L" and i_[1].vm[1] == "x"), None)
                                if nx is not None and nx[0] <= f and self.vm_pos.get(("st", vi.vm[1], 0)) is None: continue
                            if Q is self.PF and vi.vm is not None and vi.vm[1] == "x":
                                hd = next((i_[1] for i_ in self.M3[:4] if i_[1].kind == "A"), None)
                                if hd is not None and hd.vm[0] == "st" and ("st", hd.vm[1], 0) in self.vm_pos: continue
                            need = vi.lines * (2 if vi.note == "m0keep" else 1)
                            if Q is self.PF and self.PFREE and vi.vm[1] != "x" or (Q is self.PF and vi.vm[1] == "x" and vi.vm[2] in self.PX1): need = -1000
                            if not own and sum(n for n, d in self.fifo if d > f) + need > self.FCAP and not (hard is not None and hard <= f): continue
                            if not own and need > 0 and self.B > self.FTH and not (hard is not None and hard <= f): continue
                        elif self.B > th and not (hard is not None and hard <= f): continue
                        if Q is self.PF and g < 2: continue
                        if self.try_emit_from(Q, f, kinds, allk, []):
                            if ins.kind in ("A", "L", "T"): self.B += ins.lines * (2.5 if (self.FCAP and f < self.FEND and ins.vm is not None and ins.vm[0] == "pf") else self.CPL)
                            progress = True; break
                    if progress: continue
                    for Q in order:
                        if Q and (Q[0][1].kind in ("A", "L", "T") or Q[0][1].note == "m0"): continue
                        if self.try_emit_from(Q, f, kinds, allk, []):
                            progress = True; break
                self.Bhist.append(self.B)
            if self.stamps and f + 1 < N and (self.steps[f + 1]["l"] != st["l"] or (self.steps[f + 1]["gi"] == 4 and st["gi"] == 3)):
                self.stamp()
        self.drain = True
        guard = 0
        assert not self.PF
        while self.M1 or self.M2 or self.E or self.M3 or self.F or self.E2:
            guard += 1
            assert guard < 100000
            done = False
            for Q in (self.F, self.E2, self.E, self.M2, self.M3, self.M1):
                if Q:
                    es, ins, tag, lastflag = Q[0]
                    if any(id(a) not in self.issue_step for a in ins.after): continue
                    if any(t not in self.lg_pos for t in ins.need_lg): continue
                    while not self.hazard_ok(ins): self.emit(Ins("s_nop 0", "S"))
                    self.emit_wait(ins.need_vm, ins.need_lg)
                    while not self.hazard_ok(ins): self.emit(Ins("s_nop 0", "S"))
                    self.emit(ins); Q.pop(0); self.issue_step[id(ins)] = N
                    if ins.vm is not None: self.vm_step[ins.vm] = N
                    if lastflag and isinstance(tag, tuple) and tag[0] == "epi": self.epi_done(tag, N)
                    done = True; break
            assert done
        if self.stamps: self.stamp()
        if self.prof:
            k = (self.prof_k + 1) if not self.PROL else 40
            self.raw(f"""v_writelane_b32 v0, s86, {k}
s_waitcnt vmcnt(0)
{"s_memrealtime" if self.PRT else "s_memtime"} s[86:87]
s_waitcnt lgkmcnt(0)
s_nop 4""")
            self.emit(Ins("v_writelane_b32 v0, s88, 0", "V"))
            if self.PROL:
                for kk in range(self.prol_k):
                    self.emit(Ins(f"v_writelane_b32 v0, s{[60, 62, 78, 80, 82, 100, 100, 100][kk]}, {kk + 1}", "V"))
            if k + 1 < 64: self.emit(Ins(f"v_writelane_b32 v0, s86, {k+1}", "V"))
            self.emit(Ins(f"v_writelane_b32 v0, s90, 63", "V"))
            self.raw(f"""s_lshl_b32 s3, s2, 2
s_add_u32 s3, s3, s{sWv}
s_lshl_b32 s3, s3, 8""")
            self.emit(Ins(f"v_lshrrev_b32 v2, 2, v{vL16}", "V"))
            self.raw("s_nop 4")
            self.emit(Ins(f"buffer_store_dword v0, v2, {srd(sWS_)}, s3 offen", "T"))
            if self.DBGT:
                self.raw(f"""s_load_dwordx2 s[4:5], s[0:1], 32
s_waitcnt lgkmcnt(0)
s_and_b32 s5, s5, 0xffff
s_mov_b32 s6, 64
s_mov_b32 s7, 0x20000""")
                self.emit(Ins("v_subrev_u32 v0, s88, v0", "V"))
                self.raw(f"s_cmp_eq_u32 s{sWv}, 0\ns_cbranch_scc0 Lnodbg")
                self.emit(Ins("buffer_atomic_add v0, v2, s[4:7], 0 offen\nLnodbg:", "T"))

    def step_needs(self, f):
        st = self.steps[f]
        nl = [("wf", f, 0), ("wf", f, 1)]
        nv = []
        for mt in range(4):
            a, b = self.xtags(st["l"], st["ks"], mt)
            for t in a:
                assert t in self.vm_pos, ("x load not issued before use", t, f)
            for t in b:
                assert t in self.lg_pos, ("stage read not issued before use", t, f)
            nv += a; nl += b
        return nv, nl

    def pstamp(self):
        if self.prof and self.PROL:
            k = self.prol_k; self.prol_k += 1
            r = [60, 62, 78, 80, 82, 100, 100, 100][k]
            self.emit(Ins(f"s_memtime s[{r}:{r+1}]", "S"))
    def pro_issue(self):
        def take(Q, pred):
            out = []
            while Q and pred(Q[0]): out.append(Q.pop(0))
            return out
        items = take(self.M1, lambda it: it[0] <= -50) + take(self.M3, lambda it: it[0] <= -50)
        seqs = []; cur = []
        for it in items:
            cur.append(it[1])
            if it[1].kind == "A": seqs.append(cur); cur = []
        wseq = [s for s in seqs if s[-1].vm[0] == "w"]; xseq = [s for s in seqs if s[-1].vm[0] == "st"]
        nW, nX = self.PRO_W, self.PRO_X
        assert 4 * nW >= 12
        rest_w = wseq[nW:]; rest_x = xseq[8 * nX:]
        self.M1[0:0] = [(-40, ins, ("bar", -1), False) for s in rest_w for ins in s]
        self.M3[0:0] = [(-40, ins, None, False) for s in rest_x for ins in s]
        def emit_seqs(L):
            for s in L:
                for k, ins in enumerate(s):
                    if ins.kind == "A" and self.out[-1].note == "m0": self.emit(Ins("s_nop 0", "S"))
                    self.emit(ins)
                    if ins.vm is not None: self.vm_step[ins.vm] = -100
                    if ins.vm is not None: self.fifo_push(ins, self.PRO_T)
        for tok in self.PORD:
            if tok.startswith("pf"):
                lim = int(tok[2:])
                while self.PF and self.PF[0][0] <= lim:
                    es, ins, tag, lf = self.PF.pop(0)
                    self.emit(ins); self.issue_step[id(ins)] = -100
                    if ins.vm is not None: self.vm_step[ins.vm] = -100
                    if ins.vm is not None: self.fifo_push(ins, self.PRO_T)
            elif tok[0] == "x": n = int(tok[1:]); assert n < nX; emit_seqs(xseq[8 * n:8 * n + 8])
            elif tok == "wA": emit_seqs(wseq[0:3])
            elif tok == "wB": emit_seqs(wseq[3:nW])
            elif tok == "p2": self.prologue2()
            elif tok == "fb":
                self.emit(Ins(f"buffer_load_dword v{vBase}, v{vPollOff}, {srd(sWS_)}, 0 offen sc1", "L", vm=("fb",)))
                self.vm_step[("fb",)] = -100
                self.bias_loads()
            elif tok == "st": self.pstamp()
            elif tok.startswith("wait"):
                n = int(tok[4:]); self.emit(Ins(f"s_waitcnt vmcnt({n})", "W")); self.vm_done = max(self.vm_done, len(self.vmq) - n)
            else: assert 0, tok
        self.pstamp()
        n = 0
        while self.M2 and n < 8:
            es, ins, tag, lf = self.M2[0]
            assert ins.kind == "D"
            self.emit_wait(ins.need_vm, ins.need_lg)
            self.emit(ins); self.M2.pop(0); n += 1
            if ins.lg is not None: self.lg_step[ins.lg] = -100
        self.pstamp()

    def pf_streams(self):
        PF = []
        def ld(pat, dst, base, soff, tag, pre=(), off=0):
            i = Ins(f"buffer_load_dword v{dst}, v{pat}, {srd(base)}, {soff} offen" + (f" offset:{off}" if off else ""), "L", rd=vr(pat), wr=vr(dst), vm=tag)
            i.lines = {"x": 16 * self.PXW, "w": 16, "g": 32}[tag[1]]
            return list(pre) + [i]
        t = 54
        for k, (a, es) in enumerate(zip(self.PX_L, self.T_PX)):
            PF.append([es, 0, ld(27 if (k == 0 and self.PX0W) else vPFX, vPoll, sX0_, f"s{t}", ("pf", "x", a), [S(f"s_add_u32 s{t}, s{sRow}, {128 * a}")]), None])
            if k == 0 and self.PX0W: PF[-1][2][-1].lines = 16 * self.PX0W; assert es <= -90
            if a in self.PX1:
                PF[-1] = [es, 0, ld(28, vPoll, sX0_, f"s{t}", ("pf", "x", a), [S(f"s_add_u32 s{t}, s{sRow}, {128 * a}")]), None]
                PF[-1][2][-1].lines = 16; assert es < self.T_PAT - 5
        if self.CPF:
            for k, es in enumerate(self.T_CPF):
                i = Ins(f"buffer_load_dword v{vPoll if es < 200 else vPXE}, off, s[64:67], s{t}", "L", vm=("pf", "c", k)); i.lines = 1
                PF.append([es, 2, [S(f"s_add_u32 s{t}, s72, {self.CPS * k}"), i], None])
            if self.T_CPG is not None:
                i = Ins(f"buffer_load_dword v{vPoll}, off, s[64:67], s{t}", "L", vm=("pf", "cg", 0)); i.lines = 1
                PF.append([self.T_CPG, 3, [S(f"s_lshl_b32 s{t}, s2, 2"), S(f"s_add_u32 s{t}, s{t}, s{sWv}"), S(f"s_lshl_b32 s{t}, s{t}, 7"), i], None])
        for j, es in enumerate(self.T_PW0):
            PF.append([es, 1, ld(vPFW, vPoll, sW_, f"s{t}", ("pf", "w", 0, j), [S(f"s_mov_b32 s{t}, {4 * j * KSB}")]), None])
        lastw0 = PF[-1][2][-1]
        t0 = vT[0]
        pat = [V(f"v_lshlrev_b32 v{vPFG}, 3, v{vL16}", rd=vr(vL16), wr=vr(vPFG)),
               V(f"v_lshrrev_b32 v{t0}, 9, v{vL16}", rd=vr(vL16), wr=vr(t0)),
               V(f"v_lshlrev_b32 v{t0}, 30, v{t0}", rd=vr(t0), wr=vr(t0)),
               V(f"v_add_u32 v{vPFG}, v{vPFG}, v{t0}", rd=vr(t0) + vr(vPFG), wr=vr(vPFG))]
        pat[0].after = [lastw0]
        if self.T_WGS:
            self.pfg_pat = []
            for k, es in enumerate(self.T_WGS):
                gi_ = ld(29, vPoll, sW_, f"s{t}", ("pf", "g", k), [S(f"s_add_u32 s{t}, s91, {1024 * k}")])
                gi_[-1].lines = 8
                PF.append([es, 1, gi_, None])
            g = None
        elif self.T_WG < 190:
            self.pfg_pat = []
            g = ld(29, vPoll, sW_, "s91", ("pf", "g"))
        else:
            self.pfg_pat = pat
            g = ld(vPFG, vPoll, sW_, "s91", ("pf", "g"))
            g[-1].after = [pat[-1]]
        if g is not None: PF.append([self.T_WG, 0, g, None])
        if self.NL > 1:
            pass
            for l in range(1, self.NL):
                l0 = self.group_range(l - 1, 4)[1] + 1
                for j, dt in enumerate(self.T_PWL):
                    PF.append([l0 + dt, 1, ld(vPFX, vPXE, sW_, f"s{t}", ("pf", "w", l, j), [S(f"s_mov_b32 s{t}, {(0 if self.NOW else l) * LSTRIDE + j * KSB}")]), None])
        if self.FB_T is not None:
            i = Ins(f"buffer_load_dword v{vBase}, v{vPollOff}, {srd(sWS_)}, 0 offen sc1", "L", vm=("fb",)); i.lines = 4
            seq = [i]
            for l in range(3):
                b = Ins(f"buffer_load_ushort v{25+l}, v23, {srd(sB_)}, 0 offen offset:{l*ROWB}", "L", vm=("bl", l)); b.lines = 4; seq.append(b)
            PF.append([self.FB_T, 2, seq, None])
        PF.sort(key=lambda x: (x[0], x[1]))
        return PF
    def pfw_pattern(self, dst, perm):
        t0, t1 = vT
        seq = [V(f"v_lshrrev_b32 v{t0}, 6, v{vL16}", rd=vr(vL16), wr=vr(t0)),
               V(f"v_mul_u32_u24 v{dst}, {(6 if perm else 1) * KSB}, v{t0}", rd=vr(t0), wr=vr(dst)),
               V(f"v_lshrrev_b32 v{t0}, 2, v{t0}", rd=vr(t0), wr=vr(t0)),
               V(f"v_min_u32 v{t0}, 1, v{t0}", rd=vr(t0), wr=vr(t0)),
               V(f"v_lshlrev_b32 v{t0}, 30, v{t0}", rd=vr(t0), wr=vr(t0)),
               V(f"v_and_b32 v{dst}, 0x3fffffff, v{dst}", rd=vr(dst), wr=vr(dst)),
               V(f"v_add_u32 v{dst}, v{dst}, v{t0}", rd=vr(t0) + vr(dst), wr=vr(dst)),
               V(f"v_lshrrev_b32 v{t0}, 4, v{vL16}", rd=vr(vL16), wr=vr(t0)),
               V(f"v_and_b32 v{t0}, 3, v{t0}", rd=vr(t0), wr=vr(t0)),
               V(f"v_lshlrev_b32 v{t1}, 7, v{t0}", rd=vr(t0), wr=vr(t1)),
               V(f"v_add_u32 v{t1}, s{sWq}, v{t1}", rd=vr(t1), wr=vr(t1)),
               V(f"v_cmp_eq_u32 vcc, 3, v{t0}", rd=vr(t0)),
               V(f"v_mov_b32 v{t0}, 0x600", wr=vr(t0)),
               V(f"v_cndmask_b32 v{t1}, v{t1}, v{t0}, vcc", rd=vr(t0) + vr(t1), wr=vr(t1)),
               V(f"v_add_u32 v{dst}, v{dst}, v{t1}", rd=vr(dst) + vr(t1), wr=vr(dst)),
               V(f"v_add_u32 v{dst}, s55, v{dst}", rd=vr(dst), wr=vr(dst))]
        return seq

    def stamp(self):
        k = self.nstamp; self.nstamp += 1
        if k < 8:
            self.emit(Ins(f"s_memtime s[{86 + 2*k}:{87 + 2*k}]", "S"))

    def check(self):
        out = self.out
        errs = 0
        for i, ins in enumerate(out):
            if ins.kind == "M":
                n = 0
                for prev in reversed(out[max(0, i - 4):i]):
                    if n >= 2: break
                    if prev.kind == "V" and set(prev.wr) & set(ins.rd):
                        print("HAZARD V->M", i, prev.text, "|", ins.text, file=sys.stderr); errs += 1
                    n += 1
            if ins.kind == "V":
                n = 0
                for prev in reversed(out[max(0, i - 10):i]):
                    if n >= 8: break
                    if prev.kind == "M" and set(prev.wr) & (set(ins.rd) | set(ins.wr)):
                        print("HAZARD M->V", i, prev.text, "|", ins.text, file=sys.stderr); errs += 1
                    n += 1
        return errs

    def text(self):
        NL = self.NL
        L = []
        L.append("""; Kernarg layout for this problem (48 bytes, ptrs only, base s[0:1]):
;   offset   0: d_in[0] x0  shape=(16384, 832) dtype=bfloat16 strides=(1664, 2) contiguous=True
;   offset   8: d_in[1] ws  shape=(3, 832, 832) dtype=bfloat16 strides=(1384448, 1664, 2) contiguous=True
;   offset  16: d_in[2] bs  shape=(3, 832) dtype=bfloat16 strides=(1664, 2) contiguous=True
;   offset  24: d_out     shape=(16384, 832) dtype=bfloat16 (2 bytes/elem)
;   offset  32: d_debug   256 bytes
;   offset  40: d_ws      268435456 bytes workspace
; cluster of 4 workgroups = 256 rows; each workgroup owns 208 output features; layers exchange x through d_ws.""")
        L.append("; @launch grid=(256,1,1) block=(256,1,1) lds=163840")
        L.append('.amdgcn_target "amdgcn-amd-amdhsa--gfx950"')
        L.append(".text")
        L.append(f".globl {KNAME}\n.p2align 8\n.type {KNAME},@function\n{KNAME}:")
        for ins in self.out: L.append("  " + ins.text)
        if self.stamps:
            L.append("  s_memtime s[84:85]\n  s_memrealtime s[78:79]\n  s_waitcnt lgkmcnt(0)")
            L.append(f"  s_lshl_b32 s3, s2, 7\n  v_mov_b32 v2, s3\n  v_cmp_eq_u32 vcc, 0, v{vL16}\n  s_cmp_eq_u32 s{sWv}, 0\n  s_cbranch_scc0 Lnost\n  s_and_saveexec_b64 s[4:5], vcc")
            regs = [80, 82, 78, 84] + [86 + 2 * k for k in range(min(self.nstamp, 8))]
            for i, s in enumerate(regs):
                L.append(f"  v_mov_b32 v6, s{s}\n  v_mov_b32 v7, s{s+1}\n  buffer_store_dwordx2 v[6:7], v2, {srd(sWS_)}, 0 offen offset:{8*i}\n  s_nop 1")
            L.append("Lnost:")
        if self.SPAN:
            L.append(f"""  s_waitcnt vmcnt(0)
  s_memrealtime s[86:87]
  s_load_dwordx2 s[4:5], s[0:1], 32
  s_waitcnt lgkmcnt(0)
  s_and_b32 s5, s5, 0xffff
  s_mov_b32 s6, 256
  s_mov_b32 s7, 0x20000
  s_not_b32 s3, s88
  s_not_b32 s87, s86
  v_mov_b32 v2, s3
  v_writelane_b32 v2, s86, 1
  v_writelane_b32 v2, s88, 2
  v_writelane_b32 v2, s87, 3
  v_writelane_b32 v2, s79, 4
  s_not_b32 s79, s79
  v_writelane_b32 v2, s79, 5
  v_lshrrev_b32 v3, 2, v{vL16}
  v_cmp_gt_u32 vcc, 24, v3
  v_mov_b32 v4, 0x7fffff00
  v_cndmask_b32 v3, v4, v3, vcc
  s_cmp_eq_u32 s{sWv}, 0
  s_cbranch_scc0 Lnospan
  buffer_atomic_umax v2, v3, s[4:7], 0 offen""")
            L.append("Lnospan:")
        if self.ENDW: L.append("  s_waitcnt vmcnt(0)")
        L.append("Lend:\n  s_endpgm")
        L += self.slow
        L.append("Lcode_end:")
        L.append('.section .rodata,"a"\n.p2align 6')
        L.append(f".amdhsa_kernel {KNAME}")
        L.append("  .amdhsa_next_free_vgpr 512\n  .amdhsa_next_free_sgpr 102\n  .amdhsa_accum_offset 256\n  .amdhsa_group_segment_fixed_size 0\n  .amdhsa_kernarg_size 48\n  .amdhsa_user_sgpr_count 2\n  .amdhsa_user_sgpr_kernarg_segment_ptr 1\n  .amdhsa_system_sgpr_workgroup_id_x 1\n.end_amdhsa_kernel")
        return "\n".join(L) + "\n"

    LA = 3
    WDEF = 1
    FCAP = 0; FEND = 200; FTH = 150; LH = 28; LM = 12; LD = 5; PRO_T = -30; PXW = 2; STDL = 14; WDEF0 = 0; LATXB = 34; G2S = [7, 8, 9]; BLK = 0; BLK0 = -60; ENDW = 0; PHARD = 0; IVE = 12; IVT = 80; IV0 = 12; IVS = 0; FB_T = None; AGE1 = 16; PX0W = 0; PX1 = (); PFREE = 0
    ITLB = 0
    CPS = 8192; T_CPG = -94; T_WGS = [-59, -58, -57, -56]
    TSPLIT = 9
    DBGT = 0
    SPAN = 0
    XPACE = 1.5; XPN = 12; LATX2 = 30; T_U0B = -14
    PK = 0; XLEADG = [36, 40, 30, 36, 50]
    EARLYPF = 1
    PORD = ["pf-90", "x0", "wA", "p2", "wB", "x1", "fb", "pf-50"]
    PRT = 0
    CPF = 1; T_CPF = [-95, 30, 128, 230, 330, 420, 530, 635, 740, 850]
    XMODE = 0
    XB0 = XBASE
    ETA0 = 1.3
    RSL = 2
    ETA = 1.0; CPL = 9; TH = 120; TH_URG = 280; URG = 2; LATW = 16; LATX = 20; T_STG0 = 12; T_STGD = 15; PSP = 1.6; T_RL = [185, 228, 262, 214]
    PROL = 0; T_BW = 20; PRO_W = 6; PRO_X = 2; PX_L = [2, 4, 6, 8, 10, 12]; T_PX = [7, 30, 56, 82, 108, 134]; T_PW0 = [-96, 9]; T_WG = 226; T_PWL = []; T_PAT = 200; AGE2 = 12; T_PWA = -100; T_PWB = 70; AGE = 16
    NOST = 0; NOLD = 0; NOW = 0
    LDP = 2; STP = 2; OUTP = 4
    IV = 12
    PS = 0; PI = 17
    T_U0 = -36; T_U1 = 50; T_U2 = 120; XLEAD = 26; SPIN = 0x8000; E2LEAD = 2; T_POLL = 16; T_ST = 18; MAXL = 2
    MIN_VM = 10; MIN_LG = 1

    def run(self):
        self.flag_step = {}
        self.plan()
        self.prologue()
        self.build_streams()
        self.schedule()
        errs = self.check()
        return errs

if __name__ == "__main__":
    ap = argparse.ArgumentParser()
    ap.add_argument("-o", default="k.s")
    ap.add_argument("--nl", type=int, default=3)
    ap.add_argument("--interval", type=int, default=12)
    ap.add_argument("--stamps", action="store_true")
    ap.add_argument("--prof", action="store_true")
    ap.add_argument("--set", action="append", default=[])
    a = ap.parse_args()
    for kv in a.set:
        k, v = kv.split("="); setattr(Gen, k, eval(v))
    g = Gen(NL=a.nl, interval=Gen.IV, stamps=a.stamps, prof=a.prof)
    errs = g.run()
    open(a.o, "w").write(g.text())
    from collections import Counter
    print("instrs", len(g.out), Counter(i.kind for i in g.out), "hazard errs", errs, "minlead(steps)", g.minlead, file=sys.stderr)
    print("xload steps", {k: v for k, v in g.vm_step.items() if k[0] in ("x", "fp", "fs") and (k[0] != "x" or k[3] == 3)}, file=sys.stderr)
    import statistics
    print("B mean", statistics.mean(g.Bhist), "max", max(g.Bhist), "frac>150", sum(b > 150 for b in g.Bhist) / len(g.Bhist), file=sys.stderr)
    leads = [g.bars[e["jl"]] - g.vm_step[("w", n)] for n, e in enumerate(g.entries) if g.vm_step[("w", n)] > -50]
    print("ring leads min/mean", min(leads), statistics.mean(leads), "hist", sorted(leads)[:20], file=sys.stderr)
    print("stage", {k: v for k, v in g.vm_step.items() if k[0] in ("st", "rl") and k[2] in (0, 7)}, file=sys.stderr)
    print("pf", {k: v for k, v in g.vm_step.items() if k[0] == "pf"}, file=sys.stderr)
    print("epi_fin", g.epi_fin, "bias", g.bias_done, "flags", g.flag_step, "nsteps", g.nsteps, file=sys.stderr)
```

```python
import sys, argparse

KNAME = "standalone__dcn_v2_cross__recsys_kernel"
D = 832; ROWB = 1664
LSTRIDE = D * ROWB
KSB = 32 * ROWB
RING = 54848
BIAS = 54848
XR = 57344
XRW = 26624
XBASE = 0x100000
FBASE = 0x40000
XLAYER = 64 * 4 * 106496
CH = 4128
XB = 4096

ACC0 = 48
def acc(j, mt): return ACC0 + 16 * j + 4 * mt
WF0 = 32; NB = 4
def wf(f): return WF0 + 4 * (f % NB)
vA = [1, 2]; vA2 = 3
vPW = 4; vPW2 = 5; vPE = 6; vPE2 = 7
vX = [8, 9]; vX2 = 10
vL16 = 11; vL8 = 12
vPX = 13; vOut = 30
vPXE = 14; vOutE = 31
vBias = 15
vFlagOff = 16; vFlagVal = 17; vPollOff = 18; vPoll = 19; vBase = 30
vPFX = 31; vPFW = 17; vPFG = 17
vXP = [20, 24]
vT = [28, 29]
vDummy = 0
sW_ = 8; sX0_ = 12; sOUT_ = 16; sWS_ = 20; sDBG_ = 24; sB_ = 28
sQ = 32; sC = 33; sWv = 34; sWq = 35; sW1032 = 36; sW8 = 37; sXq = 38; sW1024 = 39
sXb = 40; sRow = 41; sMask = 44; sXRw = 45
sOutMt = [46, 47, 48, 49]
sT = [50, 51, 52, 53, 54, 55]
sXs = [56, 57]
sXt = [77, 84]
sP = 58
sSpin = 59
sJ = [92, 93, 94, 95, 96, 97, 98, 99]
sStamp = 60
def srd(b): return f"s[{b}:{b+3}]"

class Ins:
    __slots__ = ("text", "kind", "rd", "wr", "vm", "lg", "need_vm", "need_lg", "earliest", "label", "note", "after", "minvm", "dl", "lines", "hard")
    def __init__(self, text, kind, rd=(), wr=(), vm=None, lg=None, need_vm=None, need_lg=None, earliest=None, note=None):
        self.text = text; self.kind = kind; self.rd = tuple(rd); self.wr = tuple(wr)
        self.vm = vm; self.lg = lg; self.need_vm = need_vm or []; self.need_lg = need_lg or []
        self.earliest = earliest; self.note = note; self.after = []; self.minvm = None; self.dl = None; self.lines = 8; self.hard = None
def vr(b, n=1): return [("v", b + i) for i in range(n)]
def ar(b, n=1): return [("a", b + i) for i in range(n)]

def S(t, **k): return Ins(t, "S", **k)
def V(t, rd=(), wr=(), **k): return Ins(t, "V", rd=rd, wr=wr, **k)

class Gen:
    def __init__(self, NL=3, interval=12, dbg=None, stamps=False, prof=False):
        self.prof = prof; self.prol_k = 0
        self.NL = NL; self.interval = interval; self.stamps = stamps
        self.out = []
        self.vmq = []; self.vm_done = 0; self.vm_pos = {}
        self.lgq = []; self.lg_done = 0; self.lg_pos = {}
        self.slow = []
        self.tcount = 0
        self.nstamp = 0

    def emit(self, ins):
        if ins.vm is not None:
            assert ins.vm not in self.vm_pos, ins.vm
            self.vm_pos[ins.vm] = len(self.vmq); self.vmq.append(ins.vm)
        if ins.lg is not None:
            assert ins.lg not in self.lg_pos, ins.lg
            self.lg_pos[ins.lg] = len(self.lgq); self.lgq.append(ins.lg)
        self.out.append(ins)
    def wait_for(self, need_vm, need_lg):
        nv = None; nl = None
        for t in need_vm:
            p = self.vm_pos[t]
            if p >= self.vm_done:
                n = len(self.vmq) - 1 - p
                nv = n if nv is None else min(nv, n)
        for t in need_lg:
            p = self.lg_pos[t]
            if p >= self.lg_done:
                n = len(self.lgq) - 1 - p
                nl = n if nl is None else min(nl, n)
        return nv, nl
    def emit_wait(self, need_vm, need_lg):
        nv, nl = self.wait_for(need_vm, need_lg)
        if nv is None and nl is None: return False
        parts = []
        if nv is not None:
            nv = min(nv, 63); parts.append(f"vmcnt({nv})"); self.vm_done = max(self.vm_done, len(self.vmq) - nv)
        if nl is not None:
            nl = min(nl, 15); parts.append(f"lgkmcnt({nl})"); self.lg_done = max(self.lg_done, len(self.lgq) - nl)
        self.emit(Ins("s_waitcnt " + " ".join(parts), "W"))
        return True
    def raw(self, text, kind="S", **k):
        for line in text.strip().split("\n"):
            self.emit(Ins(line.strip(), kind, **k))
    def xch(self, l):
        if self.XMODE == 2: return (sOUT_, -self.XB0) if l == 0 else (sWS_, 0)
        if self.XMODE == 1: return (sWS_, 0)
        return (sWS_, l * XLAYER)
    def pol(self, p):
        return ("", " sc0", " sc1", " sc0 sc1", " nt", " sc0 nt", " sc1 nt", " sc0 sc1 nt")[p]
    def stemp(self, stream=0):
        self.tcount += 1
        return sT[2 * stream + self.tcount % 2]

    def plan(self):
        NL = self.NL
        self.groups = []
        for l in range(NL):
            if l == 0:
                G = [[0, 1, 2], [3, 4, 5], [6, 7, 8, 9], [10, 11, 12], list(range(13, 26))]
            else:
                G = [[0, 6, 12], [18, 1, 7], [13, 19, 2, 8], [14, 20, 3],
                     [9, 15, 21, 4, 10, 16, 22, 5, 11, 17, 23, 24, 25]]
            SL = [[13, 14, 15], [0, 1, 2], [3, 4, 5, 6], [13, 14, 15], [7, 8, 9, 10, 11, 12, 0, 1, 2, 3, 4, 5, 6]]
            if l > 0 and self.G2S: SL[1] = list(self.G2S)
            self.groups.append(list(zip(G, SL)))
        self.entries = []
        self.steps = []
        def seg_main(l, gi, u, lst):
            for ks, sl in lst:
                e = dict(kind="m", l=l, u=u, ks=[ks], size=CH, gi=gi, first=len(self.steps))
                self.entries.append(e)
                for sb in range(2):
                    for ee in range(2):
                        self.steps.append(dict(e=len(self.entries) - 1, j=4 * u + 2 * sb + ee, ks=ks, slot=sl,
                                               va=vA[sb], rel=8 * ee, rdoff=512, l=l, gi=gi, u=u))
                e["last"] = len(self.steps) - 1
        def seg_extra(l, gi, bt):
            e = dict(kind="x", l=l, u=3, ks=[k for k, _ in bt], size=XB, gi=gi, first=len(self.steps))
            self.entries.append(e)
            for i, (ks, sl) in enumerate(bt):
                self.steps.append(dict(e=len(self.entries) - 1, j=12, ks=ks, slot=sl,
                                       va=vA2, rel=1024 * i, rdoff=256, l=l, gi=gi, u=3))
            e["last"] = len(self.steps) - 1
        for l in range(NL):
            gl = [list(zip(G, SL)) for (G, SL) in self.groups[l]]
            a, b = gl[0], gl[1]
            if l == 0:
                for gi_, lst_ in ((0, a), (1, b)):
                    for it in lst_:
                        for u in range(3): seg_main(l, gi_, u, [it])
            else:
                seg_main(l, 0, 0, a); seg_main(l, 0, 1, a); seg_main(l, 1, 0, b); seg_main(l, 1, 1, b)
                seg_main(l, 0, 2, a); seg_main(l, 1, 2, b)
            ab = a + b
            seg_extra(l, 1, ab[0:4]); seg_extra(l, 1, ab[4:6])
            for gi in (2, 3, 4):
                lst = gl[gi]
                if gi == 4 and l == NL - 1 and self.TSPLIT:
                    seg_main(l, gi, 0, lst); seg_main(l, gi, 1, lst)
                    for bt in [lst[0:4], lst[4:8], lst[8:11], lst[11:13]]: seg_extra(l, gi, bt)
                    ns = self.TSPLIT
                    seg_main(l, gi, 2, lst[:13 - ns])
                    es_ = []
                    for ks, sl in lst[13 - ns:]:
                        e = dict(kind="m", l=l, u=2, ks=[ks], size=CH, gi=gi, first=len(self.steps))
                        self.entries.append(e); es_.append((len(self.entries) - 1, ks, sl))
                        for ee in range(2):
                            self.steps.append(dict(e=len(self.entries) - 1, j=8 + ee, ks=ks, slot=sl, va=vA[0], rel=8 * ee, rdoff=512, l=l, gi=gi, u=2))
                    self.tsplit_step = len(self.steps) - 1
                    for n_, ks, sl in es_:
                        for ee in range(2):
                            self.steps.append(dict(e=n_, j=10 + ee, ks=ks, slot=sl, va=vA[1], rel=8 * ee, rdoff=512, l=l, gi=gi, u=2))
                        self.entries[n_]["last"] = len(self.steps) - 1
                    continue
                for u in range(3): seg_main(l, gi, u, lst)
                if gi < 4: batches = [lst]
                elif l == 0: batches = [lst[0:4], lst[4:8], lst[8:12], lst[12:13]]
                else: batches = [lst[0:4], lst[4:8], lst[8:11], lst[11:13]]
                for bt in batches: seg_extra(l, gi, bt)
        self.nsteps = len(self.steps)
        seen = set()
        for st in self.steps:
            if st["j"] not in seen: seen.add(st["j"]); st["init"] = True
        iv = self.interval
        LA = self.LA
        self.bars = [-LA - 1]
        b_ = min(iv, self.IV0) - LA - 1
        while b_ < self.nsteps - LA - 1:
            self.bars.append(b_)
            b_ += self.IVE if b_ >= self.nsteps - self.IVT else (self.IV0 if b_ < self.IVS else iv)
        pos = 0
        live = []
        for n, e in enumerate(self.entries):
            if pos + e["size"] > RING: pos = 0
            e["base"] = pos; s0, s1 = pos, pos + e["size"]
            ov = [m for (m, a, b) in live if a < s1 and s0 < b]
            live = live + [(n, s0, s1)]
            lastneed = max([self.entries[m]["last"] for m in ov], default=None)
            if lastneed is None: e["jf"] = -1
            else:
                e["jf"] = next(j for j, P in enumerate(self.bars) if lastneed <= P + 1)
            e["jl"] = max(j for j, P in enumerate(self.bars) if P + LA + 1 <= e["first"] or j == 0)
            assert e["jf"] < e["jl"] or e["jf"] == -1, (n, e)
            pos = s1
        self.minlead = min((self.bars[e["jl"]] - self.bars[e["jf"]]) for e in self.entries if e["jf"] >= 0)

    def tr_reads(self, f):
        st = self.steps[f]; e = self.entries[st["e"]]
        r = wf(f)
        res = []
        for rd in range(2):
            off = e["base"] + st["rel"] + rd * st["rdoff"]
            res.append(Ins(f"ds_read_b64_tr_b16 v[{r+2*rd}:{r+2*rd+1}], v{st['va']} offset:{off}", "D",
                           rd=vr(st["va"]), wr=vr(r + 2 * rd, 2), lg=("wf", f, rd)))
        return res
    def mfma(self, f, mt):
        st = self.steps[f]
        c = acc(st["j"], mt); a = wf(f); b = 16 * st["slot"] + 4 * mt
        if st.get("init"):
            return Ins(f"v_mfma_f32_16x16x32_bf16 v[{c}:{c+3}], v[{a}:{a+3}], a[{b}:{b+3}], 0", "M",
                       rd=vr(a, 4) + ar(b, 4), wr=vr(c, 4))
        return Ins(f"v_mfma_f32_16x16x32_bf16 v[{c}:{c+3}], v[{a}:{a+3}], a[{b}:{b+3}], v[{c}:{c+3}]", "M",
                   rd=vr(a, 4) + ar(b, 4) + vr(c, 4), wr=vr(c, 4))
    def dma_entry(self, n):
        e = self.entries[n]; l = e["l"]
        t = self.stemp()
        if e["kind"] == "m":
            ks = e["ks"][0]
            const = (0 if self.NOW else l) * LSTRIDE + ks * KSB + 128 * e["u"]
            pat = vPW2 if (l > 0 and ks >= 24) else vPW
            seq = [S(f"s_add_u32 s{t}, s{sWq}, {const}"),
                   S(f"s_add_u32 m0, s{sW1032}, {e['base']}", note="m0"),
                   Ins(f"buffer_load_dwordx4 v{pat}, {srd(sW_)}, s{t} offen lds", "A", rd=vr(pat), vm=("w", n))]
        else:
            ks = e["ks"] + [e["ks"][-1]] * (4 - len(e["ks"]))
            lit = 0
            for i, k in enumerate(ks): lit |= (26 * (0 if self.NOW else l) + k) << (8 * i)
            pat = vPE2 if (l > 0 and ks[0] >= 24) else vPE
            seq = [S(f"s_lshr_b32 s{t}, 0x{lit:x}, s{sW8}"),
                   S(f"s_and_b32 s{t}, s{t}, 0xff"),
                   S(f"s_mul_i32 s{t}, s{t}, {KSB}"),
                   S(f"s_add_u32 s{t}, s{t}, s{sXq}"),
                   S(f"s_add_u32 m0, s{sW1024}, {e['base']}", note="m0"),
                   Ins(f"buffer_load_dwordx4 v{pat}, {srd(sW_)}, s{t} offen lds", "A", rd=vr(pat), vm=("w", n))]
        return seq
    def xload(self, l, ks, slot):
        t = sXs[(ks + l) % 2]
        xs, xo = self.xch(l - 1)
        seq = [S(f"s_add_u32 s{t}, s{sXb}, {(xo + 4096 * ks) & 0xffffffff}")]
        for mt in range(4):
            d = 16 * slot + 4 * mt
            if ks < 24:
                seq.append(Ins(f"buffer_load_dwordx4 a[{d}:{d+3}], v{vL16}, {srd(60 if self.NOLD else xs)}, s{t} offen offset:{1024*mt}{self.pol(self.LDP)}", "L",
                               rd=vr(vL16), wr=ar(d, 4), vm=("x", l, ks, mt, 0)))
            else:
                for h in range(2):
                    seq.append(Ins(f"buffer_load_dwordx2 a[{d+2*h}:{d+2*h+1}], v{vL8}, {srd(60 if self.NOLD else xs)}, s{t} offen offset:{2048*h+512*mt}{self.pol(self.LDP)}", "L",
                                   rd=vr(vL8), wr=ar(d + 2 * h, 2), vm=("x", l, ks, mt, h)))
        return seq
    def xtags(self, l, ks, mt):
        if l == 0: return [], [("xs", ks, mt)]
        if ks < 24: return [("x", l, ks, mt, 0)], []
        return [("x", l, ks, mt, 0), ("x", l, ks, mt, 1)], []
    def stage_dma(self, line, slot=None, tag="st"):
        if slot is None: slot = line % 3
        seq = []
        for j in range(8):
            imm = 1024 * (j & 1) + 128 * line
            if j % 2 == 0:
                seq.append(S(f"s_add_u32 m0, s{sXRw}, {8192 * slot + 1024 * j - 128 * line}", note="m0"))
            ins = Ins(f"buffer_load_dwordx4 v{vPX}, {srd(sX0_)}, s{sJ[j]} offen offset:{imm} lds", "A", rd=vr(vPX), vm=(tag, line, j))
            if j % 2 == 0: ins.note = "m0keep"
            seq.append(ins)
        return seq
    def stage_read(self, ks, slot):
        line, sb = ks >> 1, ks & 1
        seq = []
        for mt in range(4):
            d = 16 * slot + 4 * mt
            seq.append(Ins(f"ds_read_b128 a[{d}:{d+3}], v{vX[sb]} offset:{8192 * (line % 3) + 2048 * mt}", "D",
                           rd=vr(vX[sb]), wr=ar(d, 4), lg=("xs", ks, mt), need_vm=[("st", line, 2 * mt), ("st", line, 2 * mt + 1)]))
            seq[-1].minvm = self.AGE1 if line == 1 else self.AGE if line < 8 else self.AGE2
        return seq
    def reload_dma(self, u):
        seq = []
        if u == 0: seq.append(V(f"v_add_u32 v{vPX}, s{sWq}, v{vPX}", rd=vr(vPX), wr=vr(vPX)))
        if u < 3: return seq + self.stage_dma(u, (u + 1) % 3, "rl")
        for h in range(2):
            t = self.stemp(1)
            seq += [S(f"s_add_u32 s{t}, s{sRow}, s{sXq}"),
                    S(f"s_add_u32 s{t}, s{t}, {h * 32 * ROWB}"),
                    S(f"s_add_u32 m0, s{sXRw}, {24576 + 1024 * h}", note="m0"),
                    Ins(f"buffer_load_dwordx4 v{vPXE}, {srd(sX0_)}, s{t} offen lds", "A", rd=vr(vPXE), vm=("rl", 3, h))]
            seq[-1].lines = 32
        return seq
    def epi_unit(self, l, u):
        last = (l == self.NL - 1)
        seq = []
        items = [(sb, mt) for sb in range(2) for mt in range(4)] if u < 3 else [(0, mt) for mt in range(4)]
        def rd(i):
            sb, mt = items[i]; xp = vXP[i % 2]
            if u < 3:
                nv = [("rl", u, 2 * mt), ("rl", u, 2 * mt + 1)] if l == 0 else []
                return Ins(f"ds_read_b128 v[{xp}:{xp+3}], v{vX[sb]} offset:{8192 * ((u + 1) % 3) + 2048 * mt}", "D", rd=vr(vX[sb]), wr=vr(xp, 4),
                           lg=("xp", l, u, i), need_vm=nv)
            nv = [("rl", 3, mt >> 1)] if l == 0 else []
            return Ins(f"ds_read_b64 v[{xp}:{xp+1}], v{vX2} offset:{512 * mt}", "D", rd=vr(vX2), wr=vr(xp, 2), lg=("xp", l, u, i), need_vm=nv)
        seq2 = [rd(0), rd(1)]
        for b_ in range(2):
            if self.last_reader[b_] is not None: seq2[b_].after = [self.last_reader[b_]]
        for i, (sb, mt) in enumerate(items):
            xp = vXP[i % 2]
            ne = 2 if u < 3 else 1
            first = True; pend = None
            for e in range(ne):
                j = 4 * u + 2 * sb + e if u < 3 else 12
                c = acc(j, mt)
                for p in range(2):
                    x = xp + 2 * e + p; t = vT[p]
                    if self.PK & 1:
                        if p == 1: continue
                        t0, t1 = vT; x1 = x + 1
                        i0 = V(f"v_lshlrev_b32 v{t0}, 16, v{x}", rd=vr(x), wr=vr(t0))
                        if first: i0.need_lg = [("xp", l, u, i)]; first = False
                        seq += [i0, V(f"v_and_b32 v{t1}, s{sMask}, v{x}", rd=vr(x), wr=vr(t1)),
                                V(f"v_lshlrev_b32 v{x}, 16, v{x1}", rd=vr(x1), wr=vr(x)),
                                V(f"v_and_b32 v{x1}, s{sMask}, v{x1}", rd=vr(x1), wr=vr(x1)),
                                V(f"v_pk_mul_f32 v[{t0}:{t1}], v[{t0}:{t1}], v[{c}:{c+1}]", rd=vr(t0, 2) + vr(c, 2), wr=vr(t0, 2)),
                                V(f"v_pk_mul_f32 v[{x}:{x1}], v[{x}:{x1}], v[{c+2}:{c+3}]", rd=vr(x, 2) + vr(c + 2, 2), wr=vr(x, 2)),
                                V(f"v_cvt_pk_bf16_f32 v{x1}, v{x}, v{x1}", rd=vr(x, 2), wr=vr(x1)),
                                V(f"v_cvt_pk_bf16_f32 v{x}, v{t0}, v{t1}", rd=vr(t0, 2), wr=vr(x))]
                        continue
                    i0 = V(f"v_lshlrev_b32 v{t}, 16, v{x}", rd=vr(x), wr=vr(t))
                    if first: i0.need_lg = [("xp", l, u, i)]; first = False
                    seq += [i0,
                            V(f"v_and_b32 v{x}, s{sMask}, v{x}", rd=vr(x), wr=vr(x)),
                            V(f"v_mul_f32 v{t}, v{t}, v{c+2*p}", rd=vr(t) + vr(c + 2 * p), wr=vr(t)),
                            V(f"v_mul_f32 v{x}, v{x}, v{c+2*p+1}", rd=vr(x) + vr(c + 2 * p + 1), wr=vr(x)),
                            V(f"v_cvt_pk_bf16_f32 v{x}, v{t}, v{x}", rd=vr(t) + vr(x), wr=vr(x))]
            if pend is not None: seq.append(pend)
            lastv = seq[-1]
            if not last:
                t = sXt[i % 2]
                if u < 3:
                    b = 2 * u + sb
                    xs, xo = self.xch(l)
                    seq2.append(S(f"s_add_u32 s{t}, s42, {(xo + 4096 * b) & 0xffffffff}"))
                    st = Ins(f"buffer_store_dwordx4 v[{xp}:{xp+3}], v{vL16}, {srd(60 if self.NOST else xs)}, s{t} offen offset:{1024*mt}{self.pol(self.STP)}", "T",
                             rd=vr(xp, 4) + vr(vL16), vm=("xo", l, u, i))
                else:
                    xs, xo = self.xch(l)
                    seq2.append(S(f"s_add_u32 s{t}, s43, {xo & 0xffffffff}"))
                    st = Ins(f"buffer_store_dwordx2 v[{xp}:{xp+1}], v{vL8}, {srd(60 if self.NOST else xs)}, s{t} offen offset:{512*mt}{self.pol(self.STP)}", "T",
                             rd=vr(xp, 2) + vr(vL8), vm=("xo", l, u, i))
            else:
                if u < 3:
                    b = 2 * u + sb
                    st = Ins(f"buffer_store_dwordx4 v[{xp}:{xp+3}], v{vOut}, {srd(sOUT_)}, s{sOutMt[mt]} offen offset:{64*b}{self.pol(self.OUTP)}", "T",
                             rd=vr(xp, 4) + vr(vOut), vm=("xo", l, u, i))
                else:
                    t = sXt[i % 2]
                    seq2.append(S(f"s_add_u32 s{t}, s{sOutMt[mt]}, s76"))
                    st = Ins(f"buffer_store_dwordx2 v[{xp}:{xp+1}], v{vOutE}, {srd(sOUT_)}, s{t} offen{self.pol(self.OUTP)}", "T",
                             rd=vr(xp, 2) + vr(vOutE), vm=("xo", l, u, i))
            st.after = [lastv]; st.lines = 8 if u < 3 else 4; st.dl = -2000; st.hard = -2000
            self.last_reader[i % 2] = st
            seq2.append(st)
            if i + 2 < len(items): seq2.append(rd(i + 2))
        return seq, seq2
    def bias_unit(self, l, u):
        seq = []
        tiles = [4 * u + i for i in range(4)] if u < 3 else [12]
        def rd(i):
            xp = vXP[i % 2]
            return Ins(f"ds_read_b128 v[{xp}:{xp+3}], v{vBias} offset:{832 * l + 64 * tiles[i]}", "D", rd=vr(vBias), wr=vr(xp, 4), lg=("bi", l, tiles[i]))
        seq2 = [rd(0)] + ([rd(1)] if len(tiles) > 1 else [])
        for b_ in range(len(seq2)):
            if self.last_reader[b_] is not None: seq2[b_].after = [self.last_reader[b_]]
        for i, j in enumerate(tiles):
            xp = vXP[i % 2]
            first = True
            for mt in range(4):
                c = acc(j, mt)
                for r in range(0, 4, 2 if self.PK & 2 else 1):
                    if self.PK & 2: x = V(f"v_pk_add_f32 v[{c+r}:{c+r+1}], v[{c+r}:{c+r+1}], v[{xp+r}:{xp+r+1}]", rd=vr(c + r, 2) + vr(xp + r, 2), wr=vr(c + r, 2))
                    else: x = V(f"v_add_f32 v{c+r}, v{c+r}, v{xp+r}", rd=vr(c + r) + vr(xp + r), wr=vr(c + r))
                    if first: x.need_lg = [("bi", l, j)]; first = False
                    seq.append(x)
            self.last_reader[i % 2] = seq[-1]
            if i + 2 < len(tiles):
                r2 = rd(i + 2); r2.after = [seq[-1]]; seq2.append(r2)
        return seq, seq2
    def flag_set(self, val, need):
        v = V(f"v_add_u32 v{vFlagVal}, {val}, v{vBase}", rd=vr(vBase), wr=vr(vFlagVal), need_vm=list(need) + [("fb",)])
        v.minvm = self.T_ST
        st = Ins(f"buffer_store_dword v{vFlagVal}, v{vFlagOff}, {srd(sWS_)}, 0 offen sc1", "T", rd=vr(vFlagVal) + vr(vFlagOff), vm=("fs", val))
        st.lines = 1; st.dl = -3000; st.hard = -3000
        return [v, st]
    def flag_poll(self, val):
        k = val
        ld = Ins(f"buffer_load_dword v{vPoll}, v{vPollOff}, {srd(sWS_)}, 0 offen sc1", "L", rd=vr(vPollOff), wr=vr(vPoll), vm=("fp", val))
        chk = [V(f"v_sub_u32 v{vPoll}, v{vPoll}, v{vBase}", rd=vr(vPoll) + vr(vBase), wr=vr(vPoll), need_vm=[("fp", val), ("fb",)]),
               V(f"v_cmp_gt_u32 vcc, {val}, v{vPoll}", rd=vr(vPoll)),
               S("s_nop 0"),
               Ins(f"s_cbranch_vccnz Lslow{k}\nLback{k}:", "S")]
        self.slow.append(f"""Lslow{k}:
  s_mov_b32 s{sSpin}, 0x{self.SPIN:x}
Lspin{k}:
  buffer_load_dword v{vPoll}, v{vPollOff}, {srd(sWS_)}, 0 offen sc1
  s_waitcnt vmcnt(0)
  v_sub_u32 v{vPoll}, v{vPoll}, v{vBase}
  v_cmp_gt_u32 vcc, {val}, v{vPoll}
  s_sub_u32 s{sSpin}, s{sSpin}, 1
{"  s_add_u32 s90, s90, 0x%x" % (1 << (4 * (k - 1))) if self.prof else ""}
  s_cbranch_vccz Lback{k}
  s_cmp_lg_u32 s{sSpin}, 0
  s_cbranch_scc1 Lspin{k}
  s_branch Lback{k}""")
        return ld, chk
    def out_patterns(self):
        t0, t1 = vT
        return [V(f"v_lshrrev_b32 v{t0}, 4, v{vL16}", rd=vr(vL16), wr=vr(t0)),
                V(f"v_and_b32 v{t1}, 15, v{t0}", rd=vr(t0), wr=vr(t1)),
                V(f"v_mul_u32_u24 v{t1}, {ROWB}, v{t1}", rd=vr(t1), wr=vr(t1)),
                V(f"v_lshrrev_b32 v{t0}, 4, v{t0}", rd=vr(t0), wr=vr(t0)),
                V(f"v_lshlrev_b32 v{t0}, 3, v{t0}", rd=vr(t0), wr=vr(t0)),
                V(f"v_add_u32 v{vOutE}, v{t1}, v{t0}", rd=vr(t0) + vr(t1), wr=vr(vOutE)),
                V(f"v_add_u32 v{vOut}, v{vOutE}, v{t0}", rd=vr(t0) + vr(vOutE), wr=vr(vOut))]

    def prologue(self):
        R = self.raw
        VV = lambda t: self.emit(Ins(t, "V"))
        R("s_cmp_ge_u32 s2, 256\ns_cbranch_scc1 Lend")
        R("s_load_dwordx4 s[64:67], s[0:1], 0\ns_load_dwordx4 s[68:71], s[0:1], 16\ns_load_dwordx4 s[72:75], s[0:1], 32")
        if self.stamps:
            R("s_memrealtime s[80:81]\ns_memtime s[82:83]")
        if self.SPAN: R("s_memrealtime s[88:89]")
        if self.prof:
            R(("s_memrealtime" if self.PRT else "s_memtime") + " s[88:89]\ns_mov_b32 s90, 0")
        VV("v_lshrrev_b32 v31, 6, v0")
        VV("v_and_b32 v0, 63, v0")
        R(f"""s_and_b32 s{sC}, s2, 7
s_lshr_b32 s3, s2, 5""")
        VV(f"v_readfirstlane_b32 s{sWv}, v31")
        R(f"""s_lshl_b32 s55, s3, 2
s_lshl_b32 s3, s3, 3
s_add_u32 s{sC}, s{sC}, s3
s_lshr_b32 s{sQ}, s2, 3
s_and_b32 s{sQ}, s{sQ}, 3
s_mul_i32 s{sWq}, s{sQ}, 384
s_lshl_b32 s3, s{sC}, 2
s_add_u32 s3, s3, s{sWv}
s_mul_i32 s{sRow}, s3, {64 * ROWB}
s_add_u32 s55, s55, s{sWv}
s_mul_i32 s55, s55, {ROWB}
s_mul_i32 s{sW1032}, s{sWv}, 1032
s_lshl_b32 s{sW8}, s{sWv}, 3
s_mul_i32 s{sXRw}, s{sWv}, {XRW}
s_add_u32 s{sXRw}, s{sXRw}, {XR}
s_nop 0""")
        for j in range(8):
            R(f"s_add_u32 s{sJ[j]}, s{sRow}, {j * 8 * ROWB - 1024 * (j & 1)}")
        VV(f"v_lshlrev_b32 v{vL16}, 4, v0")
        VV("v_lshrrev_b32 v20, 3, v0")
        VV("v_and_b32 v21, 7, v0")
        VV("v_and_b32 v23, 6, v20")
        VV("v_lshlrev_b32 v22, 1, v20")
        VV("v_xor_b32 v23, v21, v23")
        VV("v_and_b32 v22, 4, v22")
        VV("v_lshlrev_b32 v23, 4, v23")
        VV(f"v_mul_u32_u24 v24, {ROWB}, v20")
        VV("v_xor_b32 v22, v21, v22")
        VV(f"v_add_u32 v{vPX}, v23, v24")
        VV("v_lshlrev_b32 v22, 4, v22")
        VV(f"v_add_u32 v23, s{sW8}, v20")
        VV(f"v_mul_u32_u24 v23, {ROWB}, v23")
        VV(f"v_add_u32 v{vPW}, v23, v22")
        if self.EARLYPF: self.pf_patterns()
        self.pstamp()
        R("s_waitcnt lgkmcnt(0)")
        self.pstamp()
        self.mk(sX0_, 64, 16384 * ROWB)
        self.mk(sW_, 66, 3 * LSTRIDE)
        if self.CPF:
            self.emit(Ins("s_getpc_b64 s[64:65]\nLpc:", "S"))
            R(f"s_and_b32 s65, s65, 0xffff\ns_mov_b32 s66, Lcode_end-Lpc\ns_mov_b32 s67, 0x20000\ns_lshr_b32 s72, s2, 3\ns_lshl_b32 s72, s72, 2\ns_add_u32 s72, s72, s{sWv}\ns_lshl_b32 s72, s72, 7")
    def prologue2(self):
        R = self.raw
        R(f"""s_lshl_b32 s{sXq}, s{sQ}, 5
s_add_u32 s{sXq}, s{sXq}, 1536
s_lshl_b32 s{sW1024}, s{sWv}, 10
s_lshl_b32 s3, s{sC}, 2
s_add_u32 s3, s3, s{sWv}
s_mul_i32 s{sXb}, s3, 106496
s_add_u32 s{sXb}, s{sXb}, {self.XB0}
s_mov_b32 s{sMask}, 0xffff0000
s_mul_i32 s42, s{sQ}, 24576
s_add_u32 s42, s42, s{sXb}
s_lshr_b32 s43, s{sQ}, 1
s_add_u32 s43, s43, 24
s_lshl_b32 s43, s43, 12
s_and_b32 s3, s{sQ}, 1
s_lshl_b32 s3, s3, 11
s_add_u32 s43, s43, s3
s_add_u32 s43, s43, s{sXb}
s_mul_i32 s76, s{sQ}, 352
s_sub_u32 s76, 1536, s76""")
        for mt in range(4):
            R(f"s_add_u32 s{sOutMt[mt]}, s{sRow}, {mt * 16 * ROWB}\ns_add_u32 s{sOutMt[mt]}, s{sOutMt[mt]}, s{sWq}")
        self.mk(sB_, 68, 3 * ROWB)
        self.mk(sOUT_, 70, 16384 * ROWB)
        self.mk(sWS_, 74, 0x10000000)
        if self.NOST or self.NOLD or self.NOW: self.mk(60, 74, 0)
        self.prologue_rest()
    def mk(self, b, lo, size):
        self.raw(f"s_mov_b32 s{b}, s{lo}\ns_and_b32 s{b+1}, s{lo+1}, 0xffff\ns_mov_b32 s{b+2}, {size}\ns_mov_b32 s{b+3}, 0x20000")
    def prologue_rest(self):
        R = self.raw
        VV = lambda t: self.emit(Ins(t, "V"))
        VV("v_lshrrev_b32 v23, 2, v20")
        VV("v_lshlrev_b32 v23, 4, v23")
        VV("v_and_b32 v24, 3, v20")
        VV("v_add_u32 v23, v23, v24")
        R(f"s_lshl_b32 s3, s{sWv}, 2")
        VV("v_add_u32 v23, s3, v23")
        VV(f"v_mul_u32_u24 v23, {ROWB}, v23")
        VV(f"v_add_u32 v{vPW2}, v23, v22")
        VV("v_lshrrev_b32 v20, 1, v0")
        VV("v_and_b32 v21, 1, v0")
        VV("v_lshlrev_b32 v21, 4, v21")
        VV(f"v_mul_u32_u24 v23, {ROWB}, v20")
        VV(f"v_add_u32 v{vPXE}, v23, v21")
        VV("v_and_b32 v23, 19, v20")
        VV("v_and_b32 v24, 4, v20")
        VV("v_lshlrev_b32 v24, 1, v24")
        VV("v_or_b32 v23, v23, v24")
        VV("v_and_b32 v24, 8, v20")
        VV("v_lshrrev_b32 v24, 1, v24")
        VV("v_or_b32 v23, v23, v24")
        VV(f"v_mul_u32_u24 v23, {ROWB}, v23")
        VV(f"v_add_u32 v{vPE}, v23, v21")
        VV("v_and_b32 v23, 7, v20")
        VV("v_and_b32 v24, 8, v20")
        VV("v_lshlrev_b32 v24, 1, v24")
        VV("v_or_b32 v23, v23, v24")
        VV("v_and_b32 v24, 16, v20")
        VV("v_lshrrev_b32 v24, 1, v24")
        VV("v_or_b32 v23, v23, v24")
        VV(f"v_mul_u32_u24 v23, {ROWB}, v23")
        VV(f"v_add_u32 v{vPE2}, v23, v21")
        VV("v_lshrrev_b32 v20, 4, v0")
        VV("v_and_b32 v21, 15, v0")
        VV("v_lshrrev_b32 v22, 2, v0")
        VV("v_and_b32 v22, 3, v22")
        VV("v_and_b32 v23, 3, v0")
        VV("v_mul_u32_u24 v24, 1032, v20")
        VV("v_lshlrev_b32 v25, 7, v22")
        VV("v_add_u32 v24, v24, v25")
        VV("v_lshlrev_b32 v25, 4, v23")
        VV("v_add_u32 v24, v24, v25")
        VV("v_lshrrev_b32 v25, 1, v22")
        VV("v_lshlrev_b32 v25, 6, v25")
        VV(f"v_add_u32 v{vA[0]}, v24, v25")
        VV("v_sub_u32 v25, 64, v25")
        VV(f"v_add_u32 v{vA[1]}, v24, v25")
        VV("v_lshrrev_b32 v24, 1, v20")
        VV("v_lshlrev_b32 v24, 9, v24")
        VV("v_and_b32 v25, 1, v20")
        VV("v_lshlrev_b32 v25, 7, v25")
        VV("v_add_u32 v24, v24, v25")
        VV("v_lshlrev_b32 v25, 5, v22")
        VV("v_add_u32 v24, v24, v25")
        VV("v_lshlrev_b32 v25, 3, v23")
        VV(f"v_add_u32 v{vA2}, v24, v25")
        VV("v_and_b32 v24, 6, v21")
        VV("v_xor_b32 v24, v20, v24")
        VV("v_lshlrev_b32 v24, 4, v24")
        VV("v_lshlrev_b32 v25, 7, v21")
        VV("v_add_u32 v24, v24, v25")
        VV(f"v_add_u32 v{vX[0]}, s{sXRw}, v24")
        VV(f"v_xor_b32 v{vX[1]}, 64, v{vX[0]}")
        VV("v_lshlrev_b32 v24, 5, v21")
        VV("v_lshlrev_b32 v25, 3, v20")
        VV("v_add_u32 v24, v24, v25")
        VV(f"v_add_u32 v24, s{sXRw}, v24")
        VV(f"v_add_u32 v{vX2}, 24576, v24")
        VV(f"v_lshlrev_b32 v{vL16}, 4, v0")
        VV(f"v_lshlrev_b32 v{vL8}, 3, v0")
        VV("v_lshlrev_b32 v24, 4, v20")
        VV(f"v_add_u32 v{vBias}, {BIAS}, v24")
        R(f"s_lshl_b32 s3, s{sC}, 2\ns_add_u32 s3, s3, s{sWv}\ns_lshl_b32 s3, s3, 9\ns_add_u32 s3, s3, {FBASE}")
        VV("v_and_b32 v24, 3, v0")
        VV("v_lshlrev_b32 v24, 7, v24")
        VV(f"v_add_u32 v{vPollOff}, s3, v24")
        VV(f"v_mov_b32 v{vFlagOff}, 0x7fffff00")
        VV(f"v_cmp_eq_u32 vcc, s{sQ}, v0")
        R("s_nop 1")
        VV(f"v_cndmask_b32 v{vFlagOff}, v{vFlagOff}, v{vPollOff}, vcc")
        if not self.EARLYPF: self.pf_patterns()
        self.bias_prologue()
        R(f"s_lshl_b32 s91, s2, 2\ns_add_u32 s91, s91, s{sWv}\ns_lshl_b32 s91, s91, 12")

    def pf_patterns(self):
        R = self.raw; VV = lambda t: self.emit(Ins(t, "V"))
        R(f"s_lshl_b32 s56, s{sQ}, 4")
        VV("v_and_b32 v26, 15, v0")
        VV("v_lshrrev_b32 v27, 4, v0")
        VV("v_add_u32 v26, s56, v26")
        VV("v_lshlrev_b32 v27, 7, v27")
        VV(f"v_mul_u32_u24 v26, {ROWB}, v26")
        VV(f"v_add_u32 v{vPFX}, v26, v27")
        if self.PXW == 2:
            VV("v_lshrrev_b32 v27, 5, v0")
            VV("v_lshlrev_b32 v27, 30, v27")
            VV(f"v_add_u32 v{vPFX}, v{vPFX}, v27")
        for i in self.pfw_pattern(vPFW, False): self.emit(i)
        if self.PX0W:
            VV(f"v_add_u32 v27, {64 - 16 * self.PX0W}, v0")
            VV("v_lshrrev_b32 v27, 6, v27")
            VV("v_lshlrev_b32 v27, 30, v27")
            VV(f"v_add_u32 v27, v{vPFX}, v27")
        if self.T_WG < 190 or self.T_WGS:
            VV("v_lshlrev_b32 v29, 7, v0")
            VV(f"v_lshrrev_b32 v28, {3 if self.T_WGS else 5}, v0")
            VV("v_min_u32 v28, 1, v28")
            VV("v_lshlrev_b32 v28, 30, v28")
            VV("v_add_u32 v29, v28, v29")
            R(f"s_lshl_b32 s91, s2, 2\ns_add_u32 s91, s91, s{sWv}\ns_lshl_b32 s91, s91, 12")
        if self.PX1:
            VV("v_lshrrev_b32 v28, 4, v0")
            VV("v_min_u32 v28, 1, v28")
            VV("v_lshlrev_b32 v28, 30, v28")
            VV(f"v_add_u32 v28, v{vPFX}, v28")
    def bias_prologue(self):
        R = self.raw; VV = lambda t: self.emit(Ins(t, "V"))
        R(f"s_lshl_b32 s3, s{sWv}, 6")
        VV("v_add_u32 v20, s3, v0")
        VV("v_min_u32 v20, 207, v20")
        VV("v_lshrrev_b32 v21, 4, v20")
        VV("v_and_b32 v22, 15, v20")
        VV("v_lshrrev_b32 v23, 1, v21")
        VV("v_lshlrev_b32 v23, 5, v23")
        VV("v_lshrrev_b32 v24, 2, v22")
        VV("v_lshlrev_b32 v24, 3, v24")
        VV("v_add_u32 v23, v23, v24")
        VV("v_and_b32 v24, 1, v21")
        VV("v_lshlrev_b32 v24, 2, v24")
        VV("v_add_u32 v23, v23, v24")
        VV("v_and_b32 v24, 3, v22")
        VV("v_add_u32 v23, v23, v24")
        R(f"s_mul_i32 s3, s{sQ}, 192")
        VV("v_add_u32 v23, s3, v23")
        R(f"s_lshl_b32 s3, s{sQ}, 4\ns_add_u32 s3, s3, 768")
        VV("v_add_u32 v24, s3, v22")
        VV("v_cmp_eq_u32 vcc, 12, v21")
        R("s_nop 1")
        VV("v_cndmask_b32 v23, v23, v24, vcc")
        VV("v_lshlrev_b32 v23, 1, v23")
        VV("v_lshlrev_b32 v22, 2, v20")
        VV(f"v_add_u32 v22, {BIAS}, v22")
    def bias_loads(self):
        for l in range(3):
            self.emit(Ins(f"buffer_load_ushort v{25+l}, v23, {srd(sB_)}, 0 offen offset:{l*ROWB}", "L", vm=("bl", l)))
            self.vm_step[("bl", l)] = -100
    def bias_write(self):
        a = [V(f"v_lshlrev_b32 v{25+l}, 16, v{25+l}", rd=vr(25 + l), wr=vr(25 + l)) for l in range(3)]
        a[0].need_vm = [("bl", 2)]
        a.append(V("v_add_f32 v25, 1.0, v25", rd=vr(25), wr=vr(25)))
        b = [Ins(f"ds_write_b32 v22, v{25+l} offset:{832*l}", "D", rd=vr(22) + vr(25 + l), lg=("bw", l)) for l in range(3)]
        b[0].after = [a[-1]]
        self.last_reader = [b[-1], b[-1]]
        return a, b

    COST = {"S": 4, "W": 4, "X": 4, "SS": 8, "V": 4, "D": 8, "L": 8, "A": 12, "T": 12}
    def fits(self, kinds):
        t = 4
        for i, k in enumerate(kinds):
            if k == "V": t = max(t, 8) + 4
            else: t += self.COST[k]
            if k == "L" and (i + 1 == len(kinds)): t += 4
            if k == "L" and i + 1 < len(kinds) and kinds[i + 1] != "V": return False
            if k in ("A", "T") and (i != 0 or len(kinds) > 1): return False
        return t <= 16

    def first_step(self, l, gi, u=0):
        for f, st in enumerate(self.steps):
            if st["l"] == l and st["gi"] == gi and st["u"] == u: return f
    def last_step(self, l, gi, u):
        r = None
        for f, st in enumerate(self.steps):
            if st["l"] == l and st["gi"] == gi and st["u"] == u: r = f
        return r
    def group_range(self, l, gi):
        fs = [f for f, st in enumerate(self.steps) if st["l"] == l and st["gi"] == gi]
        return fs[0], fs[-1]

    def build_streams(self):
        NL = self.NL
        self.last_reader = [None, None]
        M1 = []
        M2 = []
        E = []
        E2 = []
        M3 = []
        for n, e in enumerate(self.entries):
            es = -100 if e["jf"] < 0 else self.bars[e["jf"]]
            sq = self.dma_entry(n)
            for i_ in sq: i_.dl = min(self.bars[e["jl"]] - self.LATW, max(es, 0) + self.RSL)
            for i_ in sq: i_.hard = self.bars[e["jl"]] - 14
            sq[-1].lines = 8 if e["kind"] == "m" else 32
            M1.append([es, 0, sq, ("bar", e["jf"])])
        G = self.groups[0]
        slot_of = {}
        for gi, (ks_l, sl_l) in enumerate(G):
            for ks, sl in zip(ks_l, sl_l): slot_of[ks] = (gi, sl)
        def first_use(l, ks):
            for f, st in enumerate(self.steps):
                if st["l"] == l and st["ks"] == ks: return f
        self.first_use = first_use
        def slot_free(l, ks, sl):
            f0 = first_use(l, ks)
            r = -100
            for f in range(f0):
                if self.steps[f]["slot"] == sl: r = f
            return r
        self.stage_reads = {}
        stage_free = {}
        DM = []
        rd_earliest = {}
        for ks in range(26):
            gi, sl = slot_of[ks]
            rd_earliest[ks] = slot_free(0, ks, sl) + 1 if slot_free(0, ks, sl) >= 0 else -100
        cur = -100
        for ks in range(26):
            cur = max(cur, rd_earliest[ks]); rd_earliest[ks] = cur
        self.rd_earliest = rd_earliest
        self.slot_of0 = slot_of
        for line in range(13):
            seq = self.stage_dma(line)
            if line >= 3: seq[0].need_lg = [("xs", 2 * (line - 3) + 1, 3)]
            if line < self.PRO_X: es = -100
            else:
                es = self.T_STG0 + self.T_STGD * (line - self.PRO_X)
                k = 0
                for i_ in seq:
                    i_.earliest = int(es + self.PSP * k); i_.dl = i_.earliest + 8
                    if self.FCAP: i_.dl = first_use(0, min(2 * line, 25)) - self.STDL
                    if i_.kind == "A": k += 1
            M3.append([es, 1, seq, None])
        for u in (0, 3, 1, 2):
            seq = self.reload_dma(u)
            if u < 3: seq[0 if u else 1].need_lg = [("xs", 2 * (10 + u) + 1, 3)]
            es = self.T_RL[u]; k = 0
            for i_ in seq:
                i_.earliest = int(es + self.PSP * k); i_.dl = i_.earliest + 8
                if i_.kind == "A": k += 1
            M3.append([es, 1, seq, None])
        for ks in range(26):
            gi, sl = slot_of[ks]
            M2.append([rd_earliest[ks], 0, self.stage_read(ks, sl), None])
        for l in range(1, NL):
            base = 4 * (l - 1)
            def cls(ks):
                if ks >= 24: return 4
                return [1, 2, 3, 3, 4, 4][ks % 6]
            polled = set()
            lst = []
            for gi, (ks_l, sl_l) in enumerate(self.groups[l]):
                for ks, sl in zip(ks_l, sl_l):
                    lst.append((gi, ks, sl))
            gb0, gb1 = self.group_range(l - 1, 4)
            l0 = gb1 + 1
            exp = {1: l0 + self.T_U0, 2: l0 + self.T_U0B, 3: l0 + self.T_U1, 4: l0 + self.T_U2}
            items = []
            for gi, ks, sl in lst:
                es = max(slot_free(l, ks, sl) + 1, exp[cls(ks)], first_use(l, ks) - (self.XLEADG[gi] or self.XLEAD))
                items.append([es, cls(ks), first_use(l, ks), ks, sl])
            items.sort(key=lambda it: (it[0], it[2]))
            npaced = 0
            for es, c, gi, ks, sl in items:
                seq = []
                if c not in polled:
                    polled.add(c)
                    ld, chk = self.flag_poll(base + c)
                    ld.lines = 4; ld.dl = es - self.T_POLL
                    if self.PHARD: ld.hard = es - self.T_POLL
                    M2.append([es - self.T_POLL, 2, [ld], None])
                    seq += chk
                xl = self.xload(l, ks, sl)
                for i_ in xl:
                    i_.dl = first_use(l, ks) - (self.LATXB if ks in (18, 1, 7) else self.LATX)
                    if i_.kind == "L": i_.lines = 8 if ks < 24 else self.LX2
                    if i_.kind == "L" and self.XPACE and npaced < self.XPN:
                        i_.earliest = int(l0 + self.T_U0 + self.XPACE * npaced); i_.dl = max(i_.earliest + 1, first_use(l, ks) - self.LATX2); npaced += 1
                seq += xl
                M2.append([es, 3, seq, None])
        if NL > 1 and self.T_PWL:
            E.append([self.T_PAT, 0, self.pfw_pattern(vPFX, True), ("pat",)])
        a, b = self.bias_write()
        E.append([self.T_BW, 0, a, None]); E2.append([self.T_BW, 0, b, ("bw",)])
        for l in range(NL):
            g3 = 2
            for u in range(4):
                lastf = self.last_step(l, g3, u)
                a, b = self.bias_unit(l, u)
                E.append([lastf + 2, 1, a, ("bias", l, u)]); E2.append([lastf + 2 - self.E2LEAD, 1, b, None])
            if l == NL - 1:
                E.append([self.group_range(l, 4)[0] + 8, 0, self.out_patterns(), ("outpat",)])
            for u in ([0, 1, 3, 2] if (l == NL - 1 and self.TSPLIT) else range(4)):
                lastf = self.last_step(l, 4, u)
                a, b = self.epi_unit(l, u)
                if l == NL - 1 and u == 2 and self.TSPLIT:
                    for i_ in a[len(a) // 2:]: i_.earliest = lastf + 2
                    lastf = self.tsplit_step
                E.append([lastf + 2, 0, a, None]); E2.append([lastf + 2 - self.E2LEAD, 0, b, ("epi", l, u)])
        if self.ITLB:
            for k in range(2, 21):
                es = max(0, int((4096 * k - 4096 - self.ITLB) / 77))
                if es < self.steps[-1]["e"] * 0 + len(self.steps) - 20:
                    E2.append([es, 5, [Ins(f"s_buffer_load_dword s100, s[64:67], {4096 * k}", "S", lg=None, note="smem")], None])
        PFs = self.pf_streams()
        E.append([self.T_PW0[-1] + 2, 0, self.pfg_pat, None])
        M1.sort(key=lambda x: (x[0], x[1])); M2.sort(key=lambda x: (x[0], x[1])); E.sort(key=lambda x: (x[0], x[1]))
        flat = lambda Q: [(max(es, ins.earliest) if ins.earliest is not None else es, ins, tag, idx == len(seq) - 1) for es, _, seq, tag in Q for idx, ins in enumerate(seq)]
        M3.sort(key=lambda x: (x[0], x[1]))
        E2.sort(key=lambda x: (x[0], x[1]))
        self.PF = flat(PFs)
        self.M1, self.M2, self.E, self.M3, self.E2 = flat(M1), flat(M2), flat(E), flat(M3), flat(E2)

    def try_emit_from(self, Q, f, gap_kinds, allow, post_w):
        if not Q: return False
        es, ins, tag, lastflag = Q[0]
        if es > f: return False
        if isinstance(tag, tuple) and tag[0] == "bar" and tag[1] >= 0 and tag[1] > self.bar_passed: return False
        if ins.kind not in allow: return False
        if ins.note == 'm0' and self.m0_owner is not None: return False
        for a in ins.after:
            if id(a) not in self.issue_step: return False
        for t in ins.need_vm:
            if t not in self.vm_pos: return False
        for t in ins.need_lg:
            if t not in self.lg_pos: return False
        nv, nl = self.wait_for(ins.need_vm, ins.need_lg)
        needw = nv is not None or nl is not None
        kinds = gap_kinds + (["W"] if needw else []) + [ins.kind] + post_w
        if not self.fits(kinds):
            if needw and self.fits(gap_kinds + ["W"] + post_w) and self.wait_ok(ins, f):
                self.emit_wait(ins.need_vm, ins.need_lg); gap_kinds.append("W"); return True
            return False
        if needw and not self.wait_ok(ins, f): return False
        if not self.hazard_ok(ins): return False
        if needw:
            self.emit_wait(ins.need_vm, ins.need_lg); gap_kinds.append("W")
        self.emit(ins); gap_kinds.append(ins.kind)
        if ins.note == 'm0': self.m0_owner = id(Q)
        if ins.kind == 'A' and ins.note != "m0keep": self.m0_owner = None
        self.issue_step[id(ins)] = f
        if ins.vm is not None: self.vm_step[ins.vm] = f
        if ins.kind in ("A", "L", "T") and self.FCAP: self.fifo_push(ins, f)
        if ins.lg is not None: self.lg_step[ins.lg] = f
        Q.pop(0)
        if isinstance(tag, tuple) and tag[0] == "flag": self.flag_step[tag[1]] = f
        if isinstance(tag, tuple) and tag[0] == "pat":
            assert ("pf", "x", self.PX_L[-1]) in self.vm_pos, "prefetch pattern overwrites vPX before reload issued"
            self.pat_done = lastflag
        if ins.vm is not None and ins.vm[0] == "pf" and ins.vm[1] == "w" and ins.vm[2] > 0: assert self.pat_done and ("rl", 3, 1) in self.vm_pos
        if isinstance(tag, tuple) and tag[0] == "outpat":
            assert not any(i.kind == "L" and i.vm[0] == "fp" for _, i, _, _ in self.M2) and not any("v_cmp_gt_u32 vcc" in i.text for _, i, _, _ in self.M2) and not self.F
        if ins.vm is not None and ins.vm[0] == "xo" and ins.vm[2] == 0 and ins.vm[3] == 3 and ins.vm[1] < self.NL - 1:
            l_ = ins.vm[1]; val = 4 * l_ + 1
            self.F += [(f, i_, ("flag", val), False) for i_ in self.flag_set(val, [("xo", l_, 0, i) for i in range(4)])]
        if lastflag and isinstance(tag, tuple) and tag[0] == "epi":
            self.epi_done(tag, f)
        if lastflag and isinstance(tag, tuple) and tag[0] == "bias":
            self.bias_done[(tag[1], tag[2])] = f
        return True
    def fifo_lat(self, ins, f):
        t = ins.vm
        if t is None: return f + self.LD
        if t[0] == "pf":
            if t[1] in ("x", "g"): return f + self.LH
            if t[1] == "w" and t[2] == 0:
                gd = [self.fdone.get(("pf", "g", k)) for k in range(len(self.T_WGS or []))]
                if gd and all(x is not None and x <= f for x in gd): return f + self.LM
                return f + self.LH
            return f + self.LM
        if t[0] == "st":
            cov = [a for k_, a in enumerate(self.PX_L) if a <= t[1] <= a + (1 if a in self.PX1 else self.PX0W if (k_ == 0 and self.PX0W) else self.PXW) - 1 and ("pf", "x", a) in self.fdone]
            if not cov: return f + self.LH
            return max(f, min(self.fdone[("pf", "x", a)] for a in cov)) + self.LD
        if t[0] == "w" and self.entries[t[1]]["l"] == 0:
            j = self.entries[t[1]]["ks"][-1] // 4
            d = self.fdone.get(("pf", "w", 0, j))
            if d is None: return f + self.LH
            return max(f, d) + self.LD
        if t[0] in ("fb", "bl"): return f + self.LH
        return f + self.LD
    def fifo_push(self, ins, f):
        d = max(self.fifo_lat(ins, f), self.fifo[-1][1] if self.fifo else -1000)
        self.fifo.append((ins.lines, d))
        if ins.vm is not None: self.fdone[ins.vm] = d
    def fifo_ok(self, ins, f):
        occ = sum(n for n, d in self.fifo if d > f)
        return occ + ins.lines <= self.FCAP
    def wait_ok(self, ins, f):
        if self.FCAP and f < self.FEND:
            for t in ins.need_vm:
                if t[0] == "st" and self.vm_pos[t] >= self.vm_done and f < self.fdone.get(t, -1000): return False
        for t in ins.need_vm:
            if self.FCAP and f < self.FEND and t[0] == "st": continue
            if self.vm_pos[t] >= self.vm_done and f - self.vm_step.get(t, -1000) < (ins.minvm or self.MIN_VM): return False
        for t in ins.need_lg:
            if self.lg_pos[t] >= self.lg_done and f - self.lg_step.get(t, -1000) < self.MIN_LG: return False
        return True
    def hazard_ok(self, ins):
        if ins.kind in ("V", "D", "L"):
            regs = set(ins.rd) | set(ins.wr) if ins.kind == "V" else set(ins.wr)
            n = 0
            for prev in reversed(self.out):
                if n >= 9: break
                if prev.kind == "M" and (set(prev.wr) & regs): return False
                n += 1 if prev.kind != "SS" else 2
        if ins.kind == "V":
            n = 0
            for prev in reversed(self.out):
                if n >= 2: break
                if prev.kind == "T" and (set(prev.rd) & set(ins.wr)): return False
                n += 1
        if ins.kind == "V" and not getattr(self, "drain", False):
            f, g = self.cur
            nxt = []
            for d in (1, 2):
                gg = g + d; ff = f + gg // 4; gg %= 4
                if ff < self.nsteps: nxt.append(self.mfma(ff, gg))
            for m in nxt:
                if set(m.rd) & set(ins.wr): return False
        if ins.kind == "A":
            if self.out and self.out[-1].note == "m0": return False
        return True
    def epi_done(self, tag, f):
        _, l, u = tag
        self.epi_fin[(l, u)] = f
        if l == self.NL - 1: return
        n = 8 if u < 3 else 4
        tags = [("xo", l, u, i) for i in range(n)]
        val = None
        if u == 0: val = 4 * l + 2
        elif u == 1: val = 4 * l + 3
        elif u == 3: val = 4 * l + 4; tags = tags + [("xo", l, 2, i) for i in range(8)]
        if val is not None:
            self.F += [(f, ins, ("flag", val), False) for ins in self.flag_set(val, tags)]

    def schedule(self):
        self.issue_step = {}; self.vm_step = {}; self.lg_step = {}
        self.pending = []; self.epi_fin = {}; self.bias_done = {}
        self.bar_passed = -1
        self.F = []; self.pat_done = False; self.B = 0.0; self.Bhist = []
        self.fifo = []; self.fdone = {}
        self.m0_owner = None
        N = self.nsteps
        barat = {P: j for j, P in enumerate(self.bars)}
        need_at = {}
        for n, e in enumerate(self.entries): need_at.setdefault(e["jl"], []).append(("w", n))
        self.pro_issue()
        self.emit_wait(need_at.get(0, []), [])
        self.emit(Ins("s_barrier", "X")); self.bar_passed = 0
        self.pstamp()
        for f in range(self.LA):
            for r in self.tr_reads(f): self.emit(r); self.lg_step[r.lg] = -10
        if self.stamps: self.stamp()
        if self.SPAN: self.raw("s_memrealtime s[78:79]\ns_waitcnt lgkmcnt(0)\ns_mov_b32 s79, s78"); self.lg_done = len(self.lgq)
        self.epi_started = set()
        for f in range(N):
            st = self.steps[f]
            if f == 0:
                nv, nl = self.step_needs(0)
                self.emit_wait(nv, nl)
            if st["l"] > 0 and (st["l"], st["u"]) not in self.epi_started:
                self.epi_started.add((st["l"], st["u"]))
                assert (st["l"] - 1, st["u"]) in self.epi_fin, ("epilogue late", st["l"] - 1, st["u"], f, self.epi_fin)
            if self.PROL and f == 0: self.pstamp()
            if self.prof and not self.PROL and f >= self.PS and (f - self.PS) % self.PI == 0 and (f - self.PS) // self.PI <= 60:
                k = (f - self.PS) // self.PI
                if k > 0: self.emit(Ins(f"v_writelane_b32 v0, s86, {k}", "V"))
                self.emit(Ins(("s_memrealtime" if self.PRT else "s_memtime") + " s[86:87]", "S"))
                self.prof_k = k
            nL = 0; dynbar = False; defer_w = None
            for g in range(4):
                self.emit(self.mfma(f, g))
                self.cur = (f, g)
                kinds = []
                if g < 2 and f + self.LA < N:
                    r = self.tr_reads(f + self.LA)[g]
                    if g == 0:
                        pass
                    self.emit(r); self.lg_step[r.lg] = f; kinds.append("D")
                if g == 1 and f + 1 < N:
                    nv, nl = self.step_needs(f + 1)
                    if f in barat: nv = nv + need_at.get(barat[f], [])
                    for val, tags in self.pending:
                        if all(f - self.vm_step[t] >= self.T_ST for t in tags):
                            nv = nv + tags; dynbar = True
                    vready = bool(self.E) and self.E[0][1].kind == "V" and self.E[0][0] <= f
                    if self.WDEF and f >= self.WDEF0 and vready and not (f in barat or dynbar): defer_w = (nv, nl)
                    elif self.emit_wait(nv, nl): kinds.append("W")
                if defer_w is not None and g >= 2:
                    vmready = any(Q and Q[0][0] <= f and (Q[0][1].kind in ("A", "L", "T") or Q[0][1].note == "m0") for Q in (self.F, self.M1, self.M2, self.PF, self.M3, self.E2))
                    if g == 3 or not vmready:
                        if self.emit_wait(*defer_w): kinds.append("W")
                        defer_w = None
                if g == 2 and (f in barat or dynbar):
                    self.emit(Ins("s_barrier", "X")); kinds.append("X")
                    if f in barat: self.bar_passed = barat[f]
                    for val, tags in list(self.pending):
                        if all(self.vm_pos[t] < self.vm_done for t in tags):
                            self.pending.remove((val, tags))
                            seq = self.flag_set(val, tags)
                            self.F += [(f, ins, None, False) for ins in seq]
                            self.flag_step[val] = f
                self.B = max(0.0, self.B - 16 * (self.ETA if f > 215 else self.ETA0))
                progress = True
                allk = ("S", "SS", "V", "A", "L", "T", "D")
                order = [self.F, self.M1, self.M2, self.PF, self.M3, self.E2, self.E]
                while progress:
                    progress = False
                    cands = []
                    for qi, Q in enumerate(order):
                        if Q and (Q[0][1].kind in ("A", "L", "T") or Q[0][1].note == "m0") and Q[0][0] <= f:
                            ins = Q[0][1]
                            dl = ins.dl if ins.dl is not None else Q[0][0] + 10
                            cands.append((dl, qi, Q))
                    cands.sort(key=lambda c: (c[0], c[1]))
                    for dl, qi, Q in cands:
                        ins = Q[0][1]
                        th = self.TH_URG if dl <= f + self.URG else self.TH
                        if ins.note == "m0": th += 16
                        hard = getattr(ins, "hard", None)
                        if self.BLK and ins.kind == "T" and ins.vm is not None and ins.vm[0] == "xo" and any(338 * l_ + self.BLK0 <= f < 338 * l_ + self.BLK0 + self.BLK for l_ in range(1, self.NL)): continue
                        if self.FCAP and f < self.FEND:
                            vi = ins
                            if vi.kind not in ("A", "L", "T"):
                                vi = next(i_[1] for i_ in Q if i_[1].kind in ("A", "L", "T"))
                            own = self.m0_owner == id(Q)
                            if not own and Q is self.M3 and vi.vm is not None and vi.vm[0] == "st":
                                if self.fifo_lat(vi, f) > f + self.LD: continue
                                nx = next((i_ for i_ in self.PF[:3] if i_[1].kind == "L"), None)
                                nx = next((i_ for i_ in self.PF[:12] if i_[1].kind == "L" and i_[1].vm[1] == "x"), None)
                                if nx is not None and nx[0] <= f and self.vm_pos.get(("st", vi.vm[1], 0)) is None: continue
                            if Q is self.PF and vi.vm is not None and vi.vm[1] == "x":
                                hd = next((i_[1] for i_ in self.M3[:4] if i_[1].kind == "A"), None)
                                if hd is not None and hd.vm[0] == "st" and ("st", hd.vm[1], 0) in self.vm_pos: continue
                            need = vi.lines * (2 if vi.note == "m0keep" else 1)
                            if Q is self.PF and self.PFREE and vi.vm[1] != "x" or (Q is self.PF and vi.vm[1] == "x" and vi.vm[2] in self.PX1): need = -1000
                            if not own and sum(n for n, d in self.fifo if d > f) + need > self.FCAP and not (hard is not None and hard <= f): continue
                            if not own and need > 0 and self.B > self.FTH and not (hard is not None and hard <= f): continue
                        elif self.B > th and not (hard is not None and hard <= f): continue
                        if Q is self.PF and g < 2: continue
                        if Q is self.M2 and ins.kind == "L" and ins.vm[0] == "x" and f > 215 and nL + ins.lines > self.MAXLN and dl > f + self.URG2: continue
                        if self.try_emit_from(Q, f, kinds, allk, []):
                            if ins.kind in ("A", "L", "T"): self.B += ins.lines * (2.5 if (self.FCAP and f < self.FEND and ins.vm is not None and ins.vm[0] == "pf") else self.CPL)
                            if Q is self.M2 and ins.kind == "L": nL += ins.lines
                            progress = True; break
                    if progress: continue
                    for Q in order:
                        if Q and (Q[0][1].kind in ("A", "L", "T") or Q[0][1].note == "m0"): continue
                        if self.try_emit_from(Q, f, kinds, allk, []):
                            progress = True; break
                self.Bhist.append(self.B)
            if self.stamps and f + 1 < N and (self.steps[f + 1]["l"] != st["l"] or (self.steps[f + 1]["gi"] == 4 and st["gi"] == 3)):
                self.stamp()
        self.drain = True
        guard = 0
        assert not self.PF
        while self.M1 or self.M2 or self.E or self.M3 or self.F or self.E2:
            guard += 1
            assert guard < 100000
            done = False
            for Q in (self.F, self.E2, self.E, self.M2, self.M3, self.M1):
                if Q:
                    es, ins, tag, lastflag = Q[0]
                    if any(id(a) not in self.issue_step for a in ins.after): continue
                    if any(t not in self.lg_pos for t in ins.need_lg): continue
                    while not self.hazard_ok(ins): self.emit(Ins("s_nop 0", "S"))
                    self.emit_wait(ins.need_vm, ins.need_lg)
                    while not self.hazard_ok(ins): self.emit(Ins("s_nop 0", "S"))
                    self.emit(ins); Q.pop(0); self.issue_step[id(ins)] = N
                    if ins.vm is not None: self.vm_step[ins.vm] = N
                    if lastflag and isinstance(tag, tuple) and tag[0] == "epi": self.epi_done(tag, N)
                    done = True; break
            assert done
        if self.stamps: self.stamp()
        if self.prof:
            k = (self.prof_k + 1) if not self.PROL else 40
            self.raw(f"""v_writelane_b32 v0, s86, {k}
s_waitcnt vmcnt(0)
{"s_memrealtime" if self.PRT else "s_memtime"} s[86:87]
s_waitcnt lgkmcnt(0)
s_nop 4""")
            self.emit(Ins("v_writelane_b32 v0, s88, 0", "V"))
            if self.PROL:
                for kk in range(self.prol_k):
                    self.emit(Ins(f"v_writelane_b32 v0, s{[60, 62, 78, 80, 82, 100, 100, 100][kk]}, {kk + 1}", "V"))
            if k + 1 < 64: self.emit(Ins(f"v_writelane_b32 v0, s86, {k+1}", "V"))
            self.emit(Ins(f"v_writelane_b32 v0, s90, 63", "V"))
            self.raw(f"""s_lshl_b32 s3, s2, 2
s_add_u32 s3, s3, s{sWv}
s_lshl_b32 s3, s3, 8""")
            self.emit(Ins(f"v_lshrrev_b32 v2, 2, v{vL16}", "V"))
            self.raw("s_nop 4")
            self.emit(Ins(f"buffer_store_dword v0, v2, {srd(sWS_)}, s3 offen", "T"))
            if self.DBGT:
                self.raw(f"""s_load_dwordx2 s[4:5], s[0:1], 32
s_waitcnt lgkmcnt(0)
s_and_b32 s5, s5, 0xffff
s_mov_b32 s6, 64
s_mov_b32 s7, 0x20000""")
                self.emit(Ins("v_subrev_u32 v0, s88, v0", "V"))
                self.raw(f"s_cmp_eq_u32 s{sWv}, 0\ns_cbranch_scc0 Lnodbg")
                self.emit(Ins("buffer_atomic_add v0, v2, s[4:7], 0 offen\nLnodbg:", "T"))

    def step_needs(self, f):
        st = self.steps[f]
        nl = [("wf", f, 0), ("wf", f, 1)]
        nv = []
        for mt in range(4):
            a, b = self.xtags(st["l"], st["ks"], mt)
            for t in a:
                assert t in self.vm_pos, ("x load not issued before use", t, f)
            for t in b:
                assert t in self.lg_pos, ("stage read not issued before use", t, f)
            nv += a; nl += b
        return nv, nl

    def pstamp(self):
        if self.prof and self.PROL:
            k = self.prol_k; self.prol_k += 1
            r = [60, 62, 78, 80, 82, 100, 100, 100][k]
            self.emit(Ins(f"s_memtime s[{r}:{r+1}]", "S"))
    def pro_issue(self):
        def take(Q, pred):
            out = []
            while Q and pred(Q[0]): out.append(Q.pop(0))
            return out
        items = take(self.M1, lambda it: it[0] <= -50) + take(self.M3, lambda it: it[0] <= -50)
        seqs = []; cur = []
        for it in items:
            cur.append(it[1])
            if it[1].kind == "A": seqs.append(cur); cur = []
        wseq = [s for s in seqs if s[-1].vm[0] == "w"]; xseq = [s for s in seqs if s[-1].vm[0] == "st"]
        nW, nX = self.PRO_W, self.PRO_X
        assert 4 * nW >= 12
        rest_w = wseq[nW:]; rest_x = xseq[8 * nX:]
        self.M1[0:0] = [(-40, ins, ("bar", -1), False) for s in rest_w for ins in s]
        self.M3[0:0] = [(-40, ins, None, False) for s in rest_x for ins in s]
        def emit_seqs(L):
            for s in L:
                for k, ins in enumerate(s):
                    if ins.kind == "A" and self.out[-1].note == "m0": self.emit(Ins("s_nop 0", "S"))
                    self.emit(ins)
                    if ins.vm is not None: self.vm_step[ins.vm] = -100
                    if ins.vm is not None: self.fifo_push(ins, self.PRO_T)
        for tok in self.PORD:
            if tok.startswith("pf"):
                lim = int(tok[2:])
                while self.PF and self.PF[0][0] <= lim:
                    es, ins, tag, lf = self.PF.pop(0)
                    self.emit(ins); self.issue_step[id(ins)] = -100
                    if ins.vm is not None: self.vm_step[ins.vm] = -100
                    if ins.vm is not None: self.fifo_push(ins, self.PRO_T)
            elif tok[0] == "x": n = int(tok[1:]); assert n < nX; emit_seqs(xseq[8 * n:8 * n + 8])
            elif tok == "wA": emit_seqs(wseq[0:3])
            elif tok == "wB": emit_seqs(wseq[3:nW])
            elif tok == "p2": self.prologue2()
            elif tok == "fb":
                self.emit(Ins(f"buffer_load_dword v{vBase}, v{vPollOff}, {srd(sWS_)}, 0 offen sc1", "L", vm=("fb",)))
                self.vm_step[("fb",)] = -100
                self.bias_loads()
            elif tok == "st": self.pstamp()
            elif tok.startswith("wait"):
                n = int(tok[4:]); self.emit(Ins(f"s_waitcnt vmcnt({n})", "W")); self.vm_done = max(self.vm_done, len(self.vmq) - n)
            else: assert 0, tok
        self.pstamp()
        n = 0
        while self.M2 and n < 8:
            es, ins, tag, lf = self.M2[0]
            assert ins.kind == "D"
            self.emit_wait(ins.need_vm, ins.need_lg)
            self.emit(ins); self.M2.pop(0); n += 1
            if ins.lg is not None: self.lg_step[ins.lg] = -100
        self.pstamp()

    def pf_streams(self):
        PF = []
        def ld(pat, dst, base, soff, tag, pre=(), off=0):
            i = Ins(f"buffer_load_dword v{dst}, v{pat}, {srd(base)}, {soff} offen" + (f" offset:{off}" if off else ""), "L", rd=vr(pat), wr=vr(dst), vm=tag)
            i.lines = {"x": 16 * self.PXW, "w": 16, "g": 32}[tag[1]]
            return list(pre) + [i]
        t = 54
        for k, (a, es) in enumerate(zip(self.PX_L, self.T_PX)):
            PF.append([es, 0, ld(27 if (k == 0 and self.PX0W) else vPFX, vPoll, sX0_, f"s{t}", ("pf", "x", a), [S(f"s_add_u32 s{t}, s{sRow}, {128 * a}")]), None])
            if k == 0 and self.PX0W: PF[-1][2][-1].lines = 16 * self.PX0W; assert es <= -90
            if a in self.PX1:
                PF[-1] = [es, 0, ld(28, vPoll, sX0_, f"s{t}", ("pf", "x", a), [S(f"s_add_u32 s{t}, s{sRow}, {128 * a}")]), None]
                PF[-1][2][-1].lines = 16; assert es < self.T_PAT - 5
        if self.CPF:
            for k, es in enumerate(self.T_CPF):
                i = Ins(f"buffer_load_dword v{vPoll if es < 200 else vPXE}, off, s[64:67], s{t}", "L", vm=("pf", "c", k)); i.lines = 1
                PF.append([es, 2, [S(f"s_add_u32 s{t}, s72, {self.CPS * k}"), i], None])
            if self.T_CPG is not None:
                i = Ins(f"buffer_load_dword v{vPoll}, off, s[64:67], s{t}", "L", vm=("pf", "cg", 0)); i.lines = 1
                PF.append([self.T_CPG, 3, [S(f"s_lshl_b32 s{t}, s2, 2"), S(f"s_add_u32 s{t}, s{t}, s{sWv}"), S(f"s_lshl_b32 s{t}, s{t}, 7"), i], None])
        for j, es in enumerate(self.T_PW0):
            PF.append([es, 1, ld(vPFW, vPoll, sW_, f"s{t}", ("pf", "w", 0, j), [S(f"s_mov_b32 s{t}, {4 * j * KSB}")]), None])
        lastw0 = PF[-1][2][-1]
        t0 = vT[0]
        pat = [V(f"v_lshlrev_b32 v{vPFG}, 3, v{vL16}", rd=vr(vL16), wr=vr(vPFG)),
               V(f"v_lshrrev_b32 v{t0}, 9, v{vL16}", rd=vr(vL16), wr=vr(t0)),
               V(f"v_lshlrev_b32 v{t0}, 30, v{t0}", rd=vr(t0), wr=vr(t0)),
               V(f"v_add_u32 v{vPFG}, v{vPFG}, v{t0}", rd=vr(t0) + vr(vPFG), wr=vr(vPFG))]
        pat[0].after = [lastw0]
        if self.T_WGS:
            self.pfg_pat = []
            for k, es in enumerate(self.T_WGS):
                gi_ = ld(29, vPoll, sW_, f"s{t}", ("pf", "g", k), [S(f"s_add_u32 s{t}, s91, {1024 * k}")])
                gi_[-1].lines = 8
                PF.append([es, 1, gi_, None])
            g = None
        elif self.T_WG < 190:
            self.pfg_pat = []
            g = ld(29, vPoll, sW_, "s91", ("pf", "g"))
        else:
            self.pfg_pat = pat
            g = ld(vPFG, vPoll, sW_, "s91", ("pf", "g"))
            g[-1].after = [pat[-1]]
        if g is not None: PF.append([self.T_WG, 0, g, None])
        if self.NL > 1:
            pass
            for l in range(1, self.NL):
                l0 = self.group_range(l - 1, 4)[1] + 1
                for j, dt in enumerate(self.T_PWL):
                    PF.append([l0 + dt, 1, ld(vPFX, vPXE, sW_, f"s{t}", ("pf", "w", l, j), [S(f"s_mov_b32 s{t}, {(0 if self.NOW else l) * LSTRIDE + j * KSB}")]), None])
        if self.FB_T is not None:
            i = Ins(f"buffer_load_dword v{vBase}, v{vPollOff}, {srd(sWS_)}, 0 offen sc1", "L", vm=("fb",)); i.lines = 4
            seq = [i]
            for l in range(3):
                b = Ins(f"buffer_load_ushort v{25+l}, v23, {srd(sB_)}, 0 offen offset:{l*ROWB}", "L", vm=("bl", l)); b.lines = 4; seq.append(b)
            PF.append([self.FB_T, 2, seq, None])
        PF.sort(key=lambda x: (x[0], x[1]))
        return PF
    def pfw_pattern(self, dst, perm):
        t0, t1 = vT
        seq = [V(f"v_lshrrev_b32 v{t0}, 6, v{vL16}", rd=vr(vL16), wr=vr(t0)),
               V(f"v_mul_u32_u24 v{dst}, {(6 if perm else 1) * KSB}, v{t0}", rd=vr(t0), wr=vr(dst)),
               V(f"v_lshrrev_b32 v{t0}, 2, v{t0}", rd=vr(t0), wr=vr(t0)),
               V(f"v_min_u32 v{t0}, 1, v{t0}", rd=vr(t0), wr=vr(t0)),
               V(f"v_lshlrev_b32 v{t0}, 30, v{t0}", rd=vr(t0), wr=vr(t0)),
               V(f"v_and_b32 v{dst}, 0x3fffffff, v{dst}", rd=vr(dst), wr=vr(dst)),
               V(f"v_add_u32 v{dst}, v{dst}, v{t0}", rd=vr(t0) + vr(dst), wr=vr(dst)),
               V(f"v_lshrrev_b32 v{t0}, 4, v{vL16}", rd=vr(vL16), wr=vr(t0)),
               V(f"v_and_b32 v{t0}, 3, v{t0}", rd=vr(t0), wr=vr(t0)),
               V(f"v_lshlrev_b32 v{t1}, 7, v{t0}", rd=vr(t0), wr=vr(t1)),
               V(f"v_add_u32 v{t1}, s{sWq}, v{t1}", rd=vr(t1), wr=vr(t1)),
               V(f"v_cmp_eq_u32 vcc, 3, v{t0}", rd=vr(t0)),
               V(f"v_mov_b32 v{t0}, 0x600", wr=vr(t0)),
               V(f"v_cndmask_b32 v{t1}, v{t1}, v{t0}, vcc", rd=vr(t0) + vr(t1), wr=vr(t1)),
               V(f"v_add_u32 v{dst}, v{dst}, v{t1}", rd=vr(dst) + vr(t1), wr=vr(dst)),
               V(f"v_add_u32 v{dst}, s55, v{dst}", rd=vr(dst), wr=vr(dst))]
        return seq

    def stamp(self):
        k = self.nstamp; self.nstamp += 1
        if k < 8:
            self.emit(Ins(f"s_memtime s[{86 + 2*k}:{87 + 2*k}]", "S"))

    def check(self):
        out = self.out
        errs = 0
        for i, ins in enumerate(out):
            if ins.kind == "M":
                n = 0
                for prev in reversed(out[max(0, i - 4):i]):
                    if n >= 2: break
                    if prev.kind == "V" and set(prev.wr) & set(ins.rd):
                        print("HAZARD V->M", i, prev.text, "|", ins.text, file=sys.stderr); errs += 1
                    n += 1
            if ins.kind == "V":
                n = 0
                for prev in reversed(out[max(0, i - 10):i]):
                    if n >= 8: break
                    if prev.kind == "M" and set(prev.wr) & (set(ins.rd) | set(ins.wr)):
                        print("HAZARD M->V", i, prev.text, "|", ins.text, file=sys.stderr); errs += 1
                    n += 1
        return errs

    def text(self):
        NL = self.NL
        L = []
        L.append("""; Kernarg layout for this problem (48 bytes, ptrs only, base s[0:1]):
;   offset   0: d_in[0] x0  shape=(16384, 832) dtype=bfloat16 strides=(1664, 2) contiguous=True
;   offset   8: d_in[1] ws  shape=(3, 832, 832) dtype=bfloat16 strides=(1384448, 1664, 2) contiguous=True
;   offset  16: d_in[2] bs  shape=(3, 832) dtype=bfloat16 strides=(1664, 2) contiguous=True
;   offset  24: d_out     shape=(16384, 832) dtype=bfloat16 (2 bytes/elem)
;   offset  32: d_debug   256 bytes
;   offset  40: d_ws      268435456 bytes workspace
; cluster of 4 workgroups = 256 rows; each workgroup owns 208 output features; layers exchange x through d_ws.""")
        L.append("; @launch grid=(256,1,1) block=(256,1,1) lds=163840")
        L.append('.amdgcn_target "amdgcn-amd-amdhsa--gfx950"')
        L.append(".text")
        L.append(f".globl {KNAME}\n.p2align 8\n.type {KNAME},@function\n{KNAME}:")
        for ins in self.out: L.append("  " + ins.text)
        if self.stamps:
            L.append("  s_memtime s[84:85]\n  s_memrealtime s[78:79]\n  s_waitcnt lgkmcnt(0)")
            L.append(f"  s_lshl_b32 s3, s2, 7\n  v_mov_b32 v2, s3\n  v_cmp_eq_u32 vcc, 0, v{vL16}\n  s_cmp_eq_u32 s{sWv}, 0\n  s_cbranch_scc0 Lnost\n  s_and_saveexec_b64 s[4:5], vcc")
            regs = [80, 82, 78, 84] + [86 + 2 * k for k in range(min(self.nstamp, 8))]
            for i, s in enumerate(regs):
                L.append(f"  v_mov_b32 v6, s{s}\n  v_mov_b32 v7, s{s+1}\n  buffer_store_dwordx2 v[6:7], v2, {srd(sWS_)}, 0 offen offset:{8*i}\n  s_nop 1")
            L.append("Lnost:")
        if self.SPAN:
            L.append(f"""  s_waitcnt vmcnt(0)
  s_memrealtime s[86:87]
  s_load_dwordx2 s[4:5], s[0:1], 32
  s_waitcnt lgkmcnt(0)
  s_and_b32 s5, s5, 0xffff
  s_mov_b32 s6, 256
  s_mov_b32 s7, 0x20000
  s_not_b32 s3, s88
  s_not_b32 s87, s86
  v_mov_b32 v2, s3
  v_writelane_b32 v2, s86, 1
  v_writelane_b32 v2, s88, 2
  v_writelane_b32 v2, s87, 3
  v_writelane_b32 v2, s79, 4
  s_not_b32 s79, s79
  v_writelane_b32 v2, s79, 5
  v_lshrrev_b32 v3, 2, v{vL16}
  v_cmp_gt_u32 vcc, 24, v3
  v_mov_b32 v4, 0x7fffff00
  v_cndmask_b32 v3, v4, v3, vcc
  s_cmp_eq_u32 s{sWv}, 0
  s_cbranch_scc0 Lnospan
  buffer_atomic_umax v2, v3, s[4:7], 0 offen""")
            L.append("Lnospan:")
        if self.ENDW: L.append("  s_waitcnt vmcnt(0)")
        L.append("Lend:\n  s_endpgm")
        L += self.slow
        L.append("Lcode_end:")
        L.append('.section .rodata,"a"\n.p2align 6')
        L.append(f".amdhsa_kernel {KNAME}")
        L.append("  .amdhsa_next_free_vgpr 512\n  .amdhsa_next_free_sgpr 102\n  .amdhsa_accum_offset 256\n  .amdhsa_group_segment_fixed_size 0\n  .amdhsa_kernarg_size 48\n  .amdhsa_user_sgpr_count 2\n  .amdhsa_user_sgpr_kernarg_segment_ptr 1\n  .amdhsa_system_sgpr_workgroup_id_x 1\n.end_amdhsa_kernel")
        return "\n".join(L) + "\n"

    LA = 3
    WDEF = 1
    FCAP = 0; FEND = 200; FTH = 150; LH = 28; LM = 12; LD = 5; PRO_T = -30; PXW = 2; STDL = 14; WDEF0 = 0; LX2 = 8; MAXLN = 8; URG2 = -100; LATXB = 34; G2S = [7, 8, 9]; BLK = 0; BLK0 = -60; ENDW = 0; PHARD = 0; IVE = 12; IVT = 80; IV0 = 12; IVS = 0; FB_T = None; AGE1 = 16; PX0W = 0; PX1 = (); PFREE = 0
    ITLB = 0
    CPS = 8192; T_CPG = -94; T_WGS = [-59, -58, -57, -56]
    TSPLIT = 9
    DBGT = 0
    SPAN = 0
    XPACE = 1.5; XPN = 12; LATX2 = 30; T_U0B = -14
    PK = 0; XLEADG = [36, 40, 30, 36, 50]
    EARLYPF = 1
    PORD = ["pf-90", "x0", "wA", "p2", "wB", "x1", "fb", "pf-50"]
    PRT = 0
    CPF = 1; T_CPF = [-95, 30, 128, 230, 330, 420, 530, 635, 740, 850]
    XMODE = 0
    XB0 = XBASE
    ETA0 = 1.3
    RSL = 2
    ETA = 1.0; CPL = 9; TH = 120; TH_URG = 280; URG = 2; LATW = 16; LATX = 20; T_STG0 = 12; T_STGD = 15; PSP = 1.6; T_RL = [185, 228, 262, 214]
    PROL = 0; T_BW = 20; PRO_W = 6; PRO_X = 2; PX_L = [2, 4, 6, 8, 10, 12]; T_PX = [7, 30, 56, 82, 108, 134]; T_PW0 = [-96, 9]; T_WG = 226; T_PWL = []; T_PAT = 200; AGE2 = 12; T_PWA = -100; T_PWB = 70; AGE = 16
    NOST = 0; NOLD = 0; NOW = 0
    LDP = 2; STP = 2; OUTP = 4
    IV = 12
    PS = 0; PI = 17
    T_U0 = -36; T_U1 = 50; T_U2 = 120; XLEAD = 26; SPIN = 0x8000; E2LEAD = 2; T_POLL = 16; T_ST = 18; MAXL = 2
    MIN_VM = 10; MIN_LG = 1

    def run(self):
        self.flag_step = {}
        self.plan()
        self.prologue()
        self.build_streams()
        self.schedule()
        errs = self.check()
        return errs

if __name__ == "__main__":
    ap = argparse.ArgumentParser()
    ap.add_argument("-o", default="k.s")
    ap.add_argument("--nl", type=int, default=3)
    ap.add_argument("--interval", type=int, default=12)
    ap.add_argument("--stamps", action="store_true")
    ap.add_argument("--prof", action="store_true")
    ap.add_argument("--set", action="append", default=[])
    a = ap.parse_args()
    for kv in a.set:
        k, v = kv.split("="); setattr(Gen, k, eval(v))
    g = Gen(NL=a.nl, interval=Gen.IV, stamps=a.stamps, prof=a.prof)
    errs = g.run()
    open(a.o, "w").write(g.text())
    from collections import Counter
    print("instrs", len(g.out), Counter(i.kind for i in g.out), "hazard errs", errs, "minlead(steps)", g.minlead, file=sys.stderr)
    print("xload steps", {k: v for k, v in g.vm_step.items() if k[0] in ("x", "fp", "fs") and (k[0] != "x" or k[3] == 3)}, file=sys.stderr)
    import statistics
    print("B mean", statistics.mean(g.Bhist), "max", max(g.Bhist), "frac>150", sum(b > 150 for b in g.Bhist) / len(g.Bhist), file=sys.stderr)
    leads = [g.bars[e["jl"]] - g.vm_step[("w", n)] for n, e in enumerate(g.entries) if g.vm_step[("w", n)] > -50]
    print("ring leads min/mean", min(leads), statistics.mean(leads), "hist", sorted(leads)[:20], file=sys.stderr)
    print("stage", {k: v for k, v in g.vm_step.items() if k[0] in ("st", "rl") and k[2] in (0, 7)}, file=sys.stderr)
    print("pf", {k: v for k, v in g.vm_step.items() if k[0] == "pf"}, file=sys.stderr)
    print("epi_fin", g.epi_fin, "bias", g.bias_done, "flags", g.flag_step, "nsteps", g.nsteps, file=sys.stderr)
```

```python
import sys, argparse

KNAME = "standalone__dcn_v2_cross__recsys_kernel"
D = 832; ROWB = 1664
LSTRIDE = D * ROWB
KSB = 32 * ROWB
RING = 54848
BIAS = 54848
XR = 57344
XRW = 26624
XBASE = 0x100000
FBASE = 0x40000
XLAYER = 64 * 4 * 106496
CH = 4128
XB = 4096

ACC0 = 48
def acc(j, mt): return ACC0 + 16 * j + 4 * mt
WF0 = 32; NB = 4
def wf(f): return WF0 + 4 * (f % NB)
vA = [1, 2]; vA2 = 3
vPW = 4; vPW2 = 5; vPE = 6; vPE2 = 7
vX = [8, 9]; vX2 = 10
vL16 = 11; vL8 = 12
vPX = 13; vOut = 30
vPXE = 14; vOutE = 31
vBias = 15
vFlagOff = 16; vFlagVal = 17; vPollOff = 18; vPoll = 19; vBase = 30
vPFX = 31; vPFW = 17; vPFG = 17
vXP = [20, 24]
vT = [28, 29]
vDummy = 0
sW_ = 8; sX0_ = 12; sOUT_ = 16; sWS_ = 20; sDBG_ = 24; sB_ = 28
sQ = 32; sC = 33; sWv = 34; sWq = 35; sW1032 = 36; sW8 = 37; sXq = 38; sW1024 = 39
sXb = 40; sRow = 41; sMask = 44; sXRw = 45
sOutMt = [46, 47, 48, 49]
sT = [50, 51, 52, 53, 54, 55]
sXs = [56, 57]
sXt = [77, 84]
sP = 58
sSpin = 59
sJ = [92, 93, 94, 95, 96, 97, 98, 99]
sStamp = 60
def srd(b): return f"s[{b}:{b+3}]"

class Ins:
    __slots__ = ("text", "kind", "rd", "wr", "vm", "lg", "need_vm", "need_lg", "earliest", "label", "note", "after", "minvm", "dl", "lines", "hard")
    def __init__(self, text, kind, rd=(), wr=(), vm=None, lg=None, need_vm=None, need_lg=None, earliest=None, note=None):
        self.text = text; self.kind = kind; self.rd = tuple(rd); self.wr = tuple(wr)
        self.vm = vm; self.lg = lg; self.need_vm = need_vm or []; self.need_lg = need_lg or []
        self.earliest = earliest; self.note = note; self.after = []; self.minvm = None; self.dl = None; self.lines = 8; self.hard = None
def vr(b, n=1): return [("v", b + i) for i in range(n)]
def ar(b, n=1): return [("a", b + i) for i in range(n)]

def S(t, **k): return Ins(t, "S", **k)
def V(t, rd=(), wr=(), **k): return Ins(t, "V", rd=rd, wr=wr, **k)

class Gen:
    def __init__(self, NL=3, interval=12, dbg=None, stamps=False, prof=False):
        self.prof = prof; self.prol_k = 0
        self.NL = NL; self.interval = interval; self.stamps = stamps
        self.out = []
        self.vmq = []; self.vm_done = 0; self.vm_pos = {}
        self.lgq = []; self.lg_done = 0; self.lg_pos = {}
        self.slow = []
        self.tcount = 0
        self.nstamp = 0

    def emit(self, ins):
        if ins.vm is not None:
            assert ins.vm not in self.vm_pos, ins.vm
            self.vm_pos[ins.vm] = len(self.vmq); self.vmq.append(ins.vm)
        if ins.lg is not None:
            assert ins.lg not in self.lg_pos, ins.lg
            self.lg_pos[ins.lg] = len(self.lgq); self.lgq.append(ins.lg)
        self.out.append(ins)
    def wait_for(self, need_vm, need_lg):
        nv = None; nl = None
        for t in need_vm:
            p = self.vm_pos[t]
            if p >= self.vm_done:
                n = len(self.vmq) - 1 - p
                nv = n if nv is None else min(nv, n)
        for t in need_lg:
            p = self.lg_pos[t]
            if p >= self.lg_done:
                n = len(self.lgq) - 1 - p
                nl = n if nl is None else min(nl, n)
        return nv, nl
    def emit_wait(self, need_vm, need_lg):
        nv, nl = self.wait_for(need_vm, need_lg)
        if nv is None and nl is None: return False
        parts = []
        if nv is not None:
            nv = min(nv, 63); parts.append(f"vmcnt({nv})"); self.vm_done = max(self.vm_done, len(self.vmq) - nv)
        if nl is not None:
            nl = min(nl, 15); parts.append(f"lgkmcnt({nl})"); self.lg_done = max(self.lg_done, len(self.lgq) - nl)
        self.emit(Ins("s_waitcnt " + " ".join(parts), "W"))
        return True
    def raw(self, text, kind="S", **k):
        for line in text.strip().split("\n"):
            self.emit(Ins(line.strip(), kind, **k))
    def xch(self, l):
        if self.XMODE == 2: return (sOUT_, -self.XB0) if l == 0 else (sWS_, 0)
        if self.XMODE == 1: return (sWS_, 0)
        return (sWS_, l * XLAYER)
    def pol(self, p):
        return ("", " sc0", " sc1", " sc0 sc1", " nt", " sc0 nt", " sc1 nt", " sc0 sc1 nt")[p]
    def stemp(self, stream=0):
        self.tcount += 1
        return sT[2 * stream + self.tcount % 2]

    def plan(self):
        NL = self.NL
        self.groups = []
        for l in range(NL):
            if l == 0:
                G = [[0, 1, 2], [3, 4, 5], [6, 7, 8, 9], [10, 11, 12], list(range(13, 26))]
            else:
                G = [[0, 6, 12], [18, 1, 7], [13, 19, 2, 8], [14, 20, 3],
                     [9, 15, 21, 4, 10, 16, 22, 5, 11, 17, 23, 24, 25]]
            SL = [[13, 14, 15], [0, 1, 2], [3, 4, 5, 6], [13, 14, 15], [7, 8, 9, 10, 11, 12, 0, 1, 2, 3, 4, 5, 6]]
            if l > 0 and self.G2S: SL[1] = list(self.G2S)
            self.groups.append(list(zip(G, SL)))
        self.entries = []
        self.steps = []
        def seg_main(l, gi, u, lst):
            for ks, sl in lst:
                e = dict(kind="m", l=l, u=u, ks=[ks], size=CH, gi=gi, first=len(self.steps))
                self.entries.append(e)
                for sb in range(2):
                    for ee in range(2):
                        self.steps.append(dict(e=len(self.entries) - 1, j=4 * u + 2 * sb + ee, ks=ks, slot=sl,
                                               va=vA[sb], rel=8 * ee, rdoff=512, l=l, gi=gi, u=u))
                e["last"] = len(self.steps) - 1
        def seg_extra(l, gi, bt):
            e = dict(kind="x", l=l, u=3, ks=[k for k, _ in bt], size=XB, gi=gi, first=len(self.steps))
            self.entries.append(e)
            for i, (ks, sl) in enumerate(bt):
                self.steps.append(dict(e=len(self.entries) - 1, j=12, ks=ks, slot=sl,
                                       va=vA2, rel=1024 * i, rdoff=256, l=l, gi=gi, u=3))
            e["last"] = len(self.steps) - 1
        for l in range(NL):
            gl = [list(zip(G, SL)) for (G, SL) in self.groups[l]]
            a, b = gl[0], gl[1]
            if l == 0:
                for gi_, lst_ in ((0, a), (1, b)):
                    for it in lst_:
                        for u in range(3): seg_main(l, gi_, u, [it])
            else:
                seg_main(l, 0, 0, a); seg_main(l, 0, 1, a); seg_main(l, 1, 0, b); seg_main(l, 1, 1, b)
                seg_main(l, 0, 2, a); seg_main(l, 1, 2, b)
            ab = a + b
            seg_extra(l, 1, ab[0:4]); seg_extra(l, 1, ab[4:6])
            for gi in (2, 3, 4):
                lst = gl[gi]
                if gi == 4 and l == NL - 1 and self.TSPLIT:
                    seg_main(l, gi, 0, lst); seg_main(l, gi, 1, lst)
                    for bt in [lst[0:4], lst[4:8], lst[8:11], lst[11:13]]: seg_extra(l, gi, bt)
                    ns = self.TSPLIT
                    seg_main(l, gi, 2, lst[:13 - ns])
                    es_ = []
                    for ks, sl in lst[13 - ns:]:
                        e = dict(kind="m", l=l, u=2, ks=[ks], size=CH, gi=gi, first=len(self.steps))
                        self.entries.append(e); es_.append((len(self.entries) - 1, ks, sl))
                        for ee in range(2):
                            self.steps.append(dict(e=len(self.entries) - 1, j=8 + ee, ks=ks, slot=sl, va=vA[0], rel=8 * ee, rdoff=512, l=l, gi=gi, u=2))
                    self.tsplit_step = len(self.steps) - 1
                    for n_, ks, sl in es_:
                        for ee in range(2):
                            self.steps.append(dict(e=n_, j=10 + ee, ks=ks, slot=sl, va=vA[1], rel=8 * ee, rdoff=512, l=l, gi=gi, u=2))
                        self.entries[n_]["last"] = len(self.steps) - 1
                    continue
                for u in range(3): seg_main(l, gi, u, lst)
                if gi < 4: batches = [lst]
                elif l == 0: batches = [lst[0:4], lst[4:8], lst[8:12], lst[12:13]]
                else: batches = [lst[0:4], lst[4:8], lst[8:11], lst[11:13]]
                for bt in batches: seg_extra(l, gi, bt)
        self.nsteps = len(self.steps)
        seen = set()
        for st in self.steps:
            if st["j"] not in seen: seen.add(st["j"]); st["init"] = True
        iv = self.interval
        LA = self.LA
        self.bars = [-LA - 1]
        b_ = min(iv, self.IV0) - LA - 1
        while b_ < self.nsteps - LA - 1:
            self.bars.append(b_)
            b_ += self.IVE if b_ >= self.nsteps - self.IVT else (self.IV0 if b_ < self.IVS else iv)
        pos = 0
        live = []
        for n, e in enumerate(self.entries):
            if pos + e["size"] > RING: pos = 0
            e["base"] = pos; s0, s1 = pos, pos + e["size"]
            ov = [m for (m, a, b) in live if a < s1 and s0 < b]
            live = live + [(n, s0, s1)]
            lastneed = max([self.entries[m]["last"] for m in ov], default=None)
            if lastneed is None: e["jf"] = -1
            else:
                e["jf"] = next(j for j, P in enumerate(self.bars) if lastneed <= P + 1)
            e["jl"] = max(j for j, P in enumerate(self.bars) if P + LA + 1 <= e["first"] or j == 0)
            assert e["jf"] < e["jl"] or e["jf"] == -1, (n, e)
            pos = s1
        self.minlead = min((self.bars[e["jl"]] - self.bars[e["jf"]]) for e in self.entries if e["jf"] >= 0)

    def tr_reads(self, f):
        st = self.steps[f]; e = self.entries[st["e"]]
        r = wf(f)
        res = []
        for rd in range(2):
            off = e["base"] + st["rel"] + rd * st["rdoff"]
            res.append(Ins(f"ds_read_b64_tr_b16 v[{r+2*rd}:{r+2*rd+1}], v{st['va']} offset:{off}", "D",
                           rd=vr(st["va"]), wr=vr(r + 2 * rd, 2), lg=("wf", f, rd)))
        return res
    def mfma(self, f, mt):
        st = self.steps[f]
        c = acc(st["j"], mt); a = wf(f); b = 16 * st["slot"] + 4 * mt
        if st.get("init"):
            return Ins(f"v_mfma_f32_16x16x32_bf16 v[{c}:{c+3}], v[{a}:{a+3}], a[{b}:{b+3}], 0", "M",
                       rd=vr(a, 4) + ar(b, 4), wr=vr(c, 4))
        return Ins(f"v_mfma_f32_16x16x32_bf16 v[{c}:{c+3}], v[{a}:{a+3}], a[{b}:{b+3}], v[{c}:{c+3}]", "M",
                   rd=vr(a, 4) + ar(b, 4) + vr(c, 4), wr=vr(c, 4))
    def dma_entry(self, n):
        e = self.entries[n]; l = e["l"]
        t = self.stemp()
        if e["kind"] == "m":
            ks = e["ks"][0]
            const = (0 if self.NOW else l) * LSTRIDE + ks * KSB + 128 * e["u"]
            pat = vPW2 if (l > 0 and ks >= 24) else vPW
            seq = [S(f"s_add_u32 s{t}, s{sWq}, {const}"),
                   S(f"s_add_u32 m0, s{sW1032}, {e['base']}", note="m0"),
                   Ins(f"buffer_load_dwordx4 v{pat}, {srd(sW_)}, s{t} offen lds", "A", rd=vr(pat), vm=("w", n))]
        else:
            ks = e["ks"] + [e["ks"][-1]] * (4 - len(e["ks"]))
            lit = 0
            for i, k in enumerate(ks): lit |= (26 * (0 if self.NOW else l) + k) << (8 * i)
            pat = vPE2 if (l > 0 and ks[0] >= 24) else vPE
            seq = [S(f"s_lshr_b32 s{t}, 0x{lit:x}, s{sW8}"),
                   S(f"s_and_b32 s{t}, s{t}, 0xff"),
                   S(f"s_mul_i32 s{t}, s{t}, {KSB}"),
                   S(f"s_add_u32 s{t}, s{t}, s{sXq}"),
                   S(f"s_add_u32 m0, s{sW1024}, {e['base']}", note="m0"),
                   Ins(f"buffer_load_dwordx4 v{pat}, {srd(sW_)}, s{t} offen lds", "A", rd=vr(pat), vm=("w", n))]
        return seq
    def xload(self, l, ks, slot):
        t = sXs[(ks + l) % 2]
        xs, xo = self.xch(l - 1)
        seq = [S(f"s_add_u32 s{t}, s{sXb}, {(xo + 4096 * ks) & 0xffffffff}")]
        for mt in range(4):
            d = 16 * slot + 4 * mt
            if ks < 24:
                seq.append(Ins(f"buffer_load_dwordx4 a[{d}:{d+3}], v{vL16}, {srd(60 if self.NOLD else xs)}, s{t} offen offset:{1024*mt}{self.pol(self.LDP)}", "L",
                               rd=vr(vL16), wr=ar(d, 4), vm=("x", l, ks, mt, 0)))
            else:
                for h in range(2):
                    seq.append(Ins(f"buffer_load_dwordx2 a[{d+2*h}:{d+2*h+1}], v{vL8}, {srd(60 if self.NOLD else xs)}, s{t} offen offset:{2048*h+512*mt}{self.pol(self.LDP)}", "L",
                                   rd=vr(vL8), wr=ar(d + 2 * h, 2), vm=("x", l, ks, mt, h)))
        return seq
    def xtags(self, l, ks, mt):
        if l == 0: return [], [("xs", ks, mt)]
        if ks < 24: return [("x", l, ks, mt, 0)], []
        return [("x", l, ks, mt, 0), ("x", l, ks, mt, 1)], []
    def stage_dma(self, line, slot=None, tag="st"):
        if slot is None: slot = line % 3
        seq = []
        for j in range(8):
            imm = 1024 * (j & 1) + 128 * line
            if j % 2 == 0:
                seq.append(S(f"s_add_u32 m0, s{sXRw}, {8192 * slot + 1024 * j - 128 * line}", note="m0"))
            ins = Ins(f"buffer_load_dwordx4 v{vPX}, {srd(sX0_)}, s{sJ[j]} offen offset:{imm} lds", "A", rd=vr(vPX), vm=(tag, line, j))
            if j % 2 == 0: ins.note = "m0keep"
            seq.append(ins)
        return seq
    def stage_read(self, ks, slot):
        line, sb = ks >> 1, ks & 1
        seq = []
        for mt in range(4):
            d = 16 * slot + 4 * mt
            seq.append(Ins(f"ds_read_b128 a[{d}:{d+3}], v{vX[sb]} offset:{8192 * (line % 3) + 2048 * mt}", "D",
                           rd=vr(vX[sb]), wr=ar(d, 4), lg=("xs", ks, mt), need_vm=[("st", line, 2 * mt), ("st", line, 2 * mt + 1)]))
            seq[-1].minvm = self.AGE1 if line == 1 else self.AGE if line < 8 else self.AGE2
        return seq
    def reload_dma(self, u):
        seq = []
        if u == 0: seq.append(V(f"v_add_u32 v{vPX}, s{sWq}, v{vPX}", rd=vr(vPX), wr=vr(vPX)))
        if u < 3: return seq + self.stage_dma(u, (u + 1) % 3, "rl")
        for h in range(2):
            t = self.stemp(1)
            seq += [S(f"s_add_u32 s{t}, s{sRow}, s{sXq}"),
                    S(f"s_add_u32 s{t}, s{t}, {h * 32 * ROWB}"),
                    S(f"s_add_u32 m0, s{sXRw}, {24576 + 1024 * h}", note="m0"),
                    Ins(f"buffer_load_dwordx4 v{vPXE}, {srd(sX0_)}, s{t} offen lds", "A", rd=vr(vPXE), vm=("rl", 3, h))]
            seq[-1].lines = 32
        return seq
    def epi_unit(self, l, u):
        last = (l == self.NL - 1)
        seq = []
        items = [(sb, mt) for sb in range(2) for mt in range(4)] if u < 3 else [(0, mt) for mt in range(4)]
        def rd(i):
            sb, mt = items[i]; xp = vXP[i % 2]
            if u < 3:
                nv = [("rl", u, 2 * mt), ("rl", u, 2 * mt + 1)] if l == 0 else []
                return Ins(f"ds_read_b128 v[{xp}:{xp+3}], v{vX[sb]} offset:{8192 * ((u + 1) % 3) + 2048 * mt}", "D", rd=vr(vX[sb]), wr=vr(xp, 4),
                           lg=("xp", l, u, i), need_vm=nv)
            nv = [("rl", 3, mt >> 1)] if l == 0 else []
            return Ins(f"ds_read_b64 v[{xp}:{xp+1}], v{vX2} offset:{512 * mt}", "D", rd=vr(vX2), wr=vr(xp, 2), lg=("xp", l, u, i), need_vm=nv)
        seq2 = [rd(0), rd(1)]
        for b_ in range(2):
            if self.last_reader[b_] is not None: seq2[b_].after = [self.last_reader[b_]]
        for i, (sb, mt) in enumerate(items):
            xp = vXP[i % 2]
            ne = 2 if u < 3 else 1
            first = True; pend = None
            for e in range(ne):
                j = 4 * u + 2 * sb + e if u < 3 else 12
                c = acc(j, mt)
                for p in range(2):
                    x = xp + 2 * e + p; t = vT[p]
                    if self.PK & 1:
                        if p == 1: continue
                        t0, t1 = vT; x1 = x + 1
                        i0 = V(f"v_lshlrev_b32 v{t0}, 16, v{x}", rd=vr(x), wr=vr(t0))
                        if first: i0.need_lg = [("xp", l, u, i)]; first = False
                        seq += [i0, V(f"v_and_b32 v{t1}, s{sMask}, v{x}", rd=vr(x), wr=vr(t1)),
                                V(f"v_lshlrev_b32 v{x}, 16, v{x1}", rd=vr(x1), wr=vr(x)),
                                V(f"v_and_b32 v{x1}, s{sMask}, v{x1}", rd=vr(x1), wr=vr(x1)),
                                V(f"v_pk_mul_f32 v[{t0}:{t1}], v[{t0}:{t1}], v[{c}:{c+1}]", rd=vr(t0, 2) + vr(c, 2), wr=vr(t0, 2)),
                                V(f"v_pk_mul_f32 v[{x}:{x1}], v[{x}:{x1}], v[{c+2}:{c+3}]", rd=vr(x, 2) + vr(c + 2, 2), wr=vr(x, 2)),
                                V(f"v_cvt_pk_bf16_f32 v{x1}, v{x}, v{x1}", rd=vr(x, 2), wr=vr(x1)),
                                V(f"v_cvt_pk_bf16_f32 v{x}, v{t0}, v{t1}", rd=vr(t0, 2), wr=vr(x))]
                        continue
                    i0 = V(f"v_lshlrev_b32 v{t}, 16, v{x}", rd=vr(x), wr=vr(t))
                    if first: i0.need_lg = [("xp", l, u, i)]; first = False
                    seq += [i0,
                            V(f"v_and_b32 v{x}, s{sMask}, v{x}", rd=vr(x), wr=vr(x)),
                            V(f"v_mul_f32 v{t}, v{t}, v{c+2*p}", rd=vr(t) + vr(c + 2 * p), wr=vr(t)),
                            V(f"v_mul_f32 v{x}, v{x}, v{c+2*p+1}", rd=vr(x) + vr(c + 2 * p + 1), wr=vr(x)),
                            V(f"v_cvt_pk_bf16_f32 v{x}, v{t}, v{x}", rd=vr(t) + vr(x), wr=vr(x))]
            if pend is not None: seq.append(pend)
            lastv = seq[-1]
            if not last:
                t = sXt[i % 2]
                if u < 3:
                    b = 2 * u + sb
                    xs, xo = self.xch(l)
                    seq2.append(S(f"s_add_u32 s{t}, s42, {(xo + 4096 * b) & 0xffffffff}"))
                    st = Ins(f"buffer_store_dwordx4 v[{xp}:{xp+3}], v{vL16}, {srd(60 if self.NOST else xs)}, s{t} offen offset:{1024*mt}{self.pol(self.STP)}", "T",
                             rd=vr(xp, 4) + vr(vL16), vm=("xo", l, u, i))
                else:
                    xs, xo = self.xch(l)
                    seq2.append(S(f"s_add_u32 s{t}, s43, {xo & 0xffffffff}"))
                    st = Ins(f"buffer_store_dwordx2 v[{xp}:{xp+1}], v{vL8}, {srd(60 if self.NOST else xs)}, s{t} offen offset:{512*mt}{self.pol(self.STP)}", "T",
                             rd=vr(xp, 2) + vr(vL8), vm=("xo", l, u, i))
            else:
                if u < 3:
                    b = 2 * u + sb
                    st = Ins(f"buffer_store_dwordx4 v[{xp}:{xp+3}], v{vOut}, {srd(sOUT_)}, s{sOutMt[mt]} offen offset:{64*b}{self.pol(self.OUTP)}", "T",
                             rd=vr(xp, 4) + vr(vOut), vm=("xo", l, u, i))
                else:
                    t = sXt[i % 2]
                    seq2.append(S(f"s_add_u32 s{t}, s{sOutMt[mt]}, s76"))
                    st = Ins(f"buffer_store_dwordx2 v[{xp}:{xp+1}], v{vOutE}, {srd(sOUT_)}, s{t} offen{self.pol(self.OUTP)}", "T",
                             rd=vr(xp, 2) + vr(vOutE), vm=("xo", l, u, i))
            st.after = [lastv]; st.lines = 8 if u < 3 else 4; st.dl = -2000; st.hard = -2000
            self.last_reader[i % 2] = st
            seq2.append(st)
            if i + 2 < len(items): seq2.append(rd(i + 2))
        return seq, seq2
    def bias_unit(self, l, u):
        seq = []
        tiles = [4 * u + i for i in range(4)] if u < 3 else [12]
        def rd(i):
            xp = vXP[i % 2]
            return Ins(f"ds_read_b128 v[{xp}:{xp+3}], v{vBias} offset:{832 * l + 64 * tiles[i]}", "D", rd=vr(vBias), wr=vr(xp, 4), lg=("bi", l, tiles[i]))
        seq2 = [rd(0)] + ([rd(1)] if len(tiles) > 1 else [])
        for b_ in range(len(seq2)):
            if self.last_reader[b_] is not None: seq2[b_].after = [self.last_reader[b_]]
        for i, j in enumerate(tiles):
            xp = vXP[i % 2]
            first = True
            for mt in range(4):
                c = acc(j, mt)
                for r in range(0, 4, 2 if self.PK & 2 else 1):
                    if self.PK & 2: x = V(f"v_pk_add_f32 v[{c+r}:{c+r+1}], v[{c+r}:{c+r+1}], v[{xp+r}:{xp+r+1}]", rd=vr(c + r, 2) + vr(xp + r, 2), wr=vr(c + r, 2))
                    else: x = V(f"v_add_f32 v{c+r}, v{c+r}, v{xp+r}", rd=vr(c + r) + vr(xp + r), wr=vr(c + r))
                    if first: x.need_lg = [("bi", l, j)]; first = False
                    seq.append(x)
            self.last_reader[i % 2] = seq[-1]
            if i + 2 < len(tiles):
                r2 = rd(i + 2); r2.after = [seq[-1]]; seq2.append(r2)
        return seq, seq2
    def flag_set(self, val, need):
        v = V(f"v_add_u32 v{vFlagVal}, {val}, v{vBase}", rd=vr(vBase), wr=vr(vFlagVal), need_vm=list(need) + [("fb",)])
        v.minvm = self.T_ST
        st = Ins(f"buffer_store_dword v{vFlagVal}, v{vFlagOff}, {srd(sWS_)}, 0 offen sc1", "T", rd=vr(vFlagVal) + vr(vFlagOff), vm=("fs", val))
        st.lines = 1; st.dl = -3000; st.hard = -3000
        return [v, st]
    def flag_poll(self, val):
        k = val
        ld = Ins(f"buffer_load_dword v{vPoll}, v{vPollOff}, {srd(sWS_)}, 0 offen sc1", "L", rd=vr(vPollOff), wr=vr(vPoll), vm=("fp", val))
        chk = [V(f"v_sub_u32 v{vPoll}, v{vPoll}, v{vBase}", rd=vr(vPoll) + vr(vBase), wr=vr(vPoll), need_vm=[("fp", val), ("fb",)]),
               V(f"v_cmp_gt_u32 vcc, {val}, v{vPoll}", rd=vr(vPoll)),
               S("s_nop 0"),
               Ins(f"s_cbranch_vccnz Lslow{k}\nLback{k}:", "S")]
        self.slow.append(f"""Lslow{k}:
  s_mov_b32 s{sSpin}, 0x{self.SPIN:x}
Lspin{k}:
  buffer_load_dword v{vPoll}, v{vPollOff}, {srd(sWS_)}, 0 offen sc1
  s_waitcnt vmcnt(0)
  v_sub_u32 v{vPoll}, v{vPoll}, v{vBase}
  v_cmp_gt_u32 vcc, {val}, v{vPoll}
  s_sub_u32 s{sSpin}, s{sSpin}, 1
{"  s_add_u32 s90, s90, 0x%x" % (1 << (4 * (k - 1))) if self.prof else ""}
  s_cbranch_vccz Lback{k}
  s_cmp_lg_u32 s{sSpin}, 0
  s_cbranch_scc1 Lspin{k}
  s_branch Lback{k}""")
        return ld, chk
    def out_patterns(self):
        t0, t1 = vT
        return [V(f"v_lshrrev_b32 v{t0}, 4, v{vL16}", rd=vr(vL16), wr=vr(t0)),
                V(f"v_and_b32 v{t1}, 15, v{t0}", rd=vr(t0), wr=vr(t1)),
                V(f"v_mul_u32_u24 v{t1}, {ROWB}, v{t1}", rd=vr(t1), wr=vr(t1)),
                V(f"v_lshrrev_b32 v{t0}, 4, v{t0}", rd=vr(t0), wr=vr(t0)),
                V(f"v_lshlrev_b32 v{t0}, 3, v{t0}", rd=vr(t0), wr=vr(t0)),
                V(f"v_add_u32 v{vOutE}, v{t1}, v{t0}", rd=vr(t0) + vr(t1), wr=vr(vOutE)),
                V(f"v_add_u32 v{vOut}, v{vOutE}, v{t0}", rd=vr(t0) + vr(vOutE), wr=vr(vOut))]

    def prologue(self):
        R = self.raw
        VV = lambda t: self.emit(Ins(t, "V"))
        R("s_cmp_ge_u32 s2, 256\ns_cbranch_scc1 Lend")
        R("s_load_dwordx4 s[64:67], s[0:1], 0\ns_load_dwordx4 s[68:71], s[0:1], 16\ns_load_dwordx4 s[72:75], s[0:1], 32")
        if self.stamps:
            R("s_memrealtime s[80:81]\ns_memtime s[82:83]")
        if self.SPAN: R("s_memrealtime s[88:89]")
        if self.prof:
            R(("s_memrealtime" if self.PRT else "s_memtime") + " s[88:89]\ns_mov_b32 s90, 0")
        VV("v_lshrrev_b32 v31, 6, v0")
        VV("v_and_b32 v0, 63, v0")
        R(f"""s_and_b32 s{sC}, s2, 7
s_lshr_b32 s3, s2, 5""")
        VV(f"v_readfirstlane_b32 s{sWv}, v31")
        R(f"""s_lshl_b32 s55, s3, 2
s_lshl_b32 s3, s3, 3
s_add_u32 s{sC}, s{sC}, s3
s_lshr_b32 s{sQ}, s2, 3
s_and_b32 s{sQ}, s{sQ}, 3
s_mul_i32 s{sWq}, s{sQ}, 384
s_lshl_b32 s3, s{sC}, 2
s_add_u32 s3, s3, s{sWv}
s_mul_i32 s{sRow}, s3, {64 * ROWB}
s_add_u32 s55, s55, s{sWv}
s_mul_i32 s55, s55, {ROWB}
s_mul_i32 s{sW1032}, s{sWv}, 1032
s_lshl_b32 s{sW8}, s{sWv}, 3
s_mul_i32 s{sXRw}, s{sWv}, {XRW}
s_add_u32 s{sXRw}, s{sXRw}, {XR}
s_nop 0""")
        for j in range(8):
            R(f"s_add_u32 s{sJ[j]}, s{sRow}, {j * 8 * ROWB - 1024 * (j & 1)}")
        VV(f"v_lshlrev_b32 v{vL16}, 4, v0")
        VV("v_lshrrev_b32 v20, 3, v0")
        VV("v_and_b32 v21, 7, v0")
        VV("v_and_b32 v23, 6, v20")
        VV("v_lshlrev_b32 v22, 1, v20")
        VV("v_xor_b32 v23, v21, v23")
        VV("v_and_b32 v22, 4, v22")
        VV("v_lshlrev_b32 v23, 4, v23")
        VV(f"v_mul_u32_u24 v24, {ROWB}, v20")
        VV("v_xor_b32 v22, v21, v22")
        VV(f"v_add_u32 v{vPX}, v23, v24")
        VV("v_lshlrev_b32 v22, 4, v22")
        VV(f"v_add_u32 v23, s{sW8}, v20")
        VV(f"v_mul_u32_u24 v23, {ROWB}, v23")
        VV(f"v_add_u32 v{vPW}, v23, v22")
        if self.EARLYPF: self.pf_patterns()
        self.pstamp()
        R("s_waitcnt lgkmcnt(0)")
        self.pstamp()
        self.mk(sX0_, 64, 16384 * ROWB)
        self.mk(sW_, 66, 3 * LSTRIDE)
        if self.CPF:
            self.emit(Ins("s_getpc_b64 s[64:65]\nLpc:", "S"))
            R(f"s_and_b32 s65, s65, 0xffff\ns_mov_b32 s66, Lcode_end-Lpc\ns_mov_b32 s67, 0x20000\ns_lshr_b32 s72, s2, 3\ns_lshl_b32 s72, s72, 2\ns_add_u32 s72, s72, s{sWv}\ns_lshl_b32 s72, s72, 7")
    def prologue2(self):
        R = self.raw
        R(f"""s_lshl_b32 s{sXq}, s{sQ}, 5
s_add_u32 s{sXq}, s{sXq}, 1536
s_lshl_b32 s{sW1024}, s{sWv}, 10
s_lshl_b32 s3, s{sC}, 2
s_add_u32 s3, s3, s{sWv}
s_mul_i32 s{sXb}, s3, 106496
s_add_u32 s{sXb}, s{sXb}, {self.XB0}
s_mov_b32 s{sMask}, 0xffff0000
s_mul_i32 s42, s{sQ}, 24576
s_add_u32 s42, s42, s{sXb}
s_lshr_b32 s43, s{sQ}, 1
s_add_u32 s43, s43, 24
s_lshl_b32 s43, s43, 12
s_and_b32 s3, s{sQ}, 1
s_lshl_b32 s3, s3, 11
s_add_u32 s43, s43, s3
s_add_u32 s43, s43, s{sXb}
s_mul_i32 s76, s{sQ}, 352
s_sub_u32 s76, 1536, s76""")
        for mt in range(4):
            R(f"s_add_u32 s{sOutMt[mt]}, s{sRow}, {mt * 16 * ROWB}\ns_add_u32 s{sOutMt[mt]}, s{sOutMt[mt]}, s{sWq}")
        self.mk(sB_, 68, 3 * ROWB)
        self.mk(sOUT_, 70, 16384 * ROWB)
        self.mk(sWS_, 74, 0x10000000)
        if self.NOST or self.NOLD or self.NOW: self.mk(60, 74, 0)
        self.prologue_rest()
    def mk(self, b, lo, size):
        self.raw(f"s_mov_b32 s{b}, s{lo}\ns_and_b32 s{b+1}, s{lo+1}, 0xffff\ns_mov_b32 s{b+2}, {size}\ns_mov_b32 s{b+3}, 0x20000")
    def prologue_rest(self):
        R = self.raw
        VV = lambda t: self.emit(Ins(t, "V"))
        VV("v_lshrrev_b32 v23, 2, v20")
        VV("v_lshlrev_b32 v23, 4, v23")
        VV("v_and_b32 v24, 3, v20")
        VV("v_add_u32 v23, v23, v24")
        R(f"s_lshl_b32 s3, s{sWv}, 2")
        VV("v_add_u32 v23, s3, v23")
        VV(f"v_mul_u32_u24 v23, {ROWB}, v23")
        VV(f"v_add_u32 v{vPW2}, v23, v22")
        VV("v_lshrrev_b32 v20, 1, v0")
        VV("v_and_b32 v21, 1, v0")
        VV("v_lshlrev_b32 v21, 4, v21")
        VV(f"v_mul_u32_u24 v23, {ROWB}, v20")
        VV(f"v_add_u32 v{vPXE}, v23, v21")
        VV("v_and_b32 v23, 19, v20")
        VV("v_and_b32 v24, 4, v20")
        VV("v_lshlrev_b32 v24, 1, v24")
        VV("v_or_b32 v23, v23, v24")
        VV("v_and_b32 v24, 8, v20")
        VV("v_lshrrev_b32 v24, 1, v24")
        VV("v_or_b32 v23, v23, v24")
        VV(f"v_mul_u32_u24 v23, {ROWB}, v23")
        VV(f"v_add_u32 v{vPE}, v23, v21")
        VV("v_and_b32 v23, 7, v20")
        VV("v_and_b32 v24, 8, v20")
        VV("v_lshlrev_b32 v24, 1, v24")
        VV("v_or_b32 v23, v23, v24")
        VV("v_and_b32 v24, 16, v20")
        VV("v_lshrrev_b32 v24, 1, v24")
        VV("v_or_b32 v23, v23, v24")
        VV(f"v_mul_u32_u24 v23, {ROWB}, v23")
        VV(f"v_add_u32 v{vPE2}, v23, v21")
        VV("v_lshrrev_b32 v20, 4, v0")
        VV("v_and_b32 v21, 15, v0")
        VV("v_lshrrev_b32 v22, 2, v0")
        VV("v_and_b32 v22, 3, v22")
        VV("v_and_b32 v23, 3, v0")
        VV("v_mul_u32_u24 v24, 1032, v20")
        VV("v_lshlrev_b32 v25, 7, v22")
        VV("v_add_u32 v24, v24, v25")
        VV("v_lshlrev_b32 v25, 4, v23")
        VV("v_add_u32 v24, v24, v25")
        VV("v_lshrrev_b32 v25, 1, v22")
        VV("v_lshlrev_b32 v25, 6, v25")
        VV(f"v_add_u32 v{vA[0]}, v24, v25")
        VV("v_sub_u32 v25, 64, v25")
        VV(f"v_add_u32 v{vA[1]}, v24, v25")
        VV("v_lshrrev_b32 v24, 1, v20")
        VV("v_lshlrev_b32 v24, 9, v24")
        VV("v_and_b32 v25, 1, v20")
        VV("v_lshlrev_b32 v25, 7, v25")
        VV("v_add_u32 v24, v24, v25")
        VV("v_lshlrev_b32 v25, 5, v22")
        VV("v_add_u32 v24, v24, v25")
        VV("v_lshlrev_b32 v25, 3, v23")
        VV(f"v_add_u32 v{vA2}, v24, v25")
        VV("v_and_b32 v24, 6, v21")
        VV("v_xor_b32 v24, v20, v24")
        VV("v_lshlrev_b32 v24, 4, v24")
        VV("v_lshlrev_b32 v25, 7, v21")
        VV("v_add_u32 v24, v24, v25")
        VV(f"v_add_u32 v{vX[0]}, s{sXRw}, v24")
        VV(f"v_xor_b32 v{vX[1]}, 64, v{vX[0]}")
        VV("v_lshlrev_b32 v24, 5, v21")
        VV("v_lshlrev_b32 v25, 3, v20")
        VV("v_add_u32 v24, v24, v25")
        VV(f"v_add_u32 v24, s{sXRw}, v24")
        VV(f"v_add_u32 v{vX2}, 24576, v24")
        VV(f"v_lshlrev_b32 v{vL16}, 4, v0")
        VV(f"v_lshlrev_b32 v{vL8}, 3, v0")
        VV("v_lshlrev_b32 v24, 4, v20")
        VV(f"v_add_u32 v{vBias}, {BIAS}, v24")
        R(f"s_lshl_b32 s3, s{sC}, 2\ns_add_u32 s3, s3, s{sWv}\ns_lshl_b32 s3, s3, 9\ns_add_u32 s3, s3, {FBASE}")
        VV("v_and_b32 v24, 3, v0")
        VV("v_lshlrev_b32 v24, 7, v24")
        VV(f"v_add_u32 v{vPollOff}, s3, v24")
        VV(f"v_mov_b32 v{vFlagOff}, 0x7fffff00")
        VV(f"v_cmp_eq_u32 vcc, s{sQ}, v0")
        R("s_nop 1")
        VV(f"v_cndmask_b32 v{vFlagOff}, v{vFlagOff}, v{vPollOff}, vcc")
        if not self.EARLYPF: self.pf_patterns()
        self.bias_prologue()
        R(f"s_lshl_b32 s91, s2, 2\ns_add_u32 s91, s91, s{sWv}\ns_lshl_b32 s91, s91, 12")

    def pf_patterns(self):
        R = self.raw; VV = lambda t: self.emit(Ins(t, "V"))
        R(f"s_lshl_b32 s56, s{sQ}, 4")
        VV("v_and_b32 v26, 15, v0")
        VV("v_lshrrev_b32 v27, 4, v0")
        VV("v_add_u32 v26, s56, v26")
        VV("v_lshlrev_b32 v27, 7, v27")
        VV(f"v_mul_u32_u24 v26, {ROWB}, v26")
        VV(f"v_add_u32 v{vPFX}, v26, v27")
        if self.PXW == 2:
            VV("v_lshrrev_b32 v27, 5, v0")
            VV("v_lshlrev_b32 v27, 30, v27")
            VV(f"v_add_u32 v{vPFX}, v{vPFX}, v27")
        for i in self.pfw_pattern(vPFW, False): self.emit(i)
        if self.PX0W:
            VV(f"v_add_u32 v27, {64 - 16 * self.PX0W}, v0")
            VV("v_lshrrev_b32 v27, 6, v27")
            VV("v_lshlrev_b32 v27, 30, v27")
            VV(f"v_add_u32 v27, v{vPFX}, v27")
        if self.T_WG < 190 or self.T_WGS:
            VV("v_lshlrev_b32 v29, 7, v0")
            VV(f"v_lshrrev_b32 v28, {3 if self.T_WGS else 5}, v0")
            VV("v_min_u32 v28, 1, v28")
            VV("v_lshlrev_b32 v28, 30, v28")
            VV("v_add_u32 v29, v28, v29")
            R(f"s_lshl_b32 s91, s2, 2\ns_add_u32 s91, s91, s{sWv}\ns_lshl_b32 s91, s91, 12")
        if self.PX1:
            VV("v_lshrrev_b32 v28, 4, v0")
            VV("v_min_u32 v28, 1, v28")
            VV("v_lshlrev_b32 v28, 30, v28")
            VV(f"v_add_u32 v28, v{vPFX}, v28")
    def bias_prologue(self):
        R = self.raw; VV = lambda t: self.emit(Ins(t, "V"))
        R(f"s_lshl_b32 s3, s{sWv}, 6")
        VV("v_add_u32 v20, s3, v0")
        VV("v_min_u32 v20, 207, v20")
        VV("v_lshrrev_b32 v21, 4, v20")
        VV("v_and_b32 v22, 15, v20")
        VV("v_lshrrev_b32 v23, 1, v21")
        VV("v_lshlrev_b32 v23, 5, v23")
        VV("v_lshrrev_b32 v24, 2, v22")
        VV("v_lshlrev_b32 v24, 3, v24")
        VV("v_add_u32 v23, v23, v24")
        VV("v_and_b32 v24, 1, v21")
        VV("v_lshlrev_b32 v24, 2, v24")
        VV("v_add_u32 v23, v23, v24")
        VV("v_and_b32 v24, 3, v22")
        VV("v_add_u32 v23, v23, v24")
        R(f"s_mul_i32 s3, s{sQ}, 192")
        VV("v_add_u32 v23, s3, v23")
        R(f"s_lshl_b32 s3, s{sQ}, 4\ns_add_u32 s3, s3, 768")
        VV("v_add_u32 v24, s3, v22")
        VV("v_cmp_eq_u32 vcc, 12, v21")
        R("s_nop 1")
        VV("v_cndmask_b32 v23, v23, v24, vcc")
        VV("v_lshlrev_b32 v23, 1, v23")
        VV("v_lshlrev_b32 v22, 2, v20")
        VV(f"v_add_u32 v22, {BIAS}, v22")
    def bias_loads(self):
        for l in range(3):
            self.emit(Ins(f"buffer_load_ushort v{25+l}, v23, {srd(sB_)}, 0 offen offset:{l*ROWB}", "L", vm=("bl", l)))
            self.vm_step[("bl", l)] = -100
    def bias_write(self):
        a = [V(f"v_lshlrev_b32 v{25+l}, 16, v{25+l}", rd=vr(25 + l), wr=vr(25 + l)) for l in range(3)]
        a[0].need_vm = [("bl", 2)]
        a.append(V("v_add_f32 v25, 1.0, v25", rd=vr(25), wr=vr(25)))
        b = [Ins(f"ds_write_b32 v22, v{25+l} offset:{832*l}", "D", rd=vr(22) + vr(25 + l), lg=("bw", l)) for l in range(3)]
        b[0].after = [a[-1]]
        self.last_reader = [b[-1], b[-1]]
        return a, b

    COST = {"S": 4, "W": 4, "X": 4, "SS": 8, "V": 4, "D": 8, "L": 8, "A": 12, "T": 12}
    def fits(self, kinds):
        t = 4
        for i, k in enumerate(kinds):
            if k == "V": t = max(t, 8) + 4
            else: t += self.COST[k]
            if k == "L" and (i + 1 == len(kinds)): t += 4
            if k == "L" and i + 1 < len(kinds) and kinds[i + 1] != "V": return False
            if k in ("A", "T") and (i != 0 or len(kinds) > 1): return False
        return t <= 16

    def first_step(self, l, gi, u=0):
        for f, st in enumerate(self.steps):
            if st["l"] == l and st["gi"] == gi and st["u"] == u: return f
    def last_step(self, l, gi, u):
        r = None
        for f, st in enumerate(self.steps):
            if st["l"] == l and st["gi"] == gi and st["u"] == u: r = f
        return r
    def group_range(self, l, gi):
        fs = [f for f, st in enumerate(self.steps) if st["l"] == l and st["gi"] == gi]
        return fs[0], fs[-1]

    def build_streams(self):
        NL = self.NL
        self.last_reader = [None, None]
        M1 = []
        M2 = []
        E = []
        E2 = []
        M3 = []
        for n, e in enumerate(self.entries):
            es = -100 if e["jf"] < 0 else self.bars[e["jf"]]
            sq = self.dma_entry(n)
            for i_ in sq: i_.dl = min(self.bars[e["jl"]] - self.LATW, max(es, 0) + self.RSL)
            for i_ in sq: i_.hard = self.bars[e["jl"]] - 14
            sq[-1].lines = 8 if e["kind"] == "m" else 32
            M1.append([es, 0, sq, ("bar", e["jf"])])
        G = self.groups[0]
        slot_of = {}
        for gi, (ks_l, sl_l) in enumerate(G):
            for ks, sl in zip(ks_l, sl_l): slot_of[ks] = (gi, sl)
        def first_use(l, ks):
            for f, st in enumerate(self.steps):
                if st["l"] == l and st["ks"] == ks: return f
        self.first_use = first_use
        def slot_free(l, ks, sl):
            f0 = first_use(l, ks)
            r = -100
            for f in range(f0):
                if self.steps[f]["slot"] == sl: r = f
            return r
        self.stage_reads = {}
        stage_free = {}
        DM = []
        rd_earliest = {}
        for ks in range(26):
            gi, sl = slot_of[ks]
            rd_earliest[ks] = slot_free(0, ks, sl) + 1 if slot_free(0, ks, sl) >= 0 else -100
        cur = -100
        for ks in range(26):
            cur = max(cur, rd_earliest[ks]); rd_earliest[ks] = cur
        self.rd_earliest = rd_earliest
        self.slot_of0 = slot_of
        for line in range(13):
            seq = self.stage_dma(line)
            if line >= 3: seq[0].need_lg = [("xs", 2 * (line - 3) + 1, 3)]
            if line < self.PRO_X: es = -100
            else:
                es = self.T_STG0 + self.T_STGD * (line - self.PRO_X)
                k = 0
                for i_ in seq:
                    i_.earliest = int(es + self.PSP * k); i_.dl = i_.earliest + 8
                    if self.FCAP: i_.dl = first_use(0, min(2 * line, 25)) - self.STDL
                    if i_.kind == "A": k += 1
            M3.append([es, 1, seq, None])
        for u in (0, 3, 1, 2):
            seq = self.reload_dma(u)
            if u < 3: seq[0 if u else 1].need_lg = [("xs", 2 * (10 + u) + 1, 3)]
            es = self.T_RL[u]; k = 0
            for i_ in seq:
                i_.earliest = int(es + self.PSP * k); i_.dl = i_.earliest + 8
                if i_.kind == "A": k += 1
            M3.append([es, 1, seq, None])
        for ks in range(26):
            gi, sl = slot_of[ks]
            M2.append([rd_earliest[ks], 0, self.stage_read(ks, sl), None])
        for l in range(1, NL):
            base = 4 * (l - 1)
            def cls(ks):
                if ks >= 24: return 4
                return [1, 2, 3, 3, 4, 4][ks % 6]
            polled = set()
            lst = []
            for gi, (ks_l, sl_l) in enumerate(self.groups[l]):
                for ks, sl in zip(ks_l, sl_l):
                    lst.append((gi, ks, sl))
            gb0, gb1 = self.group_range(l - 1, 4)
            l0 = gb1 + 1
            exp = {1: l0 + self.T_U0, 2: l0 + self.T_U0B, 3: l0 + self.T_U1, 4: l0 + self.T_U2}
            items = []
            for gi, ks, sl in lst:
                es = max(slot_free(l, ks, sl) + 1, exp[cls(ks)], first_use(l, ks) - (self.XLEADG[gi] or self.XLEAD))
                items.append([es, cls(ks), first_use(l, ks), ks, sl])
            items.sort(key=lambda it: (it[0], it[2]))
            npaced = 0
            for es, c, gi, ks, sl in items:
                seq = []
                if c not in polled:
                    polled.add(c)
                    ld, chk = self.flag_poll(base + c)
                    ld.lines = 4; ld.dl = es - self.T_POLL
                    if self.PHARD: ld.hard = es - self.T_POLL
                    M2.append([es - self.T_POLL, 2, [ld], None])
                    seq += chk
                xl = self.xload(l, ks, sl)
                for i_ in xl:
                    i_.dl = first_use(l, ks) - (self.LATXB if ks in (18, 1, 7) else self.LATX)
                    if i_.kind == "L": i_.lines = 8 if ks < 24 else self.LX2
                    if i_.kind == "L" and self.XPACE and npaced < self.XPN:
                        i_.earliest = int(l0 + self.T_U0 + self.XPACE * npaced); i_.dl = max(i_.earliest + 1, first_use(l, ks) - self.LATX2); npaced += 1
                seq += xl
                M2.append([es, 3, seq, None])
        if NL > 1 and self.T_PWL:
            E.append([self.T_PAT, 0, self.pfw_pattern(vPFX, True), ("pat",)])
        a, b = self.bias_write()
        E.append([self.T_BW, 0, a, None]); E2.append([self.T_BW, 0, b, ("bw",)])
        for l in range(NL):
            g3 = 2
            for u in range(4):
                lastf = self.last_step(l, g3, u)
                a, b = self.bias_unit(l, u)
                E.append([lastf + 2, 1, a, ("bias", l, u)]); E2.append([lastf + 2 - self.E2LEAD, 1, b, None])
            if l == NL - 1:
                E.append([self.group_range(l, 4)[0] + 8, 0, self.out_patterns(), ("outpat",)])
            for u in ([0, 1, 3, 2] if (l == NL - 1 and self.TSPLIT) else range(4)):
                lastf = self.last_step(l, 4, u)
                a, b = self.epi_unit(l, u)
                if l == NL - 1 and u == 2 and self.TSPLIT:
                    for i_ in a[len(a) // 2:]: i_.earliest = lastf + 2
                    lastf = self.tsplit_step
                E.append([lastf + 2, 0, a, None]); E2.append([lastf + 2 - self.E2LEAD, 0, b, ("epi", l, u)])
        if self.ITLB:
            for k in range(2, 21):
                es = max(0, int((4096 * k - 4096 - self.ITLB) / 77))
                if es < self.steps[-1]["e"] * 0 + len(self.steps) - 20:
                    E2.append([es, 5, [Ins(f"s_buffer_load_dword s100, s[64:67], {4096 * k}", "S", lg=None, note="smem")], None])
        PFs = self.pf_streams()
        E.append([self.T_PW0[-1] + 2, 0, self.pfg_pat, None])
        M1.sort(key=lambda x: (x[0], x[1])); M2.sort(key=lambda x: (x[0], x[1])); E.sort(key=lambda x: (x[0], x[1]))
        flat = lambda Q: [(max(es, ins.earliest) if ins.earliest is not None else es, ins, tag, idx == len(seq) - 1) for es, _, seq, tag in Q for idx, ins in enumerate(seq)]
        M3.sort(key=lambda x: (x[0], x[1]))
        E2.sort(key=lambda x: (x[0], x[1]))
        self.PF = flat(PFs)
        self.M1, self.M2, self.E, self.M3, self.E2 = flat(M1), flat(M2), flat(E), flat(M3), flat(E2)

    def try_emit_from(self, Q, f, gap_kinds, allow, post_w):
        if not Q: return False
        es, ins, tag, lastflag = Q[0]
        if es > f: return False
        if isinstance(tag, tuple) and tag[0] == "bar" and tag[1] >= 0 and tag[1] > self.bar_passed: return False
        if ins.kind not in allow: return False
        if ins.note == 'm0' and self.m0_owner is not None: return False
        for a in ins.after:
            if id(a) not in self.issue_step: return False
        for t in ins.need_vm:
            if t not in self.vm_pos: return False
        for t in ins.need_lg:
            if t not in self.lg_pos: return False
        nv, nl = self.wait_for(ins.need_vm, ins.need_lg)
        needw = nv is not None or nl is not None
        kinds = gap_kinds + (["W"] if needw else []) + [ins.kind] + post_w
        if not self.fits(kinds):
            if needw and self.fits(gap_kinds + ["W"] + post_w) and self.wait_ok(ins, f):
                self.emit_wait(ins.need_vm, ins.need_lg); gap_kinds.append("W"); return True
            return False
        if needw and not self.wait_ok(ins, f): return False
        if not self.hazard_ok(ins): return False
        if needw:
            self.emit_wait(ins.need_vm, ins.need_lg); gap_kinds.append("W")
        self.emit(ins); gap_kinds.append(ins.kind)
        if ins.note == 'm0': self.m0_owner = id(Q)
        if ins.kind == 'A' and ins.note != "m0keep": self.m0_owner = None
        self.issue_step[id(ins)] = f
        if ins.vm is not None: self.vm_step[ins.vm] = f
        if ins.kind in ("A", "L", "T") and self.FCAP: self.fifo_push(ins, f)
        if ins.lg is not None: self.lg_step[ins.lg] = f
        Q.pop(0)
        if isinstance(tag, tuple) and tag[0] == "flag": self.flag_step[tag[1]] = f
        if isinstance(tag, tuple) and tag[0] == "pat":
            assert ("pf", "x", self.PX_L[-1]) in self.vm_pos, "prefetch pattern overwrites vPX before reload issued"
            self.pat_done = lastflag
        if ins.vm is not None and ins.vm[0] == "pf" and ins.vm[1] == "w" and ins.vm[2] > 0: assert self.pat_done and ("rl", 3, 1) in self.vm_pos
        if isinstance(tag, tuple) and tag[0] == "outpat":
            assert not any(i.kind == "L" and i.vm[0] == "fp" for _, i, _, _ in self.M2) and not any("v_cmp_gt_u32 vcc" in i.text for _, i, _, _ in self.M2) and not self.F
        if ins.vm is not None and ins.vm[0] == "xo" and ins.vm[2] == 0 and ins.vm[3] == 3 and ins.vm[1] < self.NL - 1:
            l_ = ins.vm[1]; val = 4 * l_ + 1
            self.F += [(f, i_, ("flag", val), False) for i_ in self.flag_set(val, [("xo", l_, 0, i) for i in range(4)])]
        if lastflag and isinstance(tag, tuple) and tag[0] == "epi":
            self.epi_done(tag, f)
        if lastflag and isinstance(tag, tuple) and tag[0] == "bias":
            self.bias_done[(tag[1], tag[2])] = f
        return True
    def fifo_lat(self, ins, f):
        t = ins.vm
        if t is None: return f + self.LD
        if t[0] == "pf":
            if t[1] in ("x", "g"): return f + self.LH
            if t[1] == "w" and t[2] == 0:
                gd = [self.fdone.get(("pf", "g", k)) for k in range(len(self.T_WGS or []))]
                if gd and all(x is not None and x <= f for x in gd): return f + self.LM
                return f + self.LH
            return f + self.LM
        if t[0] == "st":
            cov = [a for k_, a in enumerate(self.PX_L) if a <= t[1] <= a + (1 if a in self.PX1 else self.PX0W if (k_ == 0 and self.PX0W) else self.PXW) - 1 and ("pf", "x", a) in self.fdone]
            if not cov: return f + self.LH
            return max(f, min(self.fdone[("pf", "x", a)] for a in cov)) + self.LD
        if t[0] == "w" and self.entries[t[1]]["l"] == 0:
            j = self.entries[t[1]]["ks"][-1] // 4
            d = self.fdone.get(("pf", "w", 0, j))
            if d is None: return f + self.LH
            return max(f, d) + self.LD
        if t[0] in ("fb", "bl"): return f + self.LH
        return f + self.LD
    def fifo_push(self, ins, f):
        d = max(self.fifo_lat(ins, f), self.fifo[-1][1] if self.fifo else -1000)
        self.fifo.append((ins.lines, d))
        if ins.vm is not None: self.fdone[ins.vm] = d
    def fifo_ok(self, ins, f):
        occ = sum(n for n, d in self.fifo if d > f)
        return occ + ins.lines <= self.FCAP
    def wait_ok(self, ins, f):
        if self.FCAP and f < self.FEND:
            for t in ins.need_vm:
                if t[0] == "st" and self.vm_pos[t] >= self.vm_done and f < self.fdone.get(t, -1000): return False
        for t in ins.need_vm:
            if self.FCAP and f < self.FEND and t[0] == "st": continue
            if self.vm_pos[t] >= self.vm_done and f - self.vm_step.get(t, -1000) < (ins.minvm or self.MIN_VM): return False
        for t in ins.need_lg:
            if self.lg_pos[t] >= self.lg_done and f - self.lg_step.get(t, -1000) < self.MIN_LG: return False
        return True
    def hazard_ok(self, ins):
        if ins.kind in ("V", "D", "L"):
            regs = set(ins.rd) | set(ins.wr) if ins.kind == "V" else set(ins.wr)
            n = 0
            for prev in reversed(self.out):
                if n >= 9: break
                if prev.kind == "M" and (set(prev.wr) & regs): return False
                n += 1 if prev.kind != "SS" else 2
        if ins.kind == "V":
            n = 0
            for prev in reversed(self.out):
                if n >= 2: break
                if prev.kind == "T" and (set(prev.rd) & set(ins.wr)): return False
                n += 1
        if ins.kind == "V" and not getattr(self, "drain", False):
            f, g = self.cur
            nxt = []
            for d in (1, 2):
                gg = g + d; ff = f + gg // 4; gg %= 4
                if ff < self.nsteps: nxt.append(self.mfma(ff, gg))
            for m in nxt:
                if set(m.rd) & set(ins.wr): return False
        if ins.kind == "A":
            if self.out and self.out[-1].note == "m0": return False
        return True
    def epi_done(self, tag, f):
        _, l, u = tag
        self.epi_fin[(l, u)] = f
        if l == self.NL - 1: return
        n = 8 if u < 3 else 4
        tags = [("xo", l, u, i) for i in range(n)]
        val = None
        if u == 0: val = 4 * l + 2
        elif u == 1: val = 4 * l + 3
        elif u == 3: val = 4 * l + 4; tags = tags + [("xo", l, 2, i) for i in range(8)]
        if val is not None:
            self.F += [(f, ins, ("flag", val), False) for ins in self.flag_set(val, tags)]

    def schedule(self):
        self.issue_step = {}; self.vm_step = {}; self.lg_step = {}
        self.pending = []; self.epi_fin = {}; self.bias_done = {}
        self.bar_passed = -1
        self.F = []; self.pat_done = False; self.B = 0.0; self.Bhist = []
        self.fifo = []; self.fdone = {}
        self.m0_owner = None
        N = self.nsteps
        barat = {P: j for j, P in enumerate(self.bars)}
        need_at = {}
        for n, e in enumerate(self.entries): need_at.setdefault(e["jl"], []).append(("w", n))
        self.pro_issue()
        self.emit_wait(need_at.get(0, []), [])
        self.emit(Ins("s_barrier", "X")); self.bar_passed = 0
        self.pstamp()
        for f in range(self.LA):
            for r in self.tr_reads(f): self.emit(r); self.lg_step[r.lg] = -10
        if self.stamps: self.stamp()
        if self.SPAN: self.raw("s_memrealtime s[78:79]\ns_waitcnt lgkmcnt(0)\ns_mov_b32 s79, s78"); self.lg_done = len(self.lgq)
        self.epi_started = set()
        for f in range(N):
            st = self.steps[f]
            if f == 0:
                nv, nl = self.step_needs(0)
                self.emit_wait(nv, nl)
            if st["l"] > 0 and (st["l"], st["u"]) not in self.epi_started:
                self.epi_started.add((st["l"], st["u"]))
                assert (st["l"] - 1, st["u"]) in self.epi_fin, ("epilogue late", st["l"] - 1, st["u"], f, self.epi_fin)
            if self.PROL and f == 0: self.pstamp()
            if self.prof and not self.PROL and f >= self.PS and (f - self.PS) % self.PI == 0 and (f - self.PS) // self.PI <= 60:
                k = (f - self.PS) // self.PI
                if k > 0: self.emit(Ins(f"v_writelane_b32 v0, s86, {k}", "V"))
                self.emit(Ins(("s_memrealtime" if self.PRT else "s_memtime") + " s[86:87]", "S"))
                self.prof_k = k
            nL = 0; dynbar = False; defer_w = None
            for g in range(4):
                self.emit(self.mfma(f, g))
                self.cur = (f, g)
                kinds = []
                if g < 2 and f + self.LA < N:
                    r = self.tr_reads(f + self.LA)[g]
                    if g == 0:
                        pass
                    self.emit(r); self.lg_step[r.lg] = f; kinds.append("D")
                if g == 1 and f + 1 < N:
                    nv, nl = self.step_needs(f + 1)
                    if f in barat: nv = nv + need_at.get(barat[f], [])
                    for val, tags in self.pending:
                        if all(f - self.vm_step[t] >= self.T_ST for t in tags):
                            nv = nv + tags; dynbar = True
                    vready = bool(self.E) and self.E[0][1].kind == "V" and self.E[0][0] <= f
                    if self.WDEF and f >= self.WDEF0 and vready and not (f in barat or dynbar): defer_w = (nv, nl)
                    elif self.emit_wait(nv, nl): kinds.append("W")
                if defer_w is not None and g >= 2:
                    vmready = any(Q and Q[0][0] <= f and (Q[0][1].kind in ("A", "L", "T") or Q[0][1].note == "m0") for Q in (self.F, self.M1, self.M2, self.PF, self.M3, self.E2))
                    if g == 3 or not vmready:
                        if self.emit_wait(*defer_w): kinds.append("W")
                        defer_w = None
                if g == 2 and (f in barat or dynbar):
                    self.emit(Ins("s_barrier", "X")); kinds.append("X")
                    if f in barat: self.bar_passed = barat[f]
                    for val, tags in list(self.pending):
                        if all(self.vm_pos[t] < self.vm_done for t in tags):
                            self.pending.remove((val, tags))
                            seq = self.flag_set(val, tags)
                            self.F += [(f, ins, None, False) for ins in seq]
                            self.flag_step[val] = f
                self.B = max(0.0, self.B - 16 * (self.ETA if f > 215 else self.ETA0))
                progress = True
                allk = ("S", "SS", "V", "A", "L", "T", "D")
                order = [self.F, self.M1, self.M2, self.PF, self.M3, self.E2, self.E]
                while progress:
                    progress = False
                    cands = []
                    for qi, Q in enumerate(order):
                        if Q and (Q[0][1].kind in ("A", "L", "T") or Q[0][1].note == "m0") and Q[0][0] <= f:
                            ins = Q[0][1]
                            dl = ins.dl if ins.dl is not None else Q[0][0] + 10
                            cands.append((dl, qi, Q))
                    cands.sort(key=lambda c: (c[0], c[1]))
                    for dl, qi, Q in cands:
                        ins = Q[0][1]
                        if f in self.QW and Q is not self.F and not (getattr(ins, "hard", None) is not None and ins.hard <= f) and not (dl <= f - 6) and self.m0_owner != id(Q): continue
                        th = self.TH_URG if dl <= f + self.URG else self.TH
                        if ins.note == "m0": th += 16
                        hard = getattr(ins, "hard", None)
                        if self.BLK and ins.kind == "T" and ins.vm is not None and ins.vm[0] == "xo" and any(338 * l_ + self.BLK0 <= f < 338 * l_ + self.BLK0 + self.BLK for l_ in range(1, self.NL)): continue
                        if self.FCAP and f < self.FEND:
                            vi = ins
                            if vi.kind not in ("A", "L", "T"):
                                vi = next(i_[1] for i_ in Q if i_[1].kind in ("A", "L", "T"))
                            own = self.m0_owner == id(Q)
                            if not own and Q is self.M3 and vi.vm is not None and vi.vm[0] == "st":
                                if self.fifo_lat(vi, f) > f + self.LD: continue
                                nx = next((i_ for i_ in self.PF[:3] if i_[1].kind == "L"), None)
                                nx = next((i_ for i_ in self.PF[:12] if i_[1].kind == "L" and i_[1].vm[1] == "x"), None)
                                if nx is not None and nx[0] <= f and self.vm_pos.get(("st", vi.vm[1], 0)) is None: continue
                            if Q is self.PF and vi.vm is not None and vi.vm[1] == "x":
                                hd = next((i_[1] for i_ in self.M3[:4] if i_[1].kind == "A"), None)
                                if hd is not None and hd.vm[0] == "st" and ("st", hd.vm[1], 0) in self.vm_pos: continue
                            need = vi.lines * (2 if vi.note == "m0keep" else 1)
                            if Q is self.PF and self.PFREE and vi.vm[1] != "x" or (Q is self.PF and vi.vm[1] == "x" and vi.vm[2] in self.PX1): need = -1000
                            if not own and sum(n for n, d in self.fifo if d > f) + need > self.FCAP and not (hard is not None and hard <= f): continue
                            if not own and need > 0 and self.B > self.FTH and not (hard is not None and hard <= f): continue
                        elif self.B > th and not (hard is not None and hard <= f): continue
                        if Q is self.PF and g < 2: continue
                        if Q is self.M2 and ins.kind == "L" and ins.vm[0] == "x" and f > 215 and nL + ins.lines > self.MAXLN and dl > f + self.URG2: continue
                        if self.try_emit_from(Q, f, kinds, allk, []):
                            if ins.kind in ("A", "L", "T"): self.B += ins.lines * (2.5 if (self.FCAP and f < self.FEND and ins.vm is not None and ins.vm[0] == "pf") else self.CPL)
                            if Q is self.M2 and ins.kind == "L": nL += ins.lines
                            progress = True; break
                    if progress: continue
                    for Q in order:
                        if f in self.QW and Q is not self.F and not (Q and Q[0][1].kind in ("A", "L", "T") and self.m0_owner == id(Q)): continue
                        if Q and (Q[0][1].kind in ("A", "L", "T") or Q[0][1].note == "m0"): continue
                        if self.try_emit_from(Q, f, kinds, allk, []):
                            progress = True; break
                self.Bhist.append(self.B)
            if self.stamps and f + 1 < N and (self.steps[f + 1]["l"] != st["l"] or (self.steps[f + 1]["gi"] == 4 and st["gi"] == 3)):
                self.stamp()
        self.drain = True
        guard = 0
        assert not self.PF
        while self.M1 or self.M2 or self.E or self.M3 or self.F or self.E2:
            guard += 1
            assert guard < 100000
            done = False
            for Q in (self.F, self.E2, self.E, self.M2, self.M3, self.M1):
                if Q:
                    es, ins, tag, lastflag = Q[0]
                    if any(id(a) not in self.issue_step for a in ins.after): continue
                    if any(t not in self.lg_pos for t in ins.need_lg): continue
                    while not self.hazard_ok(ins): self.emit(Ins("s_nop 0", "S"))
                    self.emit_wait(ins.need_vm, ins.need_lg)
                    while not self.hazard_ok(ins): self.emit(Ins("s_nop 0", "S"))
                    self.emit(ins); Q.pop(0); self.issue_step[id(ins)] = N
                    if ins.vm is not None: self.vm_step[ins.vm] = N
                    if lastflag and isinstance(tag, tuple) and tag[0] == "epi": self.epi_done(tag, N)
                    done = True; break
            assert done
        if self.stamps: self.stamp()
        if self.prof:
            k = (self.prof_k + 1) if not self.PROL else 40
            self.raw(f"""v_writelane_b32 v0, s86, {k}
s_waitcnt vmcnt(0)
{"s_memrealtime" if self.PRT else "s_memtime"} s[86:87]
s_waitcnt lgkmcnt(0)
s_nop 4""")
            self.emit(Ins("v_writelane_b32 v0, s88, 0", "V"))
            if self.PROL:
                for kk in range(self.prol_k):
                    self.emit(Ins(f"v_writelane_b32 v0, s{[60, 62, 78, 80, 82, 100, 100, 100][kk]}, {kk + 1}", "V"))
            if k + 1 < 64: self.emit(Ins(f"v_writelane_b32 v0, s86, {k+1}", "V"))
            self.emit(Ins(f"v_writelane_b32 v0, s90, 63", "V"))
            self.raw(f"""s_lshl_b32 s3, s2, 2
s_add_u32 s3, s3, s{sWv}
s_lshl_b32 s3, s3, 8""")
            self.emit(Ins(f"v_lshrrev_b32 v2, 2, v{vL16}", "V"))
            self.raw("s_nop 4")
            self.emit(Ins(f"buffer_store_dword v0, v2, {srd(sWS_)}, s3 offen", "T"))
            if self.DBGT:
                self.raw(f"""s_load_dwordx2 s[4:5], s[0:1], 32
s_waitcnt lgkmcnt(0)
s_and_b32 s5, s5, 0xffff
s_mov_b32 s6, 64
s_mov_b32 s7, 0x20000""")
                self.emit(Ins("v_subrev_u32 v0, s88, v0", "V"))
                self.raw(f"s_cmp_eq_u32 s{sWv}, 0\ns_cbranch_scc0 Lnodbg")
                self.emit(Ins("buffer_atomic_add v0, v2, s[4:7], 0 offen\nLnodbg:", "T"))

    def step_needs(self, f):
        st = self.steps[f]
        nl = [("wf", f, 0), ("wf", f, 1)]
        nv = []
        for mt in range(4):
            a, b = self.xtags(st["l"], st["ks"], mt)
            for t in a:
                assert t in self.vm_pos, ("x load not issued before use", t, f)
            for t in b:
                assert t in self.lg_pos, ("stage read not issued before use", t, f)
            nv += a; nl += b
        return nv, nl

    def pstamp(self):
        if self.prof and self.PROL:
            k = self.prol_k; self.prol_k += 1
            r = [60, 62, 78, 80, 82, 100, 100, 100][k]
            self.emit(Ins(f"s_memtime s[{r}:{r+1}]", "S"))
    def pro_issue(self):
        def take(Q, pred):
            out = []
            while Q and pred(Q[0]): out.append(Q.pop(0))
            return out
        items = take(self.M1, lambda it: it[0] <= -50) + take(self.M3, lambda it: it[0] <= -50)
        seqs = []; cur = []
        for it in items:
            cur.append(it[1])
            if it[1].kind == "A": seqs.append(cur); cur = []
        wseq = [s for s in seqs if s[-1].vm[0] == "w"]; xseq = [s for s in seqs if s[-1].vm[0] == "st"]
        nW, nX = self.PRO_W, self.PRO_X
        assert 4 * nW >= 12
        rest_w = wseq[nW:]; rest_x = xseq[8 * nX:]
        self.M1[0:0] = [(-40, ins, ("bar", -1), False) for s in rest_w for ins in s]
        self.M3[0:0] = [(-40, ins, None, False) for s in rest_x for ins in s]
        def emit_seqs(L):
            for s in L:
                for k, ins in enumerate(s):
                    if ins.kind == "A" and self.out[-1].note == "m0": self.emit(Ins("s_nop 0", "S"))
                    self.emit(ins)
                    if ins.vm is not None: self.vm_step[ins.vm] = -100
                    if ins.vm is not None: self.fifo_push(ins, self.PRO_T)
        for tok in self.PORD:
            if tok.startswith("pf"):
                lim = int(tok[2:])
                while self.PF and self.PF[0][0] <= lim:
                    es, ins, tag, lf = self.PF.pop(0)
                    self.emit(ins); self.issue_step[id(ins)] = -100
                    if ins.vm is not None: self.vm_step[ins.vm] = -100
                    if ins.vm is not None: self.fifo_push(ins, self.PRO_T)
            elif tok[0] == "x": n = int(tok[1:]); assert n < nX; emit_seqs(xseq[8 * n:8 * n + 8])
            elif tok == "wA": emit_seqs(wseq[0:3])
            elif tok == "wB": emit_seqs(wseq[3:nW])
            elif tok == "p2": self.prologue2()
            elif tok == "fb":
                self.emit(Ins(f"buffer_load_dword v{vBase}, v{vPollOff}, {srd(sWS_)}, 0 offen sc1", "L", vm=("fb",)))
                self.vm_step[("fb",)] = -100
                self.bias_loads()
            elif tok == "st": self.pstamp()
            elif tok.startswith("wait"):
                n = int(tok[4:]); self.emit(Ins(f"s_waitcnt vmcnt({n})", "W")); self.vm_done = max(self.vm_done, len(self.vmq) - n)
            else: assert 0, tok
        self.pstamp()
        n = 0
        while self.M2 and n < 8:
            es, ins, tag, lf = self.M2[0]
            assert ins.kind == "D"
            self.emit_wait(ins.need_vm, ins.need_lg)
            self.emit(ins); self.M2.pop(0); n += 1
            if ins.lg is not None: self.lg_step[ins.lg] = -100
        self.pstamp()

    def pf_streams(self):
        PF = []
        def ld(pat, dst, base, soff, tag, pre=(), off=0):
            i = Ins(f"buffer_load_dword v{dst}, v{pat}, {srd(base)}, {soff} offen" + (f" offset:{off}" if off else ""), "L", rd=vr(pat), wr=vr(dst), vm=tag)
            i.lines = {"x": 16 * self.PXW, "w": 16, "g": 32}[tag[1]]
            return list(pre) + [i]
        t = 54
        for k, (a, es) in enumerate(zip(self.PX_L, self.T_PX)):
            PF.append([es, 0, ld(27 if (k == 0 and self.PX0W) else vPFX, vPoll, sX0_, f"s{t}", ("pf", "x", a), [S(f"s_add_u32 s{t}, s{sRow}, {128 * a}")]), None])
            if k == 0 and self.PX0W: PF[-1][2][-1].lines = 16 * self.PX0W; assert es <= -90
            if a in self.PX1:
                PF[-1] = [es, 0, ld(28, vPoll, sX0_, f"s{t}", ("pf", "x", a), [S(f"s_add_u32 s{t}, s{sRow}, {128 * a}")]), None]
                PF[-1][2][-1].lines = 16; assert es < self.T_PAT - 5
        if self.CPF:
            for k, es in enumerate(self.T_CPF):
                i = Ins(f"buffer_load_dword v{vPoll if es < 200 else vPXE}, off, s[64:67], s{t}", "L", vm=("pf", "c", k)); i.lines = 1
                PF.append([es, 2, [S(f"s_add_u32 s{t}, s72, {self.CPS * k}"), i], None])
            if self.T_CPG is not None:
                i = Ins(f"buffer_load_dword v{vPoll}, off, s[64:67], s{t}", "L", vm=("pf", "cg", 0)); i.lines = 1
                PF.append([self.T_CPG, 3, [S(f"s_lshl_b32 s{t}, s2, 2"), S(f"s_add_u32 s{t}, s{t}, s{sWv}"), S(f"s_lshl_b32 s{t}, s{t}, 7"), i], None])
        for j, es in enumerate(self.T_PW0):
            PF.append([es, 1, ld(vPFW, vPoll, sW_, f"s{t}", ("pf", "w", 0, j), [S(f"s_mov_b32 s{t}, {4 * j * KSB}")]), None])
        lastw0 = PF[-1][2][-1]
        t0 = vT[0]
        pat = [V(f"v_lshlrev_b32 v{vPFG}, 3, v{vL16}", rd=vr(vL16), wr=vr(vPFG)),
               V(f"v_lshrrev_b32 v{t0}, 9, v{vL16}", rd=vr(vL16), wr=vr(t0)),
               V(f"v_lshlrev_b32 v{t0}, 30, v{t0}", rd=vr(t0), wr=vr(t0)),
               V(f"v_add_u32 v{vPFG}, v{vPFG}, v{t0}", rd=vr(t0) + vr(vPFG), wr=vr(vPFG))]
        pat[0].after = [lastw0]
        if self.T_WGS:
            self.pfg_pat = []
            for k, es in enumerate(self.T_WGS):
                gi_ = ld(29, vPoll, sW_, f"s{t}", ("pf", "g", k), [S(f"s_add_u32 s{t}, s91, {1024 * k}")])
                gi_[-1].lines = 8
                PF.append([es, 1, gi_, None])
            g = None
        elif self.T_WG < 190:
            self.pfg_pat = []
            g = ld(29, vPoll, sW_, "s91", ("pf", "g"))
        else:
            self.pfg_pat = pat
            g = ld(vPFG, vPoll, sW_, "s91", ("pf", "g"))
            g[-1].after = [pat[-1]]
        if g is not None: PF.append([self.T_WG, 0, g, None])
        if self.NL > 1:
            pass
            for l in range(1, self.NL):
                l0 = self.group_range(l - 1, 4)[1] + 1
                for j, dt in enumerate(self.T_PWL):
                    PF.append([l0 + dt, 1, ld(vPFX, vPXE, sW_, f"s{t}", ("pf", "w", l, j), [S(f"s_mov_b32 s{t}, {(0 if self.NOW else l) * LSTRIDE + j * KSB}")]), None])
        if self.FB_T is not None:
            i = Ins(f"buffer_load_dword v{vBase}, v{vPollOff}, {srd(sWS_)}, 0 offen sc1", "L", vm=("fb",)); i.lines = 4
            seq = [i]
            for l in range(3):
                b = Ins(f"buffer_load_ushort v{25+l}, v23, {srd(sB_)}, 0 offen offset:{l*ROWB}", "L", vm=("bl", l)); b.lines = 4; seq.append(b)
            PF.append([self.FB_T, 2, seq, None])
        PF.sort(key=lambda x: (x[0], x[1]))
        return PF
    def pfw_pattern(self, dst, perm):
        t0, t1 = vT
        seq = [V(f"v_lshrrev_b32 v{t0}, 6, v{vL16}", rd=vr(vL16), wr=vr(t0)),
               V(f"v_mul_u32_u24 v{dst}, {(6 if perm else 1) * KSB}, v{t0}", rd=vr(t0), wr=vr(dst)),
               V(f"v_lshrrev_b32 v{t0}, 2, v{t0}", rd=vr(t0), wr=vr(t0)),
               V(f"v_min_u32 v{t0}, 1, v{t0}", rd=vr(t0), wr=vr(t0)),
               V(f"v_lshlrev_b32 v{t0}, 30, v{t0}", rd=vr(t0), wr=vr(t0)),
               V(f"v_and_b32 v{dst}, 0x3fffffff, v{dst}", rd=vr(dst), wr=vr(dst)),
               V(f"v_add_u32 v{dst}, v{dst}, v{t0}", rd=vr(t0) + vr(dst), wr=vr(dst)),
               V(f"v_lshrrev_b32 v{t0}, 4, v{vL16}", rd=vr(vL16), wr=vr(t0)),
               V(f"v_and_b32 v{t0}, 3, v{t0}", rd=vr(t0), wr=vr(t0)),
               V(f"v_lshlrev_b32 v{t1}, 7, v{t0}", rd=vr(t0), wr=vr(t1)),
               V(f"v_add_u32 v{t1}, s{sWq}, v{t1}", rd=vr(t1), wr=vr(t1)),
               V(f"v_cmp_eq_u32 vcc, 3, v{t0}", rd=vr(t0)),
               V(f"v_mov_b32 v{t0}, 0x600", wr=vr(t0)),
               V(f"v_cndmask_b32 v{t1}, v{t1}, v{t0}, vcc", rd=vr(t0) + vr(t1), wr=vr(t1)),
               V(f"v_add_u32 v{dst}, v{dst}, v{t1}", rd=vr(dst) + vr(t1), wr=vr(dst)),
               V(f"v_add_u32 v{dst}, s55, v{dst}", rd=vr(dst), wr=vr(dst))]
        return seq

    def stamp(self):
        k = self.nstamp; self.nstamp += 1
        if k < 8:
            self.emit(Ins(f"s_memtime s[{86 + 2*k}:{87 + 2*k}]", "S"))

    def check(self):
        out = self.out
        errs = 0
        for i, ins in enumerate(out):
            if ins.kind == "M":
                n = 0
                for prev in reversed(out[max(0, i - 4):i]):
                    if n >= 2: break
                    if prev.kind == "V" and set(prev.wr) & set(ins.rd):
                        print("HAZARD V->M", i, prev.text, "|", ins.text, file=sys.stderr); errs += 1
                    n += 1
            if ins.kind == "V":
                n = 0
                for prev in reversed(out[max(0, i - 10):i]):
                    if n >= 8: break
                    if prev.kind == "M" and set(prev.wr) & (set(ins.rd) | set(ins.wr)):
                        print("HAZARD M->V", i, prev.text, "|", ins.text, file=sys.stderr); errs += 1
                    n += 1
        return errs

    def text(self):
        NL = self.NL
        L = []
        L.append("""; Kernarg layout for this problem (48 bytes, ptrs only, base s[0:1]):
;   offset   0: d_in[0] x0  shape=(16384, 832) dtype=bfloat16 strides=(1664, 2) contiguous=True
;   offset   8: d_in[1] ws  shape=(3, 832, 832) dtype=bfloat16 strides=(1384448, 1664, 2) contiguous=True
;   offset  16: d_in[2] bs  shape=(3, 832) dtype=bfloat16 strides=(1664, 2) contiguous=True
;   offset  24: d_out     shape=(16384, 832) dtype=bfloat16 (2 bytes/elem)
;   offset  32: d_debug   256 bytes
;   offset  40: d_ws      268435456 bytes workspace
; cluster of 4 workgroups = 256 rows; each workgroup owns 208 output features; layers exchange x through d_ws.""")
        L.append("; @launch grid=(256,1,1) block=(256,1,1) lds=163840")
        L.append('.amdgcn_target "amdgcn-amd-amdhsa--gfx950"')
        L.append(".text")
        L.append(f".globl {KNAME}\n.p2align {self.ALIGN}\n.type {KNAME},@function\n{KNAME}:")
        for ins in self.out: L.append("  " + ins.text)
        if self.stamps:
            L.append("  s_memtime s[84:85]\n  s_memrealtime s[78:79]\n  s_waitcnt lgkmcnt(0)")
            L.append(f"  s_lshl_b32 s3, s2, 7\n  v_mov_b32 v2, s3\n  v_cmp_eq_u32 vcc, 0, v{vL16}\n  s_cmp_eq_u32 s{sWv}, 0\n  s_cbranch_scc0 Lnost\n  s_and_saveexec_b64 s[4:5], vcc")
            regs = [80, 82, 78, 84] + [86 + 2 * k for k in range(min(self.nstamp, 8))]
            for i, s in enumerate(regs):
                L.append(f"  v_mov_b32 v6, s{s}\n  v_mov_b32 v7, s{s+1}\n  buffer_store_dwordx2 v[6:7], v2, {srd(sWS_)}, 0 offen offset:{8*i}\n  s_nop 1")
            L.append("Lnost:")
        if self.SPAN:
            L.append(f"""  s_waitcnt vmcnt(0)
  s_memrealtime s[86:87]
  s_load_dwordx2 s[4:5], s[0:1], 32
  s_waitcnt lgkmcnt(0)
  s_and_b32 s5, s5, 0xffff
  s_mov_b32 s6, 256
  s_mov_b32 s7, 0x20000
  s_not_b32 s3, s88
  s_not_b32 s87, s86
  v_mov_b32 v2, s3
  v_writelane_b32 v2, s86, 1
  v_writelane_b32 v2, s88, 2
  v_writelane_b32 v2, s87, 3
  v_writelane_b32 v2, s79, 4
  s_not_b32 s79, s79
  v_writelane_b32 v2, s79, 5
  v_lshrrev_b32 v3, 2, v{vL16}
  v_cmp_gt_u32 vcc, 24, v3
  v_mov_b32 v4, 0x7fffff00
  v_cndmask_b32 v3, v4, v3, vcc
  s_cmp_eq_u32 s{sWv}, 0
  s_cbranch_scc0 Lnospan
  buffer_atomic_umax v2, v3, s[4:7], 0 offen""")
            L.append("Lnospan:")
        if self.ENDW: L.append("  s_waitcnt vmcnt(0)")
        L.append("Lend:\n  s_endpgm")
        L += self.slow
        L.append("Lcode_end:")

        L.append('.section .rodata,"a"\n.p2align 6')
        L.append(f".amdhsa_kernel {KNAME}")
        L.append("  .amdhsa_next_free_vgpr 512\n  .amdhsa_next_free_sgpr 102\n  .amdhsa_accum_offset 256\n  .amdhsa_group_segment_fixed_size 0\n  .amdhsa_kernarg_size 48\n  .amdhsa_user_sgpr_count 2\n  .amdhsa_user_sgpr_kernarg_segment_ptr 1\n  .amdhsa_system_sgpr_workgroup_id_x 1\n.end_amdhsa_kernel")
        if self.PADK: L.append(f".space {self.PADK * 1024}")
        return "\n".join(L) + "\n"

    LA = 3
    WDEF = 1
    FCAP = 0; FEND = 200; FTH = 150; LH = 28; LM = 12; LD = 5; PRO_T = -30; PXW = 2; STDL = 14; WDEF0 = 0; QW = (); ALIGN = 8; PADK = 0; LX2 = 8; MAXLN = 8; URG2 = -100; LATXB = 34; G2S = [7, 8, 9]; BLK = 0; BLK0 = -60; ENDW = 0; PHARD = 0; IVE = 12; IVT = 80; IV0 = 12; IVS = 0; FB_T = None; AGE1 = 16; PX0W = 0; PX1 = (); PFREE = 0
    ITLB = 0
    CPS = 8192; T_CPG = -94; T_WGS = [-59, -58, -57, -56]
    TSPLIT = 9
    DBGT = 0
    SPAN = 0
    XPACE = 1.5; XPN = 12; LATX2 = 30; T_U0B = -14
    PK = 0; XLEADG = [36, 40, 30, 36, 50]
    EARLYPF = 1
    PORD = ["pf-90", "x0", "wA", "p2", "wB", "x1", "fb", "pf-50"]
    PRT = 0
    CPF = 1; T_CPF = [-95, 30, 128, 230, 330, 420, 530, 635, 740, 850]
    XMODE = 0
    XB0 = XBASE
    ETA0 = 1.3
    RSL = 2
    ETA = 1.0; CPL = 9; TH = 120; TH_URG = 280; URG = 2; LATW = 16; LATX = 20; T_STG0 = 12; T_STGD = 15; PSP = 1.6; T_RL = [185, 228, 262, 214]
    PROL = 0; T_BW = 20; PRO_W = 6; PRO_X = 2; PX_L = [2, 4, 6, 8, 10, 12]; T_PX = [7, 30, 56, 82, 108, 134]; T_PW0 = [-96, 9]; T_WG = 226; T_PWL = []; T_PAT = 200; AGE2 = 12; T_PWA = -100; T_PWB = 70; AGE = 16
    NOST = 0; NOLD = 0; NOW = 0
    LDP = 2; STP = 2; OUTP = 4
    IV = 12
    PS = 0; PI = 17
    T_U0 = -36; T_U1 = 50; T_U2 = 120; XLEAD = 26; SPIN = 0x8000; E2LEAD = 2; T_POLL = 16; T_ST = 18; MAXL = 2
    MIN_VM = 10; MIN_LG = 1

    def run(self):
        self.flag_step = {}
        self.plan()
        self.prologue()
        self.build_streams()
        self.schedule()
        errs = self.check()
        return errs

if __name__ == "__main__":
    ap = argparse.ArgumentParser()
    ap.add_argument("-o", default="k.s")
    ap.add_argument("--nl", type=int, default=3)
    ap.add_argument("--interval", type=int, default=12)
    ap.add_argument("--stamps", action="store_true")
    ap.add_argument("--prof", action="store_true")
    ap.add_argument("--set", action="append", default=[])
    a = ap.parse_args()
    for kv in a.set:
        k, v = kv.split("="); setattr(Gen, k, eval(v))
    g = Gen(NL=a.nl, interval=Gen.IV, stamps=a.stamps, prof=a.prof)
    errs = g.run()
    open(a.o, "w").write(g.text())
    from collections import Counter
    print("instrs", len(g.out), Counter(i.kind for i in g.out), "hazard errs", errs, "minlead(steps)", g.minlead, file=sys.stderr)
    print("xload steps", {k: v for k, v in g.vm_step.items() if k[0] in ("x", "fp", "fs") and (k[0] != "x" or k[3] == 3)}, file=sys.stderr)
    import statistics
    print("B mean", statistics.mean(g.Bhist), "max", max(g.Bhist), "frac>150", sum(b > 150 for b in g.Bhist) / len(g.Bhist), file=sys.stderr)
    leads = [g.bars[e["jl"]] - g.vm_step[("w", n)] for n, e in enumerate(g.entries) if g.vm_step[("w", n)] > -50]
    print("ring leads min/mean", min(leads), statistics.mean(leads), "hist", sorted(leads)[:20], file=sys.stderr)
    print("stage", {k: v for k, v in g.vm_step.items() if k[0] in ("st", "rl") and k[2] in (0, 7)}, file=sys.stderr)
    print("pf", {k: v for k, v in g.vm_step.items() if k[0] == "pf"}, file=sys.stderr)
    print("epi_fin", g.epi_fin, "bias", g.bias_done, "flags", g.flag_step, "nsteps", g.nsteps, file=sys.stderr)
```

```python
import sys, argparse

KNAME = "standalone__dcn_v2_cross__recsys_kernel"
D = 832; ROWB = 1664
LSTRIDE = D * ROWB
KSB = 32 * ROWB
RING = 54848
BIAS = 54848
XR = 57344
XRW = 26624
XBASE = 0x100000
FBASE = 0x40000
XLAYER = 64 * 4 * 106496
CH = 4128
XB = 4096

ACC0 = 48
def acc(j, mt): return ACC0 + 16 * j + 4 * mt
WF0 = 32; NB = 4
def wf(f): return WF0 + 4 * (f % NB)
vA = [1, 2]; vA2 = 3
vPW = 4; vPW2 = 5; vPE = 6; vPE2 = 7
vX = [8, 9]; vX2 = 10
vL16 = 11; vL8 = 12
vPX = 13; vOut = 30
vPXE = 14; vOutE = 31
vBias = 15
vFlagOff = 16; vFlagVal = 17; vPollOff = 18; vPoll = 19; vBase = 30
vPFX = 31; vPFW = 17; vPFG = 17
vXP = [20, 24]
vT = [28, 29]
vDummy = 0
sW_ = 8; sX0_ = 12; sOUT_ = 16; sWS_ = 20; sDBG_ = 24; sB_ = 28
sQ = 32; sC = 33; sWv = 34; sWq = 35; sW1032 = 36; sW8 = 37; sXq = 38; sW1024 = 39
sXb = 40; sRow = 41; sMask = 44; sXRw = 45
sOutMt = [46, 47, 48, 49]
sT = [50, 51, 52, 53, 54, 55]
sXs = [56, 57]
sXt = [77, 84]
sP = 58
sSpin = 59
sJ = [92, 93, 94, 95, 96, 97, 98, 99]
sStamp = 60
def srd(b): return f"s[{b}:{b+3}]"

class Ins:
    __slots__ = ("text", "kind", "rd", "wr", "vm", "lg", "need_vm", "need_lg", "earliest", "label", "note", "after", "minvm", "dl", "lines", "hard")
    def __init__(self, text, kind, rd=(), wr=(), vm=None, lg=None, need_vm=None, need_lg=None, earliest=None, note=None):
        self.text = text; self.kind = kind; self.rd = tuple(rd); self.wr = tuple(wr)
        self.vm = vm; self.lg = lg; self.need_vm = need_vm or []; self.need_lg = need_lg or []
        self.earliest = earliest; self.note = note; self.after = []; self.minvm = None; self.dl = None; self.lines = 8; self.hard = None
def vr(b, n=1): return [("v", b + i) for i in range(n)]
def ar(b, n=1): return [("a", b + i) for i in range(n)]

def S(t, **k): return Ins(t, "S", **k)
def V(t, rd=(), wr=(), **k): return Ins(t, "V", rd=rd, wr=wr, **k)

class Gen:
    def __init__(self, NL=3, interval=12, dbg=None, stamps=False, prof=False):
        self.prof = prof; self.prol_k = 0
        self.NL = NL; self.interval = interval; self.stamps = stamps
        self.out = []
        self.vmq = []; self.vm_done = 0; self.vm_pos = {}
        self.lgq = []; self.lg_done = 0; self.lg_pos = {}
        self.slow = []
        self.tcount = 0
        self.nstamp = 0

    def emit(self, ins):
        if ins.vm is not None:
            assert ins.vm not in self.vm_pos, ins.vm
            self.vm_pos[ins.vm] = len(self.vmq); self.vmq.append(ins.vm)
        if ins.lg is not None:
            assert ins.lg not in self.lg_pos, ins.lg
            self.lg_pos[ins.lg] = len(self.lgq); self.lgq.append(ins.lg)
        self.out.append(ins)
    def wait_for(self, need_vm, need_lg):
        nv = None; nl = None
        for t in need_vm:
            p = self.vm_pos[t]
            if p >= self.vm_done:
                n = len(self.vmq) - 1 - p
                nv = n if nv is None else min(nv, n)
        for t in need_lg:
            p = self.lg_pos[t]
            if p >= self.lg_done:
                n = len(self.lgq) - 1 - p
                nl = n if nl is None else min(nl, n)
        return nv, nl
    def emit_wait(self, need_vm, need_lg):
        nv, nl = self.wait_for(need_vm, need_lg)
        if nv is None and nl is None: return False
        parts = []
        if nv is not None:
            nv = min(nv, 63); parts.append(f"vmcnt({nv})"); self.vm_done = max(self.vm_done, len(self.vmq) - nv)
        if nl is not None:
            nl = min(nl, 15); parts.append(f"lgkmcnt({nl})"); self.lg_done = max(self.lg_done, len(self.lgq) - nl)
        self.emit(Ins("s_waitcnt " + " ".join(parts), "W"))
        return True
    def raw(self, text, kind="S", **k):
        for line in text.strip().split("\n"):
            self.emit(Ins(line.strip(), kind, **k))
    def xch(self, l):
        if self.XMODE == 2: return (sOUT_, -self.XB0) if l == 0 else (sWS_, 0)
        if self.XMODE == 1: return (sWS_, 0)
        return (sWS_, l * XLAYER)
    def pol(self, p):
        return ("", " sc0", " sc1", " sc0 sc1", " nt", " sc0 nt", " sc1 nt", " sc0 sc1 nt")[p]
    def stemp(self, stream=0):
        self.tcount += 1
        return sT[2 * stream + self.tcount % 2]

    def plan(self):
        NL = self.NL
        self.groups = []
        for l in range(NL):
            if l == 0:
                G = [[0, 1, 2], [3, 4, 5], [6, 7, 8, 9], [10, 11, 12], list(range(13, 26))]
            else:
                G = [[0, 6, 12], [18, 1, 7], [13, 19, 2, 8], [14, 20, 3],
                     [9, 15, 21, 4, 10, 16, 22, 5, 11, 17, 23, 24, 25]]
            SL = [[13, 14, 15], [0, 1, 2], [3, 4, 5, 6], [13, 14, 15], [7, 8, 9, 10, 11, 12, 0, 1, 2, 3, 4, 5, 6]]
            if l > 0 and self.G2S: SL[1] = list(self.G2S)
            self.groups.append(list(zip(G, SL)))
        self.entries = []
        self.steps = []
        def seg_main(l, gi, u, lst):
            for ks, sl in lst:
                e = dict(kind="m", l=l, u=u, ks=[ks], size=CH, gi=gi, first=len(self.steps))
                self.entries.append(e)
                for sb in range(2):
                    for ee in range(2):
                        self.steps.append(dict(e=len(self.entries) - 1, j=4 * u + 2 * sb + ee, ks=ks, slot=sl,
                                               va=vA[sb], rel=8 * ee, rdoff=512, l=l, gi=gi, u=u))
                e["last"] = len(self.steps) - 1
        def seg_extra(l, gi, bt):
            e = dict(kind="x", l=l, u=3, ks=[k for k, _ in bt], size=XB, gi=gi, first=len(self.steps))
            self.entries.append(e)
            for i, (ks, sl) in enumerate(bt):
                self.steps.append(dict(e=len(self.entries) - 1, j=12, ks=ks, slot=sl,
                                       va=vA2, rel=1024 * i, rdoff=256, l=l, gi=gi, u=3))
            e["last"] = len(self.steps) - 1
        for l in range(NL):
            gl = [list(zip(G, SL)) for (G, SL) in self.groups[l]]
            a, b = gl[0], gl[1]
            if l == 0:
                for gi_, lst_ in ((0, a), (1, b)):
                    for it in lst_:
                        for u in range(3): seg_main(l, gi_, u, [it])
            else:
                seg_main(l, 0, 0, a); seg_main(l, 0, 1, a); seg_main(l, 1, 0, b); seg_main(l, 1, 1, b)
                seg_main(l, 0, 2, a); seg_main(l, 1, 2, b)
            ab = a + b
            seg_extra(l, 1, ab[0:4]); seg_extra(l, 1, ab[4:6])
            for gi in (2, 3, 4):
                lst = gl[gi]
                if gi == 4 and l == NL - 1 and self.TSPLIT:
                    seg_main(l, gi, 0, lst); seg_main(l, gi, 1, lst)
                    for bt in [lst[0:4], lst[4:8], lst[8:11], lst[11:13]]: seg_extra(l, gi, bt)
                    ns = self.TSPLIT
                    seg_main(l, gi, 2, lst[:13 - ns])
                    es_ = []
                    for ks, sl in lst[13 - ns:]:
                        e = dict(kind="m", l=l, u=2, ks=[ks], size=CH, gi=gi, first=len(self.steps))
                        self.entries.append(e); es_.append((len(self.entries) - 1, ks, sl))
                        for ee in range(2):
                            self.steps.append(dict(e=len(self.entries) - 1, j=8 + ee, ks=ks, slot=sl, va=vA[0], rel=8 * ee, rdoff=512, l=l, gi=gi, u=2))
                    self.tsplit_step = len(self.steps) - 1
                    for n_, ks, sl in es_:
                        for ee in range(2):
                            self.steps.append(dict(e=n_, j=10 + ee, ks=ks, slot=sl, va=vA[1], rel=8 * ee, rdoff=512, l=l, gi=gi, u=2))
                        self.entries[n_]["last"] = len(self.steps) - 1
                    continue
                for u in range(3): seg_main(l, gi, u, lst)
                if gi < 4: batches = [lst]
                elif l == 0: batches = [lst[0:4], lst[4:8], lst[8:12], lst[12:13]]
                else: batches = [lst[0:4], lst[4:8], lst[8:11], lst[11:13]]
                for bt in batches: seg_extra(l, gi, bt)
        self.nsteps = len(self.steps)
        seen = set()
        for st in self.steps:
            if st["j"] not in seen: seen.add(st["j"]); st["init"] = True
        iv = self.interval
        LA = self.LA
        self.bars = [-LA - 1]
        b_ = min(iv, self.IV0) - LA - 1
        while b_ < self.nsteps - LA - 1:
            self.bars.append(b_)
            b_ += self.IVE if b_ >= self.nsteps - self.IVT else (self.IV0 if b_ < self.IVS else iv)
        pos = 0
        live = []
        for n, e in enumerate(self.entries):
            if pos + e["size"] > RING: pos = 0
            e["base"] = pos; s0, s1 = pos, pos + e["size"]
            ov = [m for (m, a, b) in live if a < s1 and s0 < b]
            live = live + [(n, s0, s1)]
            lastneed = max([self.entries[m]["last"] for m in ov], default=None)
            if lastneed is None: e["jf"] = -1
            else:
                e["jf"] = next(j for j, P in enumerate(self.bars) if lastneed <= P + 1)
            e["jl"] = max(j for j, P in enumerate(self.bars) if P + LA + 1 <= e["first"] or j == 0)
            assert e["jf"] < e["jl"] or e["jf"] == -1, (n, e)
            pos = s1
        self.minlead = min((self.bars[e["jl"]] - self.bars[e["jf"]]) for e in self.entries if e["jf"] >= 0)

    def tr_reads(self, f):
        st = self.steps[f]; e = self.entries[st["e"]]
        r = wf(f)
        res = []
        for rd in range(2):
            off = e["base"] + st["rel"] + rd * st["rdoff"]
            res.append(Ins(f"ds_read_b64_tr_b16 v[{r+2*rd}:{r+2*rd+1}], v{st['va']} offset:{off}", "D",
                           rd=vr(st["va"]), wr=vr(r + 2 * rd, 2), lg=("wf", f, rd)))
        return res
    def mfma(self, f, mt):
        st = self.steps[f]
        c = acc(st["j"], mt); a = wf(f); b = 16 * st["slot"] + 4 * mt
        if st.get("init"):
            return Ins(f"v_mfma_f32_16x16x32_bf16 v[{c}:{c+3}], v[{a}:{a+3}], a[{b}:{b+3}], 0", "M",
                       rd=vr(a, 4) + ar(b, 4), wr=vr(c, 4))
        return Ins(f"v_mfma_f32_16x16x32_bf16 v[{c}:{c+3}], v[{a}:{a+3}], a[{b}:{b+3}], v[{c}:{c+3}]", "M",
                   rd=vr(a, 4) + ar(b, 4) + vr(c, 4), wr=vr(c, 4))
    def dma_entry(self, n):
        e = self.entries[n]; l = e["l"]
        t = self.stemp()
        if e["kind"] == "m":
            ks = e["ks"][0]
            const = (0 if self.NOW else l) * LSTRIDE + ks * KSB + 128 * e["u"]
            pat = vPW2 if (l > 0 and ks >= 24) else vPW
            seq = [S(f"s_add_u32 s{t}, s{sWq}, {const}"),
                   S(f"s_add_u32 m0, s{sW1032}, {e['base']}", note="m0"),
                   Ins(f"buffer_load_dwordx4 v{pat}, {srd(sW_)}, s{t} offen lds", "A", rd=vr(pat), vm=("w", n))]
        else:
            ks = e["ks"] + [e["ks"][-1]] * (4 - len(e["ks"]))
            lit = 0
            for i, k in enumerate(ks): lit |= (26 * (0 if self.NOW else l) + k) << (8 * i)
            pat = vPE2 if (l > 0 and ks[0] >= 24) else vPE
            seq = [S(f"s_lshr_b32 s{t}, 0x{lit:x}, s{sW8}"),
                   S(f"s_and_b32 s{t}, s{t}, 0xff"),
                   S(f"s_mul_i32 s{t}, s{t}, {KSB}"),
                   S(f"s_add_u32 s{t}, s{t}, s{sXq}"),
                   S(f"s_add_u32 m0, s{sW1024}, {e['base']}", note="m0"),
                   Ins(f"buffer_load_dwordx4 v{pat}, {srd(sW_)}, s{t} offen lds", "A", rd=vr(pat), vm=("w", n))]
        return seq
    def xload(self, l, ks, slot):
        t = sXs[(ks + l) % 2]
        xs, xo = self.xch(l - 1)
        seq = [S(f"s_add_u32 s{t}, s{sXb}, {(xo + 4096 * ks) & 0xffffffff}")]
        for mt in range(4):
            d = 16 * slot + 4 * mt
            if ks < 24:
                seq.append(Ins(f"buffer_load_dwordx4 a[{d}:{d+3}], v{vL16}, {srd(60 if self.NOLD else xs)}, s{t} offen offset:{1024*mt}{self.pol(self.LDP)}", "L",
                               rd=vr(vL16), wr=ar(d, 4), vm=("x", l, ks, mt, 0)))
            else:
                for h in range(2):
                    seq.append(Ins(f"buffer_load_dwordx2 a[{d+2*h}:{d+2*h+1}], v{vL8}, {srd(60 if self.NOLD else xs)}, s{t} offen offset:{2048*h+512*mt}{self.pol(self.LDP)}", "L",
                                   rd=vr(vL8), wr=ar(d + 2 * h, 2), vm=("x", l, ks, mt, h)))
        return seq
    def xtags(self, l, ks, mt):
        if l == 0: return [], [("xs", ks, mt)]
        if ks < 24: return [("x", l, ks, mt, 0)], []
        return [("x", l, ks, mt, 0), ("x", l, ks, mt, 1)], []
    def stage_dma(self, line, slot=None, tag="st"):
        if slot is None: slot = line % 3
        seq = []
        for j in range(8):
            imm = 1024 * (j & 1) + 128 * line
            if j % 2 == 0:
                seq.append(S(f"s_add_u32 m0, s{sXRw}, {8192 * slot + 1024 * j - 128 * line}", note="m0"))
            ins = Ins(f"buffer_load_dwordx4 v{vPX}, {srd(sX0_)}, s{sJ[j]} offen offset:{imm} lds", "A", rd=vr(vPX), vm=(tag, line, j))
            if j % 2 == 0: ins.note = "m0keep"
            seq.append(ins)
        return seq
    def stage_read(self, ks, slot):
        line, sb = ks >> 1, ks & 1
        seq = []
        for mt in range(4):
            d = 16 * slot + 4 * mt
            seq.append(Ins(f"ds_read_b128 a[{d}:{d+3}], v{vX[sb]} offset:{8192 * (line % 3) + 2048 * mt}", "D",
                           rd=vr(vX[sb]), wr=ar(d, 4), lg=("xs", ks, mt), need_vm=[("st", line, 2 * mt), ("st", line, 2 * mt + 1)]))
            seq[-1].minvm = self.AGE1 if line == 1 else self.AGE if line < 8 else self.AGE2
        return seq
    def reload_dma(self, u):
        seq = []
        if u == 0: seq.append(V(f"v_add_u32 v{vPX}, s{sWq}, v{vPX}", rd=vr(vPX), wr=vr(vPX)))
        if u < 3: return seq + self.stage_dma(u, (u + 1) % 3, "rl")
        for h in range(2):
            t = self.stemp(1)
            seq += [S(f"s_add_u32 s{t}, s{sRow}, s{sXq}"),
                    S(f"s_add_u32 s{t}, s{t}, {h * 32 * ROWB}"),
                    S(f"s_add_u32 m0, s{sXRw}, {24576 + 1024 * h}", note="m0"),
                    Ins(f"buffer_load_dwordx4 v{vPXE}, {srd(sX0_)}, s{t} offen lds", "A", rd=vr(vPXE), vm=("rl", 3, h))]
            seq[-1].lines = 32
        return seq
    def epi_unit(self, l, u):
        last = (l == self.NL - 1)
        seq = []
        items = [(sb, mt) for sb in range(2) for mt in range(4)] if u < 3 else [(0, mt) for mt in range(4)]
        if last and self.MTM and u < 2: items = [(sb, mt) for mt in range(4) for sb in range(2)]
        def rd(i):
            sb, mt = items[i]; xp = vXP[i % 2]
            if u < 3:
                nv = [("rl", u, 2 * mt), ("rl", u, 2 * mt + 1)] if l == 0 else []
                return Ins(f"ds_read_b128 v[{xp}:{xp+3}], v{vX[sb]} offset:{8192 * ((u + 1) % 3) + 2048 * mt}", "D", rd=vr(vX[sb]), wr=vr(xp, 4),
                           lg=("xp", l, u, i), need_vm=nv)
            nv = [("rl", 3, mt >> 1)] if l == 0 else []
            return Ins(f"ds_read_b64 v[{xp}:{xp+1}], v{vX2} offset:{512 * mt}", "D", rd=vr(vX2), wr=vr(xp, 2), lg=("xp", l, u, i), need_vm=nv)
        seq2 = [rd(0), rd(1)]
        for b_ in range(2):
            if self.last_reader[b_] is not None: seq2[b_].after = [self.last_reader[b_]]
        for i, (sb, mt) in enumerate(items):
            xp = vXP[i % 2]
            ne = 2 if u < 3 else 1
            first = True; pend = None
            for e in range(ne):
                j = 4 * u + 2 * sb + e if u < 3 else 12
                c = acc(j, mt)
                for p in range(2):
                    x = xp + 2 * e + p; t = vT[p]
                    if self.PK & 1:
                        if p == 1: continue
                        t0, t1 = vT; x1 = x + 1
                        i0 = V(f"v_lshlrev_b32 v{t0}, 16, v{x}", rd=vr(x), wr=vr(t0))
                        if first: i0.need_lg = [("xp", l, u, i)]; first = False
                        seq += [i0, V(f"v_and_b32 v{t1}, s{sMask}, v{x}", rd=vr(x), wr=vr(t1)),
                                V(f"v_lshlrev_b32 v{x}, 16, v{x1}", rd=vr(x1), wr=vr(x)),
                                V(f"v_and_b32 v{x1}, s{sMask}, v{x1}", rd=vr(x1), wr=vr(x1)),
                                V(f"v_pk_mul_f32 v[{t0}:{t1}], v[{t0}:{t1}], v[{c}:{c+1}]", rd=vr(t0, 2) + vr(c, 2), wr=vr(t0, 2)),
                                V(f"v_pk_mul_f32 v[{x}:{x1}], v[{x}:{x1}], v[{c+2}:{c+3}]", rd=vr(x, 2) + vr(c + 2, 2), wr=vr(x, 2)),
                                V(f"v_cvt_pk_bf16_f32 v{x1}, v{x}, v{x1}", rd=vr(x, 2), wr=vr(x1)),
                                V(f"v_cvt_pk_bf16_f32 v{x}, v{t0}, v{t1}", rd=vr(t0, 2), wr=vr(x))]
                        continue
                    i0 = V(f"v_lshlrev_b32 v{t}, 16, v{x}", rd=vr(x), wr=vr(t))
                    if first: i0.need_lg = [("xp", l, u, i)]; first = False
                    seq += [i0,
                            V(f"v_and_b32 v{x}, s{sMask}, v{x}", rd=vr(x), wr=vr(x)),
                            V(f"v_mul_f32 v{t}, v{t}, v{c+2*p}", rd=vr(t) + vr(c + 2 * p), wr=vr(t)),
                            V(f"v_mul_f32 v{x}, v{x}, v{c+2*p+1}", rd=vr(x) + vr(c + 2 * p + 1), wr=vr(x)),
                            V(f"v_cvt_pk_bf16_f32 v{x}, v{t}, v{x}", rd=vr(t) + vr(x), wr=vr(x))]
            if pend is not None: seq.append(pend)
            lastv = seq[-1]
            if not last:
                t = sXt[i % 2]
                if u < 3:
                    b = 2 * u + sb
                    xs, xo = self.xch(l)
                    seq2.append(S(f"s_add_u32 s{t}, s42, {(xo + 4096 * b) & 0xffffffff}"))
                    st = Ins(f"buffer_store_dwordx4 v[{xp}:{xp+3}], v{vL16}, {srd(60 if self.NOST else xs)}, s{t} offen offset:{1024*mt}{self.pol(self.STP)}", "T",
                             rd=vr(xp, 4) + vr(vL16), vm=("xo", l, u, i))
                else:
                    xs, xo = self.xch(l)
                    seq2.append(S(f"s_add_u32 s{t}, s43, {xo & 0xffffffff}"))
                    st = Ins(f"buffer_store_dwordx2 v[{xp}:{xp+1}], v{vL8}, {srd(60 if self.NOST else xs)}, s{t} offen offset:{512*mt}{self.pol(self.STP)}", "T",
                             rd=vr(xp, 2) + vr(vL8), vm=("xo", l, u, i))
            else:
                if u < 3:
                    b = 2 * u + sb
                    st = Ins(f"buffer_store_dwordx4 v[{xp}:{xp+3}], v{vOut}, {srd(sOUT_)}, s{sOutMt[mt]} offen offset:{64*b}{self.pol(self.OUTP)}", "T",
                             rd=vr(xp, 4) + vr(vOut), vm=("xo", l, u, i))
                else:
                    t = sXt[i % 2]
                    seq2.append(S(f"s_add_u32 s{t}, s{sOutMt[mt]}, s76"))
                    st = Ins(f"buffer_store_dwordx2 v[{xp}:{xp+1}], v{vOutE}, {srd(sOUT_)}, s{t} offen{self.pol(self.OUTP)}", "T",
                             rd=vr(xp, 2) + vr(vOutE), vm=("xo", l, u, i))
            st.after = [lastv]; st.lines = 8 if u < 3 else 4; st.dl = -2000; st.hard = -2000
            self.last_reader[i % 2] = st
            seq2.append(st)
            if i + 2 < len(items): seq2.append(rd(i + 2))
        return seq, seq2
    def bias_unit(self, l, u):
        seq = []
        tiles = [4 * u + i for i in range(4)] if u < 3 else [12]
        def rd(i):
            xp = vXP[i % 2]
            return Ins(f"ds_read_b128 v[{xp}:{xp+3}], v{vBias} offset:{832 * l + 64 * tiles[i]}", "D", rd=vr(vBias), wr=vr(xp, 4), lg=("bi", l, tiles[i]))
        seq2 = [rd(0)] + ([rd(1)] if len(tiles) > 1 else [])
        for b_ in range(len(seq2)):
            if self.last_reader[b_] is not None: seq2[b_].after = [self.last_reader[b_]]
        for i, j in enumerate(tiles):
            xp = vXP[i % 2]
            first = True
            for mt in range(4):
                c = acc(j, mt)
                for r in range(0, 4, 2 if self.PK & 2 else 1):
                    if self.PK & 2: x = V(f"v_pk_add_f32 v[{c+r}:{c+r+1}], v[{c+r}:{c+r+1}], v[{xp+r}:{xp+r+1}]", rd=vr(c + r, 2) + vr(xp + r, 2), wr=vr(c + r, 2))
                    else: x = V(f"v_add_f32 v{c+r}, v{c+r}, v{xp+r}", rd=vr(c + r) + vr(xp + r), wr=vr(c + r))
                    if first: x.need_lg = [("bi", l, j)]; first = False
                    seq.append(x)
            self.last_reader[i % 2] = seq[-1]
            if i + 2 < len(tiles):
                r2 = rd(i + 2); r2.after = [seq[-1]]; seq2.append(r2)
        return seq, seq2
    def flag_set(self, val, need):
        v = V(f"v_add_u32 v{vFlagVal}, {val}, v{vBase}", rd=vr(vBase), wr=vr(vFlagVal), need_vm=list(need) + [("fb",)])
        v.minvm = self.T_ST
        st = Ins(f"buffer_store_dword v{vFlagVal}, v{vFlagOff}, {srd(sWS_)}, 0 offen sc1", "T", rd=vr(vFlagVal) + vr(vFlagOff), vm=("fs", val))
        st.lines = 1; st.dl = -3000; st.hard = -3000
        return [v, st]
    def flag_poll(self, val):
        k = val
        ld = Ins(f"buffer_load_dword v{vPoll}, v{vPollOff}, {srd(sWS_)}, 0 offen sc1", "L", rd=vr(vPollOff), wr=vr(vPoll), vm=("fp", val))
        chk = [V(f"v_sub_u32 v{vPoll}, v{vPoll}, v{vBase}", rd=vr(vPoll) + vr(vBase), wr=vr(vPoll), need_vm=[("fp", val), ("fb",)]),
               V(f"v_cmp_gt_u32 vcc, {val}, v{vPoll}", rd=vr(vPoll)),
               S("s_nop 0"),
               Ins(f"s_cbranch_vccnz Lslow{k}\nLback{k}:", "S")]
        self.slow.append(f"""Lslow{k}:
  s_mov_b32 s{sSpin}, 0x{self.SPIN:x}
Lspin{k}:
  buffer_load_dword v{vPoll}, v{vPollOff}, {srd(sWS_)}, 0 offen sc1
  s_waitcnt vmcnt(0)
  v_sub_u32 v{vPoll}, v{vPoll}, v{vBase}
  v_cmp_gt_u32 vcc, {val}, v{vPoll}
  s_sub_u32 s{sSpin}, s{sSpin}, 1
{"  s_add_u32 s90, s90, 0x%x" % (1 << (4 * (k - 1))) if self.prof else ""}
  s_cbranch_vccz Lback{k}
  s_cmp_lg_u32 s{sSpin}, 0
  s_cbranch_scc1 Lspin{k}
  s_branch Lback{k}""")
        return ld, chk
    def out_patterns(self):
        t0, t1 = vT
        return [V(f"v_lshrrev_b32 v{t0}, 4, v{vL16}", rd=vr(vL16), wr=vr(t0)),
                V(f"v_and_b32 v{t1}, 15, v{t0}", rd=vr(t0), wr=vr(t1)),
                V(f"v_mul_u32_u24 v{t1}, {ROWB}, v{t1}", rd=vr(t1), wr=vr(t1)),
                V(f"v_lshrrev_b32 v{t0}, 4, v{t0}", rd=vr(t0), wr=vr(t0)),
                V(f"v_lshlrev_b32 v{t0}, 3, v{t0}", rd=vr(t0), wr=vr(t0)),
                V(f"v_add_u32 v{vOutE}, v{t1}, v{t0}", rd=vr(t0) + vr(t1), wr=vr(vOutE)),
                V(f"v_add_u32 v{vOut}, v{vOutE}, v{t0}", rd=vr(t0) + vr(vOutE), wr=vr(vOut))]

    def prologue(self):
        R = self.raw
        VV = lambda t: self.emit(Ins(t, "V"))
        R("s_cmp_ge_u32 s2, 256\ns_cbranch_scc1 Lend")
        R("s_load_dwordx4 s[64:67], s[0:1], 0\ns_load_dwordx4 s[68:71], s[0:1], 16\ns_load_dwordx4 s[72:75], s[0:1], 32")
        if self.stamps:
            R("s_memrealtime s[80:81]\ns_memtime s[82:83]")
        if self.SPAN: R("s_memrealtime s[88:89]")
        if self.prof:
            R(("s_memrealtime" if self.PRT else "s_memtime") + " s[88:89]\ns_mov_b32 s90, 0")
        VV("v_lshrrev_b32 v31, 6, v0")
        VV("v_and_b32 v0, 63, v0")
        R(f"""s_and_b32 s{sC}, s2, 7
s_lshr_b32 s3, s2, 5""")
        VV(f"v_readfirstlane_b32 s{sWv}, v31")
        R(f"""s_lshl_b32 s55, s3, 2
s_lshl_b32 s3, s3, 3
s_add_u32 s{sC}, s{sC}, s3
s_lshr_b32 s{sQ}, s2, 3
s_and_b32 s{sQ}, s{sQ}, 3
s_mul_i32 s{sWq}, s{sQ}, 384
s_lshl_b32 s3, s{sC}, 2
s_add_u32 s3, s3, s{sWv}
s_mul_i32 s{sRow}, s3, {64 * ROWB}
s_add_u32 s55, s55, s{sWv}
s_mul_i32 s55, s55, {ROWB}
s_mul_i32 s{sW1032}, s{sWv}, 1032
s_lshl_b32 s{sW8}, s{sWv}, 3
s_mul_i32 s{sXRw}, s{sWv}, {XRW}
s_add_u32 s{sXRw}, s{sXRw}, {XR}
s_nop 0""")
        for j in range(8):
            R(f"s_add_u32 s{sJ[j]}, s{sRow}, {j * 8 * ROWB - 1024 * (j & 1)}")
        VV(f"v_lshlrev_b32 v{vL16}, 4, v0")
        VV("v_lshrrev_b32 v20, 3, v0")
        VV("v_and_b32 v21, 7, v0")
        VV("v_and_b32 v23, 6, v20")
        VV("v_lshlrev_b32 v22, 1, v20")
        VV("v_xor_b32 v23, v21, v23")
        VV("v_and_b32 v22, 4, v22")
        VV("v_lshlrev_b32 v23, 4, v23")
        VV(f"v_mul_u32_u24 v24, {ROWB}, v20")
        VV("v_xor_b32 v22, v21, v22")
        VV(f"v_add_u32 v{vPX}, v23, v24")
        VV("v_lshlrev_b32 v22, 4, v22")
        VV(f"v_add_u32 v23, s{sW8}, v20")
        VV(f"v_mul_u32_u24 v23, {ROWB}, v23")
        VV(f"v_add_u32 v{vPW}, v23, v22")
        if self.EARLYPF: self.pf_patterns()
        self.pstamp()
        R("s_waitcnt lgkmcnt(0)")
        self.pstamp()
        self.mk(sX0_, 64, 16384 * ROWB)
        self.mk(sW_, 66, 3 * LSTRIDE)
        if self.CPF:
            self.emit(Ins("s_getpc_b64 s[64:65]\nLpc:", "S"))
            R(f"s_and_b32 s65, s65, 0xffff\ns_mov_b32 s66, Lcode_end-Lpc\ns_mov_b32 s67, 0x20000\ns_lshr_b32 s72, s2, 3\ns_lshl_b32 s72, s72, 2\ns_add_u32 s72, s72, s{sWv}\ns_lshl_b32 s72, s72, 7")
    def prologue2(self):
        R = self.raw
        R(f"""s_lshl_b32 s{sXq}, s{sQ}, 5
s_add_u32 s{sXq}, s{sXq}, 1536
s_lshl_b32 s{sW1024}, s{sWv}, 10
s_lshl_b32 s3, s{sC}, 2
s_add_u32 s3, s3, s{sWv}
s_mul_i32 s{sXb}, s3, 106496
s_add_u32 s{sXb}, s{sXb}, {self.XB0}
s_mov_b32 s{sMask}, 0xffff0000
s_mul_i32 s42, s{sQ}, 24576
s_add_u32 s42, s42, s{sXb}
s_lshr_b32 s43, s{sQ}, 1
s_add_u32 s43, s43, 24
s_lshl_b32 s43, s43, 12
s_and_b32 s3, s{sQ}, 1
s_lshl_b32 s3, s3, 11
s_add_u32 s43, s43, s3
s_add_u32 s43, s43, s{sXb}
s_mul_i32 s76, s{sQ}, 352
s_sub_u32 s76, 1536, s76""")
        for mt in range(4):
            R(f"s_add_u32 s{sOutMt[mt]}, s{sRow}, {mt * 16 * ROWB}\ns_add_u32 s{sOutMt[mt]}, s{sOutMt[mt]}, s{sWq}")
        self.mk(sB_, 68, 3 * ROWB)
        self.mk(sOUT_, 70, 16384 * ROWB)
        self.mk(sWS_, 74, 0x10000000)
        if self.NOST or self.NOLD or self.NOW: self.mk(60, 74, 0)
        self.prologue_rest()
    def mk(self, b, lo, size):
        self.raw(f"s_mov_b32 s{b}, s{lo}\ns_and_b32 s{b+1}, s{lo+1}, 0xffff\ns_mov_b32 s{b+2}, {size}\ns_mov_b32 s{b+3}, 0x20000")
    def prologue_rest(self):
        R = self.raw
        VV = lambda t: self.emit(Ins(t, "V"))
        VV("v_lshrrev_b32 v23, 2, v20")
        VV("v_lshlrev_b32 v23, 4, v23")
        VV("v_and_b32 v24, 3, v20")
        VV("v_add_u32 v23, v23, v24")
        R(f"s_lshl_b32 s3, s{sWv}, 2")
        VV("v_add_u32 v23, s3, v23")
        VV(f"v_mul_u32_u24 v23, {ROWB}, v23")
        VV(f"v_add_u32 v{vPW2}, v23, v22")
        VV("v_lshrrev_b32 v20, 1, v0")
        VV("v_and_b32 v21, 1, v0")
        VV("v_lshlrev_b32 v21, 4, v21")
        VV(f"v_mul_u32_u24 v23, {ROWB}, v20")
        VV(f"v_add_u32 v{vPXE}, v23, v21")
        VV("v_and_b32 v23, 19, v20")
        VV("v_and_b32 v24, 4, v20")
        VV("v_lshlrev_b32 v24, 1, v24")
        VV("v_or_b32 v23, v23, v24")
        VV("v_and_b32 v24, 8, v20")
        VV("v_lshrrev_b32 v24, 1, v24")
        VV("v_or_b32 v23, v23, v24")
        VV(f"v_mul_u32_u24 v23, {ROWB}, v23")
        VV(f"v_add_u32 v{vPE}, v23, v21")
        VV("v_and_b32 v23, 7, v20")
        VV("v_and_b32 v24, 8, v20")
        VV("v_lshlrev_b32 v24, 1, v24")
        VV("v_or_b32 v23, v23, v24")
        VV("v_and_b32 v24, 16, v20")
        VV("v_lshrrev_b32 v24, 1, v24")
        VV("v_or_b32 v23, v23, v24")
        VV(f"v_mul_u32_u24 v23, {ROWB}, v23")
        VV(f"v_add_u32 v{vPE2}, v23, v21")
        VV("v_lshrrev_b32 v20, 4, v0")
        VV("v_and_b32 v21, 15, v0")
        VV("v_lshrrev_b32 v22, 2, v0")
        VV("v_and_b32 v22, 3, v22")
        VV("v_and_b32 v23, 3, v0")
        VV("v_mul_u32_u24 v24, 1032, v20")
        VV("v_lshlrev_b32 v25, 7, v22")
        VV("v_add_u32 v24, v24, v25")
        VV("v_lshlrev_b32 v25, 4, v23")
        VV("v_add_u32 v24, v24, v25")
        VV("v_lshrrev_b32 v25, 1, v22")
        VV("v_lshlrev_b32 v25, 6, v25")
        VV(f"v_add_u32 v{vA[0]}, v24, v25")
        VV("v_sub_u32 v25, 64, v25")
        VV(f"v_add_u32 v{vA[1]}, v24, v25")
        VV("v_lshrrev_b32 v24, 1, v20")
        VV("v_lshlrev_b32 v24, 9, v24")
        VV("v_and_b32 v25, 1, v20")
        VV("v_lshlrev_b32 v25, 7, v25")
        VV("v_add_u32 v24, v24, v25")
        VV("v_lshlrev_b32 v25, 5, v22")
        VV("v_add_u32 v24, v24, v25")
        VV("v_lshlrev_b32 v25, 3, v23")
        VV(f"v_add_u32 v{vA2}, v24, v25")
        VV("v_and_b32 v24, 6, v21")
        VV("v_xor_b32 v24, v20, v24")
        VV("v_lshlrev_b32 v24, 4, v24")
        VV("v_lshlrev_b32 v25, 7, v21")
        VV("v_add_u32 v24, v24, v25")
        VV(f"v_add_u32 v{vX[0]}, s{sXRw}, v24")
        VV(f"v_xor_b32 v{vX[1]}, 64, v{vX[0]}")
        VV("v_lshlrev_b32 v24, 5, v21")
        VV("v_lshlrev_b32 v25, 3, v20")
        VV("v_add_u32 v24, v24, v25")
        VV(f"v_add_u32 v24, s{sXRw}, v24")
        VV(f"v_add_u32 v{vX2}, 24576, v24")
        VV(f"v_lshlrev_b32 v{vL16}, 4, v0")
        VV(f"v_lshlrev_b32 v{vL8}, 3, v0")
        VV("v_lshlrev_b32 v24, 4, v20")
        VV(f"v_add_u32 v{vBias}, {BIAS}, v24")
        R(f"s_lshl_b32 s3, s{sC}, 2\ns_add_u32 s3, s3, s{sWv}\ns_lshl_b32 s3, s3, 9\ns_add_u32 s3, s3, {FBASE}")
        VV("v_and_b32 v24, 3, v0")
        VV("v_lshlrev_b32 v24, 7, v24")
        VV(f"v_add_u32 v{vPollOff}, s3, v24")
        VV(f"v_mov_b32 v{vFlagOff}, 0x7fffff00")
        VV(f"v_cmp_eq_u32 vcc, s{sQ}, v0")
        R("s_nop 1")
        VV(f"v_cndmask_b32 v{vFlagOff}, v{vFlagOff}, v{vPollOff}, vcc")
        if not self.EARLYPF: self.pf_patterns()
        self.bias_prologue()
        R(f"s_lshl_b32 s91, s2, 2\ns_add_u32 s91, s91, s{sWv}\ns_lshl_b32 s91, s91, 12")

    def pf_patterns(self):
        R = self.raw; VV = lambda t: self.emit(Ins(t, "V"))
        R(f"s_lshl_b32 s56, s{sQ}, 4")
        VV("v_and_b32 v26, 15, v0")
        VV("v_lshrrev_b32 v27, 4, v0")
        VV("v_add_u32 v26, s56, v26")
        VV("v_lshlrev_b32 v27, 7, v27")
        VV(f"v_mul_u32_u24 v26, {ROWB}, v26")
        VV(f"v_add_u32 v{vPFX}, v26, v27")
        if self.PXW == 2:
            VV("v_lshrrev_b32 v27, 5, v0")
            VV("v_lshlrev_b32 v27, 30, v27")
            VV(f"v_add_u32 v{vPFX}, v{vPFX}, v27")
        for i in self.pfw_pattern(vPFW, False): self.emit(i)
        if self.PX0W:
            VV(f"v_add_u32 v27, {64 - 16 * self.PX0W}, v0")
            VV("v_lshrrev_b32 v27, 6, v27")
            VV("v_lshlrev_b32 v27, 30, v27")
            VV(f"v_add_u32 v27, v{vPFX}, v27")
        if self.T_WG < 190 or self.T_WGS:
            VV("v_lshlrev_b32 v29, 7, v0")
            VV(f"v_lshrrev_b32 v28, {3 if self.T_WGS else 5}, v0")
            VV("v_min_u32 v28, 1, v28")
            VV("v_lshlrev_b32 v28, 30, v28")
            VV("v_add_u32 v29, v28, v29")
            R(f"s_lshl_b32 s91, s2, 2\ns_add_u32 s91, s91, s{sWv}\ns_lshl_b32 s91, s91, 12")
        if self.PX1:
            VV("v_lshrrev_b32 v28, 4, v0")
            VV("v_min_u32 v28, 1, v28")
            VV("v_lshlrev_b32 v28, 30, v28")
            VV(f"v_add_u32 v28, v{vPFX}, v28")
    def bias_prologue(self):
        R = self.raw; VV = lambda t: self.emit(Ins(t, "V"))
        R(f"s_lshl_b32 s3, s{sWv}, 6")
        VV("v_add_u32 v20, s3, v0")
        VV("v_min_u32 v20, 207, v20")
        VV("v_lshrrev_b32 v21, 4, v20")
        VV("v_and_b32 v22, 15, v20")
        VV("v_lshrrev_b32 v23, 1, v21")
        VV("v_lshlrev_b32 v23, 5, v23")
        VV("v_lshrrev_b32 v24, 2, v22")
        VV("v_lshlrev_b32 v24, 3, v24")
        VV("v_add_u32 v23, v23, v24")
        VV("v_and_b32 v24, 1, v21")
        VV("v_lshlrev_b32 v24, 2, v24")
        VV("v_add_u32 v23, v23, v24")
        VV("v_and_b32 v24, 3, v22")
        VV("v_add_u32 v23, v23, v24")
        R(f"s_mul_i32 s3, s{sQ}, 192")
        VV("v_add_u32 v23, s3, v23")
        R(f"s_lshl_b32 s3, s{sQ}, 4\ns_add_u32 s3, s3, 768")
        VV("v_add_u32 v24, s3, v22")
        VV("v_cmp_eq_u32 vcc, 12, v21")
        R("s_nop 1")
        VV("v_cndmask_b32 v23, v23, v24, vcc")
        VV("v_lshlrev_b32 v23, 1, v23")
        VV("v_lshlrev_b32 v22, 2, v20")
        VV(f"v_add_u32 v22, {BIAS}, v22")
    def bias_loads(self):
        for l in range(3):
            self.emit(Ins(f"buffer_load_ushort v{25+l}, v23, {srd(sB_)}, 0 offen offset:{l*ROWB}", "L", vm=("bl", l)))
            self.vm_step[("bl", l)] = -100
    def bias_write(self):
        a = [V(f"v_lshlrev_b32 v{25+l}, 16, v{25+l}", rd=vr(25 + l), wr=vr(25 + l)) for l in range(3)]
        a[0].need_vm = [("bl", 2)]
        a.append(V("v_add_f32 v25, 1.0, v25", rd=vr(25), wr=vr(25)))
        b = [Ins(f"ds_write_b32 v22, v{25+l} offset:{832*l}", "D", rd=vr(22) + vr(25 + l), lg=("bw", l)) for l in range(3)]
        b[0].after = [a[-1]]
        self.last_reader = [b[-1], b[-1]]
        return a, b

    COST = {"S": 4, "W": 4, "X": 4, "SS": 8, "V": 4, "D": 8, "L": 8, "A": 12, "T": 12}
    def fits(self, kinds):
        t = 4
        for i, k in enumerate(kinds):
            if k == "V": t = max(t, 8) + 4
            else: t += self.COST[k]
            if k == "L" and (i + 1 == len(kinds)): t += 4
            if k == "L" and i + 1 < len(kinds) and kinds[i + 1] != "V": return False
            if k in ("A", "T") and (i != 0 or len(kinds) > 1): return False
        return t <= 16

    def first_step(self, l, gi, u=0):
        for f, st in enumerate(self.steps):
            if st["l"] == l and st["gi"] == gi and st["u"] == u: return f
    def last_step(self, l, gi, u):
        r = None
        for f, st in enumerate(self.steps):
            if st["l"] == l and st["gi"] == gi and st["u"] == u: r = f
        return r
    def group_range(self, l, gi):
        fs = [f for f, st in enumerate(self.steps) if st["l"] == l and st["gi"] == gi]
        return fs[0], fs[-1]

    def build_streams(self):
        NL = self.NL
        self.last_reader = [None, None]
        M1 = []
        M2 = []
        E = []
        E2 = []
        M3 = []
        for n, e in enumerate(self.entries):
            es = -100 if e["jf"] < 0 else self.bars[e["jf"]]
            sq = self.dma_entry(n)
            for i_ in sq: i_.dl = min(self.bars[e["jl"]] - self.LATW, max(es, 0) + self.RSL)
            for i_ in sq: i_.hard = self.bars[e["jl"]] - 14
            sq[-1].lines = 8 if e["kind"] == "m" else 32
            M1.append([es, 0, sq, ("bar", e["jf"])])
        G = self.groups[0]
        slot_of = {}
        for gi, (ks_l, sl_l) in enumerate(G):
            for ks, sl in zip(ks_l, sl_l): slot_of[ks] = (gi, sl)
        def first_use(l, ks):
            for f, st in enumerate(self.steps):
                if st["l"] == l and st["ks"] == ks: return f
        self.first_use = first_use
        def slot_free(l, ks, sl):
            f0 = first_use(l, ks)
            r = -100
            for f in range(f0):
                if self.steps[f]["slot"] == sl: r = f
            return r
        self.stage_reads = {}
        stage_free = {}
        DM = []
        rd_earliest = {}
        for ks in range(26):
            gi, sl = slot_of[ks]
            rd_earliest[ks] = slot_free(0, ks, sl) + 1 if slot_free(0, ks, sl) >= 0 else -100
        cur = -100
        for ks in range(26):
            cur = max(cur, rd_earliest[ks]); rd_earliest[ks] = cur
        self.rd_earliest = rd_earliest
        self.slot_of0 = slot_of
        for line in range(13):
            seq = self.stage_dma(line)
            if line >= 3: seq[0].need_lg = [("xs", 2 * (line - 3) + 1, 3)]
            if line < self.PRO_X: es = -100
            else:
                es = self.T_STG0 + self.T_STGD * (line - self.PRO_X)
                k = 0
                for i_ in seq:
                    i_.earliest = int(es + self.PSP * k); i_.dl = i_.earliest + 8
                    if self.FCAP: i_.dl = first_use(0, min(2 * line, 25)) - self.STDL
                    if i_.kind == "A": k += 1
            M3.append([es, 1, seq, None])
        for u in (0, 3, 1, 2):
            seq = self.reload_dma(u)
            if u < 3: seq[0 if u else 1].need_lg = [("xs", 2 * (10 + u) + 1, 3)]
            es = self.T_RL[u]; k = 0
            for i_ in seq:
                i_.earliest = int(es + self.PSP * k); i_.dl = i_.earliest + 8
                if i_.kind == "A": k += 1
            M3.append([es, 1, seq, None])
        for ks in range(26):
            gi, sl = slot_of[ks]
            M2.append([rd_earliest[ks], 0, self.stage_read(ks, sl), None])
        for l in range(1, NL):
            base = 4 * (l - 1)
            def cls(ks):
                if ks >= 24: return 4
                return [1, 2, 3, 3, 4, 4][ks % 6]
            polled = set()
            lst = []
            for gi, (ks_l, sl_l) in enumerate(self.groups[l]):
                for ks, sl in zip(ks_l, sl_l):
                    lst.append((gi, ks, sl))
            gb0, gb1 = self.group_range(l - 1, 4)
            l0 = gb1 + 1
            exp = {1: l0 + self.T_U0, 2: l0 + self.T_U0B, 3: l0 + self.T_U1, 4: l0 + self.T_U2}
            items = []
            for gi, ks, sl in lst:
                es = max(slot_free(l, ks, sl) + 1, exp[cls(ks)], first_use(l, ks) - (self.XLEADG[gi] or self.XLEAD))
                items.append([es, cls(ks), first_use(l, ks), ks, sl])
            items.sort(key=lambda it: (it[0], it[2]))
            npaced = 0
            for es, c, gi, ks, sl in items:
                seq = []
                if c not in polled:
                    polled.add(c)
                    ld, chk = self.flag_poll(base + c)
                    ld.lines = 4; ld.dl = es - self.T_POLL
                    if self.PHARD: ld.hard = es - self.T_POLL
                    M2.append([es - self.T_POLL, 2, [ld], None])
                    seq += chk
                xl = self.xload(l, ks, sl)
                for i_ in xl:
                    i_.dl = first_use(l, ks) - (self.LATXB if ks in (18, 1, 7) else self.LATX)
                    if i_.kind == "L": i_.lines = 8 if ks < 24 else self.LX2
                    if i_.kind == "L" and self.XPACE and npaced < self.XPN:
                        i_.earliest = int(l0 + self.T_U0 + self.XPACE * npaced); i_.dl = max(i_.earliest + 1, first_use(l, ks) - self.LATX2); npaced += 1
                seq += xl
                M2.append([es, 3, seq, None])
        if NL > 1 and self.T_PWL:
            E.append([self.T_PAT, 0, self.pfw_pattern(vPFX, True), ("pat",)])
        a, b = self.bias_write()
        E.append([self.T_BW, 0, a, None]); E2.append([self.T_BW, 0, b, ("bw",)])
        for l in range(NL):
            g3 = 2
            for u in range(4):
                lastf = self.last_step(l, g3, u)
                a, b = self.bias_unit(l, u)
                E.append([lastf + 2, 1, a, ("bias", l, u)]); E2.append([lastf + 2 - self.E2LEAD, 1, b, None])
            if l == NL - 1:
                E.append([self.group_range(l, 4)[0] + 8, 0, self.out_patterns(), ("outpat",)])
            for u in ([0, 1, 3, 2] if (l == NL - 1 and self.TSPLIT) else range(4)):
                lastf = self.last_step(l, 4, u)
                a, b = self.epi_unit(l, u)
                if l == NL - 1 and u == 2 and self.TSPLIT:
                    for i_ in a[len(a) // 2:]: i_.earliest = lastf + 2
                    lastf = self.tsplit_step
                E.append([lastf + 2, 0, a, None]); E2.append([lastf + 2 - self.E2LEAD, 0, b, ("epi", l, u)])
        if self.ITLB:
            for k in range(2, 21):
                es = max(0, int((4096 * k - 4096 - self.ITLB) / 77))
                if es < self.steps[-1]["e"] * 0 + len(self.steps) - 20:
                    E2.append([es, 5, [Ins(f"s_buffer_load_dword s100, s[64:67], {4096 * k}", "S", lg=None, note="smem")], None])
        PFs = self.pf_streams()
        E.append([self.T_PW0[-1] + 2, 0, self.pfg_pat, None])
        M1.sort(key=lambda x: (x[0], x[1])); M2.sort(key=lambda x: (x[0], x[1])); E.sort(key=lambda x: (x[0], x[1]))
        flat = lambda Q: [(max(es, ins.earliest) if ins.earliest is not None else es, ins, tag, idx == len(seq) - 1) for es, _, seq, tag in Q for idx, ins in enumerate(seq)]
        M3.sort(key=lambda x: (x[0], x[1]))
        E2.sort(key=lambda x: (x[0], x[1]))
        self.PF = flat(PFs)
        self.M1, self.M2, self.E, self.M3, self.E2 = flat(M1), flat(M2), flat(E), flat(M3), flat(E2)

    def try_emit_from(self, Q, f, gap_kinds, allow, post_w):
        if not Q: return False
        es, ins, tag, lastflag = Q[0]
        if es > f: return False
        if isinstance(tag, tuple) and tag[0] == "bar" and tag[1] >= 0 and tag[1] > self.bar_passed: return False
        if ins.kind not in allow: return False
        if ins.note == 'm0' and self.m0_owner is not None: return False
        for a in ins.after:
            if id(a) not in self.issue_step: return False
        for t in ins.need_vm:
            if t not in self.vm_pos: return False
        for t in ins.need_lg:
            if t not in self.lg_pos: return False
        nv, nl = self.wait_for(ins.need_vm, ins.need_lg)
        needw = nv is not None or nl is not None
        kinds = gap_kinds + (["W"] if needw else []) + [ins.kind] + post_w
        if not self.fits(kinds):
            if needw and self.fits(gap_kinds + ["W"] + post_w) and self.wait_ok(ins, f):
                self.emit_wait(ins.need_vm, ins.need_lg); gap_kinds.append("W"); return True
            return False
        if needw and not self.wait_ok(ins, f): return False
        if not self.hazard_ok(ins): return False
        if needw:
            self.emit_wait(ins.need_vm, ins.need_lg); gap_kinds.append("W")
        self.emit(ins); gap_kinds.append(ins.kind)
        if ins.note == 'm0': self.m0_owner = id(Q)
        if ins.kind == 'A' and ins.note != "m0keep": self.m0_owner = None
        self.issue_step[id(ins)] = f
        if ins.vm is not None: self.vm_step[ins.vm] = f
        if ins.kind in ("A", "L", "T") and self.FCAP: self.fifo_push(ins, f)
        if ins.lg is not None: self.lg_step[ins.lg] = f
        Q.pop(0)
        if isinstance(tag, tuple) and tag[0] == "flag": self.flag_step[tag[1]] = f
        if isinstance(tag, tuple) and tag[0] == "pat":
            assert ("pf", "x", self.PX_L[-1]) in self.vm_pos, "prefetch pattern overwrites vPX before reload issued"
            self.pat_done = lastflag
        if ins.vm is not None and ins.vm[0] == "pf" and ins.vm[1] == "w" and ins.vm[2] > 0: assert self.pat_done and ("rl", 3, 1) in self.vm_pos
        if isinstance(tag, tuple) and tag[0] == "outpat":
            assert not any(i.kind == "L" and i.vm[0] == "fp" for _, i, _, _ in self.M2) and not any("v_cmp_gt_u32 vcc" in i.text for _, i, _, _ in self.M2) and not self.F
        if ins.vm is not None and ins.vm[0] == "xo" and ins.vm[2] == 0 and ins.vm[3] == 3 and ins.vm[1] < self.NL - 1:
            l_ = ins.vm[1]; val = 4 * l_ + 1
            self.F += [(f, i_, ("flag", val), False) for i_ in self.flag_set(val, [("xo", l_, 0, i) for i in range(4)])]
        if lastflag and isinstance(tag, tuple) and tag[0] == "epi":
            self.epi_done(tag, f)
        if lastflag and isinstance(tag, tuple) and tag[0] == "bias":
            self.bias_done[(tag[1], tag[2])] = f
        return True
    def fifo_lat(self, ins, f):
        t = ins.vm
        if t is None: return f + self.LD
        if t[0] == "pf":
            if t[1] in ("x", "g"): return f + self.LH
            if t[1] == "w" and t[2] == 0:
                gd = [self.fdone.get(("pf", "g", k)) for k in range(len(self.T_WGS or []))]
                if gd and all(x is not None and x <= f for x in gd): return f + self.LM
                return f + self.LH
            return f + self.LM
        if t[0] == "st":
            cov = [a for k_, a in enumerate(self.PX_L) if a <= t[1] <= a + (1 if a in self.PX1 else self.PX0W if (k_ == 0 and self.PX0W) else self.PXW) - 1 and ("pf", "x", a) in self.fdone]
            if not cov: return f + self.LH
            return max(f, min(self.fdone[("pf", "x", a)] for a in cov)) + self.LD
        if t[0] == "w" and self.entries[t[1]]["l"] == 0:
            j = self.entries[t[1]]["ks"][-1] // 4
            d = self.fdone.get(("pf", "w", 0, j))
            if d is None: return f + self.LH
            return max(f, d) + self.LD
        if t[0] in ("fb", "bl"): return f + self.LH
        return f + self.LD
    def fifo_push(self, ins, f):
        d = max(self.fifo_lat(ins, f), self.fifo[-1][1] if self.fifo else -1000)
        self.fifo.append((ins.lines, d))
        if ins.vm is not None: self.fdone[ins.vm] = d
    def fifo_ok(self, ins, f):
        occ = sum(n for n, d in self.fifo if d > f)
        return occ + ins.lines <= self.FCAP
    def wait_ok(self, ins, f):
        if self.FCAP and f < self.FEND:
            for t in ins.need_vm:
                if t[0] == "st" and self.vm_pos[t] >= self.vm_done and f < self.fdone.get(t, -1000): return False
        for t in ins.need_vm:
            if self.FCAP and f < self.FEND and t[0] == "st": continue
            if self.vm_pos[t] >= self.vm_done and f - self.vm_step.get(t, -1000) < (ins.minvm or self.MIN_VM): return False
        for t in ins.need_lg:
            if self.lg_pos[t] >= self.lg_done and f - self.lg_step.get(t, -1000) < self.MIN_LG: return False
        return True
    def hazard_ok(self, ins):
        if ins.kind in ("V", "D", "L"):
            regs = set(ins.rd) | set(ins.wr) if ins.kind == "V" else set(ins.wr)
            n = 0
            for prev in reversed(self.out):
                if n >= 9: break
                if prev.kind == "M" and (set(prev.wr) & regs): return False
                n += 1 if prev.kind != "SS" else 2
        if ins.kind == "V":
            n = 0
            for prev in reversed(self.out):
                if n >= 2: break
                if prev.kind == "T" and (set(prev.rd) & set(ins.wr)): return False
                n += 1
        if ins.kind == "V" and not getattr(self, "drain", False):
            f, g = self.cur
            nxt = []
            for d in (1, 2):
                gg = g + d; ff = f + gg // 4; gg %= 4
                if ff < self.nsteps: nxt.append(self.mfma(ff, gg))
            for m in nxt:
                if set(m.rd) & set(ins.wr): return False
        if ins.kind == "A":
            if self.out and self.out[-1].note == "m0": return False
        return True
    def epi_done(self, tag, f):
        _, l, u = tag
        self.epi_fin[(l, u)] = f
        if l == self.NL - 1: return
        n = 8 if u < 3 else 4
        tags = [("xo", l, u, i) for i in range(n)]
        val = None
        if u == 0: val = 4 * l + 2
        elif u == 1: val = 4 * l + 3
        elif u == 3: val = 4 * l + 4; tags = tags + [("xo", l, 2, i) for i in range(8)]
        if val is not None:
            self.F += [(f, ins, ("flag", val), False) for ins in self.flag_set(val, tags)]

    def schedule(self):
        self.issue_step = {}; self.vm_step = {}; self.lg_step = {}
        self.pending = []; self.epi_fin = {}; self.bias_done = {}
        self.bar_passed = -1
        self.F = []; self.pat_done = False; self.B = 0.0; self.Bhist = []
        self.fifo = []; self.fdone = {}
        self.m0_owner = None
        N = self.nsteps
        barat = {P: j for j, P in enumerate(self.bars)}
        need_at = {}
        for n, e in enumerate(self.entries): need_at.setdefault(e["jl"], []).append(("w", n))
        self.pro_issue()
        self.emit_wait(need_at.get(0, []), [])
        self.emit(Ins("s_barrier", "X")); self.bar_passed = 0
        self.pstamp()
        for f in range(self.LA):
            for r in self.tr_reads(f): self.emit(r); self.lg_step[r.lg] = -10
        if self.stamps: self.stamp()
        if self.SPAN: self.raw("s_memrealtime s[78:79]\ns_waitcnt lgkmcnt(0)\ns_mov_b32 s79, s78"); self.lg_done = len(self.lgq)
        self.epi_started = set()
        for f in range(N):
            st = self.steps[f]
            if f == 0:
                nv, nl = self.step_needs(0)
                self.emit_wait(nv, nl)
            if st["l"] > 0 and (st["l"], st["u"]) not in self.epi_started:
                self.epi_started.add((st["l"], st["u"]))
                assert (st["l"] - 1, st["u"]) in self.epi_fin, ("epilogue late", st["l"] - 1, st["u"], f, self.epi_fin)
            if self.PROL and f == 0: self.pstamp()
            if self.prof and not self.PROL and f >= self.PS and (f - self.PS) % self.PI == 0 and (f - self.PS) // self.PI <= 60:
                k = (f - self.PS) // self.PI
                if k > 0: self.emit(Ins(f"v_writelane_b32 v0, s86, {k}", "V"))
                self.emit(Ins(("s_memrealtime" if self.PRT else "s_memtime") + " s[86:87]", "S"))
                self.prof_k = k
            nL = 0; dynbar = False; defer_w = None
            for g in range(4):
                self.emit(self.mfma(f, g))
                self.cur = (f, g)
                kinds = []
                if g < 2 and f + self.LA < N:
                    r = self.tr_reads(f + self.LA)[g]
                    if g == 0:
                        pass
                    self.emit(r); self.lg_step[r.lg] = f; kinds.append("D")
                if g == 1 and f + 1 < N:
                    nv, nl = self.step_needs(f + 1)
                    if f in barat: nv = nv + need_at.get(barat[f], [])
                    for val, tags in self.pending:
                        if all(f - self.vm_step[t] >= self.T_ST for t in tags):
                            nv = nv + tags; dynbar = True
                    vready = bool(self.E) and self.E[0][1].kind == "V" and self.E[0][0] <= f
                    if self.WDEF and f >= self.WDEF0 and vready and not (f in barat or dynbar): defer_w = (nv, nl)
                    elif self.emit_wait(nv, nl): kinds.append("W")
                if defer_w is not None and g >= 2:
                    vmready = any(Q and Q[0][0] <= f and (Q[0][1].kind in ("A", "L", "T") or Q[0][1].note == "m0") for Q in (self.F, self.M1, self.M2, self.PF, self.M3, self.E2))
                    if g == 3 or not vmready:
                        if self.emit_wait(*defer_w): kinds.append("W")
                        defer_w = None
                if g == 2 and (f in barat or dynbar):
                    self.emit(Ins("s_barrier", "X")); kinds.append("X")
                    if f in barat: self.bar_passed = barat[f]
                    for val, tags in list(self.pending):
                        if all(self.vm_pos[t] < self.vm_done for t in tags):
                            self.pending.remove((val, tags))
                            seq = self.flag_set(val, tags)
                            self.F += [(f, ins, None, False) for ins in seq]
                            self.flag_step[val] = f
                self.B = max(0.0, self.B - 16 * (self.ETA if f > 215 else self.ETA0))
                progress = True
                allk = ("S", "SS", "V", "A", "L", "T", "D")
                order = [self.F, self.M1, self.M2, self.PF, self.M3, self.E2, self.E]
                while progress:
                    progress = False
                    cands = []
                    for qi, Q in enumerate(order):
                        if Q and (Q[0][1].kind in ("A", "L", "T") or Q[0][1].note == "m0") and Q[0][0] <= f:
                            ins = Q[0][1]
                            dl = ins.dl if ins.dl is not None else Q[0][0] + 10
                            cands.append((dl, qi, Q))
                    cands.sort(key=lambda c: (c[0], c[1]))
                    for dl, qi, Q in cands:
                        ins = Q[0][1]
                        if f in self.QW and Q is not self.F and not (getattr(ins, "hard", None) is not None and ins.hard <= f) and not (dl <= f - 6) and self.m0_owner != id(Q): continue
                        th = self.TH_URG if dl <= f + self.URG else self.TH
                        if ins.note == "m0": th += 16
                        hard = getattr(ins, "hard", None)
                        if self.BLK and ins.kind == "T" and ins.vm is not None and ins.vm[0] == "xo" and any(338 * l_ + self.BLK0 <= f < 338 * l_ + self.BLK0 + self.BLK for l_ in range(1, self.NL)): continue
                        if self.FCAP and f < self.FEND:
                            vi = ins
                            if vi.kind not in ("A", "L", "T"):
                                vi = next(i_[1] for i_ in Q if i_[1].kind in ("A", "L", "T"))
                            own = self.m0_owner == id(Q)
                            if not own and Q is self.M3 and vi.vm is not None and vi.vm[0] == "st":
                                if self.fifo_lat(vi, f) > f + self.LD: continue
                                nx = next((i_ for i_ in self.PF[:3] if i_[1].kind == "L"), None)
                                nx = next((i_ for i_ in self.PF[:12] if i_[1].kind == "L" and i_[1].vm[1] == "x"), None)
                                if nx is not None and nx[0] <= f and self.vm_pos.get(("st", vi.vm[1], 0)) is None: continue
                            if Q is self.PF and vi.vm is not None and vi.vm[1] == "x":
                                hd = next((i_[1] for i_ in self.M3[:4] if i_[1].kind == "A"), None)
                                if hd is not None and hd.vm[0] == "st" and ("st", hd.vm[1], 0) in self.vm_pos: continue
                            need = vi.lines * (2 if vi.note == "m0keep" else 1)
                            if Q is self.PF and self.PFREE and vi.vm[1] != "x" or (Q is self.PF and vi.vm[1] == "x" and vi.vm[2] in self.PX1): need = -1000
                            if not own and sum(n for n, d in self.fifo if d > f) + need > self.FCAP and not (hard is not None and hard <= f): continue
                            if not own and need > 0 and self.B > self.FTH and not (hard is not None and hard <= f): continue
                        elif self.B > th and not (hard is not None and hard <= f): continue
                        if Q is self.PF and g < 2: continue
                        if Q is self.M2 and ins.kind == "L" and ins.vm[0] == "x" and f > 215 and nL + ins.lines > self.MAXLN and dl > f + self.URG2: continue
                        if self.try_emit_from(Q, f, kinds, allk, []):
                            if ins.kind in ("A", "L", "T"): self.B += ins.lines * (2.5 if (self.FCAP and f < self.FEND and ins.vm is not None and ins.vm[0] == "pf") else self.CPL)
                            if Q is self.M2 and ins.kind == "L": nL += ins.lines
                            progress = True; break
                    if progress: continue
                    for Q in order:
                        if f in self.QW and Q is not self.F and not (Q and Q[0][1].kind in ("A", "L", "T") and self.m0_owner == id(Q)): continue
                        if Q and (Q[0][1].kind in ("A", "L", "T") or Q[0][1].note == "m0"): continue
                        if self.try_emit_from(Q, f, kinds, allk, []):
                            progress = True; break
                self.Bhist.append(self.B)
            if self.stamps and f + 1 < N and (self.steps[f + 1]["l"] != st["l"] or (self.steps[f + 1]["gi"] == 4 and st["gi"] == 3)):
                self.stamp()
        self.drain = True
        guard = 0
        assert not self.PF
        while self.M1 or self.M2 or self.E or self.M3 or self.F or self.E2:
            guard += 1
            assert guard < 100000
            done = False
            for Q in (self.F, self.E2, self.E, self.M2, self.M3, self.M1):
                if Q:
                    es, ins, tag, lastflag = Q[0]
                    if any(id(a) not in self.issue_step for a in ins.after): continue
                    if any(t not in self.lg_pos for t in ins.need_lg): continue
                    while not self.hazard_ok(ins): self.emit(Ins("s_nop 0", "S"))
                    self.emit_wait(ins.need_vm, ins.need_lg)
                    while not self.hazard_ok(ins): self.emit(Ins("s_nop 0", "S"))
                    self.emit(ins); Q.pop(0); self.issue_step[id(ins)] = N
                    if ins.vm is not None: self.vm_step[ins.vm] = N
                    if lastflag and isinstance(tag, tuple) and tag[0] == "epi": self.epi_done(tag, N)
                    done = True; break
            assert done
        if self.stamps: self.stamp()
        if self.prof:
            k = (self.prof_k + 1) if not self.PROL else 40
            self.raw(f"""v_writelane_b32 v0, s86, {k}
s_waitcnt vmcnt(0)
{"s_memrealtime" if self.PRT else "s_memtime"} s[86:87]
s_waitcnt lgkmcnt(0)
s_nop 4""")
            self.emit(Ins("v_writelane_b32 v0, s88, 0", "V"))
            if self.PROL:
                for kk in range(self.prol_k):
                    self.emit(Ins(f"v_writelane_b32 v0, s{[60, 62, 78, 80, 82, 100, 100, 100][kk]}, {kk + 1}", "V"))
            if k + 1 < 64: self.emit(Ins(f"v_writelane_b32 v0, s86, {k+1}", "V"))
            self.emit(Ins(f"v_writelane_b32 v0, s90, 63", "V"))
            self.raw(f"""s_lshl_b32 s3, s2, 2
s_add_u32 s3, s3, s{sWv}
s_lshl_b32 s3, s3, 8""")
            self.emit(Ins(f"v_lshrrev_b32 v2, 2, v{vL16}", "V"))
            self.raw("s_nop 4")
            self.emit(Ins(f"buffer_store_dword v0, v2, {srd(sWS_)}, s3 offen", "T"))
            if self.DBGT:
                self.raw(f"""s_load_dwordx2 s[4:5], s[0:1], 32
s_waitcnt lgkmcnt(0)
s_and_b32 s5, s5, 0xffff
s_mov_b32 s6, 64
s_mov_b32 s7, 0x20000""")
                self.emit(Ins("v_subrev_u32 v0, s88, v0", "V"))
                self.raw(f"s_cmp_eq_u32 s{sWv}, 0\ns_cbranch_scc0 Lnodbg")
                self.emit(Ins("buffer_atomic_add v0, v2, s[4:7], 0 offen\nLnodbg:", "T"))

    def step_needs(self, f):
        st = self.steps[f]
        nl = [("wf", f, 0), ("wf", f, 1)]
        nv = []
        for mt in range(4):
            a, b = self.xtags(st["l"], st["ks"], mt)
            for t in a:
                assert t in self.vm_pos, ("x load not issued before use", t, f)
            for t in b:
                assert t in self.lg_pos, ("stage read not issued before use", t, f)
            nv += a; nl += b
        return nv, nl

    def pstamp(self):
        if self.prof and self.PROL:
            k = self.prol_k; self.prol_k += 1
            r = [60, 62, 78, 80, 82, 100, 100, 100][k]
            self.emit(Ins(f"s_memtime s[{r}:{r+1}]", "S"))
    def pro_issue(self):
        def take(Q, pred):
            out = []
            while Q and pred(Q[0]): out.append(Q.pop(0))
            return out
        items = take(self.M1, lambda it: it[0] <= -50) + take(self.M3, lambda it: it[0] <= -50)
        seqs = []; cur = []
        for it in items:
            cur.append(it[1])
            if it[1].kind == "A": seqs.append(cur); cur = []
        wseq = [s for s in seqs if s[-1].vm[0] == "w"]; xseq = [s for s in seqs if s[-1].vm[0] == "st"]
        nW, nX = self.PRO_W, self.PRO_X
        assert 4 * nW >= 12
        rest_w = wseq[nW:]; rest_x = xseq[8 * nX:]
        self.M1[0:0] = [(-40, ins, ("bar", -1), False) for s in rest_w for ins in s]
        self.M3[0:0] = [(-40, ins, None, False) for s in rest_x for ins in s]
        def emit_seqs(L):
            for s in L:
                for k, ins in enumerate(s):
                    if ins.kind == "A" and self.out[-1].note == "m0": self.emit(Ins("s_nop 0", "S"))
                    self.emit(ins)
                    if ins.vm is not None: self.vm_step[ins.vm] = -100
                    if ins.vm is not None: self.fifo_push(ins, self.PRO_T)
        for tok in self.PORD:
            if tok.startswith("pf"):
                lim = int(tok[2:])
                while self.PF and self.PF[0][0] <= lim:
                    es, ins, tag, lf = self.PF.pop(0)
                    self.emit(ins); self.issue_step[id(ins)] = -100
                    if ins.vm is not None: self.vm_step[ins.vm] = -100
                    if ins.vm is not None: self.fifo_push(ins, self.PRO_T)
            elif tok[0] == "x": n = int(tok[1:]); assert n < nX; emit_seqs(xseq[8 * n:8 * n + 8])
            elif tok == "wA": emit_seqs(wseq[0:3])
            elif tok == "wB": emit_seqs(wseq[3:nW])
            elif tok == "p2": self.prologue2()
            elif tok == "fb":
                self.emit(Ins(f"buffer_load_dword v{vBase}, v{vPollOff}, {srd(sWS_)}, 0 offen sc1", "L", vm=("fb",)))
                self.vm_step[("fb",)] = -100
                self.bias_loads()
            elif tok == "st": self.pstamp()
            elif tok.startswith("wait"):
                n = int(tok[4:]); self.emit(Ins(f"s_waitcnt vmcnt({n})", "W")); self.vm_done = max(self.vm_done, len(self.vmq) - n)
            else: assert 0, tok
        self.pstamp()
        n = 0
        while self.M2 and n < 8:
            es, ins, tag, lf = self.M2[0]
            assert ins.kind == "D"
            self.emit_wait(ins.need_vm, ins.need_lg)
            self.emit(ins); self.M2.pop(0); n += 1
            if ins.lg is not None: self.lg_step[ins.lg] = -100
        self.pstamp()

    def pf_streams(self):
        PF = []
        def ld(pat, dst, base, soff, tag, pre=(), off=0):
            i = Ins(f"buffer_load_dword v{dst}, v{pat}, {srd(base)}, {soff} offen" + (f" offset:{off}" if off else ""), "L", rd=vr(pat), wr=vr(dst), vm=tag)
            i.lines = {"x": 16 * self.PXW, "w": 16, "g": 32}[tag[1]]
            return list(pre) + [i]
        t = 54
        for k, (a, es) in enumerate(zip(self.PX_L, self.T_PX)):
            PF.append([es, 0, ld(27 if (k == 0 and self.PX0W) else vPFX, vPoll, sX0_, f"s{t}", ("pf", "x", a), [S(f"s_add_u32 s{t}, s{sRow}, {128 * a}")]), None])
            if k == 0 and self.PX0W: PF[-1][2][-1].lines = 16 * self.PX0W; assert es <= -90
            if a in self.PX1:
                PF[-1] = [es, 0, ld(28, vPoll, sX0_, f"s{t}", ("pf", "x", a), [S(f"s_add_u32 s{t}, s{sRow}, {128 * a}")]), None]
                PF[-1][2][-1].lines = 16; assert es < self.T_PAT - 5
        if self.CPF:
            for k, es in enumerate(self.T_CPF):
                i = Ins(f"buffer_load_dword v{vPoll if es < 200 else vPXE}, off, s[64:67], s{t}", "L", vm=("pf", "c", k)); i.lines = 1
                PF.append([es, 2, [S(f"s_add_u32 s{t}, s72, {self.CPS * k}"), i], None])
            if self.T_CPG is not None:
                i = Ins(f"buffer_load_dword v{vPoll}, off, s[64:67], s{t}", "L", vm=("pf", "cg", 0)); i.lines = 1
                PF.append([self.T_CPG, 3, [S(f"s_lshl_b32 s{t}, s2, 2"), S(f"s_add_u32 s{t}, s{t}, s{sWv}"), S(f"s_lshl_b32 s{t}, s{t}, 7"), i], None])
        for j, es in enumerate(self.T_PW0):
            PF.append([es, 1, ld(vPFW, vPoll, sW_, f"s{t}", ("pf", "w", 0, j), [S(f"s_mov_b32 s{t}, {4 * j * KSB}")]), None])
        lastw0 = PF[-1][2][-1]
        t0 = vT[0]
        pat = [V(f"v_lshlrev_b32 v{vPFG}, 3, v{vL16}", rd=vr(vL16), wr=vr(vPFG)),
               V(f"v_lshrrev_b32 v{t0}, 9, v{vL16}", rd=vr(vL16), wr=vr(t0)),
               V(f"v_lshlrev_b32 v{t0}, 30, v{t0}", rd=vr(t0), wr=vr(t0)),
               V(f"v_add_u32 v{vPFG}, v{vPFG}, v{t0}", rd=vr(t0) + vr(vPFG), wr=vr(vPFG))]
        pat[0].after = [lastw0]
        if self.NOG:
            self.pfg_pat = []; g = None
        elif self.T_WGS:
            self.pfg_pat = []
            for k, es in enumerate(self.T_WGS):
                gi_ = ld(29, vPoll, sW_, f"s{t}", ("pf", "g", k), [S(f"s_add_u32 s{t}, s91, {1024 * k}")])
                gi_[-1].lines = 8
                PF.append([es, 1, gi_, None])
            g = None
        elif self.T_WG < 190:
            self.pfg_pat = []
            g = ld(29, vPoll, sW_, "s91", ("pf", "g"))
        else:
            self.pfg_pat = pat
            g = ld(vPFG, vPoll, sW_, "s91", ("pf", "g"))
            g[-1].after = [pat[-1]]
        if g is not None: PF.append([self.T_WG, 0, g, None])
        if self.NL > 1:
            pass
            for l in range(1, self.NL):
                l0 = self.group_range(l - 1, 4)[1] + 1
                for j, dt in enumerate(self.T_PWL):
                    PF.append([l0 + dt, 1, ld(vPFX, vPXE, sW_, f"s{t}", ("pf", "w", l, j), [S(f"s_mov_b32 s{t}, {(0 if self.NOW else l) * LSTRIDE + j * KSB}")]), None])
        if self.FB_T is not None:
            i = Ins(f"buffer_load_dword v{vBase}, v{vPollOff}, {srd(sWS_)}, 0 offen sc1", "L", vm=("fb",)); i.lines = 4
            seq = [i]
            for l in range(3):
                b = Ins(f"buffer_load_ushort v{25+l}, v23, {srd(sB_)}, 0 offen offset:{l*ROWB}", "L", vm=("bl", l)); b.lines = 4; seq.append(b)
            PF.append([self.FB_T, 2, seq, None])
        PF.sort(key=lambda x: (x[0], x[1]))
        return PF
    def pfw_pattern(self, dst, perm):
        t0, t1 = vT
        seq = [V(f"v_lshrrev_b32 v{t0}, 6, v{vL16}", rd=vr(vL16), wr=vr(t0)),
               V(f"v_mul_u32_u24 v{dst}, {(6 if perm else 1) * KSB}, v{t0}", rd=vr(t0), wr=vr(dst)),
               V(f"v_lshrrev_b32 v{t0}, 2, v{t0}", rd=vr(t0), wr=vr(t0)),
               V(f"v_min_u32 v{t0}, 1, v{t0}", rd=vr(t0), wr=vr(t0)),
               V(f"v_lshlrev_b32 v{t0}, 30, v{t0}", rd=vr(t0), wr=vr(t0)),
               V(f"v_and_b32 v{dst}, 0x3fffffff, v{dst}", rd=vr(dst), wr=vr(dst)),
               V(f"v_add_u32 v{dst}, v{dst}, v{t0}", rd=vr(t0) + vr(dst), wr=vr(dst)),
               V(f"v_lshrrev_b32 v{t0}, 4, v{vL16}", rd=vr(vL16), wr=vr(t0)),
               V(f"v_and_b32 v{t0}, 3, v{t0}", rd=vr(t0), wr=vr(t0)),
               V(f"v_lshlrev_b32 v{t1}, 7, v{t0}", rd=vr(t0), wr=vr(t1)),
               V(f"v_add_u32 v{t1}, s{sWq}, v{t1}", rd=vr(t1), wr=vr(t1)),
               V(f"v_cmp_eq_u32 vcc, 3, v{t0}", rd=vr(t0)),
               V(f"v_mov_b32 v{t0}, 0x600", wr=vr(t0)),
               V(f"v_cndmask_b32 v{t1}, v{t1}, v{t0}, vcc", rd=vr(t0) + vr(t1), wr=vr(t1)),
               V(f"v_add_u32 v{dst}, v{dst}, v{t1}", rd=vr(dst) + vr(t1), wr=vr(dst)),
               V(f"v_add_u32 v{dst}, s55, v{dst}", rd=vr(dst), wr=vr(dst))]
        return seq

    def stamp(self):
        k = self.nstamp; self.nstamp += 1
        if k < 8:
            self.emit(Ins(f"s_memtime s[{86 + 2*k}:{87 + 2*k}]", "S"))

    def check(self):
        out = self.out
        errs = 0
        for i, ins in enumerate(out):
            if ins.kind == "M":
                n = 0
                for prev in reversed(out[max(0, i - 4):i]):
                    if n >= 2: break
                    if prev.kind == "V" and set(prev.wr) & set(ins.rd):
                        print("HAZARD V->M", i, prev.text, "|", ins.text, file=sys.stderr); errs += 1
                    n += 1
            if ins.kind == "V":
                n = 0
                for prev in reversed(out[max(0, i - 10):i]):
                    if n >= 8: break
                    if prev.kind == "M" and set(prev.wr) & (set(ins.rd) | set(ins.wr)):
                        print("HAZARD M->V", i, prev.text, "|", ins.text, file=sys.stderr); errs += 1
                    n += 1
        return errs

    def text(self):
        NL = self.NL
        L = []
        L.append("""; Kernarg layout for this problem (48 bytes, ptrs only, base s[0:1]):
;   offset   0: d_in[0] x0  shape=(16384, 832) dtype=bfloat16 strides=(1664, 2) contiguous=True
;   offset   8: d_in[1] ws  shape=(3, 832, 832) dtype=bfloat16 strides=(1384448, 1664, 2) contiguous=True
;   offset  16: d_in[2] bs  shape=(3, 832) dtype=bfloat16 strides=(1664, 2) contiguous=True
;   offset  24: d_out     shape=(16384, 832) dtype=bfloat16 (2 bytes/elem)
;   offset  32: d_debug   256 bytes
;   offset  40: d_ws      268435456 bytes workspace
; cluster of 4 workgroups = 256 rows; each workgroup owns 208 output features; layers exchange x through d_ws.""")
        L.append("; @launch grid=(256,1,1) block=(256,1,1) lds=163840")
        L.append('.amdgcn_target "amdgcn-amd-amdhsa--gfx950"')
        L.append(".text")
        L.append(f".globl {KNAME}\n.p2align {self.ALIGN}\n.type {KNAME},@function\n{KNAME}:")
        for ins in self.out: L.append("  " + ins.text)
        if self.stamps:
            L.append("  s_memtime s[84:85]\n  s_memrealtime s[78:79]\n  s_waitcnt lgkmcnt(0)")
            L.append(f"  s_lshl_b32 s3, s2, 7\n  v_mov_b32 v2, s3\n  v_cmp_eq_u32 vcc, 0, v{vL16}\n  s_cmp_eq_u32 s{sWv}, 0\n  s_cbranch_scc0 Lnost\n  s_and_saveexec_b64 s[4:5], vcc")
            regs = [80, 82, 78, 84] + [86 + 2 * k for k in range(min(self.nstamp, 8))]
            for i, s in enumerate(regs):
                L.append(f"  v_mov_b32 v6, s{s}\n  v_mov_b32 v7, s{s+1}\n  buffer_store_dwordx2 v[6:7], v2, {srd(sWS_)}, 0 offen offset:{8*i}\n  s_nop 1")
            L.append("Lnost:")
        if self.SPAN:
            L.append(f"""  s_waitcnt vmcnt(0)
  s_memrealtime s[86:87]
  s_load_dwordx2 s[4:5], s[0:1], 32
  s_waitcnt lgkmcnt(0)
  s_and_b32 s5, s5, 0xffff
  s_mov_b32 s6, 256
  s_mov_b32 s7, 0x20000
  s_not_b32 s3, s88
  s_not_b32 s87, s86
  v_mov_b32 v2, s3
  v_writelane_b32 v2, s86, 1
  v_writelane_b32 v2, s88, 2
  v_writelane_b32 v2, s87, 3
  v_writelane_b32 v2, s79, 4
  s_not_b32 s79, s79
  v_writelane_b32 v2, s79, 5
  v_lshrrev_b32 v3, 2, v{vL16}
  v_cmp_gt_u32 vcc, 24, v3
  v_mov_b32 v4, 0x7fffff00
  v_cndmask_b32 v3, v4, v3, vcc
  s_cmp_eq_u32 s{sWv}, 0
  s_cbranch_scc0 Lnospan
  buffer_atomic_umax v2, v3, s[4:7], 0 offen""")
            L.append("Lnospan:")
        if self.ENDW: L.append("  s_waitcnt vmcnt(0)")
        L.append("Lend:\n  s_endpgm")
        L += self.slow
        L.append("Lcode_end:")

        L.append('.section .rodata,"a"\n.p2align 6')
        L.append(f".amdhsa_kernel {KNAME}")
        L.append("  .amdhsa_next_free_vgpr 512\n  .amdhsa_next_free_sgpr 102\n  .amdhsa_accum_offset 256\n  .amdhsa_group_segment_fixed_size 0\n  .amdhsa_kernarg_size 48\n  .amdhsa_user_sgpr_count 2\n  .amdhsa_user_sgpr_kernarg_segment_ptr 1\n  .amdhsa_system_sgpr_workgroup_id_x 1\n.end_amdhsa_kernel")
        if self.PADK: L.append(f".space {self.PADK * 1024}")
        return "\n".join(L) + "\n"

    LA = 3
    WDEF = 1
    FCAP = 0; FEND = 200; FTH = 150; LH = 28; LM = 12; LD = 5; PRO_T = -30; PXW = 2; STDL = 14; WDEF0 = 0; MTM = 0; NOG = 0; QW = (); ALIGN = 8; PADK = 0; LX2 = 8; MAXLN = 8; URG2 = -100; LATXB = 34; G2S = [7, 8, 9]; BLK = 0; BLK0 = -60; ENDW = 0; PHARD = 0; IVE = 12; IVT = 80; IV0 = 12; IVS = 0; FB_T = None; AGE1 = 16; PX0W = 0; PX1 = (); PFREE = 0
    ITLB = 0
    CPS = 8192; T_CPG = -94; T_WGS = [-59, -58, -57, -56]
    TSPLIT = 9
    DBGT = 0
    SPAN = 0
    XPACE = 1.5; XPN = 12; LATX2 = 30; T_U0B = -14
    PK = 0; XLEADG = [36, 40, 30, 36, 50]
    EARLYPF = 1
    PORD = ["pf-90", "x0", "wA", "p2", "wB", "x1", "fb", "pf-50"]
    PRT = 0
    CPF = 1; T_CPF = [-95, 30, 128, 230, 330, 420, 530, 635, 740, 850]
    XMODE = 0
    XB0 = XBASE
    ETA0 = 1.3
    RSL = 2
    ETA = 1.0; CPL = 9; TH = 120; TH_URG = 280; URG = 2; LATW = 16; LATX = 20; T_STG0 = 12; T_STGD = 15; PSP = 1.6; T_RL = [185, 228, 262, 214]
    PROL = 0; T_BW = 20; PRO_W = 6; PRO_X = 2; PX_L = [2, 4, 6, 8, 10, 12]; T_PX = [7, 30, 56, 82, 108, 134]; T_PW0 = [-96, 9]; T_WG = 226; T_PWL = []; T_PAT = 200; AGE2 = 12; T_PWA = -100; T_PWB = 70; AGE = 16
    NOST = 0; NOLD = 0; NOW = 0
    LDP = 2; STP = 2; OUTP = 4
    IV = 12
    PS = 0; PI = 17
    T_U0 = -36; T_U1 = 50; T_U2 = 120; XLEAD = 26; SPIN = 0x8000; E2LEAD = 2; T_POLL = 16; T_ST = 18; MAXL = 2
    MIN_VM = 10; MIN_LG = 1

    def run(self):
        self.flag_step = {}
        self.plan()
        self.prologue()
        self.build_streams()
        self.schedule()
        errs = self.check()
        return errs

if __name__ == "__main__":
    ap = argparse.ArgumentParser()
    ap.add_argument("-o", default="k.s")
    ap.add_argument("--nl", type=int, default=3)
    ap.add_argument("--interval", type=int, default=12)
    ap.add_argument("--stamps", action="store_true")
    ap.add_argument("--prof", action="store_true")
    ap.add_argument("--set", action="append", default=[])
    a = ap.parse_args()
    for kv in a.set:
        k, v = kv.split("="); setattr(Gen, k, eval(v))
    g = Gen(NL=a.nl, interval=Gen.IV, stamps=a.stamps, prof=a.prof)
    errs = g.run()
    open(a.o, "w").write(g.text())
    from collections import Counter
    print("instrs", len(g.out), Counter(i.kind for i in g.out), "hazard errs", errs, "minlead(steps)", g.minlead, file=sys.stderr)
    print("xload steps", {k: v for k, v in g.vm_step.items() if k[0] in ("x", "fp", "fs") and (k[0] != "x" or k[3] == 3)}, file=sys.stderr)
    import statistics
    print("B mean", statistics.mean(g.Bhist), "max", max(g.Bhist), "frac>150", sum(b > 150 for b in g.Bhist) / len(g.Bhist), file=sys.stderr)
    leads = [g.bars[e["jl"]] - g.vm_step[("w", n)] for n, e in enumerate(g.entries) if g.vm_step[("w", n)] > -50]
    print("ring leads min/mean", min(leads), statistics.mean(leads), "hist", sorted(leads)[:20], file=sys.stderr)
    print("stage", {k: v for k, v in g.vm_step.items() if k[0] in ("st", "rl") and k[2] in (0, 7)}, file=sys.stderr)
    print("pf", {k: v for k, v in g.vm_step.items() if k[0] == "pf"}, file=sys.stderr)
    print("epi_fin", g.epi_fin, "bias", g.bias_done, "flags", g.flag_step, "nsteps", g.nsteps, file=sys.stderr)
```
